```python
import torch

def _softmax(x, axis=-1):
    return torch.softmax(x, dim=axis)
def _gelu(x):
    return torch.nn.functional.gelu(x, approximate="tanh")
def _silu(x):
    return torch.nn.functional.silu(x)
def _sigmoid(x):
    return torch.sigmoid(x)
def _layernorm(x, axis=-1, eps=1e-5):
    m = x.mean(dim=axis, keepdim=True)
    v = x.var(dim=axis, keepdim=True, unbiased=False)
    return (x - m) / torch.sqrt(v + eps)
def _scatter_add(tgt, idx, src, axis=0):
    return tgt.clone().index_add_(axis, idx, src)
def _segment_sum(src, seg, n):
    out = torch.zeros((n,) + src.shape[1:], dtype=src.dtype)
    return out.index_add_(0, seg, src)
def _pad(x, pw):
    flat = tuple(v for pair in reversed(pw) for v in pair)
    return torch.nn.functional.pad(x, flat)

kernel_name = 'recurrent_scan__linear_kernel_hedgehog__dense_activation_mish__prompt'

def setup_inputs():

    _w = (lambda a: (lambda t: t.to(torch.bfloat16) if t.is_floating_point() else t)(torch.as_tensor(a)))
    def _A_setup():
        B, S, D, H = 1, 2048, 640, 32
        Dh = D // H
        return {
            "x": _w((lambda *s: torch.randn(*s, dtype=torch.bfloat16) * 0.05)(B, S, D)),
            "wqkv": _w((lambda *s: torch.randn(*s, dtype=torch.bfloat16) * 0.4)(D, 3 * D)),
            "w_phi": _w((lambda *s: torch.randn(*s, dtype=torch.bfloat16) * 0.4)(H, Dh, Dh) * (Dh ** -0.5)),
            "wo": _w((lambda *s: torch.randn(*s, dtype=torch.bfloat16) * 0.2)(D, D)),
        }
    _A_in = _A_setup()

    def _B_setup():
        B, S, D, F = 1, 2048, 640, 1728
        return {
            "x": _w((lambda *s: torch.randn(*s, dtype=torch.bfloat16) * 0.05)(B, S, D)),
            "w1": _w((lambda *s: torch.randn(*s, dtype=torch.bfloat16) * 0.4)(D, F) * (D ** -0.5)),
            "b1": _w((lambda *s: torch.randn(*s, dtype=torch.bfloat16) * 0.4)(F)),
            "w2": _w((lambda *s: torch.randn(*s, dtype=torch.bfloat16) * 0.1)(F, D) * (F ** -0.5)),
        }
    _B_in = _B_setup()

    return {
        "A_x": _A_in["x"],
        "A_wqkv": _A_in["wqkv"],
        "A_w_phi": _A_in["w_phi"],
        "A_wo": _A_in["wo"],
        "B_x": _B_in["x"],
        "B_w1": _B_in["w1"],
        "B_b1": _B_in["b1"],
        "B_w2": _B_in["w2"],
    }

def reference(A_x, A_wqkv, A_w_phi, A_wo, B_x, B_w1, B_b1, B_w2):
    def _A_ref(x, wqkv, w_phi, wo):
        B, S, D = x.shape
        H = 32; Dh = D // H
        qkv = (lambda x, *d: x.permute(*d))((x @ wqkv).reshape(B, S, 3, H, Dh), 2, 0, 3, 1, 4)
        q, k, v = qkv[0], qkv[1], qkv[2]
        pq = torch.einsum("bhsd,hdf->bhsf", q, w_phi)
        pk = torch.einsum("bhsd,hdf->bhsf", k, w_phi)
        phi_q = torch.concatenate([_softmax(pq, axis=-1), _softmax(-pq, axis=-1)], axis=-1)
        phi_k = torch.concatenate([_softmax(pk, axis=-1), _softmax(-pk, axis=-1)], axis=-1)
        kv = torch.einsum("bhsf,bhsd->bhfd", phi_k, v)
        z  = torch.einsum("bhsf->bhf", phi_k)
        num = torch.einsum("bhqf,bhfd->bhqd", phi_q, kv)
        den = torch.einsum("bhqf,bhf->bhq", phi_q, z)[..., None] + 1e-6
        o = num / den
        return (lambda x, *d: x.permute(*d))(o, 0, 2, 1, 3).reshape(B, S, D) @ wo

    def _B_ref(x, w1, b1, w2):
        h = torch.einsum("bsd,df->bsf", x, w1) + b1
        sp = torch.log1p(torch.exp(-torch.abs(h))) + torch.where(h > 0, h, torch.zeros_like(h))
        act = h * torch.tanh(sp)
        return torch.einsum("bsf,fd->bsd", act, w2)

    x = A_x
    xn = _layernorm(x, axis=-1)
    s = _A_ref(xn, A_wqkv, A_w_phi, A_wo)
    g = _silu(_B_ref(xn, B_w1, B_b1, B_w2))
    return x + s * g
```

```python
import re

TRANS = ('v_exp_f32', 'v_log_f32', 'v_rcp_f32', 'v_rsq_f32', 'v_sqrt_f32', 'v_sin_f32', 'v_cos_f32')
REG_RE = re.compile(r'^(-?)(\|?)(abs\()?([vas])(\d+|\[(\d+):(\d+)\])\)?(\|?)$')


def regs_of(op):
    op = op.strip()
    if op in ('vcc',):
        return [('s', 106), ('s', 107)]
    if op in ('exec',):
        return [('s', 126), ('s', 127)]
    if op == 'm0':
        return [('s', 124)]
    if op == 'vcc_lo':
        return [('s', 106)]
    if op == 'exec_lo':
        return [('s', 126)]
    if op == 'exec_hi':
        return [('s', 127)]
    m = REG_RE.match(op)
    if not m:
        return []
    f = m.group(4)
    if m.group(6) is not None:
        return [(f, i) for i in range(int(m.group(6)), int(m.group(7)) + 1)]
    return [(f, int(m.group(5)))]


def split_ops(s):
    ops, depth, cur = [], 0, ''
    for ch in s:
        if ch in '[(':
            depth += 1
        if ch in '])':
            depth -= 1
        if ch == ',' and depth == 0:
            ops.append(cur.strip())
            cur = ''
        else:
            cur += ch
    if cur.strip():
        ops.append(cur.strip())
    res = []
    for o in ops:
        res.append(o.split(' ')[0])
    return res


class Ins:
    __slots__ = ('slot', 'kind', 'mn', 'reads', 'writes', 'passes', 'srcc', 'srcab', 'wide')


class Asm:
    def __init__(self):
        self.out = []
        self.hist = []
        self.slot = 0
        self.vmq = []
        self.lgq = []
        self.nins = 0
        self.maxv = -1
        self.maxa = -1
        self.maxs = -1

    def snap(self):
        return (list(self.hist), self.slot, list(self.vmq), list(self.lgq))

    def restore(self, s):
        self.hist, self.slot, self.vmq, self.lgq = list(s[0]), s[1], list(s[2]), list(s[3])

    def raw(self, text):
        self.out.append(text)

    def label(self, name):
        self.out.append(name + ':')

    def comment(self, t):
        self.out.append('  ; ' + t)

    def flush_hazards(self):
        self.nop(12)

    def nop(self, n):
        while n > 0:
            k = min(n, 16)
            self.out.append('  s_nop %d' % (k - 1))
            self.slot += k
            self.nins += 1
            n -= k

    def classify(self, text):
        t = text.strip()
        sp = t.find(' ')
        mn = t if sp < 0 else t[:sp]
        rest = '' if sp < 0 else t[sp + 1:]
        ops = split_ops(rest)
        i = Ins()
        i.mn = mn
        i.reads, i.writes, i.passes, i.srcc, i.srcab, i.wide = [], [], 0, [], [], False
        R = regs_of
        if mn.startswith('v_mfma'):
            i.kind = 'mfma'
            i.passes = 8 if '32x32' in mn else 4
            i.writes = R(ops[0])
            i.srcab = R(ops[1]) + R(ops[2])
            i.srcc = R(ops[3])
            i.reads = i.srcab + i.srcc
        elif mn.startswith('v_'):
            i.kind = 'valu'
            if mn in TRANS:
                i.kind = 'trans'
            if mn.startswith('v_dot'):
                i.kind = 'dl'
            if mn.startswith('v_permlane'):
                i.kind = 'perm'
                i.writes = R(ops[0]) + R(ops[1])
                i.reads = R(ops[0]) + R(ops[1])
            elif mn.startswith('v_readfirstlane') or mn.startswith('v_readlane'):
                i.kind = 'rdl'
                i.writes = R(ops[0])
                for o in ops[1:]:
                    i.reads += R(o)
            elif mn.startswith('v_add_co') or mn.startswith('v_sub_co') or mn.startswith('v_addc_co'):
                i.writes = R(ops[0]) + R(ops[1])
                for o in ops[2:]:
                    i.reads += R(o)
            else:
                i.writes = R(ops[0])
                for o in ops[1:]:
                    i.reads += R(o)
                if mn.startswith('v_fmac') or mn.startswith('v_dot2c') or mn.startswith('v_pk_fmac'):
                    i.reads += R(ops[0])
                if mn.startswith('v_cndmask') and len(ops) == 3:
                    i.reads += R('vcc')
        elif mn.startswith('ds_'):
            i.kind = 'lds'
            if mn.startswith('ds_read') or mn.startswith('ds_bpermute') or mn.startswith('ds_swizzle'):
                i.writes = R(ops[0])
                for o in ops[1:]:
                    i.reads += R(o)
            else:
                for o in ops:
                    i.reads += R(o)
        elif mn.startswith('buffer_') or mn.startswith('global_'):
            i.kind = 'vmem'
            islds = re.search(r'\blds\b', rest) is not None
            if mn.startswith('buffer_load') and not islds:
                i.writes = R(ops[0])
                for o in ops[1:]:
                    i.reads += R(o)
            elif islds:
                i.kind = 'dma'
                for o in ops:
                    i.reads += R(o)
                i.reads += R('m0')
            else:
                for o in ops:
                    i.reads += R(o)
                if mn.startswith('buffer_atomic') and re.search(r'\bsc0\b', rest):
                    i.writes = R(ops[0])
                if mn.startswith('buffer_store') and ('x4' in mn or 'x3' in mn):
                    i.wide = True
                    i.srcab = R(ops[0])
        elif mn.startswith('s_'):
            i.kind = 'salu'
            if mn in ('s_waitcnt', 's_barrier', 's_nop', 's_branch', 's_endpgm', 's_sleep', 's_setprio') or mn.startswith('s_cbranch') or mn.startswith('s_cmp'):
                for o in ops:
                    i.reads += R(o)
            elif ops:
                i.writes = R(ops[0])
                for o in ops[1:]:
                    i.reads += R(o)
        else:
            raise ValueError('unknown instr ' + text)
        for f, n in i.reads + i.writes:
            if f == 'v':
                self.maxv = max(self.maxv, n)
            elif f == 'a':
                self.maxa = max(self.maxa, n)
            elif f == 's' and n < 102:
                self.maxs = max(self.maxs, n)
        return i

    def need(self, p, c):
        VAL = ('valu', 'trans', 'dl', 'perm', 'rdl')
        n = 0
        pw = set(p.writes)
        cr, cw = set(c.reads), set(c.writes)
        if p.kind in VAL:
            vw = {r for r in pw if r[0] in 'va'}
            sw = {r for r in pw if r[0] == 's'}
            if c.kind == 'mfma' and vw & cr:
                n = max(n, 3 if p.kind == 'dl' else 2)
            if p.kind == 'trans' and c.kind in VAL and c.kind != 'trans' and vw & cr:
                n = max(n, 1)
            if c.kind == 'rdl' and vw & cr:
                n = max(n, 1)
            if c.kind == 'perm' and vw & cr:
                n = max(n, 2)
            if p.kind == 'dl' and vw & (cr | cw):
                if c.mn == p.mn:
                    n = max(n, 0)
                else:
                    n = max(n, 3)
            if sw:
                if c.kind in VAL and sw & cr:
                    n = max(n, 4 if c.kind == 'rdl' else 2)
                if c.kind in ('vmem', 'dma') and sw & cr:
                    n = max(n, 5)
                if c.kind == 'salu' and sw & cr:
                    n = max(n, 1)
        if p.kind == 'mfma':
            big = {4: 8, 8: 12}[p.passes]
            ovl = {4: 6, 8: 10}[p.passes]
            if c.kind == 'mfma':
                if pw & set(c.srcab):
                    n = max(n, big)
                if pw & set(c.srcc):
                    if not (c.srcc == p.writes and c.passes == p.passes):
                        n = max(n, ovl)
                if pw & cw and not (c.srcc == p.writes and c.passes == p.passes):
                    n = max(n, ovl)
            elif c.kind in VAL or c.kind in ('vmem', 'lds', 'dma'):
                if pw & (cr | cw):
                    n = max(n, big)
            if c.kind in VAL and set(p.srcc) & cw:
                n = max(n, {4: 3, 8: 7}[p.passes])
        if p.kind == 'vmem' and p.wide and c.kind in VAL + ('lds', 'vmem') and set(p.srcab) & cw:
            n = max(n, 2)
        if p.kind == 'salu' and ('s', 124) in pw and c.kind == 'dma':
            n = max(n, 1)
        return n

    def I(self, text, vm=None, lg=None):
        ins = self.classify(text)
        pad = 0
        for p in self.hist:
            nd = self.need(p, ins)
            if nd:
                dist = self.slot - p.slot - 1
                pad = max(pad, nd - dist)
        if pad > 0:
            self.nop(pad)
        ins.slot = self.slot
        self.slot += 1
        self.hist.append(ins)
        while self.hist and self.slot - self.hist[0].slot > 24:
            self.hist.pop(0)
        self.out.append('  ' + text)
        self.nins += 1
        if ins.kind in ('vmem', 'dma'):
            self.vmq.append(vm)
        if ins.kind == 'lds':
            self.lgq.append(lg)
        return ins

    def _count_after(self, q, tags):
        last = -1
        for idx, t in enumerate(q):
            if t in tags:
                last = idx
        if last < 0:
            return None
        return len(q) - 1 - last

    def wait(self, vm=None, lg=None):
        parts = []
        if vm is not None:
            tags = vm if isinstance(vm, (list, set)) else [vm]
            n = self._count_after(self.vmq, tags)
            if n is not None:
                n2 = min(n, 63)
                parts.append('vmcnt(%d)' % n2)
                self.vmq = self.vmq[len(self.vmq) - n2:] if n2 else []
        if lg is not None:
            tags = lg if isinstance(lg, (list, set)) else [lg]
            n = self._count_after(self.lgq, tags)
            if n is not None:
                n2 = min(n, 15)
                parts.append('lgkmcnt(%d)' % n2)
                self.lgq = self.lgq[len(self.lgq) - n2:] if n2 else []
        if parts:
            self.I('s_waitcnt ' + ' '.join(parts))

    def wait_all(self, vm=False, lg=False):
        parts = []
        if vm:
            parts.append('vmcnt(0)')
            self.vmq = []
        if lg:
            parts.append('lgkmcnt(0)')
            self.lgq = []
        self.I('s_waitcnt ' + ' '.join(parts))

    def text(self):
        return '\n'.join(self.out) + '\n'


def v(n, cnt=1):
    return 'v%d' % n if cnt == 1 else 'v[%d:%d]' % (n, n + cnt - 1)


def a(n, cnt=1):
    return 'a%d' % n if cnt == 1 else 'a[%d:%d]' % (n, n + cnt - 1)


def s(n, cnt=1):
    return 's%d' % n if cnt == 1 else 's[%d:%d]' % (n, n + cnt - 1)
```

```python
from asmlib import *

ACT_OFF = 0
PHIQ_OFF = 128 * 54 * 1024
KVP_OFF = PHIQ_OFF + 128 * 32 * 1280
KVT_OFF = KVP_OFF + 16 * 8 * 24 * 1024
WS_END = KVT_OFF + 32 * 1920

LOG2E = 0x3fb8aa3b

SRD_X, SRD_W, SRD_WS, SRD_AUX, SRD_DBG = 20, 24, 28, 32, 36
S_TB, S_FB, S_W, S_TG, S_GRP, S_M0B, S_TMP, S_T2, S_LOG2E = 40, 41, 42, 43, 44, 45, 46, 47, 48
S_MASK = 52
S_T3, S_T4 = 54, 55
V_LANE, V_T, V_G = 1, 2, 3
V_DM0, V_DM1, V_RB0, V_RB1, V_XO, V_ONES, V_SUM, V_SQ, V_CS = 4, 5, 6, 7, 8, 10, 11, 12, 13
V_DQ0, V_DQ1 = 20, 21
V_TMP0, V_TMP1 = 22, 23
WIN, ACC, XF = 24, 40, 96
D_RING = 8


def srd(A, d, lo, size):
    A.I('s_mov_b32 %s, %s' % (s(d), s(lo)))
    A.I('s_and_b32 %s, %s, 0xffff' % (s(d + 1), s(lo + 1)))
    A.I('s_mov_b32 %s, 0x%x' % (s(d + 2), size))
    A.I('s_mov_b32 %s, 0x20000' % s(d + 3))


def swap23(A, dst, src, t0):
    A.I('v_and_b32 %s, 0x13, %s' % (v(dst), v(src)))
    A.I('v_and_b32 %s, 4, %s' % (v(t0), v(src)))
    A.I('v_lshl_or_b32 %s, %s, 1, %s' % (v(dst), v(t0), v(dst)))
    A.I('v_and_b32 %s, 8, %s' % (v(t0), v(src)))
    A.I('v_lshrrev_b32 %s, 1, %s' % (v(t0), v(t0)))
    A.I('v_or_b32 %s, %s, %s' % (v(dst), v(dst), v(t0)))


def divmod_const(A, q, r, x, c, magic):
    A.I('v_mul_u32_u24 %s, %d, %s' % (v(q), magic, v(x)))
    A.I('v_lshrrev_b32 %s, 16, %s' % (v(q), v(q)))
    A.I('v_mul_u32_u24 %s, %d, %s' % (v(r), c, v(q)))
    A.I('v_sub_u32 %s, %s, %s' % (v(r), v(x), v(r)))


def trbase(A, dst, rowbytes, t0, t1):
    A.I('v_lshrrev_b32 %s, 1, %s' % (v(t0), v(V_G)))
    A.I('v_lshlrev_b32 %s, 4, %s' % (v(t0), v(t0)))
    A.I('v_and_b32 %s, 1, %s' % (v(t1), v(V_G)))
    A.I('v_lshl_add_u32 %s, %s, 2, %s' % (v(t0), v(t1), v(t0)))
    A.I('v_bfe_u32 %s, %s, 2, 2' % (v(t1), v(V_LANE)))
    A.I('v_add_u32 %s, %s, %s' % (v(t0), v(t0), v(t1)))
    A.I('v_mul_u32_u24 %s, %d, %s' % (v(t0), rowbytes, v(t0)))
    A.I('v_and_b32 %s, 3, %s' % (v(t1), v(V_LANE)))
    A.I('v_lshl_add_u32 %s, %s, 3, %s' % (v(dst), v(t1), v(t0)))


def xf(sk, tt):
    return XF + (sk * 2 + tt) * 4


def issue_x(A, sk):
    for tt in range(2):
        so = '0' if tt == 0 else s(S_T2)
        A.I('buffer_load_dwordx4 %s, %s, %s, %s offen offset:%d' % (v(xf(sk, tt), 4), v(V_XO), s(SRD_X, 4), so, sk * 64), vm=('x', sk))


class Loop:
    def __init__(self, A, name, n_ft, st0, slotbytes, half_slots, reg_off, half_off, dma_issue, last_stage,
                 acc, stat_tt, ncs=True, xwait=True):
        self.__dict__.update(locals())

    def rd(self, F):
        A = self.A
        sk, ft = divmod(F, self.n_ft)
        stage = self.st0 + sk
        slot = stage % D_RING
        base = V_RB0 if slot < self.half_slots else V_RB1
        off = (slot % self.half_slots) * self.slotbytes + self.reg_off + ft * 32
        w = WIN + (F % 4) * 4
        A.I('ds_read_b64_tr_b16 %s, %s offset:%d' % (v(w, 2), v(base), off), lg=('f', F))
        A.I('ds_read_b64_tr_b16 %s, %s offset:%d' % (v(w + 2, 2), v(base), off + self.half_off), lg=('f', F))

    def sync_stage(self, stage):
        A = self.A
        A.wait(vm=('dma', stage))
        A.I('s_barrier')
        nxt = stage + D_RING - 2
        if stage >= 1 and nxt <= self.last_stage:
            self.dma_issue(nxt)

    def kstep(self, sk, with_cs):
        A = self.A
        tot = 20 * self.n_ft
        for ft in range(self.n_ft):
            F = sk * self.n_ft + ft
            Fn = F + 3
            if Fn < tot:
                if Fn % self.n_ft == 0:
                    self.sync_stage(self.st0 + Fn // self.n_ft)
                self.rd(Fn)
            A.wait(lg=('f', F), vm=('x', sk) if (ft == 0 and self.xwait) else None)
            w = WIN + (F % 4) * 4
            for tt in range(2):
                d = v(self.acc(ft, tt), 4)
                A.I('v_mfma_f32_16x16x32_bf16 %s, %s, %s, %s' % (d, v(w, 4), v(xf(sk, tt), 4), d if sk else '0'))
            if with_cs:
                for j in range(4):
                    A.I('v_dot2c_f32_bf16 %s, %s, %s' % (v(V_CS + ft), v(w + j), v(V_ONES)))
            if self.stat_tt is not None and ft < 4:
                x = xf(sk, self.stat_tt) + ft
                A.I('v_dot2c_f32_bf16 %s, %s, %s' % (v(V_SUM), v(x), v(V_ONES)))
                A.I('v_dot2c_f32_bf16 %s, %s, %s' % (v(V_SQ), v(x), v(x)))

    def run(self):
        A = self.A
        self.sync_stage(self.st0)
        for F in range(3):
            self.rd(F)
        for sk in range(20):
            lx = 'L_%s_x%d' % (self.name, sk)
            lj = 'L_%s_j%d' % (self.name, sk)
            A.I('s_cmp_eq_u32 %s, %d' % (s(S_TG), sk & 3))
            A.I('s_cbranch_scc1 %s' % lx)
            sn = A.snap()
            self.kstep(sk, False)
            A.I('s_branch %s' % lj)
            end1 = A.snap()
            A.restore(sn)
            A.label(lx)
            self.kstep(sk, True)
            end2 = A.snap()
            assert end1[2] == end2[2] and end1[3] == end2[3]
            A.label(lj)
            A.restore(end1)


def stats_to_mr(A, vsum, vsq, nm, r, t0):
    A.I('v_mul_f32 %s, 0x3acccccd, %s' % (v(vsum), v(vsum)))
    A.I('v_mul_f32 %s, 0x3acccccd, %s' % (v(vsq), v(vsq)))
    A.I('v_fma_f32 %s, -%s, %s, %s' % (v(vsq), v(vsum), v(vsum), v(vsq)))
    A.I('v_max_f32 %s, 0, %s' % (v(vsq), v(vsq)))
    A.I('v_cvt_pk_bf16_f32 %s, %s, %s' % (v(t0), v(vsum), v(vsq)))
    A.I('v_lshlrev_b32 %s, 16, %s' % (v(nm), v(t0)))
    A.I('v_xor_b32 %s, 0x80000000, %s' % (v(nm), v(nm)))
    A.I('v_and_b32 %s, 0xffff0000, %s' % (v(t0), v(t0)))
    A.I('v_add_f32 %s, 0x3727c5ac, %s' % (v(t0), v(t0)))
    A.I('v_cvt_pk_bf16_f32 %s, %s, %s' % (v(t0), v(t0), v(t0)))
    A.I('v_and_b32 %s, 0xffff0000, %s' % (v(t0), v(t0)))
    A.I('v_sqrt_f32 %s, %s' % (v(t0), v(t0)))
    A.I('v_cvt_pk_bf16_f32 %s, %s, %s' % (v(t0), v(t0), v(t0)))
    A.I('v_and_b32 %s, 0xffff0000, %s' % (v(t0), v(t0)))
    A.I('v_rcp_f32 %s, %s' % (v(r), v(t0)))


def publish_cs_stats(A, ncs, cs_lds, stat_lds, stat_tt, t0):
    A.I('v_lshlrev_b32 %s, 2, %s' % (v(t0), v(V_T)))
    A.I('v_add_u32 %s, %d, %s' % (v(t0), cs_lds, v(t0)))
    for ft in range(ncs):
        A.I('ds_add_f32 %s, %s offset:%d' % (v(t0), v(V_CS + ft), ft * 64), lg='pub')
    if stat_tt is not None:
        A.I('v_lshlrev_b32 %s, 3, %s' % (v(t0 + 1), v(V_T)))
        A.I('s_lshl_b32 %s, %s, 8' % (s(S_TMP), s(S_TG)))
        A.I('s_add_u32 %s, %s, %d' % (s(S_TMP), s(S_TMP), stat_lds))
        A.I('v_add_u32 %s, %s, %s' % (v(t0 + 1), s(S_TMP), v(t0 + 1)))
        A.I('ds_add_f32 %s, %s offset:%d' % (v(t0 + 1), v(V_SUM), stat_tt * 128), lg='pub')
        A.I('ds_add_f32 %s, %s offset:%d' % (v(t0 + 1), v(V_SQ), stat_tt * 128 + 4), lg='pub')


def read_stats(A, areg, tts, dst):
    for i, tt in enumerate(tts):
        A.I('ds_read_b64 %s, %s offset:%d' % (v(dst + 2 * i, 2), v(areg), tt * 128), lg='st')


def read_cs(A, cs_lds, n, dst, t0):
    A.I('v_lshlrev_b32 %s, 4, %s' % (v(t0), v(V_G)))
    A.I('v_add_u32 %s, %d, %s' % (v(t0), cs_lds, v(t0)))
    for ft in range(n):
        A.I('ds_read_b128 %s, %s offset:%d' % (v(dst + 4 * ft, 4), v(t0), ft * 64), lg='cs')


def gen_k1(A, mapping=0):
    A.label('k1_kernel')
    A.I('s_cmp_ge_u32 s2, 256')
    A.I('s_cbranch_scc1 L_k1_end')
    A.I('s_load_dwordx4 s[4:7], s[0:1], 0')
    A.I('s_load_dwordx2 s[8:9], s[0:1], 16')
    A.I('s_load_dwordx4 s[12:15], s[0:1], 40')
    A.I('s_load_dwordx4 s[16:19], s[0:1], 72')
    if mapping == 0:
        A.I('s_lshr_b32 %s, s2, 4' % s(S_TB))
        A.I('s_and_b32 %s, s2, 15' % s(S_FB))
    A.I('v_and_b32 %s, 63, v0' % v(V_LANE))
    A.I('v_and_b32 %s, 15, v0' % v(V_T))
    A.I('v_bfe_u32 %s, v0, 4, 2' % v(V_G))
    A.I('v_lshrrev_b32 %s, 6, v0' % v(V_TMP0))
    A.I('v_readfirstlane_b32 %s, %s' % (s(S_W), v(V_TMP0)))
    A.I('s_and_b32 %s, %s, 3' % (s(S_TG), s(S_W)))
    A.I('s_lshr_b32 %s, %s, 2' % (s(S_GRP), s(S_W)))
    A.I('s_mov_b32 %s, 0x%x' % (s(S_LOG2E), LOG2E))
    A.I('s_mov_b32 %s, 20480' % s(S_T2))
    A.I('v_mov_b32 %s, 0x3f803f80' % v(V_ONES))
    for r in [V_SUM, V_SQ] + [V_CS + i for i in range(7)]:
        A.I('v_mov_b32 %s, 0' % v(r))
    A.I('s_lshl_b32 %s, %s, 7' % (s(S_TMP), s(S_TB)))
    A.I('s_lshl_b32 %s, %s, 5' % (s(S_T3), s(S_TG)))
    A.I('s_add_u32 %s, %s, %s' % (s(S_TMP), s(S_TMP), s(S_T3)))
    A.I('v_add_u32 %s, %s, %s' % (v(V_XO), s(S_TMP), v(V_T)))
    A.I('v_mul_u32_u24 %s, 1280, %s' % (v(V_XO), v(V_XO)))
    A.I('v_lshl_add_u32 %s, %s, 4, %s' % (v(V_XO), v(V_G), v(V_XO)))
    A.I('s_waitcnt lgkmcnt(0)')
    srd(A, SRD_X, 4, 2048 * 640 * 2)
    srd(A, SRD_WS, 18, WS_END)
    srd(A, SRD_DBG, 16, 256)
    A.I('s_cmp_ge_u32 %s, 8' % s(S_FB))
    A.I('s_cbranch_scc1 L_k1_ffn')
    sn = A.snap()
    gen_k1_attn(A)
    A.restore(sn)
    A.label('L_k1_ffn')
    gen_k1_ffn(A)
    A.label('L_k1_end')
    A.I('s_endpgm')


F_SLOT = 15360
F_CS = 8 * F_SLOT
F_STAT = F_CS + 1024
F_LDS = F_STAT + 1024


def mish_batch(A, vals, T):
    n = len(vals)
    E = [T + i for i in range(n)]
    U = [T + n + i for i in range(n)]
    for i, (ac, cs, b, nm, r) in enumerate(vals):
        A.I('v_fma_f32 %s, %s, %s, %s' % (v(ac), v(nm), v(cs), v(ac)))
    for i, (ac, cs, b, nm, r) in enumerate(vals):
        A.I('v_fma_f32 %s, %s, %s, %s' % (v(ac), v(ac), v(r), v(b)))
    for i, (ac, *_) in enumerate(vals):
        A.I('v_mul_f32 %s, %s, %s' % (v(E[i]), s(S_LOG2E), v(ac)))
    for i in range(n):
        A.I('v_min_f32 %s, 0x42700000, %s' % (v(E[i]), v(E[i])))
    for i in range(n):
        A.I('v_exp_f32 %s, %s' % (v(E[i]), v(E[i])))
    for i in range(n):
        A.I('v_add_f32 %s, 2.0, %s' % (v(U[i]), v(E[i])))
    for i in range(n):
        A.I('v_mul_f32 %s, %s, %s' % (v(E[i]), v(E[i]), v(U[i])))
    for i in range(n):
        A.I('v_add_f32 %s, 2.0, %s' % (v(U[i]), v(E[i])))
    for i in range(n):
        A.I('v_rcp_f32 %s, %s' % (v(U[i]), v(U[i])))
    for i in range(n):
        A.I('v_mul_f32 %s, %s, %s' % (v(E[i]), v(E[i]), v(U[i])))
    for i, (ac, *_) in enumerate(vals):
        A.I('v_mul_f32 %s, %s, %s' % (v(ac), v(ac), v(E[i])))


def gen_k1_ffn(A):
    S_P0 = 56
    srd(A, SRD_W, 12, 640 * 1728 * 2)
    srd(A, SRD_AUX, 14, 1728 * 2)
    A.I('s_sub_u32 %s, %s, 8' % (s(S_P0), s(S_FB)))
    A.I('s_mul_i32 %s, %s, 7' % (s(S_P0), s(S_P0)))
    A.I('s_min_u32 %s, %s, 47' % (s(S_P0), s(S_P0)))
    A.I('v_lshlrev_b32 %s, 2, v0' % v(V_TMP0))
    A.I('v_mov_b32 %s, 0' % v(V_TMP1))
    A.I('v_add_u32 %s, %d, %s' % (v(V_TMP0), F_CS, v(V_TMP0)))
    A.I('ds_write_b32 %s, %s' % (v(V_TMP0), v(V_TMP1)), lg='z')
    t = [ACC + i for i in range(8)]
    A.I('s_mul_i32 %s, %s, 120' % (s(S_TMP), s(S_W)))
    A.I('s_lshl_b32 %s, %s, 6' % (s(S_T3), s(S_P0)))
    for j, dst in enumerate((V_DM0, V_DM1)):
        A.I('v_add_u32 %s, %s, %s' % (v(t[0]), s(S_TMP), v(V_LANE)))
        if j:
            A.I('v_add_u32 %s, 64, %s' % (v(t[0]), v(t[0])))
        divmod_const(A, t[1], t[2], t[0], 30, 2185)
        A.I('v_and_b32 %s, 31, %s' % (v(t[1]), v(t[1])))
        swap23(A, t[3], t[1], t[4])
        A.I('v_mul_u32_u24 %s, 3456, %s' % (v(t[3]), v(t[3])))
        A.I('v_lshl_add_u32 %s, %s, 4, %s' % (v(t[3]), v(t[2]), v(t[3])))
        A.I('v_add_u32 %s, %s, %s' % (v(dst), s(S_T3), v(t[3])))
    A.I('s_mul_i32 %s, %s, 1920' % (s(S_M0B), s(S_W)))
    trbase(A, V_RB0, 480, t[0], t[1])
    A.I('s_mul_i32 %s, %s, 224' % (s(S_TMP), s(S_GRP)))
    A.I('v_add_u32 %s, %s, %s' % (v(V_RB0), s(S_TMP), v(V_RB0)))
    A.I('v_add_u32 %s, %d, %s' % (v(V_RB1), 4 * F_SLOT, v(V_RB0)))

    def dma(stage):
        slot = stage % D_RING
        A.I('s_mov_b32 %s, %d' % (s(S_TMP), stage * 32 * 3456))
        A.I('s_add_u32 m0, %s, %d' % (s(S_M0B), slot * F_SLOT))
        A.I('buffer_load_dwordx4 %s, %s, %s offen lds' % (v(V_DM0), s(SRD_W, 4), s(S_TMP)), vm=('dma', stage))
        A.I('s_add_u32 m0, %s, %d' % (s(S_M0B), slot * F_SLOT + 1024))
        A.I('s_mov_b32 exec_hi, 0x00ffffff')
        A.I('buffer_load_dwordx4 %s, %s, %s offen lds' % (v(V_DM1), s(SRD_W, 4), s(S_TMP)), vm=('dma', stage))
        A.I('s_mov_b64 exec, -1')

    issue_x(A, 0)
    issue_x(A, 1)
    dma(0)
    dma(1)
    sk = 2
    for st in range(2, 7):
        for _ in range(3):
            issue_x(A, sk)
            sk += 1
        dma(st)
    while sk < 20:
        issue_x(A, sk)
        sk += 1
    A.wait(lg='z')

    def acc(ft, tt):
        return ACC + (ft * 2 + tt) * 4

    A.I('s_cmp_eq_u32 %s, 1' % s(S_GRP))
    A.I('s_cbranch_scc1 L_ffn_B')
    sn = A.snap()
    for grp in range(2):
        if grp:
            A.restore(sn)
            A.label('L_ffn_B')
        L = Loop(A, 'ffn%d' % grp, 7, 0, F_SLOT, 4, 0, 8 * 480, dma, 19, acc, grp)
        L.run()
        T0 = XF
        BI = XF
        BF = XF + 16
        CSR = XF + 44
        STR = XF + 72
        NM = XF + 76
        TT = XF + 80
        AD = XF + 96
        A.I('s_lshl_b32 %s, %s, 6' % (s(S_TMP), s(S_P0)))
        A.I('v_lshlrev_b32 %s, 3, %s' % (v(AD), v(V_G)))
        for ft in range(7):
            A.I('buffer_load_dwordx2 %s, %s, %s, %s offen offset:%d' % (v(BI + 2 * ft, 2), v(AD), s(SRD_AUX, 4), s(S_TMP), grp * 224 + ft * 32), vm='bias')
        publish_cs_stats(A, 7, F_CS + grp * 448, F_STAT, grp, AD + 1)
        A.wait(lg='pub')
        A.I('s_barrier')
        read_stats(A, AD + 2, [0, 1], STR)
        read_cs(A, F_CS + grp * 448, 7, CSR, AD + 1)
        A.wait(lg='st')
        for tt in range(2):
            stats_to_mr(A, STR + 2 * tt, STR + 2 * tt + 1, NM + 2 * tt, NM + 2 * tt + 1, AD + 3)
        A.wait(vm='bias')
        for ft in range(7):
            for h in range(2):
                A.I('v_lshlrev_b32 %s, 16, %s' % (v(BF + 4 * ft + 2 * h), v(BI + 2 * ft + h)))
                A.I('v_and_b32 %s, 0xffff0000, %s' % (v(BF + 4 * ft + 2 * h + 1), v(BI + 2 * ft + h)))
        A.wait(lg='cs')
        A.I('s_lshl_b32 %s, %s, 3' % (s(S_TMP), s(S_TB)))
        A.I('s_lshl_b32 %s, %s, 1' % (s(S_T3), s(S_TG)))
        A.I('s_add_u32 %s, %s, %s' % (s(S_TMP), s(S_TMP), s(S_T3)))
        A.I('s_mul_i32 %s, %s, 54' % (s(S_TMP), s(S_TMP)))
        A.I('s_add_u32 %s, %s, %s' % (s(S_TMP), s(S_TMP), s(S_P0)))
        A.I('s_lshl_b32 %s, %s, 10' % (s(S_TMP), s(S_TMP)))
        A.I('s_add_u32 %s, %s, %d' % (s(S_TMP), s(S_TMP), ACT_OFF + grp * 3 * 1024))
        A.I('s_add_u32 %s, %s, %d' % (s(S_T3), s(S_TMP), 54 * 1024))
        A.I('v_lshlrev_b32 %s, 4, %s' % (v(AD), v(V_LANE)))
        OUT = XF + 100
        if grp == 0:
            pairs = [(0, 1), (2, 3), (4, 5), (6, None)]
        else:
            pairs = [(None, 0), (1, 2), (3, 4), (5, 6)]
        for pi, pr in enumerate(pairs):
            for tt in range(2):
                vals = []
                for ft in pr:
                    if ft is None:
                        continue
                    for r_ in range(4):
                        vals.append((acc(ft, tt) + r_, CSR + 4 * ft + r_, BF + 4 * ft + r_, NM + 2 * tt, NM + 2 * tt + 1))
                mish_batch(A, vals, TT)
                o = OUT + ((pi * 2 + tt) % 4) * 4
                for hi, ft in enumerate(pr):
                    if ft is None:
                        continue
                    ac = acc(ft, tt)
                    A.I('v_cvt_pk_bf16_f32 %s, %s, %s' % (v(o + 2 * hi), v(ac), v(ac + 1)))
                    A.I('v_cvt_pk_bf16_f32 %s, %s, %s' % (v(o + 2 * hi + 1), v(ac + 2), v(ac + 3)))
                so = s(S_TMP) if tt == 0 else s(S_T3)
                if pr[0] is not None and pr[1] is not None:
                    A.I('buffer_store_dwordx4 %s, %s, %s, %s offen offset:%d' % (v(o, 4), v(AD), s(SRD_WS, 4), so, pi * 1024), vm='st')
                elif pr[1] is None:
                    A.I('buffer_store_dwordx2 %s, %s, %s, %s offen offset:%d' % (v(o, 2), v(AD), s(SRD_WS, 4), so, pi * 1024), vm='st')
                else:
                    A.I('buffer_store_dwordx2 %s, %s, %s, %s offen offset:%d' % (v(o + 2, 2), v(AD), s(SRD_WS, 4), so, pi * 1024 + 8), vm='st')
        A.I('s_endpgm')


A_SLOT = 10240
A_PHIK = 8 * A_SLOT
PHIK_ROW = 352
A_VS = A_PHIK + 128 * PHIK_ROW
A_M = A_VS + 128 * 160
A_CS = A_M + 80 * 160
A_STAT = A_CS + 1024
A_LDS = A_STAT + 1024


def read_mfrags(A, MF, vb):
    for u in range(5):
        b = MF + u * 10
        for j in range(5):
            A.I('ds_read_b64_tr_b16 %s, %s offset:%d' % (v(b + 2 * j, 2), v(vb), j * 16 * 160 + u * 32), lg='mf')


def feat_epilogue(A, accs, CSR, nm, r, MF, BO, P, EP, EM, X, sync=None):
    sync = sync or (lambda: None)
    for ft in range(5):
        for r_ in range(4):
            ac = accs[ft] + r_
            A.I('v_fma_f32 %s, %s, %s, %s' % (v(ac), v(nm), v(CSR + 4 * ft + r_), v(ac)))
        for r_ in range(4):
            ac = accs[ft] + r_
            A.I('v_mul_f32 %s, %s, %s' % (v(ac), v(ac), v(r)))
        A.I('v_cvt_pk_bf16_f32 %s, %s, %s' % (v(BO + 2 * ft), v(accs[ft]), v(accs[ft] + 1)))
        A.I('v_cvt_pk_bf16_f32 %s, %s, %s' % (v(BO + 2 * ft + 1), v(accs[ft] + 2), v(accs[ft] + 3)))
    sync()
    A.wait(lg='mf')
    for u in range(5):
        b = MF + u * 10
        d = v(P + 4 * u, 4)
        A.I('v_mfma_f32_16x16x32_bf16 %s, %s, %s, 0' % (d, v(b, 4), v(BO, 4)))
    for u in range(5):
        b = MF + u * 10
        d = v(P + 4 * u, 4)
        A.I('v_mfma_f32_16x16x32_bf16 %s, %s, %s, %s' % (d, v(b + 4, 4), v(BO + 4, 4), d))
    for u in range(5):
        b = MF + u * 10
        d = v(P + 4 * u, 4)
        A.I('v_mfma_f32_16x16x16_bf16 %s, %s, %s, %s' % (d, v(b + 8, 2), v(BO + 8, 2), d))
    sync()
    MX, MN, SP, SM = X, X + 1, X + 2, X + 3
    A.I('v_max3_f32 %s, %s, %s, %s' % (v(MX), v(P), v(P + 1), v(P + 2)))
    A.I('v_min3_f32 %s, %s, %s, %s' % (v(MN), v(P), v(P + 1), v(P + 2)))
    for i in range(3, 19, 2):
        A.I('v_max3_f32 %s, %s, %s, %s' % (v(MX), v(MX), v(P + i), v(P + i + 1)))
        A.I('v_min3_f32 %s, %s, %s, %s' % (v(MN), v(MN), v(P + i), v(P + i + 1)))
    A.I('v_max_f32 %s, %s, %s' % (v(MX), v(MX), v(P + 19)))
    A.I('v_min_f32 %s, %s, %s' % (v(MN), v(MN), v(P + 19)))
    A.I('v_mul_f32 %s, %s, %s' % (v(MX), s(S_LOG2E), v(MX)))
    A.I('v_mul_f32 %s, %s, %s' % (v(MN), s(S_LOG2E), v(MN)))
    sync()
    for i in range(20):
        A.I('v_fma_f32 %s, %s, %s, -%s' % (v(EP + i), v(P + i), s(S_LOG2E), v(MX)))
        A.I('v_fma_f32 %s, -%s, %s, %s' % (v(EM + i), v(P + i), s(S_LOG2E), v(MN)))
    sync()
    for i in range(20):
        A.I('v_exp_f32 %s, %s' % (v(EP + i), v(EP + i)))
        A.I('v_exp_f32 %s, %s' % (v(EM + i), v(EM + i)))
        if i == 9:
            sync()
    sync()
    A.I('v_add_f32 %s, %s, %s' % (v(SP), v(EP), v(EP + 1)))
    A.I('v_add_f32 %s, %s, %s' % (v(SM), v(EM), v(EM + 1)))
    A.I('v_add_f32 %s, %s, %s' % (v(X + 4), v(EP + 2), v(EP + 3)))
    A.I('v_add_f32 %s, %s, %s' % (v(X + 5), v(EM + 2), v(EM + 3)))
    for i in range(4, 20, 2):
        A.I('v_add_f32 %s, %s, %s' % (v(SP), v(SP), v(EP + i)))
        A.I('v_add_f32 %s, %s, %s' % (v(SM), v(SM), v(EM + i)))
        A.I('v_add_f32 %s, %s, %s' % (v(X + 4), v(X + 4), v(EP + i + 1)))
        A.I('v_add_f32 %s, %s, %s' % (v(X + 5), v(X + 5), v(EM + i + 1)))
    A.I('v_add_f32 %s, %s, %s' % (v(SP), v(SP), v(X + 4)))
    A.I('v_add_f32 %s, %s, %s' % (v(SM), v(SM), v(X + 5)))
    A.I('v_rcp_f32 %s, %s' % (v(SP), v(SP)))
    A.I('v_rcp_f32 %s, %s' % (v(SM), v(SM)))
    sync()
    for i in range(20):
        A.I('v_mul_f32 %s, %s, %s' % (v(EP + i), v(EP + i), v(SP)))
        A.I('v_mul_f32 %s, %s, %s' % (v(EM + i), v(EM + i), v(SM)))
    sync()
    for i in range(10):
        A.I('v_cvt_pk_bf16_f32 %s, %s, %s' % (v(P + i), v(EP + 2 * i), v(EP + 2 * i + 1)))
        A.I('v_cvt_pk_bf16_f32 %s, %s, %s' % (v(P + 10 + i), v(EM + 2 * i), v(EM + 2 * i + 1)))
    sync()


def read_cs_list(A, cs_lds, dsts, t0):
    A.I('v_lshlrev_b32 %s, 4, %s' % (v(t0), v(V_G)))
    A.I('v_add_u32 %s, %d, %s' % (v(t0), cs_lds, v(t0)))
    for ft, d in enumerate(dsts):
        A.I('ds_read_b128 %s, %s offset:%d' % (v(d, 4), v(t0), ft * 64), lg='cs')


def store_phiq(A, P, tt, t0, t1):
    A.I('s_lshl_b32 %s, %s, 3' % (s(S_TMP), s(S_TB)))
    A.I('s_lshl_b32 %s, %s, 1' % (s(S_T3), s(S_TG)))
    A.I('s_add_u32 %s, %s, %s' % (s(S_TMP), s(S_TMP), s(S_T3)))
    A.I('s_add_u32 %s, %s, %d' % (s(S_TMP), s(S_TMP), tt))
    A.I('s_lshl_b32 %s, %s, 3' % (s(S_TMP), s(S_TMP)))
    A.I('s_add_u32 %s, %s, %s' % (s(S_TMP), s(S_TMP), s(S_FB)))
    A.I('s_mul_i32 %s, %s, 5120' % (s(S_TMP), s(S_TMP)))
    A.I('s_add_u32 %s, %s, %d' % (s(S_TMP), s(S_TMP), PHIQ_OFF))
    A.I('v_mul_u32_u24 %s, 1280, %s' % (v(t0), v(V_G)))
    A.I('v_lshl_add_u32 %s, %s, 4, %s' % (v(t0), v(V_T), v(t0)))
    for j in range(5):
        A.I('buffer_store_dwordx4 %s, %s, %s, %s offen offset:%d' % (v(P + 4 * j, 4), v(t0), s(SRD_WS, 4), s(S_TMP), j * 256), vm='st')


def gen_k1_attn(A):
    srd(A, SRD_W, 6, 640 * 1920 * 2)
    srd(A, SRD_AUX, 8, 32 * 400 * 2)
    t = [ACC + i for i in range(16)]
    A.I('v_lshlrev_b32 %s, 2, v0' % v(V_TMP0))
    A.I('v_mov_b32 %s, 0' % v(V_TMP1))
    A.I('v_add_u32 %s, %d, %s' % (v(V_TMP0), A_CS, v(V_TMP0)))
    A.I('ds_write_b32 %s, %s' % (v(V_TMP0), v(V_TMP1)), lg='z')
    A.I('s_mul_i32 %s, %s, 80' % (s(S_TMP), s(S_W)))
    A.I('s_mul_i32 %s, %s, 160' % (s(S_T3), s(S_FB)))
    for j, dst in enumerate((V_DM0, V_DM1)):
        A.I('v_add_u32 %s, %s, %s' % (v(t[0]), s(S_TMP), v(V_LANE)))
        if j:
            A.I('v_add_u32 %s, 64, %s' % (v(t[0]), v(t[0])))
        divmod_const(A, t[1], t[2], t[0], 10, 6554)
        A.I('v_lshrrev_b32 %s, 5, %s' % (v(t[5]), v(t[1])))
        A.I('v_and_b32 %s, 1, %s' % (v(t[5]), v(t[5])))
        A.I('v_and_b32 %s, 31, %s' % (v(t[1]), v(t[1])))
        swap23(A, t[3], t[1], t[4])
        A.I('v_mul_u32_u24 %s, 3840, %s' % (v(t[3]), v(t[3])))
        A.I('v_lshl_add_u32 %s, %s, 4, %s' % (v(t[3]), v(t[2]), v(t[3])))
        A.I('v_mul_u32_u24 %s, 1280, %s' % (v(t[5]), v(t[5])))
        A.I('v_add3_u32 %s, %s, %s, %s' % (v(dst), s(S_T3), v(t[3]), v(t[5])))
        A.I('v_add_u32 %s, 1280, %s' % (v(dst), v(dst)))
    A.I('s_mul_i32 %s, %s, 80' % (s(S_TMP), s(S_TG)))
    for j, dst in enumerate((V_DQ0, V_DQ1)):
        A.I('v_add_u32 %s, %s, %s' % (v(t[0]), s(S_TMP), v(V_LANE)))
        if j:
            A.I('v_add_u32 %s, 64, %s' % (v(t[0]), v(t[0])))
        divmod_const(A, t[1], t[2], t[0], 10, 6554)
        A.I('v_and_b32 %s, 31, %s' % (v(t[1]), v(t[1])))
        swap23(A, t[3], t[1], t[4])
        A.I('v_mul_u32_u24 %s, 3840, %s' % (v(t[3]), v(t[3])))
        A.I('v_lshl_add_u32 %s, %s, 4, %s' % (v(t[3]), v(t[2]), v(t[3])))
        A.I('v_add_u32 %s, %s, %s' % (v(dst), s(S_T3), v(t[3])))
    A.I('s_mul_i32 %s, %s, 1280' % (s(S_M0B), s(S_W)))
    S_M0Q = 56
    A.I('s_mul_i32 %s, %s, 1280' % (s(S_M0Q), s(S_TG)))
    trbase(A, V_RB0, 160, t[0], t[1])
    A.I('v_add_u32 %s, %d, %s' % (v(V_RB1), 4 * A_SLOT, v(V_RB0)))

    def mk_dma(grp):
        def dma(stage):
            slot = stage % D_RING
            if stage < 20:
                d0, d1, mb = V_DM0, V_DM1, S_M0B
            else:
                if grp == 0:
                    return
                d0, d1, mb = V_DQ0, V_DQ1, S_M0Q
            A.I('s_mov_b32 %s, %d' % (s(S_TMP), (stage % 20) * 32 * 3840))
            A.I('s_add_u32 m0, %s, %d' % (s(mb), slot * A_SLOT))
            A.I('buffer_load_dwordx4 %s, %s, %s offen lds' % (v(d0), s(SRD_W, 4), s(S_TMP)), vm=('dma', stage))
            A.I('s_add_u32 m0, %s, %d' % (s(mb), slot * A_SLOT + 1024))
            A.I('s_mov_b64 exec, 0xffff')
            A.I('buffer_load_dwordx4 %s, %s, %s offen lds' % (v(d1), s(SRD_W, 4), s(S_TMP)), vm=('dma', stage))
            A.I('s_mov_b64 exec, -1')
        return dma
    dma = mk_dma(0)

    issue_x(A, 0)
    issue_x(A, 1)
    dma(0)
    dma(1)
    for i in range(4):
        A.I('v_add_u32 %s, %d, v0' % (v(t[0]), 512 * i))
        divmod_const(A, t[1], t[2], t[0], 20, 3277)
        divmod_const(A, t[3], t[4], t[1], 20, 3277)
        A.I('v_and_b32 %s, 3, %s' % (v(t[5]), v(t[2])))
        A.I('v_lshrrev_b32 %s, 2, %s' % (v(t[6]), v(t[2])))
        A.I('v_mul_u32_u24 %s, 800, %s' % (v(t[7]), v(t[3])))
        A.I('v_mul_u32_u24 %s, 40, %s' % (v(t[4]), v(t[4])))
        A.I('v_add_u32 %s, %s, %s' % (v(t[7]), v(t[7]), v(t[4])))
        A.I('v_lshl_add_u32 %s, %s, 3, %s' % (v(t[7]), v(t[6]), v(t[7])))
        A.I('v_cmp_eq_u32 vcc, %s, %s' % (v(t[5]), v(t[3])))
        A.I('v_mov_b32 %s, 0x7ffffff0' % v(t[4]))
        A.I('v_cndmask_b32 %s, %s, %s, vcc' % (v(t[7]), v(t[4]), v(t[7])))
        A.I('s_mul_i32 %s, %s, 3200' % (s(S_TMP), s(S_FB)))
        A.I('buffer_load_dwordx2 %s, %s, %s, %s offen' % (v(ACC + 16 + 2 * i, 2), v(t[7]), s(SRD_AUX, 4), s(S_TMP)), vm='m')
        A.I('v_lshlrev_b32 %s, 3, %s' % (v(ACC + 24 + i), v(t[0])))
        A.I('v_add_u32 %s, %d, %s' % (v(ACC + 24 + i), A_M, v(ACC + 24 + i)))
    sk = 2
    for st in range(2, 7):
        for _ in range(3):
            issue_x(A, sk)
            sk += 1
        dma(st)
    while sk < 20:
        issue_x(A, sk)
        sk += 1
    A.wait(vm='m')
    for i in range(4):
        if i == 3:
            A.I('v_cmp_gt_u32 vcc, 64, v0')
            A.I('s_and_saveexec_b64 %s, vcc' % s(S_MASK, 2))
        A.I('ds_write_b64 %s, %s' % (v(ACC + 24 + i), v(ACC + 16 + 2 * i, 2)), lg='z')
        if i == 3:
            A.I('s_mov_b64 exec, -1')
    A.wait(lg='z')

    def acc(ft, tt):
        return ACC + (ft * 2 + tt) * 4

    STR, NM, AD = 80, 84, 88
    CSR, MF, P, EP, EM = XF, XF + 20, XF + 70, XF + 90, XF + 110
    BO, X = WIN, WIN + 10
    VMB = 92
    HAND = A_PHIK

    def mbase():
        A.I('v_bfe_u32 %s, %s, 2, 4' % (v(VMB), v(V_LANE)))
        A.I('v_mul_u32_u24 %s, 160, %s' % (v(VMB), v(VMB)))
        A.I('v_and_b32 %s, 3, %s' % (v(AD), v(V_LANE)))
        A.I('v_lshl_add_u32 %s, %s, 3, %s' % (v(VMB), v(AD), v(VMB)))
        A.I('v_add_u32 %s, %d, %s' % (v(VMB), A_M, v(VMB)))

    def pub(ncs, cs_lds, stat_tt):
        A.I('v_lshlrev_b32 %s, 2, %s' % (v(AD), v(V_T)))
        A.I('v_add_u32 %s, %d, %s' % (v(AD), cs_lds, v(AD)))
        for ft in range(ncs):
            A.I('ds_add_f32 %s, %s offset:%d' % (v(AD), v(V_CS + ft), ft * 64), lg='pub')
        if stat_tt is not None:
            A.I('v_lshlrev_b32 %s, 3, %s' % (v(AD + 1), v(V_T)))
            A.I('s_lshl_b32 %s, %s, 8' % (s(S_TMP), s(S_TG)))
            A.I('s_add_u32 %s, %s, %d' % (s(S_TMP), s(S_TMP), A_STAT))
            A.I('v_add_u32 %s, %s, %s' % (v(AD + 1), s(S_TMP), v(AD + 1)))
            A.I('ds_add_f32 %s, %s offset:%d' % (v(AD + 1), v(V_SUM), stat_tt * 128), lg='pub')
            A.I('ds_add_f32 %s, %s offset:%d' % (v(AD + 1), v(V_SQ), stat_tt * 128 + 4), lg='pub')

    def rd_stats():
        for tt in range(2):
            A.I('ds_read_b64 %s, %s offset:%d' % (v(STR + 2 * tt, 2), v(AD + 1), tt * 128), lg='st')

    def mr():
        A.wait(lg='st')
        for tt in range(2):
            stats_to_mr(A, STR + 2 * tt, STR + 2 * tt + 1, NM + 2 * tt, NM + 2 * tt + 1, AD + 2)

    A.I('s_cmp_eq_u32 %s, 1' % s(S_GRP))
    A.I('s_cbranch_scc1 L_att_B')
    sn = A.snap()

    L = Loop(A, 'attA', 5, 0, A_SLOT, 4, 0, 8 * 160, mk_dma(0), 39, acc, 0)
    L.run()
    pub(5, A_CS, 0)
    A.wait(lg='pub')
    A.I('s_barrier')
    rd_stats()
    read_cs_list(A, A_CS, [CSR + 4 * i for i in range(5)], AD + 3)
    mbase()
    read_mfrags(A, MF, VMB)
    mr()
    A.wait(lg='cs')
    nbar = [0]

    def sync():
        if nbar[0] < 18:
            A.I('s_barrier')
            nbar[0] += 1
    A.I('s_mul_i32 %s, %s, %d' % (s(S_TMP), s(S_TG), 32 * PHIK_ROW))
    A.I('s_add_u32 %s, %s, %d' % (s(S_TMP), s(S_TMP), A_PHIK))
    A.I('v_mul_u32_u24 %s, %d, %s' % (v(AD), PHIK_ROW, v(V_T)))
    A.I('v_mul_u32_u24 %s, 80, %s' % (v(AD + 2), v(V_G)))
    A.I('v_add3_u32 %s, %s, %s, %s' % (v(AD), s(S_TMP), v(AD), v(AD + 2)))
    for tt in range(2):
        calls = [0]

        def sync9():
            calls[0] += 1
            if calls[0] <= 9:
                sync()
        feat_epilogue(A, [acc(ft, tt) for ft in range(5)], CSR, NM + 2 * tt, NM + 2 * tt + 1, MF, BO, P, EP, EM, X, sync9)
        for j in range(5):
            A.I('ds_write_b128 %s, %s offset:%d' % (v(AD), v(P + 4 * j, 4), tt * 16 * PHIK_ROW + j * 16), lg='pk')
    assert nbar[0] == 18
    A.wait(lg='pk')
    A.I('s_barrier')
    KA, KB = AD, AD + 2
    trbase(A, KA, PHIK_ROW, AD + 3, VMB + 1)
    A.I('s_mul_i32 %s, %s, 80' % (s(S_TMP), s(S_TG)))
    A.I('s_add_u32 %s, %s, %d' % (s(S_TMP), s(S_TMP), A_PHIK))
    A.I('v_add_u32 %s, %s, %s' % (v(KA), s(S_TMP), v(KA)))
    trbase(A, KB, 160, AD + 3, VMB + 1)
    A.I('s_mul_i32 %s, %s, 40' % (s(S_TMP), s(S_TG)))
    A.I('s_add_u32 %s, %s, %d' % (s(S_TMP), s(S_TMP), A_VS))
    A.I('v_add_u32 %s, %s, %s' % (v(KB), s(S_TMP), v(KB)))
    A.I('v_cmp_eq_u32 %s, 4, %s' % (s(S_MASK, 2), v(V_T)))
    FR = XF + 70
    for ks in range(4):
        for i in range(3):
            r0 = FR + (ks * 5 + i) * 4
            for h in range(2):
                A.I('ds_read_b64_tr_b16 %s, %s offset:%d' % (v(r0 + 2 * h, 2), v(KA), (ks * 32 + 8 * h) * PHIK_ROW + i * 32), lg=('kv', ks))
        for dt in range(2):
            r0 = FR + (ks * 5 + 3 + dt) * 4
            for h in range(2):
                A.I('ds_read_b64_tr_b16 %s, %s offset:%d' % (v(r0 + 2 * h, 2), v(KB), (ks * 32 + 8 * h) * 160 + dt * 32), lg=('kv', ks))
    KD = ACC
    for ks in range(4):
        A.wait(lg=('kv', ks))
        rb1 = FR + (ks * 5 + 4) * 4
        for j in range(4):
            A.I('v_cndmask_b32 %s, %s, %s, %s' % (v(rb1 + j), v(rb1 + j), v(V_ONES), s(S_MASK, 2)))
        for dt in range(2):
            for i in range(3):
                d = v(KD + (dt * 3 + i) * 4, 4)
                A.I('v_mfma_f32_16x16x32_bf16 %s, %s, %s, %s' % (d, v(FR + (ks * 5 + i) * 4, 4), v(FR + (ks * 5 + 3 + dt) * 4, 4), d if ks else '0'))
    A.I('s_lshl_b32 %s, %s, 3' % (s(S_TMP), s(S_TB)))
    A.I('s_add_u32 %s, %s, %s' % (s(S_TMP), s(S_TMP), s(S_FB)))
    A.I('s_mul_i32 %s, %s, 24' % (s(S_TMP), s(S_TMP)))
    A.I('s_mul_i32 %s, %s, 6' % (s(S_T3), s(S_TG)))
    A.I('s_add_u32 %s, %s, %s' % (s(S_TMP), s(S_TMP), s(S_T3)))
    A.I('s_lshl_b32 %s, %s, 10' % (s(S_TMP), s(S_TMP)))
    A.I('s_add_u32 %s, %s, %d' % (s(S_TMP), s(S_TMP), KVP_OFF))
    A.I('s_add_u32 %s, %s, 3072' % (s(S_T3), s(S_TMP)))
    A.I('v_lshlrev_b32 %s, 4, %s' % (v(AD), v(V_LANE)))
    for q in range(6):
        A.I('buffer_store_dwordx4 %s, %s, %s, %s offen offset:%d sc1' % (v(KD + q * 4, 4), v(AD), s(SRD_WS, 4), s(S_TMP) if q < 3 else s(S_T3), (q % 3) * 1024), vm='kvp')
    A.I('s_barrier')
    A.wait(vm='kvp')
    A.I('v_mov_b32 %s, 1' % v(AD + 2))
    A.I('s_lshl_b32 %s, %s, 2' % (s(S_TMP), s(S_FB)))
    A.I('v_mov_b32 %s, %s' % (v(AD + 3), s(S_TMP)))
    A.I('s_mov_b64 exec, 1')
    A.I('buffer_atomic_add %s, %s, %s, 0 offen sc1' % (v(AD + 2), v(AD + 3), s(SRD_DBG, 4)), vm='at')
    A.I('s_mov_b64 exec, -1')
    A.I('s_barrier')
    A.I('s_mul_i32 %s, %s, 5120' % (s(S_TMP), s(S_TG)))
    A.I('s_add_u32 %s, %s, %d' % (s(S_TMP), s(S_TMP), HAND))
    A.I('v_lshlrev_b32 %s, 4, %s' % (v(AD), v(V_LANE)))
    A.I('v_add_u32 %s, %s, %s' % (v(AD), s(S_TMP), v(AD)))
    for ft in range(5):
        A.I('ds_read_b128 %s, %s offset:%d' % (v(ACC + 4 * ft, 4), v(AD), ft * 1024), lg='cs')
    read_cs_list(A, A_CS + 640, [CSR + 4 * i for i in range(5)], AD + 2)
    A.wait(lg='cs')
    RQ = [XF + 130 + 2 * i for i in range(15)] + [ACC + 20]
    S_HF = 57
    calls = [0]

    def sync_red():
        calls[0] += 1
        if calls[0] != 6:
            return
        A.I('s_cmp_ge_u32 %s, 3' % s(S_TG))
        A.I('s_cbranch_scc1 L_red_skip1')
        sn2 = A.snap()
        A.flush_hazards()
        A.label('L_poll')
        A.I('buffer_load_dword %s, %s, %s, 0 offen sc1' % (v(AD + 2), v(AD + 3), s(SRD_DBG, 4)), vm='poll')
        A.wait_all(vm=True)
        A.I('v_readfirstlane_b32 %s, %s' % (s(S_TMP), v(AD + 2)))
        A.I('s_cmp_ge_u32 %s, 64' % s(S_TMP))
        A.I('s_cbranch_scc1 L_poll_done')
        A.I('s_sleep 1')
        A.I('s_branch L_poll')
        A.label('L_poll_done')
        A.I('s_mul_i32 %s, %s, 3' % (s(S_HF), s(S_TB)))
        A.I('s_add_u32 %s, %s, %s' % (s(S_HF), s(S_HF), s(S_TG)))
        A.I('s_mul_i32 %s, %s, %d' % (s(S_TMP), s(S_FB), 24 * 1024))
        A.I('s_lshl_b32 %s, %s, 9' % (s(S_T3), s(S_HF)))
        A.I('s_add_u32 %s, %s, %s' % (s(S_TMP), s(S_TMP), s(S_T3)))
        A.I('s_add_u32 %s, %s, %d' % (s(S_TMP), s(S_TMP), KVP_OFF))
        A.I('v_lshlrev_b32 %s, 3, %s' % (v(AD + 2), v(V_LANE)))
        for p in range(16):
            A.I('buffer_load_dwordx2 %s, %s, %s, %s offen sc1' % (v(RQ[p], 2), v(AD + 2), s(SRD_WS, 4), s(S_TMP)), vm='red')
            A.I('s_add_u32 %s, %s, %d' % (s(S_TMP), s(S_TMP), 8 * 24 * 1024))
        A.label('L_red_skip1')
        A.flush_hazards()
    feat_epilogue(A, [ACC + 4 * ft for ft in range(5)], CSR, NM + 2, NM + 3, MF, BO, P, EP, EM, X, sync_red)
    store_phiq(A, P, 1, AD, AD + 2)
    A.I('s_cmp_ge_u32 %s, 3' % s(S_TG))
    A.I('s_cbranch_scc1 L_k1_end')
    A.wait_all(vm=True)
    for p in range(1, 16):
        for h in range(2):
            A.I('v_add_f32 %s, %s, %s' % (v(RQ[0] + h), v(RQ[0] + h), v(RQ[p] + h)))
    A.I('v_cvt_pk_bf16_f32 %s, %s, %s' % (v(RQ[0]), v(RQ[0]), v(RQ[0] + 1)))
    A.I('s_lshr_b32 %s, %s, 1' % (s(S_TMP), s(S_HF)))
    A.I('s_mul_i32 %s, %s, 43' % (s(S_T3), s(S_TMP)))
    A.I('s_lshr_b32 %s, %s, 8' % (s(S_T3), s(S_T3)))
    A.I('s_mul_i32 %s, %s, 6' % (s(S_T4), s(S_T3)))
    A.I('s_sub_u32 %s, %s, %s' % (s(S_TMP), s(S_TMP), s(S_T4)))
    A.I('s_cmp_ge_u32 %s, 3' % s(S_TMP))
    A.I('s_cselect_b32 %s, 1, 0' % s(S_T4))
    A.I('s_mul_i32 %s, %s, 3' % (s(58), s(S_T4)))
    A.I('s_sub_u32 %s, %s, %s' % (s(S_TMP), s(S_TMP), s(58)))
    A.I('s_and_b32 %s, %s, 1' % (s(58), s(S_HF)))
    A.I('s_lshl_b32 %s, %s, 5' % (s(58), s(58)))
    t = [EP + i for i in range(8)]
    A.I('v_lshrrev_b32 %s, 1, %s' % (v(t[0]), v(V_LANE)))
    A.I('v_add_u32 %s, %s, %s' % (v(t[0]), s(58), v(t[0])))
    A.I('v_and_b32 %s, 15, %s' % (v(t[1]), v(t[0])))
    A.I('v_lshrrev_b32 %s, 4, %s' % (v(t[2]), v(t[0])))
    A.I('v_and_b32 %s, 1, %s' % (v(t[3]), v(V_LANE)))
    A.I('v_lshlrev_b32 %s, 1, %s' % (v(t[3]), v(t[3])))
    A.I('v_lshl_add_u32 %s, %s, 2, %s' % (v(t[3]), v(t[2]), v(t[3])))
    A.I('s_lshl_b32 %s, %s, 4' % (s(S_TMP), s(S_TMP)))
    A.I('v_add_u32 %s, %s, %s' % (v(t[3]), s(S_TMP), v(t[3])))
    A.I('s_lshl_b32 %s, %s, 4' % (s(S_T4), s(S_T4)))
    A.I('v_add_u32 %s, %s, %s' % (v(t[1]), s(S_T4), v(t[1])))
    A.I('v_mul_u32_u24 %s, 80, %s' % (v(t[4]), v(t[1])))
    A.I('v_lshl_add_u32 %s, %s, 1, %s' % (v(t[4]), v(t[3]), v(t[4])))
    A.I('v_mov_b32 %s, 0x7ffffff0' % v(t[5]))
    A.I('v_cmp_gt_u32 vcc, 21, %s' % v(t[1]))
    A.I('v_cndmask_b32 %s, %s, %s, vcc' % (v(t[4]), v(t[5]), v(t[4])))
    A.I('v_cmp_gt_u32 vcc, 40, %s' % v(t[3]))
    A.I('v_cndmask_b32 %s, %s, %s, vcc' % (v(t[4]), v(t[5]), v(t[4])))
    A.I('s_lshl_b32 %s, %s, 2' % (s(S_TMP), s(S_FB)))
    A.I('s_add_u32 %s, %s, %s' % (s(S_TMP), s(S_TMP), s(S_T3)))
    A.I('s_mul_i32 %s, %s, 1920' % (s(S_TMP), s(S_TMP)))
    A.I('s_add_u32 %s, %s, %d' % (s(S_TMP), s(S_TMP), KVT_OFF))
    A.I('buffer_store_dword %s, %s, %s, %s offen' % (v(RQ[0]), v(t[4]), s(SRD_WS, 4), s(S_TMP)), vm='st')
    A.I('s_endpgm')

    A.restore(sn)
    A.label('L_att_B')
    L = Loop(A, 'attB', 5, 0, A_SLOT, 4, 5120, 8 * 160, mk_dma(1), 39, acc, 1)
    L.run()
    pub(5, A_CS + 320, 1)
    A.wait(lg='pub')
    A.I('s_barrier')
    rd_stats()
    CSB = [24, 28, 32, 36, 92]
    read_cs_list(A, A_CS + 320, CSB, AD + 3)
    for i in range(5):
        A.I('v_mov_b32 %s, 0' % v(V_CS + i))
    mr()
    A.wait(lg='cs')
    A.I('s_mul_i32 %s, %s, %d' % (s(S_TMP), s(S_TG), 32 * 160))
    A.I('s_add_u32 %s, %s, %d' % (s(S_TMP), s(S_TMP), A_VS))
    A.I('v_mul_u32_u24 %s, 160, %s' % (v(AD), v(V_T)))
    A.I('v_lshl_add_u32 %s, %s, 3, %s' % (v(AD), v(V_G), v(AD)))
    A.I('v_add_u32 %s, %s, %s' % (v(AD), s(S_TMP), v(AD)))
    for tt in range(2):
        for ft in range(5):
            ac = acc(ft, tt)
            for r_ in range(4):
                A.I('v_fma_f32 %s, %s, %s, %s' % (v(ac + r_), v(NM + 2 * tt), v(CSB[ft] + r_), v(ac + r_)))
            for r_ in range(4):
                A.I('v_mul_f32 %s, %s, %s' % (v(ac + r_), v(ac + r_), v(NM + 2 * tt + 1)))
            A.I('v_cvt_pk_bf16_f32 %s, %s, %s' % (v(ac), v(ac), v(ac + 1)))
            A.I('v_cvt_pk_bf16_f32 %s, %s, %s' % (v(ac + 1), v(ac + 2), v(ac + 3)))
            A.I('ds_write_b64 %s, %s offset:%d' % (v(AD), v(ac, 2), tt * 16 * 160 + ft * 32), lg='vs')
    A.wait(lg='vs')
    L = Loop(A, 'attQ', 5, 20, A_SLOT, 4, 0, 8 * 160, mk_dma(1), 39, acc, None, xwait=False)
    L.run()
    pub(5, A_CS + 640, None)
    A.I('s_mul_i32 %s, %s, 5120' % (s(S_TMP), s(S_TG)))
    A.I('s_add_u32 %s, %s, %d' % (s(S_TMP), s(S_TMP), HAND))
    A.I('v_lshlrev_b32 %s, 4, %s' % (v(AD + 2), v(V_LANE)))
    A.I('v_add_u32 %s, %s, %s' % (v(AD + 2), s(S_TMP), v(AD + 2)))
    for ft in range(5):
        A.I('ds_write_b128 %s, %s offset:%d' % (v(AD + 2), v(acc(ft, 1), 4), ft * 1024), lg='pub')
    mbase()
    read_mfrags(A, MF, VMB)
    A.wait(lg='pub')
    A.I('s_barrier')
    read_cs_list(A, A_CS + 640, [CSR + 4 * i for i in range(5)], AD + 2)
    A.wait(lg='cs')
    feat_epilogue(A, [acc(ft, 0) for ft in range(5)], CSR, NM, NM + 1, MF, BO, P, EP, EM, X, None)
    store_phiq(A, P, 0, AD, AD + 2)
    A.I('s_endpgm')
```

```python
from asmlib import *
from k1 import ACT_OFF, PHIQ_OFF, KVT_OFF, WS_END, LOG2E, srd, divmod_const

SRD_X, SRD_WO, SRD_W2, SRD_OUT, SRD_WS = 20, 24, 28, 32, 36
S_RB, S_CB, S_W, S_TMP, S_T2, S_T3, S_LOG2E, S_M0B = 40, 41, 42, 43, 44, 45, 46, 47
S_ACT = 48
S_PHI = 52
S_KV = 56
S_W2O = 57
V_LANE, V_T, V_G = 1, 2, 3
V_L16 = 4
V_PB = 5
V_KA0, V_KB0, V_KA1, V_KB1 = 6, 7, 8, 9
V_DM = 10
V_RB = 15
V_RB4 = 16
V_TMP = 17
WIN = 32
KVF = 72
PHF = 96
DT = 144
OF = 176
ACC_G, ACC_S, ACT_B = 0, 80, 160
NACT = 6
SLOT = 5120
K2_LDS = 163840
NK = 14


def gen_k2(A):
    A.label('k2_kernel')
    A.I('s_cmp_ge_u32 s2, 256')
    A.I('s_cbranch_scc1 L_k2_end')
    A.I('s_load_dwordx2 s[4:5], s[0:1], 0')
    A.I('s_load_dwordx2 s[6:7], s[0:1], 24')
    A.I('s_load_dwordx4 s[8:11], s[0:1], 56')
    A.I('s_load_dwordx2 s[12:13], s[0:1], 80')
    A.I('s_and_b32 %s, s2, 7' % s(S_RB))
    A.I('s_lshl_b32 %s, %s, 2' % (s(S_RB), s(S_RB)))
    A.I('s_bfe_u32 %s, s2, 0x20003' % s(S_TMP))
    A.I('s_add_u32 %s, %s, %s' % (s(S_RB), s(S_RB), s(S_TMP)))
    A.I('s_lshr_b32 %s, s2, 5' % s(S_CB))
    A.I('v_and_b32 %s, 63, v0' % v(V_LANE))
    A.I('v_and_b32 %s, 15, v0' % v(V_T))
    A.I('v_bfe_u32 %s, v0, 4, 2' % v(V_G))
    A.I('v_lshrrev_b32 %s, 6, v0' % v(V_TMP))
    A.I('v_readfirstlane_b32 %s, %s' % (s(S_W), v(V_TMP)))
    A.I('s_mov_b32 %s, 0x%x' % (s(S_LOG2E), LOG2E))
    A.I('v_lshlrev_b32 %s, 4, %s' % (v(V_L16), v(V_LANE)))
    t = [V_TMP + i for i in range(8)]
    A.I('v_and_b32 %s, 1, %s' % (v(t[0]), v(V_G)))
    A.I('v_lshlrev_b32 %s, 3, %s' % (v(t[0]), v(t[0])))
    A.I('v_lshl_add_u32 %s, %s, 4, %s' % (v(V_PB), v(V_T), v(t[0])))
    A.I('v_add_u32 %s, 1024, %s' % (v(V_PB), v(V_PB)))
    A.I('v_mul_u32_u24 %s, 80, %s' % (v(t[0]), v(V_T)))
    A.I('v_lshl_add_u32 %s, %s, 4, %s' % (v(V_KA0), v(V_G), v(t[0])))
    A.I('v_lshl_add_u32 %s, %s, 3, %s' % (v(V_KB0), v(V_G), v(t[0])))
    A.I('v_add_u32 %s, 64, %s' % (v(V_KB0), v(V_KB0)))
    A.I('v_lshrrev_b32 %s, 2, %s' % (v(t[1]), v(V_T)))
    A.I('v_add_u32 %s, 16, %s' % (v(t[1]), v(t[1])))
    A.I('v_and_b32 %s, 3, %s' % (v(t[2]), v(V_T)))
    A.I('v_cmp_eq_u32 vcc, 0, %s' % v(t[2]))
    A.I('v_mov_b32 %s, 20' % v(t[2]))
    A.I('v_cndmask_b32 %s, %s, %s, vcc' % (v(t[1]), v(t[2]), v(t[1])))
    A.I('v_mul_u32_u24 %s, 80, %s' % (v(t[0]), v(t[1])))
    A.I('v_lshl_add_u32 %s, %s, 4, %s' % (v(V_KA1), v(V_G), v(t[0])))
    A.I('v_lshl_add_u32 %s, %s, 3, %s' % (v(V_KB1), v(V_G), v(t[0])))
    A.I('v_add_u32 %s, 64, %s' % (v(V_KB1), v(V_KB1)))
    A.I('v_mov_b32 %s, 0x7ffffff0' % v(t[2]))
    A.I('v_cmp_gt_u32 vcc, 2, %s' % v(V_G))
    A.I('v_cndmask_b32 %s, %s, %s, vcc' % (v(V_KB0), v(t[2]), v(V_KB0)))
    A.I('v_cndmask_b32 %s, %s, %s, vcc' % (v(V_KB1), v(t[2]), v(V_KB1)))
    A.I('s_mul_i32 %s, %s, 160' % (s(S_TMP), s(S_CB)))
    for j in range(5):
        A.I('v_add_u32 %s, %d, %s' % (v(t[0]), 64 * j, v(V_LANE)))
        divmod_const(A, t[1], t[2], t[0], 10, 6554)
        A.I('v_mul_u32_u24 %s, 1280, %s' % (v(t[1]), v(t[1])))
        A.I('v_lshl_add_u32 %s, %s, 4, %s' % (v(t[1]), v(t[2]), v(t[1])))
        A.I('v_add_u32 %s, %s, %s' % (v(V_DM + j), s(S_TMP), v(t[1])))
    A.I('s_mul_i32 %s, %s, 40960' % (s(S_M0B), s(S_W)))
    A.I('v_lshrrev_b32 %s, 2, %s' % (v(t[0]), v(V_LANE)))
    A.I('v_mul_u32_u24 %s, 160, %s' % (v(t[0]), v(t[0])))
    A.I('v_and_b32 %s, 3, %s' % (v(t[1]), v(V_LANE)))
    A.I('v_lshl_add_u32 %s, %s, 3, %s' % (v(t[0]), v(t[1]), v(t[0])))
    A.I('v_add_u32 %s, %s, %s' % (v(V_RB), s(S_M0B), v(t[0])))
    A.I('v_bfe_u32 %s, %s, 2, 2' % (v(t[0]), v(V_LANE)))
    A.I('v_mul_u32_u24 %s, 20, %s' % (v(t[0]), v(t[0])))
    A.I('v_add3_u32 %s, %s, %s, 16' % (v(t[0]), v(t[0]), v(V_G)))
    A.I('v_mul_u32_u24 %s, 160, %s' % (v(t[0]), v(t[0])))
    A.I('v_lshl_add_u32 %s, %s, 3, %s' % (v(t[0]), v(t[1]), v(t[0])))
    A.I('v_add_u32 %s, %s, %s' % (v(V_RB4), s(S_M0B), v(t[0])))
    for i in range(4):
        A.I('s_add_u32 %s, %s, %d' % (s(S_TMP), s(S_W), i))
        A.I('s_and_b32 %s, %s, 3' % (s(S_TMP), s(S_TMP)))
        A.I('s_lshl_b32 %s, %s, 2' % (s(S_T2), s(S_RB)))
        A.I('s_add_u32 %s, %s, %s' % (s(S_TMP), s(S_TMP), s(S_T2)))
        A.I('s_mul_i32 %s, %s, 54' % (s(S_T2), s(S_TMP)))
        A.I('s_add_u32 %s, %s, %s' % (s(S_T2), s(S_T2), s(S_W)))
        A.I('s_lshl_b32 %s, %s, 10' % (s(S_ACT + i), s(S_T2)))
        if ACT_OFF:
            A.I('s_add_u32 %s, %s, %d' % (s(S_ACT + i), s(S_ACT + i), ACT_OFF))
        A.I('s_lshl_b32 %s, %s, 5' % (s(S_T2), s(S_TMP)))
        A.I('s_lshl_b32 %s, %s, 3' % (s(S_T3), s(S_W)))
        A.I('s_add_u32 %s, %s, %s' % (s(S_T2), s(S_T2), s(S_T3)))
        A.I('s_mul_i32 %s, %s, 1280' % (s(S_T2), s(S_T2)))
        A.I('s_add_u32 %s, %s, %d' % (s(S_PHI + i), s(S_T2), PHIQ_OFF))
    A.I('s_mul_i32 %s, %s, %d' % (s(S_KV), s(S_W), 8 * 1920))
    A.I('s_add_u32 %s, %s, %d' % (s(S_KV), s(S_KV), KVT_OFF))
    A.I('s_mul_i32 %s, %s, %d' % (s(S_W2O), s(S_W), 32 * 1280))
    A.I('s_waitcnt lgkmcnt(0)')
    srd(A, SRD_X, 4, 2048 * 640 * 2)
    srd(A, SRD_WO, 6, 640 * 640 * 2)
    srd(A, SRD_W2, 8, 1728 * 640 * 2)
    srd(A, SRD_OUT, 10, 2048 * 640 * 2)
    srd(A, SRD_WS, 12, WS_END)

    def dma_wo(j):
        A.I('s_mul_i32 %s, %s, %d' % (s(S_TMP), s(S_W), 160 * 1280))
        A.I('s_add_u32 %s, %s, %d' % (s(S_TMP), s(S_TMP), j * 32 * 1280))
        for q in range(5):
            A.I('s_add_u32 m0, %s, %d' % (s(S_M0B), j * SLOT + q * 1024))
            A.I('buffer_load_dwordx4 %s, %s, %s offen lds' % (v(V_DM + q), s(SRD_WO, 4), s(S_TMP)), vm=('wo', j))

    def w2slot(n):
        return (5 + n) % 8

    def dma_w2(n):
        A.I('s_add_u32 %s, %s, %d' % (s(S_TMP), s(S_W2O), n * 4 * 32 * 1280))
        for q in range(5):
            A.I('s_add_u32 m0, %s, %d' % (s(S_M0B), w2slot(n) * SLOT + q * 1024))
            A.I('buffer_load_dwordx4 %s, %s, %s offen lds' % (v(V_DM + q), s(SRD_W2, 4), s(S_TMP)), vm=('w2', n))

    def ld_act(n):
        b = ACT_B + (n % NACT) * 16
        for i in range(4):
            if n == NK - 1:
                pass
            A.I('s_add_u32 %s, %s, %d' % (s(S_TMP), s(S_ACT + i), n * 4096))
            A.I('buffer_load_dwordx4 %s, %s, %s, %s offen' % (a(b + 4 * i, 4), v(V_L16), s(SRD_WS, 4), s(S_TMP)), vm=('act', n))

    def ld_head(h):
        kb = KVF + (h % 2) * 12
        pb = PHF + (h % 2) * 24
        A.I('s_add_u32 %s, %s, %d' % (s(S_TMP), s(S_KV), h * 1920))
        A.I('buffer_load_dwordx4 %s, %s, %s, %s offen' % (v(kb, 4), v(V_KA0), s(SRD_WS, 4), s(S_TMP)), vm=('h', h))
        A.I('buffer_load_dwordx2 %s, %s, %s, %s offen' % (v(kb + 4, 2), v(V_KB0), s(SRD_WS, 4), s(S_TMP)), vm=('h', h))
        A.I('buffer_load_dwordx4 %s, %s, %s, %s offen' % (v(kb + 6, 4), v(V_KA1), s(SRD_WS, 4), s(S_TMP)), vm=('h', h))
        A.I('buffer_load_dwordx2 %s, %s, %s, %s offen' % (v(kb + 10, 2), v(V_KB1), s(SRD_WS, 4), s(S_TMP)), vm=('h', h))
        for i in range(4):
            A.I('s_add_u32 %s, %s, %d' % (s(S_TMP), s(S_PHI + i), h * 1280))
            A.I('buffer_load_dwordx4 %s, %s, %s, %s offen' % (v(pb + 6 * i, 4), v(V_L16), s(SRD_WS, 4), s(S_TMP)), vm=('h', h))
            A.I('buffer_load_dwordx2 %s, %s, %s, %s offen' % (v(pb + 6 * i + 4, 2), v(V_PB), s(SRD_WS, 4), s(S_TMP)), vm=('h', h))

    def do_head(h):
        kb = KVF + (h % 2) * 12
        pb = PHF + (h % 2) * 24
        A.wait(vm=('h', h))
        for i in range(4):
            for tl in range(2):
                d = v(DT + i * 8 + tl * 4, 4)
                A.I('v_mfma_f32_16x16x32_bf16 %s, %s, %s, 0' % (d, v(kb + 6 * tl, 4), v(pb + 6 * i, 4)))
        for i in range(4):
            for tl in range(2):
                d = v(DT + i * 8 + tl * 4, 4)
                A.I('v_mfma_f32_16x16x16_bf16 %s, %s, %s, %s' % (d, v(kb + 6 * tl + 4, 2), v(pb + 6 * i + 4, 2), d))

    def fin_head(h):
        for i in range(4):
            d = DT + i * 8
            A.I('v_add_f32 %s, 0x358637bd, %s' % (v(d + 5), v(d + 5)))
        for i in range(4):
            d = DT + i * 8
            A.I('v_rcp_f32 %s, %s' % (v(d + 5), v(d + 5)))
        for i in range(4):
            d = DT + i * 8
            for r_ in range(5):
                A.I('v_mul_f32 %s, %s, %s' % (v(d + r_), v(d + r_), v(d + 5)))
            o = OF + (i * 5 + h // 2) * 4 + (h % 2) * 2
            A.I('v_cvt_pk_bf16_f32 %s, %s, %s' % (v(o), v(d), v(d + 1)))
            A.I('v_cvt_pk_bf16_f32 %s, %s, %s' % (v(o + 1), v(d + 2), v(d + 3)))
            o4 = OF + (i * 5 + 4) * 4 + h // 2
            if h % 2 == 0:
                A.I('v_mov_b32 %s, %s' % (v(V_TMP + 8 + i), v(d + 4)))
            else:
                A.I('v_cvt_pk_bf16_f32 %s, %s, %s' % (v(o4), v(V_TMP + 8 + i), v(d + 4)))

    def rd_frags(setidx, offs, base, tag):
        for ft in range(5):
            w = WIN + (setidx * 5 + ft) * 4
            A.I('ds_read_b64_tr_b16 %s, %s offset:%d' % (v(w, 2), v(base), offs[0] + ft * 32), lg=(tag, ft))
            A.I('ds_read_b64_tr_b16 %s, %s offset:%d' % (v(w + 2, 2), v(base), offs[1] + ft * 32), lg=(tag, ft))

    def mm(setidx, tag, accb, bfrag, first, between=None):
        for ft in range(5):
            A.wait(lg=(tag, ft))
            w = WIN + (setidx * 5 + ft) * 4
            for i in range(4):
                d = a(accb + (ft * 4 + i) * 4, 4)
                A.I('v_mfma_f32_16x16x32_bf16 %s, %s, %s, %s' % (d, v(w, 4), bfrag(i), '0' if first else d))
            if between:
                between(ft)

    ld_head(0)
    ld_head(1)
    for j in range(5):
        dma_wo(j)
    for n in range(3):
        dma_w2(n)
    for n in range(NACT):
        ld_act(n)
    for h in range(8):
        do_head(h)
        if h + 2 < 8:
            ld_head(h + 2)
        fin_head(h)
    A.wait(vm=[('wo', j) for j in range(5)])

    def wo_offs(j):
        if j < 4:
            return (40 * j * 160, (40 * j + 20) * 160), V_RB
        return (0, 80 * 160), V_RB4
    o_, b_ = wo_offs(0)
    rd_frags(0, o_, b_, ('wo', 0))
    for j in range(5):
        if j + 1 < 5:
            o_, b_ = wo_offs(j + 1)
            rd_frags((j + 1) % 2, o_, b_, ('wo', j + 1))
        else:
            A.wait(vm=('w2', 0))
            rd_frags((j + 1) % 2, (w2slot(0) * SLOT, w2slot(0) * SLOT + 16 * 160), V_RB, ('w2', 0))
        mm(j % 2, ('wo', j), ACC_S, lambda i: v(OF + (i * 5 + j) * 4, 4), j == 0)
    for n in range(3, 8):
        dma_w2(n)
    for n in range(NK):
        st = (5 + n) % 2
        if n + 1 < NK:
            A.wait(vm=('w2', n + 1))
            rd_frags((st + 1) % 2, (w2slot(n + 1) * SLOT, w2slot(n + 1) * SLOT + 16 * 160), V_RB, ('w2', n + 1))
        A.wait(vm=('act', n))
        b = ACT_B + (n % NACT) * 16
        mm(st, ('w2', n), ACC_G, lambda i: a(b + 4 * i, 4), n == 0)
        if n + 8 < NK:
            dma_w2(n + 8)
        if n + NACT < NK:
            ld_act(n + NACT)

    XR = KVF
    A.I('s_lshl_b32 %s, %s, 6' % (s(S_TMP), s(S_RB)))
    A.I('s_lshl_b32 %s, %s, 4' % (s(S_T2), s(S_W)))
    A.I('s_add_u32 %s, %s, %s' % (s(S_TMP), s(S_TMP), s(S_T2)))
    A.I('s_mul_i32 %s, %s, 1280' % (s(S_TMP), s(S_TMP)))
    A.I('s_mul_i32 %s, %s, 160' % (s(S_T2), s(S_CB)))
    A.I('s_add_u32 %s, %s, %s' % (s(S_T3), s(S_TMP), s(S_T2)))
    VO = V_TMP
    A.I('v_mul_u32_u24 %s, 1280, %s' % (v(VO), v(V_T)))
    A.I('v_lshl_add_u32 %s, %s, 3, %s' % (v(VO), v(V_G), v(VO)))
    for ft in range(5):
        A.I('buffer_load_dwordx2 %s, %s, %s, %s offen offset:%d' % (v(XR + 2 * ft, 2), v(VO), s(SRD_X, 4), s(S_T3), ft * 32), vm='x')
    A.I('s_barrier')
    for i in range(1, 4):
        A.I('s_add_u32 %s, %s, %d' % (s(S_TMP), s(S_W), i))
        A.I('s_and_b32 %s, %s, 3' % (s(S_TMP), s(S_TMP)))
        A.I('s_mul_i32 %s, %s, 30720' % (s(S_TMP), s(S_TMP)))
        A.I('v_add_u32 %s, %s, %s' % (v(V_TMP + i), s(S_TMP), v(V_L16)))
        for k in range(10):
            src = (ACC_G if k < 5 else ACC_S) + ((k % 5) * 4 + i) * 4
            A.I('ds_write_b128 %s, %s offset:%d' % (v(V_TMP + i), a(src, 4), (i - 1) * 10240 + k * 1024), lg='ex')
    A.wait(lg='ex')
    A.I('s_barrier')
    A.I('s_mul_i32 %s, %s, 30720' % (s(S_TMP), s(S_W)))
    A.I('v_add_u32 %s, %s, %s' % (v(V_TMP + 1), s(S_TMP), v(V_L16)))
    R = 96
    for i in range(3):
        for k in range(10):
            A.I('ds_read_b128 %s, %s offset:%d' % (v(R + (i * 10 + k) * 4, 4), v(V_TMP + 1), i * 10240 + k * 1024), lg=('rx', k) if i == 2 else 'r')
    O = 216
    for k in range(10):
        src = (ACC_G if k < 5 else ACC_S) + ((k % 5) * 4) * 4
        for r_ in range(4):
            A.I('v_accvgpr_read_b32 %s, %s' % (v(O + k * 4 + r_), a(src + r_)))
    for k in range(10):
        A.wait(lg=('rx', k))
        for i in range(3):
            for r_ in range(4):
                A.I('v_add_f32 %s, %s, %s' % (v(O + k * 4 + r_), v(O + k * 4 + r_), v(R + (i * 10 + k) * 4 + r_)))
    A.wait(vm='x')
    T = 96
    for ft in range(5):
        g_, s_ = O + ft * 4, O + (5 + ft) * 4
        e = T + ft * 8
        for r_ in range(4):
            A.I('v_mul_f32 %s, %s, %s' % (v(e + r_), s(S_LOG2E), v(g_ + r_)))
        for r_ in range(4):
            A.I('v_exp_f32 %s, -%s' % (v(e + r_), v(e + r_)))
        for r_ in range(4):
            A.I('v_add_f32 %s, 1.0, %s' % (v(e + r_), v(e + r_)))
        for r_ in range(4):
            A.I('v_rcp_f32 %s, %s' % (v(e + r_), v(e + r_)))
        for r_ in range(4):
            A.I('v_mul_f32 %s, %s, %s' % (v(e + r_), v(e + r_), v(g_ + r_)))
        for h in range(2):
            A.I('v_lshlrev_b32 %s, 16, %s' % (v(e + 4 + 2 * h), v(XR + 2 * ft + h)))
            A.I('v_and_b32 %s, 0xffff0000, %s' % (v(e + 5 + 2 * h), v(XR + 2 * ft + h)))
        for r_ in range(4):
            A.I('v_fma_f32 %s, %s, %s, %s' % (v(e + r_), v(e + r_), v(s_ + r_), v(e + 4 + r_)))
        A.I('v_cvt_pk_bf16_f32 %s, %s, %s' % (v(e), v(e), v(e + 1)))
        A.I('v_cvt_pk_bf16_f32 %s, %s, %s' % (v(e + 1), v(e + 2), v(e + 3)))
        A.I('buffer_store_dwordx2 %s, %s, %s, %s offen offset:%d' % (v(e, 2), v(VO), s(SRD_OUT, 4), s(S_T3), ft * 32), vm='st')
    A.label('L_k2_end')
    A.I('s_endpgm')
```

```python
import sys
sys.path.insert(0, 'gen')
from asmlib import *
import k1, k2

NAME = 'recurrent_scan__linear_kernel_hedgehog__dense_activation_mish__prompt'

def kd(name, nv, acc_off, ns):
    return '''.p2align 6
.amdhsa_kernel %s
  .amdhsa_next_free_vgpr %d
  .amdhsa_next_free_sgpr %d
  .amdhsa_accum_offset %d
  .amdhsa_group_segment_fixed_size 0
  .amdhsa_kernarg_size 88
  .amdhsa_user_sgpr_count 2
  .amdhsa_user_sgpr_kernarg_segment_ptr 1
  .amdhsa_system_sgpr_workgroup_id_x 1
.end_amdhsa_kernel
''' % (name, nv, ns, acc_off)

def main(out):
    import os
    Asm.stamps_on = os.environ.get('STAMP', '0') == '1'
    A1 = Asm(); k1.gen_k1(A1, int(os.environ.get('MAP', '1')))
    A2 = Asm(); k2.gen_k2(A2)
    lds1 = max(k1.F_LDS, k1.A_LDS)
    hdr = '''; generated by gen/gen.py (hand-written generator) -- two launches
; @launch kernel=k1_kernel grid=(256,1,1) block=(512,1,1) lds=%d
; @launch kernel=k2_kernel grid=(256,1,1) block=(512,1,1) lds=%d
.amdgcn_target "amdgcn-amd-amdhsa--gfx950"
.text
''' % (lds1, k2.K2_LDS)
    txt = hdr
    for nm, A in (('k1_kernel', A1), ('k2_kernel', A2)):
        txt += '.globl %s\n.p2align 8\n.type %s,@function\n' % (nm, nm) + A.text()
    txt += '.section .rodata,"a"\n'
    txt += kd('k1_kernel', 256, 256, 102)
    txt += kd('k2_kernel', 256, 256, 102)
    open(out, 'w').write(txt)
    print('k1 instrs', A1.nins, 'maxv', A1.maxv, 'maxa', A1.maxa, 'maxs', A1.maxs)
    print('k2 instrs', A2.nins, 'maxv', A2.maxv, 'maxa', A2.maxa, 'maxs', A2.maxs)

if __name__ == '__main__':
    main(sys.argv[1] if len(sys.argv) > 1 else 'cdna_kernels/%s.s' % NAME)
```

```python
import re

TRANS = ('v_exp_f32', 'v_log_f32', 'v_rcp_f32', 'v_rsq_f32', 'v_sqrt_f32', 'v_sin_f32', 'v_cos_f32')
REG_RE = re.compile(r'^(-?)(\|?)(abs\()?([vas])(\d+|\[(\d+):(\d+)\])\)?(\|?)$')


def regs_of(op):
    op = op.strip()
    if op in ('vcc',):
        return [('s', 106), ('s', 107)]
    if op in ('exec',):
        return [('s', 126), ('s', 127)]
    if op == 'm0':
        return [('s', 124)]
    if op == 'vcc_lo':
        return [('s', 106)]
    if op == 'exec_lo':
        return [('s', 126)]
    if op == 'exec_hi':
        return [('s', 127)]
    m = REG_RE.match(op)
    if not m:
        return []
    f = m.group(4)
    if m.group(6) is not None:
        return [(f, i) for i in range(int(m.group(6)), int(m.group(7)) + 1)]
    return [(f, int(m.group(5)))]


def split_ops(s):
    ops, depth, cur = [], 0, ''
    for ch in s:
        if ch in '[(':
            depth += 1
        if ch in '])':
            depth -= 1
        if ch == ',' and depth == 0:
            ops.append(cur.strip())
            cur = ''
        else:
            cur += ch
    if cur.strip():
        ops.append(cur.strip())
    res = []
    for o in ops:
        res.append(o.split(' ')[0])
    return res


class Ins:
    __slots__ = ('slot', 'kind', 'mn', 'reads', 'writes', 'passes', 'srcc', 'srcab', 'wide')


class Asm:
    def __init__(self):
        self.out = []
        self.hist = []
        self.slot = 0
        self.vmq = []
        self.lgq = []
        self.nins = 0
        self.maxv = -1
        self.maxa = -1
        self.maxs = -1

    def snap(self):
        return (list(self.hist), self.slot, list(self.vmq), list(self.lgq))

    def restore(self, s):
        self.hist, self.slot, self.vmq, self.lgq = list(s[0]), s[1], list(s[2]), list(s[3])

    def raw(self, text):
        self.out.append(text)

    def label(self, name):
        if self.deferring is not None:
            return self._rec(self.label, name)
        self.out.append(name + ':')

    def comment(self, t):
        self.out.append('  ; ' + t)

    def flush_hazards(self):
        self.nop(12)

    def nop(self, n):
        if self.deferring is not None:
            return self._rec(self.nop, n)
        while n > 0:
            k = min(n, 16)
            self.out.append('  s_nop %d' % (k - 1))
            self.slot += k
            self.nins += 1
            n -= k

    def classify(self, text):
        t = text.strip()
        sp = t.find(' ')
        mn = t if sp < 0 else t[:sp]
        rest = '' if sp < 0 else t[sp + 1:]
        ops = split_ops(rest)
        i = Ins()
        i.mn = mn
        i.reads, i.writes, i.passes, i.srcc, i.srcab, i.wide = [], [], 0, [], [], False
        R = regs_of
        if mn.startswith('v_mfma'):
            i.kind = 'mfma'
            i.passes = 8 if '32x32' in mn else 4
            i.writes = R(ops[0])
            i.srcab = R(ops[1]) + R(ops[2])
            i.srcc = R(ops[3])
            i.reads = i.srcab + i.srcc
        elif mn.startswith('v_'):
            i.kind = 'valu'
            if mn in TRANS:
                i.kind = 'trans'
            if mn.startswith('v_dot'):
                i.kind = 'dl'
            if mn.startswith('v_permlane'):
                i.kind = 'perm'
                i.writes = R(ops[0]) + R(ops[1])
                i.reads = R(ops[0]) + R(ops[1])
            elif mn.startswith('v_readfirstlane') or mn.startswith('v_readlane'):
                i.kind = 'rdl'
                i.writes = R(ops[0])
                for o in ops[1:]:
                    i.reads += R(o)
            elif mn.startswith('v_add_co') or mn.startswith('v_sub_co') or mn.startswith('v_addc_co'):
                i.writes = R(ops[0]) + R(ops[1])
                for o in ops[2:]:
                    i.reads += R(o)
            else:
                i.writes = R(ops[0])
                for o in ops[1:]:
                    i.reads += R(o)
                if mn.startswith('v_fmac') or mn.startswith('v_dot2c') or mn.startswith('v_pk_fmac'):
                    i.reads += R(ops[0])
                if mn.startswith('v_cndmask') and len(ops) == 3:
                    i.reads += R('vcc')
        elif mn.startswith('ds_'):
            i.kind = 'lds'
            if mn.startswith('ds_read') or mn.startswith('ds_bpermute') or mn.startswith('ds_swizzle'):
                i.writes = R(ops[0])
                for o in ops[1:]:
                    i.reads += R(o)
            else:
                for o in ops:
                    i.reads += R(o)
        elif mn.startswith('buffer_') or mn.startswith('global_'):
            i.kind = 'vmem'
            islds = re.search(r'\blds\b', rest) is not None
            if mn.startswith('buffer_load') and not islds:
                i.writes = R(ops[0])
                for o in ops[1:]:
                    i.reads += R(o)
            elif islds:
                i.kind = 'dma'
                for o in ops:
                    i.reads += R(o)
                i.reads += R('m0')
            else:
                for o in ops:
                    i.reads += R(o)
                if mn.startswith('buffer_atomic') and re.search(r'\bsc0\b', rest):
                    i.writes = R(ops[0])
                if mn.startswith('buffer_store') and ('x4' in mn or 'x3' in mn):
                    i.wide = True
                    i.srcab = R(ops[0])
        elif mn.startswith('s_'):
            i.kind = 'salu'
            if mn in ('s_waitcnt', 's_barrier', 's_nop', 's_branch', 's_endpgm', 's_sleep', 's_setprio') or mn.startswith('s_cbranch') or mn.startswith('s_cmp'):
                for o in ops:
                    i.reads += R(o)
            elif ops:
                i.writes = R(ops[0])
                for o in ops[1:]:
                    i.reads += R(o)
        else:
            raise ValueError('unknown instr ' + text)
        for f, n in i.reads + i.writes:
            if f == 'v':
                self.maxv = max(self.maxv, n)
            elif f == 'a':
                self.maxa = max(self.maxa, n)
            elif f == 's' and n < 102:
                self.maxs = max(self.maxs, n)
        return i

    def need(self, p, c):
        VAL = ('valu', 'trans', 'dl', 'perm', 'rdl')
        n = 0
        pw = set(p.writes)
        cr, cw = set(c.reads), set(c.writes)
        if p.kind in VAL:
            vw = {r for r in pw if r[0] in 'va'}
            sw = {r for r in pw if r[0] == 's'}
            if c.kind == 'mfma' and vw & cr:
                n = max(n, 3 if p.kind == 'dl' else 2)
            if p.kind == 'trans' and c.kind in VAL and c.kind != 'trans' and vw & cr:
                n = max(n, 1)
            if c.kind == 'rdl' and vw & cr:
                n = max(n, 1)
            if c.kind == 'perm' and vw & cr:
                n = max(n, 2)
            if p.kind == 'dl' and vw & (cr | cw):
                if c.mn == p.mn:
                    n = max(n, 0)
                else:
                    n = max(n, 3)
            if sw:
                if c.kind in VAL and sw & cr:
                    n = max(n, 4 if c.kind == 'rdl' else 2)
                if c.kind in ('vmem', 'dma') and sw & cr:
                    n = max(n, 5)
                if c.kind == 'salu' and sw & cr:
                    n = max(n, 1)
        if p.kind == 'mfma':
            big = {4: 8, 8: 12}[p.passes]
            ovl = {4: 6, 8: 10}[p.passes]
            if c.kind == 'mfma':
                if pw & set(c.srcab):
                    n = max(n, big)
                if pw & set(c.srcc):
                    if not (c.srcc == p.writes and c.passes == p.passes):
                        n = max(n, ovl)
                if pw & cw and not (c.srcc == p.writes and c.passes == p.passes):
                    n = max(n, ovl)
            elif c.kind in VAL or c.kind in ('vmem', 'lds', 'dma'):
                if pw & (cr | cw):
                    n = max(n, big)
            if c.kind in VAL and set(p.srcc) & cw:
                n = max(n, {4: 3, 8: 7}[p.passes])
        if p.kind == 'vmem' and p.wide and c.kind in VAL + ('lds', 'vmem') and set(p.srcab) & cw:
            n = max(n, 2)
        if p.kind == 'salu' and ('s', 124) in pw and c.kind == 'dma':
            n = max(n, 1)
        return n

    deferring = None

    def defer_begin(self):
        self.deferring = []
        self._grp = None

    def defer_end(self):
        q, self.deferring = self.deferring, None
        return q

    def group_begin(self):
        if self.deferring is not None:
            self._grp = []

    def group_end(self):
        if self.deferring is not None:
            self.deferring.append(self._grp)
            self._grp = None

    def _rec(self, fn, *args, **kw):
        item = (fn, args, kw)
        if self._grp is not None:
            self._grp.append(item)
        else:
            self.deferring.append([item])

    def drain(self, q, n):
        k = 0
        while q and k < n:
            for fn, args, kw in q.pop(0):
                fn(*args, **kw)
                k += 1

    def pop_vm(self):
        if self.deferring is not None:
            return self._rec(self.pop_vm)
        self.vmq.pop()

    def I(self, text, vm=None, lg=None):
        if self.deferring is not None:
            return self._rec(self.I, text, vm=vm, lg=lg)
        ins = self.classify(text)
        pad = 0
        for p in self.hist:
            nd = self.need(p, ins)
            if nd:
                dist = self.slot - p.slot - 1
                pad = max(pad, nd - dist)
        if pad > 0:
            self.nop(pad)
        ins.slot = self.slot
        self.slot += 1
        self.hist.append(ins)
        while self.hist and self.slot - self.hist[0].slot > 24:
            self.hist.pop(0)
        self.out.append('  ' + text)
        self.nins += 1
        if ins.kind in ('vmem', 'dma'):
            self.vmq.append(vm)
        if ins.kind == 'lds':
            self.lgq.append(lg)
        return ins

    def _count_after(self, q, tags):
        last = -1
        for idx, t in enumerate(q):
            if t in tags:
                last = idx
        if last < 0:
            return None
        return len(q) - 1 - last

    def wait(self, vm=None, lg=None):
        if self.deferring is not None:
            return self._rec(self.wait, vm=vm, lg=lg)
        parts = []
        if vm is not None:
            tags = vm if isinstance(vm, (list, set)) else [vm]
            n = self._count_after(self.vmq, tags)
            if n is not None:
                n2 = min(n, 63)
                parts.append('vmcnt(%d)' % n2)
                self.vmq = self.vmq[len(self.vmq) - n2:] if n2 else []
        if lg is not None:
            tags = lg if isinstance(lg, (list, set)) else [lg]
            n = self._count_after(self.lgq, tags)
            if n is not None:
                n2 = min(n, 15)
                parts.append('lgkmcnt(%d)' % n2)
                self.lgq = self.lgq[len(self.lgq) - n2:] if n2 else []
        if parts:
            self.I('s_waitcnt ' + ' '.join(parts))

    def wait_all(self, vm=False, lg=False):
        parts = []
        if vm:
            parts.append('vmcnt(0)')
            self.vmq = []
        if lg:
            parts.append('lgkmcnt(0)')
            self.lgq = []
        self.I('s_waitcnt ' + ' '.join(parts))

    stamps_on = False
    STAMP_OFF = 32 << 20

    def stamp(self, idx):
        if not self.stamps_on:
            return
        self.I('s_memtime s[86:87]')
        self.wait_all(lg=True)
        self.I('s_mov_b32 s%d, s86' % (64 + idx))

    def stamp_flush(self, wsptr_lo, s_wave, nwaves):
        if not self.stamps_on:
            return
        self.I('s_mov_b32 s80, s%d' % wsptr_lo)
        self.I('s_and_b32 s81, s%d, 0xffff' % (wsptr_lo + 1))
        self.I('s_mov_b32 s82, 0x4000000')
        self.I('s_mov_b32 s83, 0x20000')
        self.I('s_mul_i32 s84, s2, %d' % nwaves)
        self.I('s_add_u32 s84, s84, s%d' % s_wave)
        self.I('s_lshl_b32 s84, s84, 6')
        self.I('s_add_u32 s84, s84, %d' % self.STAMP_OFF)
        self.I('v_mov_b32 v22, 0')
        self.I('s_mov_b64 exec, 1')
        for i in range(16):
            self.I('v_mov_b32 v23, s%d' % (64 + i))
            self.I('buffer_store_dword v23, v22, s[80:83], s84 offen offset:%d' % (4 * i))
        self.I('s_mov_b64 exec, -1')

    def text(self):
        return '\n'.join(self.out) + '\n'


def v(n, cnt=1):
    return 'v%d' % n if cnt == 1 else 'v[%d:%d]' % (n, n + cnt - 1)


def a(n, cnt=1):
    return 'a%d' % n if cnt == 1 else 'a[%d:%d]' % (n, n + cnt - 1)


def s(n, cnt=1):
    return 's%d' % n if cnt == 1 else 's[%d:%d]' % (n, n + cnt - 1)
```

```python
from asmlib import *

ACT_OFF = 0
PHIQ_OFF = 128 * 54 * 1024
KVA_OFF = PHIQ_OFF + 128 * 32 * 1280
STAT_OFF = KVA_OFF + 32 * 3360 + 1024
CSP_OFF = STAT_OFF + 2048 * 8
WR_OFF = CSP_OFF + 16 * 16 * 1024
WR_WAVE = 19 * 5120
WS_END = WR_OFF + 32 * WR_WAVE

LOG2E = 0x3fb8aa3b
BIG = 0x7ffffff0

SRD_X, SRD_W, SRD_WS, SRD_AUX, SRD_DBG = 20, 24, 28, 32, 36
S_TB, S_FB, S_W, S_TG, S_GRP, S_M0B, S_TMP, S_M0X, S_LOG2E = 40, 41, 42, 43, 44, 45, 46, 47, 48
S_XOFF = 49
S_DT = 50
S_MASK = 52
S_T3, S_T4 = 54, 55
S_P0, S_M0Q, S_HF, S_T5 = 56, 56, 57, 58
V_LANE, V_T, V_G = 1, 2, 3
V_DM0, V_DM1, V_RB0, V_RB1, V_DX0, V_DX1, V_ONES = 4, 5, 6, 7, 8, 9, 20
V_XR0 = 10
V_NM = 14
V_N, V_HI = 16, 17
V_POLL, V_PA = 18, 19
V_TMP0, V_TMP1 = 22, 23
WIN, ACC, XF, HK = 24, 40, 104, 136
D_RING = 6
XP = 16384
DBG_STAT, DBG_CS = 16, 32


def srd(A, d, lo, size):
    A.I('s_mov_b32 %s, %s' % (s(d), s(lo)))
    A.I('s_and_b32 %s, %s, 0xffff' % (s(d + 1), s(lo + 1)))
    A.I('s_mov_b32 %s, 0x%x' % (s(d + 2), size))
    A.I('s_mov_b32 %s, 0x20000' % s(d + 3))


def swap23(A, dst, src, t0):
    A.I('v_and_b32 %s, 0x13, %s' % (v(dst), v(src)))
    A.I('v_and_b32 %s, 4, %s' % (v(t0), v(src)))
    A.I('v_lshl_or_b32 %s, %s, 1, %s' % (v(dst), v(t0), v(dst)))
    A.I('v_and_b32 %s, 8, %s' % (v(t0), v(src)))
    A.I('v_lshrrev_b32 %s, 1, %s' % (v(t0), v(t0)))
    A.I('v_or_b32 %s, %s, %s' % (v(dst), v(dst), v(t0)))


def divmod_const(A, q, r, x, c, magic):
    A.I('v_mul_u32_u24 %s, %d, %s' % (v(q), magic, v(x)))
    A.I('v_lshrrev_b32 %s, 16, %s' % (v(q), v(q)))
    A.I('v_mul_u32_u24 %s, %d, %s' % (v(r), c, v(q)))
    A.I('v_sub_u32 %s, %s, %s' % (v(r), v(x), v(r)))


def trbase(A, dst, rowbytes, t0, t1):
    A.I('v_lshrrev_b32 %s, 1, %s' % (v(t0), v(V_G)))
    A.I('v_lshlrev_b32 %s, 4, %s' % (v(t0), v(t0)))
    A.I('v_and_b32 %s, 1, %s' % (v(t1), v(V_G)))
    A.I('v_lshl_add_u32 %s, %s, 2, %s' % (v(t0), v(t1), v(t0)))
    A.I('v_bfe_u32 %s, %s, 2, 2' % (v(t1), v(V_LANE)))
    A.I('v_add_u32 %s, %s, %s' % (v(t0), v(t0), v(t1)))
    A.I('v_mul_u32_u24 %s, %d, %s' % (v(t0), rowbytes, v(t0)))
    A.I('v_and_b32 %s, 3, %s' % (v(t1), v(V_LANE)))
    A.I('v_lshl_add_u32 %s, %s, 3, %s' % (v(dst), v(t1), v(t0)))


def xf(sk, ks):
    return XF + ((sk % 4) * 2 + ks) * 4


def dma_x(A, p, xbase):
    A.I('s_add_u32 %s, %s, %d' % (s(S_DT), s(S_XOFF), p * 128))
    for j, d in enumerate((V_DX0, V_DX1)):
        A.I('s_add_u32 m0, %s, %d' % (s(S_M0X), xbase + (p % 3) * XP + j * 1024))
        A.I('buffer_load_dwordx4 %s, %s, %s offen lds' % (v(d), s(SRD_X, 4), s(S_DT)), vm=('xp', p))


class Loop:
    def __init__(self, A, name, tiles, ks_off, half_off, dma_issue, xbase, hooks=None, nwin=4, fillers=None):
        self.__dict__.update(locals())
        self.hooks = hooks or {}
        self.nf = 2 * len(tiles)

    def rd(self, F):
        A = self.A
        sk, fi = divmod(F, self.nf)
        ks, ti = divmod(fi, len(self.tiles))
        slot = sk % D_RING
        base = V_RB0 if slot < 3 else V_RB1
        off = (slot % 3) * F_SLOT + ks * self.ks_off + self.tiles[ti][0]
        w = WIN + (F % self.nwin) * 4
        A.I('ds_read_b64_tr_b16 %s, %s offset:%d' % (v(w, 2), v(base), off), lg=('f', F))
        A.I('ds_read_b64_tr_b16 %s, %s offset:%d' % (v(w + 2, 2), v(base), off + self.half_off), lg=('f', F))

    def sync_stage(self, sk):
        A = self.A
        tags = [('dma', sk)]
        if sk % 2 == 0:
            tags.append(('xp', sk // 2))
        A.wait(vm=tags)
        A.I('s_barrier')
        if sk % 2 == 0:
            p = sk // 2
            for s4 in range(4):
                A.I('ds_read_b128 %s, %s offset:%d' % (v(xf(sk + s4 // 2, s4 % 2), 4), v(V_XR0 + s4), (p % 3) * XP), lg=('x', sk + s4 // 2))
        if self.name.endswith('1') and sk >= 2:
            self.pending = sk
            return
        self.issue_after(sk)

    def issue_after(self, sk):
        A = self.A
        if sk == 0:
            self.dma_issue(2)
            dma_x(A, 2, self.xbase)
            self.dma_issue(3)
        elif sk == 1:
            self.dma_issue(4)
            self.dma_issue(5)
        elif sk + 4 <= 19:
            self.dma_issue(sk + 4)
        if sk % 2 == 1 and (sk // 2 + 3) < 10:
            dma_x(A, sk // 2 + 3, self.xbase)

    def run(self):
        A = self.A
        tot = 20 * self.nf
        la = self.nwin - 1
        self.pending = None
        self.sync_stage(0)
        A.stamp(1)
        for F in range(la):
            self.rd(F)
        for sk in range(20):
            if sk in (1, 5, 10):
                A.stamp({1: 2, 5: 3, 10: 4}[sk])
            if sk in self.hooks:
                self.hooks[sk]()
            for fi in range(self.nf):
                F = sk * self.nf + fi
                Fn = F + la
                if Fn < tot:
                    if Fn % self.nf == 0:
                        self.sync_stage(Fn // self.nf)
                    self.rd(Fn)
                A.wait(lg=[('f', F), ('x', sk)])
                w = WIN + (F % self.nwin) * 4
                ks, ti = divmod(fi, len(self.tiles))
                d = v(self.tiles[ti][1], 16)
                A.I('v_mfma_f32_32x32x16_bf16 %s, %s, %s, %s' % (d, v(w, 4), v(xf(sk, ks), 4), d if (sk or ks) else '0'))
                if self.pending is not None and fi == 1:
                    self.issue_after(self.pending)
                    self.pending = None
                if self.fillers:
                    A.drain(self.fillers, 4)
        assert not self.fillers
        A.stamp(5)


def stats_to_mr(A, vsum, vsq, nm, r, t0):
    A.I('v_mul_f32 %s, 0x3acccccd, %s' % (v(vsum), v(vsum)))
    A.I('v_mul_f32 %s, 0x3acccccd, %s' % (v(vsq), v(vsq)))
    A.I('v_fma_f32 %s, -%s, %s, %s' % (v(vsq), v(vsum), v(vsum), v(vsq)))
    A.I('v_max_f32 %s, 0, %s' % (v(vsq), v(vsq)))
    A.I('v_cvt_pk_bf16_f32 %s, %s, %s' % (v(t0), v(vsum), v(vsq)))
    A.I('v_lshlrev_b32 %s, 16, %s' % (v(nm), v(t0)))
    A.I('v_xor_b32 %s, 0x80000000, %s' % (v(nm), v(nm)))
    A.I('v_and_b32 %s, 0xffff0000, %s' % (v(t0), v(t0)))
    A.I('v_add_f32 %s, 0x3727c5ac, %s' % (v(t0), v(t0)))
    A.I('v_cvt_pk_bf16_f32 %s, %s, %s' % (v(t0), v(t0), v(t0)))
    A.I('v_and_b32 %s, 0xffff0000, %s' % (v(t0), v(t0)))
    A.I('v_sqrt_f32 %s, %s' % (v(t0), v(t0)))
    A.I('v_cvt_pk_bf16_f32 %s, %s, %s' % (v(t0), v(t0), v(t0)))
    A.I('v_and_b32 %s, 0xffff0000, %s' % (v(t0), v(t0)))
    A.I('v_rcp_f32 %s, %s' % (v(r), v(t0)))


def wave_sum(A, regs, t):
    for ctl in ('quad_perm:[1,0,3,2]', 'quad_perm:[2,3,0,1]', 'row_half_mirror', 'row_mirror'):
        A.nop(2)
        for r_ in regs:
            A.I('v_add_f32_dpp %s, %s, %s %s row_mask:0xf bank_mask:0xf' % (v(r_), v(r_), v(r_), ctl))
    for op in ('v_permlane16_swap_b32', 'v_permlane32_swap_b32'):
        for r_, t_ in zip(regs, t):
            A.I('v_mov_b32 %s, %s' % (v(t_), v(r_)))
        for r_, t_ in zip(regs, t):
            A.I('%s %s, %s' % (op, v(r_), v(t_)))
        for r_, t_ in zip(regs, t):
            A.I('v_add_f32 %s, %s, %s' % (v(r_), v(r_), v(t_)))


class Coop:
    def __init__(self, A, rowbytes, csw_lds, cs_lds, colmap):
        self.__dict__.update(locals())
        self.SR = ACC
        self.CR = ACC + 8
        self.T = ACC + 20

    def issue_loads(self):
        A, T = self.A, self.T
        A.I('s_lshl_b32 %s, %s, 7' % (s(S_TMP), s(S_TB)))
        A.I('s_lshl_b32 %s, %s, 3' % (s(S_T3), s(S_FB)))
        A.I('s_add_u32 %s, %s, %s' % (s(S_TMP), s(S_TMP), s(S_T3)))
        A.I('s_add_u32 %s, %s, %s' % (s(S_T5), s(S_TMP), s(S_W)))
        A.I('s_mul_i32 %s, %s, 1280' % (s(S_TMP), s(S_T5)))
        A.I('v_lshlrev_b32 %s, 4, %s' % (v(T), v(V_LANE)))
        A.I('buffer_load_dwordx4 %s, %s, %s, %s offen' % (v(self.SR, 4), v(T), s(SRD_X, 4), s(S_TMP)), vm='sl')
        A.I('v_mov_b32 %s, 0x%x' % (v(T + 1), BIG))
        A.I('v_cmp_gt_u32 vcc, 16, %s' % v(V_LANE))
        A.I('v_cndmask_b32 %s, %s, %s, vcc' % (v(T + 1), v(T + 1), v(T)))
        A.I('buffer_load_dwordx4 %s, %s, %s, %s offen offset:1024' % (v(self.SR + 4, 4), v(T + 1), s(SRD_X, 4), s(S_TMP)), vm='sl')
        self.colmap(T + 2, T + 3)
        A.I('s_mul_i32 %s, %s, 40' % (s(S_TMP), s(S_TB)))
        A.I('s_mul_i32 %s, %s, 5' % (s(S_T3), s(S_W)))
        A.I('s_add_u32 %s, %s, %s' % (s(S_TMP), s(S_TMP), s(S_T3)))
        A.I('s_mul_i32 %s, %s, %d' % (s(S_TMP), s(S_TMP), self.rowbytes))
        for i in range(5):
            A.I('buffer_load_dwordx2 %s, %s, %s, %s offen' % (v(self.CR + 2 * i, 2), v(T + 2), s(SRD_W, 4), s(S_TMP)), vm='cl')
            if i < 4:
                A.I('s_add_u32 %s, %s, %d' % (s(S_TMP), s(S_TMP), self.rowbytes))

    def compute(self):
        A, T = self.A, self.T
        SU, SQ = T + 4, T + 5
        A.I('v_mov_b32 %s, 0' % v(SU))
        A.I('v_mov_b32 %s, 0' % v(SQ))
        A.wait(vm='sl')
        for i in range(8):
            A.I('v_dot2c_f32_bf16 %s, %s, %s' % (v(SU), v(self.SR + i), v(V_ONES)))
            A.I('v_dot2c_f32_bf16 %s, %s, %s' % (v(SQ), v(self.SR + i), v(self.SR + i)))
        A.nop(3)
        wave_sum(A, [SU, SQ], [T + 6, T + 7])
        stats_to_mr(A, SU, SQ, T + 8, T + 9, T + 6)
        A.I('s_lshl_b32 %s, %s, 3' % (s(S_TMP), s(S_T5)))
        A.I('s_add_u32 %s, %s, %d' % (s(S_TMP), s(S_TMP), STAT_OFF))
        A.I('v_mov_b32 %s, 0' % v(T + 6))
        A.I('s_mov_b64 exec, 1')
        A.I('buffer_store_dwordx2 %s, %s, %s, %s offen sc1' % (v(T + 8, 2), v(T + 6), s(SRD_WS, 4), s(S_TMP)), vm='sst')
        A.I('s_mov_b64 exec, -1')
        A.I('v_lshlrev_b32 %s, 2, v0' % v(T + 7))
        A.I('v_mov_b32 %s, 0x%x' % (v(T + 14), BIG))
        A.I('v_cmp_gt_u32 vcc, 105, v0')
        A.I('v_cndmask_b32 %s, %s, %s, vcc' % (v(T + 7), v(T + 14), v(T + 7)))
        A.I('s_mul_i32 %s, s2, 420' % s(S_TMP))
        A.I('s_add_u32 %s, %s, %d' % (s(S_TMP), s(S_TMP), KVA_OFF))
        A.I('buffer_store_dword %s, %s, %s, %s offen sc1' % (v(T + 6), v(T + 7), s(SRD_WS, 4), s(S_TMP)), vm='sst')
        A.wait(vm='cl')
        C = T + 10
        for i in range(5):
            for h in range(2):
                r_ = self.CR + 2 * i + h
                if i == 0:
                    A.I('v_lshlrev_b32 %s, 16, %s' % (v(C + 2 * h), v(r_)))
                    A.I('v_and_b32 %s, 0xffff0000, %s' % (v(C + 2 * h + 1), v(r_)))
                else:
                    A.I('v_lshlrev_b32 %s, 16, %s' % (v(T + 6), v(r_)))
                    A.I('v_and_b32 %s, 0xffff0000, %s' % (v(T + 7), v(r_)))
                    A.I('v_add_f32 %s, %s, %s' % (v(C + 2 * h), v(C + 2 * h), v(T + 6)))
                    A.I('v_add_f32 %s, %s, %s' % (v(C + 2 * h + 1), v(C + 2 * h + 1), v(T + 7)))
        A.I('s_lshl_b32 %s, %s, 10' % (s(S_TMP), s(S_W)))
        A.I('s_add_u32 %s, %s, %d' % (s(S_TMP), s(S_TMP), self.csw_lds))
        A.I('v_lshlrev_b32 %s, 4, %s' % (v(T + 6), v(V_LANE)))
        A.I('v_add_u32 %s, %s, %s' % (v(T + 6), s(S_TMP), v(T + 6)))
        A.I('ds_write_b128 %s, %s' % (v(T + 6), v(C, 4)), lg='z')

    def hook_reduce(self):
        A = self.A
        R = HK
        A.I('s_lshl_b32 %s, %s, 8' % (s(S_TMP), s(S_TG)))
        A.I('s_add_u32 %s, %s, %d' % (s(S_TMP), s(S_TMP), self.csw_lds))
        A.I('v_lshlrev_b32 %s, 2, %s' % (v(R + 8), v(V_LANE)))
        A.I('v_add_u32 %s, %s, %s' % (v(R + 9), s(S_TMP), v(R + 8)))
        for i in range(8):
            A.I('ds_read_b32 %s, %s offset:%d' % (v(R + i), v(R + 9), i * 1024), lg='cr')

    def hook_reduce2(self):
        A = self.A
        R = HK
        A.wait(lg='cr')
        for i in range(1, 8):
            A.I('v_add_f32 %s, %s, %s' % (v(R), v(R), v(R + i)))
        A.I('s_lshl_b32 %s, %s, 4' % (s(S_TMP), s(S_FB)))
        A.I('s_add_u32 %s, %s, %s' % (s(S_TMP), s(S_TMP), s(S_TB)))
        A.I('s_lshl_b32 %s, %s, 10' % (s(S_TMP), s(S_TMP)))
        A.I('s_lshl_b32 %s, %s, 8' % (s(S_T3), s(S_TG)))
        A.I('s_add_u32 %s, %s, %s' % (s(S_TMP), s(S_TMP), s(S_T3)))
        A.I('s_add_u32 %s, %s, %d' % (s(S_TMP), s(S_TMP), CSP_OFF))
        A.I('buffer_store_dword %s, %s, %s, %s offen sc1' % (v(R), v(R + 8), s(SRD_WS, 4), s(S_TMP)), vm='cst')

    def hook_waitst(self):
        self.A.wait(vm=['sst', 'cst'])

    def hook_signal(self, grp, name):
        A = self.A
        if grp != 0:
            return
        R = HK + 10
        A.I('v_mov_b32 %s, 1' % v(R))
        A.I('s_and_b32 %s, s2, 1' % s(S_TMP))
        A.I('s_lshl_b32 %s, %s, 7' % (s(S_TMP), s(S_TMP)))
        A.I('v_mov_b32 %s, %s' % (v(R + 1), s(S_TMP)))
        A.I('v_lshlrev_b32 %s, 7, %s' % (v(V_PA), v(V_LANE)))
        A.I('v_and_b32 %s, 128, %s' % (v(V_PA), v(V_PA)))
        A.I('s_cmp_lg_u32 %s, 0' % s(S_TG))
        A.I('s_cbranch_scc1 L_%s_nosig' % name)
        A.I('s_mov_b64 exec, 1')
        A.I('buffer_atomic_add %s, %s, %s, 0 offen sc1' % (v(R), v(R + 1), s(SRD_DBG, 4)), vm='at')
        A.vmq.pop()
        A.I('s_mov_b64 exec, -1')
        A.label('L_%s_nosig' % name)

    def hook_poll(self, grp, name):
        A = self.A
        if grp != 0:
            return
        lp, ld = 'L_%s_poll' % name, 'L_%s_pdone' % name
        A.wait(vm='poll')
        A.I('s_cmp_lg_u32 %s, 0' % s(S_TG))
        A.I('s_cbranch_scc1 %s' % ld)
        A.label(lp)
        A.I('v_readlane_b32 %s, %s, 0' % (s(S_TMP), v(V_POLL)))
        A.I('v_readlane_b32 %s, %s, 1' % (s(S_T3), v(V_POLL)))
        A.I('s_min_u32 %s, %s, %s' % (s(S_TMP), s(S_TMP), s(S_T3)))
        A.I('s_cmp_ge_u32 %s, 128' % s(S_TMP))
        A.I('s_cbranch_scc1 %s' % ld)
        A.I('s_sleep 2')
        A.I('buffer_load_dword %s, %s, %s, 0 offen sc1' % (v(V_POLL), v(V_PA), s(SRD_DBG, 4)))
        A.vmq.pop()
        A.I('s_waitcnt vmcnt(0)')
        A.I('s_branch %s' % lp)
        A.label(ld)
        A.nop(4)

    def hook_poll_issue(self, grp):
        A = self.A
        if grp != 0:
            return
        A.I('s_mul_i32 %s, %s, 0x1000' % (s(S_TMP), s(S_TG)))
        A.I('buffer_load_dword %s, %s, %s, %s offen sc1' % (v(V_POLL), v(V_PA), s(SRD_DBG, 4), s(S_TMP)), vm='poll')

    def hook_consume(self, grp):
        A = self.A
        A.I('s_lshl_b32 %s, %s, 10' % (s(S_TMP), s(S_TB)))
        A.I('s_lshl_b32 %s, %s, 8' % (s(S_T3), s(S_TG)))
        A.I('s_add_u32 %s, %s, %s' % (s(S_TMP), s(S_TMP), s(S_T3)))
        A.I('s_add_u32 %s, %s, %d' % (s(S_TMP), s(S_TMP), STAT_OFF))
        A.I('v_lshlrev_b32 %s, 3, %s' % (v(V_TMP0), v(V_N)))
        A.I('buffer_load_dwordx2 %s, %s, %s, %s offen sc1' % (v(V_NM, 2), v(V_TMP0), s(SRD_WS, 4), s(S_TMP)), vm='nm')
        if grp == 0:
            A.I('s_lshl_b32 %s, %s, 14' % (s(S_TMP), s(S_FB)))
            A.I('s_lshl_b32 %s, %s, 8' % (s(S_T3), s(S_TG)))
            A.I('s_add_u32 %s, %s, %s' % (s(S_TMP), s(S_TMP), s(S_T3)))
            A.I('s_add_u32 %s, %s, %d' % (s(S_TMP), s(S_TMP), CSP_OFF))
            A.I('v_lshlrev_b32 %s, 2, %s' % (v(V_TMP1), v(V_LANE)))
            for p in range(16):
                A.I('buffer_load_dword %s, %s, %s, %s offen offset:%d sc1' % (v(HK + p), v(V_TMP1), s(SRD_WS, 4), s(S_TMP), (p % 4) * 1024), vm='csp')
                if p % 4 == 3 and p < 15:
                    A.I('s_add_u32 %s, %s, 4096' % (s(S_TMP), s(S_TMP)))

    def finish(self, grp):
        A = self.A
        if grp == 0:
            A.wait(vm='csp')
            for st in (8, 4, 2, 1):
                for i in range(st):
                    A.I('v_add_f32 %s, %s, %s' % (v(HK + i), v(HK + i), v(HK + i + st)))
            A.I('s_lshl_b32 %s, %s, 8' % (s(S_TMP), s(S_TG)))
            A.I('s_add_u32 %s, %s, %d' % (s(S_TMP), s(S_TMP), self.cs_lds))
            A.I('v_add_u32 %s, %s, %s' % (v(V_TMP1), s(S_TMP), v(V_TMP1)))
            A.I('ds_write_b32 %s, %s' % (v(V_TMP1), v(HK)), lg='pub')
            A.wait(lg='pub')
        A.wait(vm='nm')

    def hooks(self, grp, name):
        h = {}
        if grp == 0:
            h[0] = self.hook_reduce
            h[1] = self.hook_reduce2
        h[3] = self.hook_waitst
        h[4] = lambda: self.hook_signal(grp, name)
        h[13] = lambda: self.hook_poll_issue(grp)
        h[15] = lambda: self.hook_poll(grp, name)
        h[16] = lambda: self.hook_consume(grp)
        return h


SRD_R = 60


def relayout_issue(A, R):
    A.I('s_lshl_b32 s92, s2, 3')
    A.I('s_add_u32 s92, s92, %s' % s(S_W))
    A.group_begin()
    A.I('s_cmp_lt_u32 s92, 640')
    A.I('s_cselect_b32 s96, s88, s90')
    A.I('s_cselect_b32 s97, s89, s91')
    A.I('s_cselect_b32 s93, 0, 640')
    A.group_end()
    A.I('s_and_b32 s97, s97, 0xffff')
    A.I('s_mov_b32 s98, %d' % (1728 * 1280))
    A.I('s_mov_b32 s99, 0x20000')
    A.I('s_sub_u32 s93, s92, s93')
    A.I('s_mul_i32 s93, s93, 1280')
    A.I('v_lshlrev_b32 %s, 4, %s' % (v(R + 16), v(V_LANE)))
    A.I('v_mov_b32 %s, 0x%x' % (v(R + 17), BIG))
    A.I('v_cmp_gt_u32 vcc, 16, %s' % v(V_LANE))
    A.I('v_cndmask_b32 %s, %s, %s, vcc' % (v(R + 17), v(R + 17), v(R + 16)))
    A.I('buffer_load_dwordx4 %s, %s, s[96:99], s93 offen' % (v(R, 4), v(R + 16)), vm='rl')
    A.I('buffer_load_dwordx4 %s, %s, s[96:99], s93 offen offset:1024' % (v(R + 4, 4), v(R + 17)), vm='rl')
    A.I('s_mov_b32 s96, s90')
    A.I('s_and_b32 s97, s91, 0xffff')
    A.I('s_add_u32 s93, s92, 1408')
    A.I('s_mul_i32 s93, s93, 1280')
    A.I('buffer_load_dwordx4 %s, %s, s[96:99], s93 offen' % (v(R + 8, 4), v(R + 16)), vm='rl')
    A.I('buffer_load_dwordx4 %s, %s, s[96:99], s93 offen offset:1024' % (v(R + 12, 4), v(R + 17)), vm='rl')


def relayout_store(A, R):
    T = R + 18
    for j in range(2):
        A.I('v_add_u32 %s, %d, %s' % (v(T), 64 * j, v(V_LANE)))
        divmod_const(A, T + 1, T + 2, T, 10, 6554)
        A.I('s_mov_b32 s94, %d' % (4 * WR_WAVE))
        A.I('v_mul_lo_u32 %s, %s, s94' % (v(T + 1), v(T + 1)))
        A.I('v_lshl_add_u32 %s, %s, 4, %s' % (v(R + 16 + j), v(T + 2), v(T + 1)))
    A.I('v_mov_b32 %s, 0x%x' % (v(T), BIG))
    A.I('v_cmp_gt_u32 vcc, 16, %s' % v(V_LANE))
    A.I('v_cndmask_b32 %s, %s, %s, vcc' % (v(R + 17), v(T), v(R + 17)))

    def w2dest(srow):
        A.I('s_lshr_b32 s94, %s, 5' % srow)
        A.I('s_and_b32 s95, s94, 3')
        A.I('s_mul_i32 s95, s95, %d' % WR_WAVE)
        A.I('s_lshr_b32 s94, s94, 2')
        A.I('s_mul_i32 s94, s94, 5120')
        A.I('s_add_u32 s95, s95, s94')
        A.I('s_and_b32 s94, %s, 7' % srow)
        A.I('s_and_b32 s101, %s, 8' % srow)
        A.I('s_lshl_b32 s101, s101, 1')
        A.I('s_or_b32 s94, s94, s101')
        A.I('s_and_b32 s101, %s, 16' % srow)
        A.I('s_lshr_b32 s101, s101, 1')
        A.I('s_or_b32 s94, s94, s101')
        A.I('s_mul_i32 s94, s94, 160')
        A.I('s_add_u32 s95, s95, s94')
    A.I('s_sub_u32 s93, s92, 640')
    w2dest('s93')
    A.I('s_mov_b32 s100, s95')
    A.I('s_mul_i32 s93, s92, 3277')
    A.I('s_lshr_b32 s93, s93, 16')
    A.I('s_mul_i32 s94, s93, 20')
    A.I('s_sub_u32 s94, s92, s94')
    A.I('s_lshr_b32 s95, s93, 3')
    A.I('s_mul_i32 s95, s95, %d' % WR_WAVE)
    A.I('s_add_u32 s95, s95, %d' % (14 * 5120))
    A.I('s_and_b32 s93, s93, 7')
    A.I('s_lshr_b32 s96, s93, 1')
    A.I('s_mul_i32 s96, s96, 5120')
    A.I('s_and_b32 s97, s93, 1')
    A.I('s_lshl_b32 s97, s97, 4')
    A.I('s_add_u32 s97, s97, s94')
    A.I('s_mul_i32 s97, s97, 160')
    A.I('s_add_u32 s96, s96, s97')
    A.I('s_lshr_b32 s97, s93, 2')
    A.I('s_lshl_b32 s97, s97, 4')
    A.I('s_and_b32 s98, s93, 3')
    A.I('s_add_u32 s97, s97, s98')
    A.I('s_sub_u32 s98, s94, 16')
    A.I('s_lshl_b32 s98, s98, 2')
    A.I('s_add_u32 s97, s97, s98')
    A.I('s_mul_i32 s97, s97, 160')
    A.I('s_add_u32 s97, s97, %d' % (4 * 5120))
    A.group_begin()
    A.I('s_cmp_lt_u32 s94, 16')
    A.I('s_cselect_b32 s96, s96, s97')
    A.group_end()
    A.I('s_add_u32 s95, s95, s96')
    A.group_begin()
    A.I('s_cmp_lt_u32 s92, 640')
    A.I('s_cselect_b32 s95, s95, s100')
    A.group_end()
    A.I('s_add_u32 s100, s95, %d' % WR_OFF)
    A.wait(vm='rl')
    A.I('buffer_store_dwordx4 %s, %s, %s, s100 offen' % (v(R, 4), v(R + 16), s(SRD_WS, 4)), vm='rs')
    A.I('buffer_store_dwordx4 %s, %s, %s, s100 offen' % (v(R + 4, 4), v(R + 17), s(SRD_WS, 4)), vm='rs')
    A.I('s_add_u32 s93, s92, 1408')
    w2dest('s93')
    A.I('s_add_u32 s95, s95, %d' % WR_OFF)
    A.group_begin()
    A.I('s_cmp_lt_u32 s92, 320')
    A.I('s_cselect_b32 s95, s95, 0x%x' % BIG)
    A.group_end()
    A.I('buffer_store_dwordx4 %s, %s, %s, s95 offen' % (v(R + 8, 4), v(R + 16), s(SRD_WS, 4)), vm='rs')
    A.I('buffer_store_dwordx4 %s, %s, %s, s95 offen' % (v(R + 12, 4), v(R + 17), s(SRD_WS, 4)), vm='rs')


def read_cs_list(A, cs_lds, dsts, t0):
    A.I('v_lshlrev_b32 %s, 4, %s' % (v(t0), v(V_G)))
    A.I('v_add_u32 %s, %d, %s' % (v(t0), cs_lds, v(t0)))
    for ft, d in enumerate(dsts):
        A.I('ds_read_b128 %s, %s offset:%d' % (v(d, 4), v(t0), ft * 64), lg='cs')


def setup_x(A, xbase, t):
    A.I('s_lshl_b32 %s, %s, 7' % (s(S_TMP), s(S_W)))
    for j, dst in enumerate((V_DX0, V_DX1)):
        A.I('v_add_u32 %s, %s, %s' % (v(t[0]), s(S_TMP), v(V_LANE)))
        if j:
            A.I('v_add_u32 %s, 64, %s' % (v(t[0]), v(t[0])))
        A.I('v_lshrrev_b32 %s, 3, %s' % (v(t[1]), v(t[0])))
        A.I('v_bfe_u32 %s, %s, 4, 3' % (v(t[2]), v(t[0])))
        A.I('v_and_b32 %s, 7, %s' % (v(t[0]), v(t[0])))
        A.I('v_xor_b32 %s, %s, %s' % (v(t[0]), v(t[0]), v(t[2])))
        A.I('v_mul_u32_u24 %s, 1280, %s' % (v(t[1]), v(t[1])))
        A.I('v_lshl_add_u32 %s, %s, 4, %s' % (v(dst), v(t[0]), v(t[1])))
    A.I('s_mul_i32 %s, %s, %d' % (s(S_XOFF), s(S_TB), 128 * 1280))
    A.I('s_lshl_b32 %s, %s, 11' % (s(S_M0X), s(S_W)))
    A.I('v_bfe_u32 %s, %s, 1, 3' % (v(t[0]), v(V_N)))
    A.I('v_xor_b32 %s, %s, %s' % (v(t[0]), v(t[0]), v(V_HI)))
    A.I('v_lshlrev_b32 %s, 4, %s' % (v(t[0]), v(t[0])))
    A.I('v_lshl_add_u32 %s, %s, 7, %s' % (v(t[0]), v(V_N), v(t[0])))
    A.I('s_lshl_b32 %s, %s, 12' % (s(S_TMP), s(S_TG)))
    A.I('s_add_u32 %s, %s, %d' % (s(S_TMP), s(S_TMP), xbase))
    for s4 in range(4):
        A.I('v_xor_b32 %s, %d, %s' % (v(t[1]), 32 * s4, v(t[0])))
        A.I('v_add_u32 %s, %s, %s' % (v(V_XR0 + s4), s(S_TMP), v(t[1])))


def gen_k1(A, mapping=0):
    A.label('k1_kernel')
    A.I('s_cmp_ge_u32 s2, 256')
    A.I('s_cbranch_scc1 L_k1_end')
    A.I('s_load_dwordx4 s[4:7], s[0:1], 0')
    A.I('s_load_dwordx2 s[8:9], s[0:1], 16')
    A.I('s_load_dwordx4 s[12:15], s[0:1], 40')
    A.I('s_load_dwordx4 s[16:19], s[0:1], 72')
    A.I('s_load_dwordx2 s[88:89], s[0:1], 24')
    A.I('s_load_dwordx2 s[90:91], s[0:1], 56')
    if mapping == 0:
        A.I('s_lshr_b32 %s, s2, 4' % s(S_TB))
        A.I('s_and_b32 %s, s2, 15' % s(S_FB))
    elif mapping == 1:
        A.I('s_bfe_u32 %s, s2, 0x10002' % s(S_TB))
        A.I('s_lshl_b32 %s, %s, 3' % (s(S_TB), s(S_TB)))
        A.I('s_bfe_u32 %s, s2, 0x30003' % s(S_TMP))
        A.I('s_add_u32 %s, %s, %s' % (s(S_TB), s(S_TB), s(S_TMP)))
        A.I('s_lshr_b32 %s, s2, 6' % s(S_FB))
        A.I('s_lshl_b32 %s, %s, 2' % (s(S_FB), s(S_FB)))
        A.I('s_and_b32 %s, s2, 3' % s(S_TMP))
        A.I('s_add_u32 %s, %s, %s' % (s(S_FB), s(S_FB), s(S_TMP)))
    elif mapping == 2:
        A.I('s_and_b32 %s, s2, 7' % s(S_TB))
        A.I('s_lshl_b32 %s, %s, 1' % (s(S_TB), s(S_TB)))
        A.I('s_bfe_u32 %s, s2, 0x10003' % s(S_TMP))
        A.I('s_add_u32 %s, %s, %s' % (s(S_TB), s(S_TB), s(S_TMP)))
        A.I('s_lshr_b32 %s, s2, 4' % s(S_FB))
    A.I('v_and_b32 %s, 63, v0' % v(V_LANE))
    A.I('v_and_b32 %s, 15, v0' % v(V_T))
    A.I('v_bfe_u32 %s, v0, 4, 2' % v(V_G))
    A.I('v_and_b32 %s, 31, v0' % v(V_N))
    A.I('v_bfe_u32 %s, v0, 5, 1' % v(V_HI))
    A.I('v_lshrrev_b32 %s, 6, v0' % v(V_TMP0))
    A.I('v_readfirstlane_b32 %s, %s' % (s(S_W), v(V_TMP0)))
    A.I('s_and_b32 %s, %s, 3' % (s(S_TG), s(S_W)))
    A.I('s_lshr_b32 %s, %s, 2' % (s(S_GRP), s(S_W)))
    A.I('s_mov_b32 %s, 0x%x' % (s(S_LOG2E), LOG2E))
    A.I('v_mov_b32 %s, 0x3f803f80' % v(V_ONES))
    A.I('s_waitcnt lgkmcnt(0)')
    if A.stamps_on:
        for i in range(16):
            A.I('s_mov_b32 s%d, 0' % (64 + i))
    A.stamp(0)
    srd(A, SRD_X, 4, 2048 * 640 * 2)
    srd(A, SRD_WS, 18, WS_END)
    srd(A, SRD_DBG, 16, 256)
    A.I('s_cmp_ge_u32 %s, 8' % s(S_FB))
    A.I('s_cbranch_scc1 L_k1_ffn')
    sn = A.snap()
    gen_k1_attn(A)
    A.restore(sn)
    A.label('L_k1_ffn')
    gen_k1_ffn(A)
    A.label('L_k1_end')
    A.I('s_endpgm')


F_SLOT = 15360
F_X = D_RING * F_SLOT
F_CSW = 5 * F_SLOT
F_CS = F_X + 3 * XP
F_BIAS = F_CS + 1024
F_LDS = F_BIAS + 1024


def mish_batch(A, vals, T):
    n = len(vals)
    E = [T + i for i in range(n)]
    U = [T + n + i for i in range(n)]
    for i, (ac, cs, b, nm, r) in enumerate(vals):
        A.I('v_fma_f32 %s, %s, %s, %s' % (v(ac), v(nm), v(cs), v(ac)))
    for i, (ac, cs, b, nm, r) in enumerate(vals):
        A.I('v_fma_f32 %s, %s, %s, %s' % (v(ac), v(ac), v(r), v(b)))
    for i, (ac, *_) in enumerate(vals):
        A.I('v_mul_f32 %s, %s, %s' % (v(E[i]), s(S_LOG2E), v(ac)))
    for i in range(n):
        A.I('v_exp_f32 %s, %s' % (v(E[i]), v(E[i])))
    for i in range(n):
        A.I('v_add_f32 %s, 2.0, %s' % (v(U[i]), v(E[i])))
    for i in range(n):
        A.I('v_fma_f32 %s, %s, %s, 2.0' % (v(U[i]), v(E[i]), v(U[i])))
    for i in range(n):
        A.I('v_rcp_f32 %s, %s' % (v(U[i]), v(U[i])))
    for i in range(n):
        A.I('v_fma_f32 %s, %s, -2.0, 1.0' % (v(U[i]), v(U[i])))
    for i, (ac, *_) in enumerate(vals):
        A.I('v_mul_f32 %s, %s, %s' % (v(ac), v(ac), v(U[i])))


def w_voffsets(A, t, kind):
    per = 112 if kind == 'ffn' else 120
    A.I('s_mul_i32 %s, %s, %d' % (s(S_TMP), s(S_W), per))
    if kind == 'ffn':
        A.I('s_lshl_b32 %s, %s, 6' % (s(S_T3), s(S_P0)))
    else:
        A.I('s_mul_i32 %s, %s, 160' % (s(S_T3), s(S_FB)))
    for j, dst in enumerate((V_DM0, V_DM1)):
        A.I('v_add_u32 %s, %s, %s' % (v(t[0]), s(S_TMP), v(V_LANE)))
        if j:
            A.I('v_add_u32 %s, 64, %s' % (v(t[0]), v(t[0])))
        if kind == 'ffn':
            divmod_const(A, t[1], t[2], t[0], 28, 2341)
            A.I('v_mul_u32_u24 %s, 3456, %s' % (v(t[3]), v(t[1])))
            A.I('v_lshl_add_u32 %s, %s, 4, %s' % (v(t[3]), v(t[2]), v(t[3])))
            A.I('v_add_u32 %s, %s, %s' % (v(dst), s(S_T3), v(t[3])))
        else:
            divmod_const(A, t[1], t[2], t[0], 30, 2185)
            divmod_const(A, t[5], t[7], t[2], 10, 6554)
            A.I('v_and_b32 %s, 24, %s' % (v(t[3]), v(t[1])))
            A.I('v_and_b32 %s, 1, %s' % (v(t[4]), v(t[1])))
            A.I('v_lshl_or_b32 %s, %s, 2, %s' % (v(t[3]), v(t[4]), v(t[3])))
            A.I('v_bfe_u32 %s, %s, 1, 2' % (v(t[4]), v(t[1])))
            A.I('v_or_b32 %s, %s, %s' % (v(t[3]), v(t[3]), v(t[4])))
            A.I('v_mul_u32_u24 %s, 3840, %s' % (v(t[3]), v(t[3])))
            A.I('v_lshl_add_u32 %s, %s, 4, %s' % (v(t[3]), v(t[7]), v(t[3])))
            A.I('v_add_u32 %s, 1, %s' % (v(t[6]), v(t[5])))
            A.I('v_cmp_gt_u32 vcc, 2, %s' % v(t[5]))
            A.I('v_cndmask_b32 %s, 0, %s, vcc' % (v(t[6]), v(t[6])))
            A.I('v_mul_u32_u24 %s, 1280, %s' % (v(t[6]), v(t[6])))
            A.I('v_add3_u32 %s, %s, %s, %s' % (v(dst), s(S_T3), v(t[3]), v(t[6])))
    A.I('s_mul_i32 %s, %s, %d' % (s(S_M0B), s(S_W), per * 16))


def mk_dma(A, rowbytes, himask):
    def dma(stage):
        slot = stage % D_RING
        A.I('s_mov_b32 %s, %d' % (s(S_DT), stage * 32 * rowbytes))
        A.I('s_add_u32 m0, %s, %d' % (s(S_M0B), slot * F_SLOT))
        A.I('buffer_load_dwordx4 %s, %s, %s offen lds' % (v(V_DM0), s(SRD_W, 4), s(S_DT)), vm=('dma', stage))
        A.I('s_add_u32 m0, %s, %d' % (s(S_M0B), slot * F_SLOT + 1024))
        A.I('s_mov_b32 exec_hi, 0x%x' % himask)
        A.I('buffer_load_dwordx4 %s, %s, %s offen lds' % (v(V_DM1), s(SRD_W, 4), s(S_DT)), vm=('dma', stage))
        A.I('s_mov_b64 exec, -1')
    return dma


def trbase32(A, dst, rowbytes, rmul, t0, t1):
    A.I('v_bfe_u32 %s, %s, 2, 2' % (v(t0), v(V_LANE)))
    if rmul == 2:
        A.I('v_lshlrev_b32 %s, 1, %s' % (v(t0), v(t0)))
    A.I('v_lshl_add_u32 %s, %s, 3, %s' % (v(t0), v(V_HI), v(t0)))
    A.I('v_mul_u32_u24 %s, %d, %s' % (v(t0), rowbytes, v(t0)))
    A.I('v_and_b32 %s, 1, %s' % (v(t1), v(V_G)))
    A.I('v_lshl_add_u32 %s, %s, 5, %s' % (v(t0), v(t1), v(t0)))
    A.I('v_and_b32 %s, 3, %s' % (v(t1), v(V_LANE)))
    A.I('v_lshl_add_u32 %s, %s, 3, %s' % (v(dst), v(t1), v(t0)))


def rd_vec32(A, areg, lds_off, dst, tag):
    for j in range(4):
        A.I('ds_read_b128 %s, %s offset:%d' % (v(dst + 4 * j, 4), v(areg), lds_off + j * 32), lg=tag)


RLY = 160


def gen_k1_ffn(A):
    srd(A, SRD_W, 12, 640 * 1728 * 2)
    A.I('s_sub_u32 %s, %s, 8' % (s(S_P0), s(S_FB)))
    A.I('s_mul_i32 %s, %s, 7' % (s(S_P0), s(S_P0)))
    A.I('s_min_u32 %s, %s, 47' % (s(S_P0), s(S_P0)))
    t = [200 + i for i in range(8)]
    setup_x(A, F_X, t)
    dma_x(A, 0, F_X)
    w_voffsets(A, t, 'ffn')
    dma = mk_dma(A, 3456, 0xffff)
    dma(0)
    dma(1)
    dma_x(A, 1, F_X)
    srd(A, SRD_AUX, 14, 1728 * 2)

    def colmap(dst, t0):
        A.I('s_lshl_b32 %s, %s, 6' % (s(S_T3), s(S_P0)))
        A.I('v_lshlrev_b32 %s, 3, %s' % (v(dst), v(V_LANE)))
        A.I('v_add_u32 %s, %s, %s' % (v(dst), s(S_T3), v(dst)))
        A.I('v_mov_b32 %s, 0x%x' % (v(t0), BIG))
        A.I('v_cmp_gt_u32 vcc, 56, %s' % v(V_LANE))
        A.I('v_cndmask_b32 %s, %s, %s, vcc' % (v(dst), v(t0), v(dst)))
    C = Coop(A, 3456, F_CSW, F_CS, colmap)
    C.issue_loads()
    A.stamp(8)
    trbase32(A, V_RB0, 448, 1, t[0], t[1])
    A.I('s_lshl_b32 %s, %s, 8' % (s(S_TMP), s(S_GRP)))
    A.I('v_add_u32 %s, %s, %s' % (v(V_RB0), s(S_TMP), v(V_RB0)))
    A.I('v_add_u32 %s, %d, %s' % (v(V_RB1), 3 * F_SLOT, v(V_RB0)))
    C.compute()
    A.wait(lg='z')
    A.stamp(14)

    def mk_fill(grp):
        A.defer_begin()
        relayout_issue(A, RLY)
        if grp == 0:
            A.I('s_lshl_b32 s87, %s, 6' % s(S_P0))
            A.I('v_lshlrev_b32 %s, 1, v0' % v(190))
            A.I('buffer_load_ushort %s, %s, %s, s87 offen' % (v(191), v(190), s(SRD_AUX, 4)), vm='bias')
        relayout_store(A, RLY)
        if grp == 0:
            A.wait(vm='bias')
            A.I('v_lshlrev_b32 %s, 16, %s' % (v(191), v(191)))
            A.I('v_lshlrev_b32 %s, 2, v0' % v(190))
            A.I('v_add_u32 %s, %d, %s' % (v(190), F_BIAS, v(190)))
            A.I('ds_write_b32 %s, %s' % (v(190), v(191)), lg='z')
        return A.defer_end()
    A.I('s_cmp_eq_u32 %s, 1' % s(S_GRP))
    A.I('s_cbranch_scc1 L_ffn_B')
    sn = A.snap()
    for grp in range(2):
        if grp:
            A.restore(sn)
            A.label('L_ffn_B')
        nt = 4 - grp
        tiles = [(ti * 64, ACC + 16 * ti) for ti in range(nt)]
        L = Loop(A, 'ffn%d' % grp, tiles, 16 * 448, 4 * 448, dma, F_X, C.hooks(grp, 'ffn%d' % grp), fillers=mk_fill(grp))
        L.run()
        CSR = [152, 184]
        BFR = [168, 200]
        TT = 216
        OUT = 232
        AD = 252
        C.finish(grp)
        A.stamp(6)
        A.I('s_barrier')
        A.stamp(7)
        A.I('v_lshlrev_b32 %s, 4, %s' % (v(AD + 1), v(V_HI)))
        A.I('v_add_u32 %s, %d, %s' % (v(AD + 1), F_CS + grp * 512, v(AD + 1)))

        def rdv(ti):
            rd_vec32(A, AD + 1, ti * 128, CSR[ti % 2], ('cs', ti))
            rd_vec32(A, AD + 1, 1024 + ti * 128, BFR[ti % 2], ('cs', ti))
        rdv(0)
        A.I('s_lshl_b32 %s, %s, 3' % (s(S_TMP), s(S_TB)))
        A.I('s_lshl_b32 %s, %s, 1' % (s(S_T3), s(S_TG)))
        A.I('s_add_u32 %s, %s, %s' % (s(S_TMP), s(S_TMP), s(S_T3)))
        A.I('s_mul_i32 %s, %s, 54' % (s(S_TMP), s(S_TMP)))
        A.I('s_add_u32 %s, %s, %s' % (s(S_TMP), s(S_TMP), s(S_P0)))
        A.I('s_lshl_b32 %s, %s, 10' % (s(S_TMP), s(S_TMP)))
        A.I('s_add_u32 %s, %s, %d' % (s(S_TMP), s(S_TMP), ACT_OFF + grp * 4 * 1024))
        A.I('v_and_b32 %s, 1, %s' % (v(AD), v(V_G)))
        A.I('v_mul_u32_u24 %s, %d, %s' % (v(AD), 54 * 1024, v(AD)))
        A.I('v_lshl_add_u32 %s, %s, 4, %s' % (v(AD), v(V_T), v(AD)))
        A.I('v_lshl_add_u32 %s, %s, 8, %s' % (v(AD), v(V_HI), v(AD)))
        for ti in range(nt):
            A.stamp(10 + ti)
            if ti + 1 < nt:
                rdv(ti + 1)
            A.wait(lg=('cs', ti))
            for hb in range(2):
                vals = []
                for r_ in range(8):
                    i_ = hb * 8 + r_
                    vals.append((ACC + 16 * ti + i_, CSR[ti % 2] + i_, BFR[ti % 2] + i_, V_NM, V_NM + 1))
                mish_batch(A, vals, TT)
                o = OUT + ((ti * 2 + hb) % 4) * 4
                for q in range(4):
                    ac = ACC + 16 * ti + hb * 8 + 2 * q
                    A.I('v_cvt_pk_bf16_f32 %s, %s, %s' % (v(o + q), v(ac), v(ac + 1)))
                A.I('buffer_store_dwordx4 %s, %s, %s, %s offen offset:%d' % (v(o, 4), v(AD), s(SRD_WS, 4), s(S_TMP), ti * 1024 + hb * 512), vm='st')
        A.stamp(15)
        A.stamp_flush(18, S_W, 8)
        A.I('s_endpgm')


A_X = D_RING * F_SLOT
PHIK_ROW = 352
A_PHIK = 0
A_VS = A_PHIK + 128 * PHIK_ROW
A_M = A_X + 3 * XP
A_CSW = 5 * F_SLOT
A_CS = A_M + 80 * 192
A_LDS = A_CS + 1024


def softmax2(A, P, EP, EM, X, scl, sync):
    MX, MN, SP, SM = X, X + 1, X + 2, X + 3
    A.I('v_max3_f32 %s, %s, %s, %s' % (v(MX), v(P), v(P + 1), v(P + 2)))
    A.I('v_min3_f32 %s, %s, %s, %s' % (v(MN), v(P), v(P + 1), v(P + 2)))
    for i in range(3, 19, 2):
        A.I('v_max3_f32 %s, %s, %s, %s' % (v(MX), v(MX), v(P + i), v(P + i + 1)))
        A.I('v_min3_f32 %s, %s, %s, %s' % (v(MN), v(MN), v(P + i), v(P + i + 1)))
    A.I('v_max_f32 %s, %s, %s' % (v(MX), v(MX), v(P + 19)))
    A.I('v_min_f32 %s, %s, %s' % (v(MN), v(MN), v(P + 19)))
    A.I('v_mul_f32 %s, %s, %s' % (v(MX), v(scl), v(MX)))
    A.I('v_mul_f32 %s, %s, %s' % (v(MN), v(scl), v(MN)))
    for i in range(20):
        A.I('v_fma_f32 %s, %s, %s, -%s' % (v(EP + i), v(P + i), v(scl), v(MX)))
        A.I('v_fma_f32 %s, -%s, %s, %s' % (v(EM + i), v(P + i), v(scl), v(MN)))
    sync()
    for i in range(20):
        A.I('v_exp_f32 %s, %s' % (v(EP + i), v(EP + i)))
        A.I('v_exp_f32 %s, %s' % (v(EM + i), v(EM + i)))
    sync()
    A.I('v_add_f32 %s, %s, %s' % (v(SP), v(EP), v(EP + 1)))
    A.I('v_add_f32 %s, %s, %s' % (v(SM), v(EM), v(EM + 1)))
    A.I('v_add_f32 %s, %s, %s' % (v(X + 4), v(EP + 2), v(EP + 3)))
    A.I('v_add_f32 %s, %s, %s' % (v(X + 5), v(EM + 2), v(EM + 3)))
    for i in range(4, 20, 2):
        A.I('v_add_f32 %s, %s, %s' % (v(SP), v(SP), v(EP + i)))
        A.I('v_add_f32 %s, %s, %s' % (v(SM), v(SM), v(EM + i)))
        A.I('v_add_f32 %s, %s, %s' % (v(X + 4), v(X + 4), v(EP + i + 1)))
        A.I('v_add_f32 %s, %s, %s' % (v(X + 5), v(X + 5), v(EM + i + 1)))
    A.I('v_add_f32 %s, %s, %s' % (v(SP), v(SP), v(X + 4)))
    A.I('v_add_f32 %s, %s, %s' % (v(SM), v(SM), v(X + 5)))
    A.I('v_rcp_f32 %s, %s' % (v(SP), v(SP)))
    A.I('v_rcp_f32 %s, %s' % (v(SM), v(SM)))
    for i in range(20):
        A.I('v_mul_f32 %s, %s, %s' % (v(EP + i), v(EP + i), v(SP)))
        A.I('v_mul_f32 %s, %s, %s' % (v(EM + i), v(EM + i), v(SM)))
    for i in range(10):
        A.I('v_cvt_pk_bf16_f32 %s, %s, %s' % (v(P + i), v(EP + 2 * i), v(EP + 2 * i + 1)))
        A.I('v_cvt_pk_bf16_f32 %s, %s, %s' % (v(P + 10 + i), v(EM + 2 * i), v(EM + 2 * i + 1)))
    sync()


def gen_k1_attn(A):
    srd(A, SRD_W, 6, 640 * 1920 * 2)
    t = [200 + i for i in range(16)]
    setup_x(A, A_X, t)
    dma_x(A, 0, A_X)
    w_voffsets(A, t, 'attn')
    dma = mk_dma(A, 3840, 0x00ffffff)
    dma(0)
    dma(1)
    dma_x(A, 1, A_X)
    srd(A, SRD_AUX, 8, 32 * 400 * 2)

    def colmap(dst, t0):
        divmod_const(A, t[0], t[1], V_LANE, 20, 3277)
        A.I('v_add_u32 %s, 1, %s' % (v(t[2]), v(t[0])))
        A.I('v_cmp_eq_u32 vcc, 2, %s' % v(t[0]))
        A.I('v_cndmask_b32 %s, %s, 0, vcc' % (v(t[2]), v(t[2])))
        A.I('v_mul_u32_u24 %s, 1280, %s' % (v(t[2]), v(t[2])))
        A.I('v_lshl_add_u32 %s, %s, 3, %s' % (v(dst), v(t[1]), v(t[2])))
        A.I('s_mul_i32 %s, %s, 160' % (s(S_T3), s(S_FB)))
        A.I('v_add_u32 %s, %s, %s' % (v(dst), s(S_T3), v(dst)))
        A.I('v_mov_b32 %s, 0x%x' % (v(t0), BIG))
        A.I('v_cmp_gt_u32 vcc, 60, %s' % v(V_LANE))
        A.I('v_cndmask_b32 %s, %s, %s, vcc' % (v(dst), v(t0), v(dst)))
    C = Coop(A, 3840, A_CSW, A_CS, colmap)
    C.issue_loads()
    trbase32(A, V_RB0, 480, 2, t[0], t[1])
    A.I('s_lshl_b32 %s, %s, 8' % (s(S_TMP), s(S_GRP)))
    A.I('v_add_u32 %s, %s, %s' % (v(V_RB0), s(S_TMP), v(V_RB0)))
    A.I('v_add_u32 %s, %d, %s' % (v(V_RB1), 3 * F_SLOT, v(V_RB0)))
    C.compute()
    A.wait(lg='z')

    def mk_fill():
        A.defer_begin()
        relayout_issue(A, RLY)
        MD, MA = 184, 192
        for i in range(4):
            A.I('v_add_u32 %s, %d, v0' % (v(t[0]), 512 * i))
            divmod_const(A, t[1], t[2], t[0], 24, 2731)
            divmod_const(A, t[3], t[4], t[1], 20, 3277)
            A.I('v_lshrrev_b32 %s, 1, %s' % (v(t[5]), v(t[2])))
            A.I('v_lshlrev_b32 %s, 2, %s' % (v(t[5]), v(t[5])))
            A.I('v_and_b32 %s, 1, %s' % (v(t[6]), v(t[2])))
            A.I('v_lshlrev_b32 %s, 1, %s' % (v(t[6]), v(t[6])))
            A.I('v_cmp_lt_u32 vcc, 19, %s' % v(t[5]))
            A.I('v_addc_co_u32 %s, vcc, 0, %s, vcc' % (v(t[6]), v(t[6])))
            A.I('v_cmp_lt_u32 vcc, 19, %s' % v(t[5]))
            A.I('v_subrev_u32 %s, 20, %s' % (v(t[8]), v(t[5])))
            A.I('v_cndmask_b32 %s, %s, %s, vcc' % (v(t[8]), v(t[5]), v(t[8])))
            A.I('v_mul_u32_u24 %s, 800, %s' % (v(t[7]), v(t[3])))
            A.I('v_mul_u32_u24 %s, 40, %s' % (v(t[4]), v(t[4])))
            A.I('v_add_u32 %s, %s, %s' % (v(t[7]), v(t[7]), v(t[4])))
            A.I('v_lshl_add_u32 %s, %s, 1, %s' % (v(t[7]), v(t[8]), v(t[7])))
            A.I('v_mov_b32 %s, 0x%x' % (v(t[4]), BIG))
            A.I('v_cmp_eq_u32 vcc, %s, %s' % (v(t[6]), v(t[3])))
            A.I('v_cndmask_b32 %s, %s, %s, vcc' % (v(t[7]), v(t[4]), v(t[7])))
            A.I('v_cmp_gt_u32 vcc, 40, %s' % v(t[5]))
            A.I('v_cndmask_b32 %s, %s, %s, vcc' % (v(t[7]), v(t[4]), v(t[7])))
            A.I('s_mul_i32 s87, %s, 3200' % s(S_FB))
            A.I('buffer_load_dwordx2 %s, %s, %s, %s offen' % (v(MD + 2 * i, 2), v(t[7]), s(SRD_AUX, 4), 's87'), vm='m')
            A.I('v_lshlrev_b32 %s, 3, %s' % (v(MA + i), v(t[0])))
            A.I('v_add_u32 %s, %d, %s' % (v(MA + i), A_M, v(MA + i)))

        relayout_store(A, RLY)
        A.wait(vm='m')
        for i in range(4):
            if i == 3:
                A.group_begin()
                A.I('v_cmp_gt_u32 vcc, 384, v0')
                A.I('s_and_saveexec_b64 %s, vcc' % s(S_MASK, 2))
            A.I('ds_write_b64 %s, %s' % (v(MA + i), v(MD + 2 * i, 2)), lg='z')
            if i == 3:
                A.I('s_mov_b64 exec, -1')
                A.group_end()
        return A.defer_end()

    NM = V_NM
    CSR = 104
    MF = 168
    AD = 228
    X = 240
    SCL = 246
    VMB = 247
    BO = 24
    A.I('s_cmp_eq_u32 %s, 1' % s(S_GRP))
    A.I('s_cbranch_scc1 L_att_B')
    sn = A.snap()
    for grp in range(2):
        if grp:
            A.restore(sn)
            A.label('L_att_B')
        tiles = [(ti * 64, ACC + 16 * ti) for ti in range(4)]
        L = Loop(A, 'att%d' % grp, tiles, 16 * 480, 480, dma, A_X, C.hooks(grp, 'att%d' % grp), fillers=mk_fill())
        L.run()
        C.finish(grp)
        A.I('v_bfe_u32 %s, %s, 2, 2' % (v(VMB), v(V_LANE)))
        A.I('v_lshl_add_u32 %s, %s, 2, %s' % (v(VMB), v(V_HI), v(VMB)))
        A.I('v_mul_u32_u24 %s, 192, %s' % (v(VMB), v(VMB)))
        A.I('v_and_b32 %s, 1, %s' % (v(AD), v(V_G)))
        A.I('v_lshl_add_u32 %s, %s, 5, %s' % (v(VMB), v(AD), v(VMB)))
        A.I('v_and_b32 %s, 3, %s' % (v(AD), v(V_LANE)))
        A.I('v_lshl_add_u32 %s, %s, 3, %s' % (v(VMB), v(AD), v(VMB)))
        A.I('v_add_u32 %s, %d, %s' % (v(VMB), A_M, v(VMB)))
        for u in range(3):
            for s2 in range(5):
                b = MF + (u * 5 + s2) * 4
                for h in range(2):
                    A.I('ds_read_b64_tr_b16 %s, %s offset:%d' % (v(b + 2 * h, 2), v(VMB), (16 * s2 + 8 * h) * 192 + u * 64), lg='mf')
        A.I('v_mul_f32 %s, %s, %s' % (v(SCL), s(S_LOG2E), v(NM + 1)))
        A.I('s_barrier')
        if grp == 0:
            A.I('s_setprio 2')
        A.stamp(6)
        A.I('v_lshlrev_b32 %s, 4, %s' % (v(AD + 1), v(V_HI)))
        A.I('v_add_u32 %s, %d, %s' % (v(AD + 1), A_CS + grp * 512, v(AD + 1)))
        for ti in range(4):
            rd_vec32(A, AD + 1, ti * 128, CSR + 16 * ti, ('cs', ti))
        A.I('s_mul_i32 %s, %s, %d' % (s(S_TMP), s(S_TG), 32 * 160))
        A.I('s_add_u32 %s, %s, %d' % (s(S_TMP), s(S_TMP), A_VS))
        A.I('v_mul_u32_u24 %s, 160, %s' % (v(AD), v(V_N)))
        A.I('v_lshl_add_u32 %s, %s, 3, %s' % (v(AD), v(V_HI), v(AD)))
        A.I('v_add_u32 %s, %s, %s' % (v(AD), s(S_TMP), v(AD)))
        if grp == 0:
            vq = [(2, 2, 0), (2, 3, 8)] + [(3, j, 16 + 8 * j) for j in range(4)]
            st2 = [(0, 0), (0, 8), (1, 0), (1, 8), (2, 0)]
        else:
            vq = [(0, j, 48 + 8 * j) for j in range(4)]
            st2 = [(1, 0), (1, 8), (2, 0), (2, 8), (3, 0)]
        BOS = [24, 28, 32, 36, 248]
        for (ti, j, f0) in vq:
            A.wait(lg=('cs', ti))
            ac = ACC + 16 * ti + 4 * j
            for r_ in range(4):
                A.I('v_fma_f32 %s, %s, %s, %s' % (v(ac + r_), v(NM), v(CSR + 16 * ti + 4 * j + r_), v(ac + r_)))
            for r_ in range(4):
                A.I('v_mul_f32 %s, %s, %s' % (v(ac + r_), v(ac + r_), v(NM + 1)))
            A.I('v_cvt_pk_bf16_f32 %s, %s, %s' % (v(ac), v(ac), v(ac + 1)))
            A.I('v_cvt_pk_bf16_f32 %s, %s, %s' % (v(ac + 1), v(ac + 2), v(ac + 3)))
            A.I('ds_write_b64 %s, %s offset:%d' % (v(AD), v(ac, 2), f0 * 2), lg='vs')
        for s2, (ti, r0) in enumerate(st2):
            A.wait(lg=('cs', ti))
            ac = ACC + 16 * ti + r0
            for r_ in range(8):
                A.I('v_fma_f32 %s, %s, %s, %s' % (v(ac + r_), v(NM), v(CSR + 16 * ti + r0 + r_), v(ac + r_)))
            for q in range(4):
                A.I('v_cvt_pk_bf16_f32 %s, %s, %s' % (v(BOS[s2] + q), v(ac + 2 * q), v(ac + 2 * q + 1)))
        A.wait(lg='mf')
        P = 104
        for s2 in range(5):
            for u in range(3):
                d = v(P + 16 * u, 16)
                A.I('v_mfma_f32_32x32x16_bf16 %s, %s, %s, %s' % (d, v(MF + (u * 5 + s2) * 4, 4), v(BOS[s2], 4), d if s2 else '0'))
        EP, EM = 40, 60
        calls = [0]
        if grp == 0:
            A.I('s_mul_i32 %s, %s, %d' % (s(S_TMP), s(S_TG), 32 * PHIK_ROW))
            A.I('s_add_u32 %s, %s, %d' % (s(S_TMP), s(S_TMP), A_PHIK))
            A.I('v_mul_u32_u24 %s, %d, %s' % (v(AD + 2), PHIK_ROW, v(V_N)))
            A.I('v_mul_u32_u24 %s, 160, %s' % (v(AD + 3), v(V_HI)))
            A.I('v_add3_u32 %s, %s, %s, %s' % (v(AD + 2), s(S_TMP), v(AD + 2), v(AD + 3)))
            for a_ in range(2):
                softmax2(A, P + 20 * a_, EP, EM, X, SCL, lambda: None)
                for j in range(5):
                    A.I('ds_write_b128 %s, %s offset:%d' % (v(AD + 2), v(P + 20 * a_ + 4 * j, 4), a_ * 80 + j * 16), lg='pk')
            A.stamp(8)
            KA, KB = AD + 4, AD + 5
            trbase(A, KA, PHIK_ROW, AD + 6, AD + 7)
            A.I('s_mul_i32 %s, %s, 80' % (s(S_TMP), s(S_TG)))
            A.I('s_add_u32 %s, %s, %d' % (s(S_TMP), s(S_TMP), A_PHIK))
            A.I('v_add_u32 %s, %s, %s' % (v(KA), s(S_TMP), v(KA)))
            trbase(A, KB, 160, AD + 6, AD + 7)
            A.I('s_mul_i32 %s, %s, 40' % (s(S_TMP), s(S_TG)))
            A.I('s_add_u32 %s, %s, %d' % (s(S_TMP), s(S_TMP), A_VS))
            A.I('v_add_u32 %s, %s, %s' % (v(KB), s(S_TMP), v(KB)))
            A.I('v_cmp_eq_u32 %s, 4, %s' % (s(S_MASK, 2), v(V_T)))
            A.wait(lg=['pk', 'vs'])
            A.I('s_barrier')
            FR = 104
            for ks in range(4):
                for i in range(5):
                    r0 = FR + (ks * 5 + i) * 4
                    for h in range(2):
                        if i < 3:
                            A.I('ds_read_b64_tr_b16 %s, %s offset:%d' % (v(r0 + 2 * h, 2), v(KA), (ks * 32 + 8 * h) * PHIK_ROW + i * 32), lg=('kv', ks))
                        else:
                            A.I('ds_read_b64_tr_b16 %s, %s offset:%d' % (v(r0 + 2 * h, 2), v(KB), (ks * 32 + 8 * h) * 160 + (i - 3) * 32), lg=('kv', ks))
            KD = 40
            for ks in range(4):
                A.wait(lg=('kv', ks))
                rb = FR + (ks * 5 + 4) * 4
                for j in range(4):
                    A.I('v_cndmask_b32 %s, %s, %s, %s' % (v(rb + j), v(rb + j), v(V_ONES), s(S_MASK, 2)))
                for dt in range(2):
                    for i in range(3):
                        d = v(KD + (dt * 3 + i) * 4, 4)
                        A.I('v_mfma_f32_16x16x32_bf16 %s, %s, %s, %s' % (d, v(FR + (ks * 5 + 3 + dt) * 4, 4), v(FR + (ks * 5 + i) * 4, 4), d if ks else '0'))
            A.I('s_lshl_b32 %s, %s, 2' % (s(S_TMP), s(S_FB)))
            A.I('s_add_u32 %s, %s, %s' % (s(S_TMP), s(S_TMP), s(S_TG)))
            A.I('s_mul_i32 %s, %s, 3360' % (s(S_TMP), s(S_TMP)))
            A.I('s_add_u32 %s, %s, %d' % (s(S_TMP), s(S_TMP), KVA_OFF))
            A.I('v_mul_u32_u24 %s, 640, %s' % (v(AD), v(V_G)))
            A.I('v_lshl_add_u32 %s, %s, 2, %s' % (v(AD), v(V_T), v(AD)))
            for dt in range(2):
                for i in range(3):
                    for r_ in range(4):
                        lo, hi_ = 0xffffffff, 0xffffffff
                        if dt == 1:
                            hi_ = 0
                            lo = 0xffffffff if r_ == 0 else 0xffff
                        if i == 2:
                            lo &= 0x00ff00ff
                            hi_ &= 0x00ff00ff
                        A.I('s_mov_b32 exec_lo, 0x%x' % lo)
                        A.I('s_mov_b32 exec_hi, 0x%x' % hi_)
                        A.I('buffer_atomic_add_f32 %s, %s, %s, %s offen offset:%d' % (v(KD + (dt * 3 + i) * 4 + r_), v(AD), s(SRD_WS, 4), s(S_TMP), (16 * dt + r_) * 160 + i * 64), vm='kvp')
            A.I('s_mov_b64 exec, -1')
            A.stamp(9)
        else:
            A.wait(lg='vs')
            A.I('s_lshl_b32 %s, %s, 3' % (s(S_TMP), s(S_TB)))
            A.I('s_lshl_b32 %s, %s, 1' % (s(S_T3), s(S_TG)))
            A.I('s_add_u32 %s, %s, %s' % (s(S_TMP), s(S_TMP), s(S_T3)))
            A.I('s_lshl_b32 %s, %s, 3' % (s(S_TMP), s(S_TMP)))
            A.I('s_add_u32 %s, %s, %s' % (s(S_TMP), s(S_TMP), s(S_FB)))
            A.I('s_mul_i32 %s, %s, 5120' % (s(S_TMP), s(S_TMP)))
            A.I('s_add_u32 %s, %s, %d' % (s(S_TMP), s(S_TMP), PHIQ_OFF))
            A.I('s_add_u32 %s, %s, 4096' % (s(S_T3), s(S_TMP)))
            A.I('v_and_b32 %s, 1, %s' % (v(AD + 2), v(V_G)))
            A.I('v_mul_u32_u24 %s, %d, %s' % (v(AD + 2), 8 * 5120, v(AD + 2)))
            A.I('v_lshl_add_u32 %s, %s, 4, %s' % (v(AD + 2), v(V_T), v(AD + 2)))
            A.I('v_lshl_add_u32 %s, %s, 9, %s' % (v(AD + 3), v(V_HI), v(AD + 2)))
            A.I('v_lshl_add_u32 %s, %s, 11, %s' % (v(AD + 2), v(V_HI), v(AD + 2)))
            def syncB():
                calls[0] += 1
                if calls[0] == 4:
                    A.I('s_barrier')
            for a_ in range(2):
                softmax2(A, P + 20 * a_, EP, EM, X, SCL, syncB)
                for j in range(4):
                    A.I('buffer_store_dwordx4 %s, %s, %s, %s offen offset:%d' % (v(P + 20 * a_ + 4 * j, 4), v(AD + 2), s(SRD_WS, 4), s(S_TMP), a_ * 1024 + j * 256), vm='st')
                A.I('buffer_store_dwordx4 %s, %s, %s, %s offen offset:%d' % (v(P + 20 * a_ + 16, 4), v(AD + 3), s(SRD_WS, 4), s(S_T3), a_ * 256), vm='st')
        A.stamp(15)
        A.stamp_flush(18, S_W, 8)
        A.I('s_endpgm')
```

```python
from asmlib import *
from k1 import ACT_OFF, PHIQ_OFF, KVA_OFF, WR_OFF, WR_WAVE, WS_END, LOG2E, srd, divmod_const

SRD_X, SRD_OUT, SRD_WS = 20, 32, 36
S_RB, S_CB, S_W, S_TMP, S_T2, S_T3, S_LOG2E, S_M0B = 40, 41, 42, 43, 44, 45, 46, 47
S_ACT = 48
S_PHI = 52
S_KV = 56
S_WR = 57
V_LANE, V_T, V_G = 1, 2, 3
V_L16 = 4
V_PB = 5
V_KA0, V_KB0, V_KA1, V_KB1 = 6, 7, 8, 9
V_RB = 15
V_TMP = 17
WIN = 32
NHB = 3
KVF = 72
PHF = 88
PHB = 136
DT = 144
OF = 176
ACC_G, ACC_S, ACT_B = 0, 80, 160
NACT = 4
APB = 224
NSLOT = 5
KVL = NSLOT * 5120
SLOT = 5120
K2_LDS = 163840
NK = 14
PFW = 3


def gen_k2(A):
    A.label('k2_kernel')
    A.I('s_cmp_ge_u32 s2, 256')
    A.I('s_cbranch_scc1 L_k2_end')
    A.I('s_load_dwordx2 s[4:5], s[0:1], 0')
    A.I('s_load_dwordx2 s[10:11], s[0:1], 64')
    A.I('s_load_dwordx2 s[12:13], s[0:1], 80')
    A.I('s_and_b32 %s, s2, 7' % s(S_RB))
    A.I('s_lshl_b32 %s, %s, 2' % (s(S_RB), s(S_RB)))
    A.I('s_bfe_u32 %s, s2, 0x20003' % s(S_TMP))
    A.I('s_add_u32 %s, %s, %s' % (s(S_RB), s(S_RB), s(S_TMP)))
    A.I('s_lshr_b32 %s, s2, 5' % s(S_CB))
    A.I('v_and_b32 %s, 63, v0' % v(V_LANE))
    A.I('v_and_b32 %s, 15, v0' % v(V_T))
    A.I('v_bfe_u32 %s, v0, 4, 2' % v(V_G))
    A.I('v_lshrrev_b32 %s, 6, v0' % v(V_TMP))
    A.I('v_readfirstlane_b32 %s, %s' % (s(S_W), v(V_TMP)))
    A.I('s_mov_b32 %s, 0x%x' % (s(S_LOG2E), LOG2E))
    A.I('v_lshlrev_b32 %s, 4, %s' % (v(V_L16), v(V_LANE)))
    A.I('s_mul_i32 %s, %s, 40960' % (s(S_M0B), s(S_W)))
    A.I('s_lshl_b32 %s, %s, 2' % (s(S_WR), s(S_CB)))
    A.I('s_add_u32 %s, %s, %s' % (s(S_WR), s(S_WR), s(S_W)))
    A.I('s_mul_i32 %s, %s, %d' % (s(S_WR), s(S_WR), WR_WAVE))
    A.I('s_add_u32 %s, %s, %d' % (s(S_WR), s(S_WR), WR_OFF))
    for i in range(4):
        A.I('s_add_u32 %s, %s, %d' % (s(S_TMP), s(S_W), i))
        A.I('s_and_b32 %s, %s, 3' % (s(S_TMP), s(S_TMP)))
        A.I('s_lshl_b32 %s, %s, 2' % (s(S_T2), s(S_RB)))
        A.I('s_add_u32 %s, %s, %s' % (s(S_TMP), s(S_TMP), s(S_T2)))
        A.I('s_mul_i32 %s, %s, 54' % (s(S_T2), s(S_TMP)))
        A.I('s_add_u32 %s, %s, %s' % (s(S_T2), s(S_T2), s(S_W)))
        A.I('s_lshl_b32 %s, %s, 10' % (s(S_ACT + i), s(S_T2)))
        A.I('s_lshl_b32 %s, %s, 3' % (s(S_T2), s(S_TMP)))
        A.I('s_lshl_b32 %s, %s, 1' % (s(S_T3), s(S_W)))
        A.I('s_add_u32 %s, %s, %s' % (s(S_T2), s(S_T2), s(S_T3)))
        A.I('s_mul_i32 %s, %s, 5120' % (s(S_T2), s(S_T2)))
        A.I('s_add_u32 %s, %s, %d' % (s(S_PHI + i), s(S_T2), PHIQ_OFF))
    A.I('s_mul_i32 %s, %s, %d' % (s(S_KV), s(S_W), 8 * 3360))
    A.I('s_add_u32 %s, %s, %d' % (s(S_KV), s(S_KV), KVA_OFF))
    A.I('s_waitcnt lgkmcnt(0)')
    if A.stamps_on:
        for i in range(16):
            A.I('s_mov_b32 s%d, 0' % (64 + i))
    A.stamp(0)
    srd(A, SRD_WS, 12, WS_END)

    def dma_w(st):
        A.I('s_add_u32 %s, %s, %d' % (s(S_TMP), s(S_WR), st * SLOT))
        A.I('s_add_u32 m0, %s, %d' % (s(S_M0B), (st % NSLOT) * SLOT))
        for q in range(4):
            A.I('buffer_load_dwordx4 %s, %s, %s offen offset:%d lds' % (v(V_L16), s(SRD_WS, 4), s(S_TMP), q * 1024), vm=('w', st))
        A.I('s_add_u32 %s, %s, 4096' % (s(S_TMP), s(S_TMP)))
        A.I('s_add_u32 m0, %s, %d' % (s(S_M0B), (st % NSLOT) * SLOT + 4096))
        A.I('buffer_load_dwordx4 %s, %s, %s offen lds' % (v(V_L16), s(SRD_WS, 4), s(S_TMP)), vm=('w', st))

    def ld_act(n):
        b = ACT_B + (n % NACT) * 16
        for i in range(4):
            A.I('s_add_u32 %s, %s, %d' % (s(S_TMP), s(S_ACT + i), n * 4096))
            A.I('buffer_load_dwordx4 %s, %s, %s, %s offen' % (a(b + 4 * i, 4), v(V_L16), s(SRD_WS, 4), s(S_TMP)), vm=('act', n))

    dma_w(0)
    ld_act(0)
    dma_w(1)
    ld_act(1)
    srd(A, SRD_X, 4, 2048 * 640 * 2)
    srd(A, SRD_OUT, 10, 2048 * 640 * 2)
    t = [V_TMP + i for i in range(8)]
    def stage_kv(half):
        A.I('s_add_u32 %s, %s, %d' % (s(S_TMP), s(S_KV), half * 4 * 3360))
        for q in range(14):
            if q % 4 == 0:
                A.I('s_add_u32 m0, %s, %d' % (s(S_M0B), KVL + q * 1024))
                if q:
                    A.I('s_add_u32 %s, %s, 4096' % (s(S_TMP), s(S_TMP)))
            A.I('buffer_load_dwordx4 %s, %s, %s offen offset:%d lds' % (v(V_L16), s(SRD_WS, 4), s(S_TMP), (q % 4) * 1024), vm=('kvt', half))
    stage_kv(0)
    A.I('s_add_u32 %s, %s, %d' % (s(S_TMP), s(S_M0B), KVL))
    A.I('v_mul_u32_u24 %s, 160, %s' % (v(t[0]), v(V_T)))
    A.I('v_add_u32 %s, %s, %s' % (v(V_KB0), s(S_TMP), v(t[0])))
    A.I('v_lshl_add_u32 %s, %s, 5, %s' % (v(V_KA0), v(V_G), v(V_KB0)))
    A.I('v_lshrrev_b32 %s, 2, %s' % (v(t[1]), v(V_T)))
    A.I('v_add_u32 %s, 16, %s' % (v(t[1]), v(t[1])))
    A.I('v_and_b32 %s, 3, %s' % (v(t[2]), v(V_T)))
    A.I('v_cmp_eq_u32 vcc, 0, %s' % v(t[2]))
    A.I('v_mov_b32 %s, 20' % v(t[2]))
    A.I('v_cndmask_b32 %s, %s, %s, vcc' % (v(t[1]), v(t[2]), v(t[1])))
    A.I('v_mul_u32_u24 %s, 160, %s' % (v(t[0]), v(t[1])))
    A.I('v_add_u32 %s, %s, %s' % (v(V_KB1), s(S_TMP), v(t[0])))
    A.I('v_lshl_add_u32 %s, %s, 5, %s' % (v(V_KA1), v(V_G), v(V_KB1)))
    A.I('v_lshrrev_b32 %s, 2, %s' % (v(t[0]), v(V_LANE)))
    A.I('v_mul_u32_u24 %s, 160, %s' % (v(t[0]), v(t[0])))
    A.I('v_and_b32 %s, 3, %s' % (v(t[1]), v(V_LANE)))
    A.I('v_lshl_add_u32 %s, %s, 3, %s' % (v(t[0]), v(t[1]), v(t[0])))
    A.I('v_add_u32 %s, %s, %s' % (v(V_RB), s(S_M0B), v(t[0])))

    def ld_head(h):
        pb = PHF + (h % NHB) * 16
        for i in range(4):
            A.I('s_add_u32 %s, %s, %d' % (s(S_TMP), s(S_PHI + i), (h // 4) * 5120 + (h % 4) * 1024))
            A.I('buffer_load_dwordx4 %s, %s, %s, %s offen' % (v(pb + 4 * i, 4), v(V_L16), s(SRD_WS, 4), s(S_TMP)), vm=('h', h))
        if h % 4 == 0:
            for i in range(4):
                A.I('s_add_u32 %s, %s, %d' % (s(S_TMP), s(S_PHI + i), (h // 4) * 5120 + 4096))
                A.I('buffer_load_dwordx4 %s, %s, %s, %s offen' % (a(APB + (h // 4) * 16 + 4 * i, 4), v(V_L16), s(SRD_WS, 4), s(S_TMP)), vm=('h', h))

    def rd_kv(h):
        A.wait(vm=('kvt', h // 4))
        base = (h % 4) * 3360
        for k, (areg, off) in enumerate(((V_KA0, 0), (V_KB0, 128), (V_KA1, 0), (V_KB1, 128))):
            for q in range(2):
                A.I('ds_read_b128 %s, %s offset:%d' % (v(DT + 8 * k + 4 * q, 4), v(areg), base + off + 16 * q), lg=('kv', h))

    def do_head(h):
        pb = PHF + (h % NHB) * 16
        A.wait(lg=('kv', h))
        g = h % 4
        for k in (0, 2):
            for q in range(4):
                A.I('v_cvt_pk_bf16_f32 %s, %s, %s' % (v(KVF + 4 * k + q), v(DT + 8 * k + 2 * q), v(DT + 8 * k + 2 * q + 1)))
        for k in (1, 3):
            for q in range(4):
                A.I('v_mov_b32 %s, 0' % v(KVF + 4 * k + q))
        A.I('s_mov_b32 exec_lo, 0x%x' % ((0xffff << (16 * g)) & 0xffffffff if g < 2 else 0))
        A.I('s_mov_b32 exec_hi, 0x%x' % ((0xffff << (16 * (g - 2))) & 0xffffffff if g >= 2 else 0))
        for k in (1, 3):
            for q in range(4):
                A.I('v_cvt_pk_bf16_f32 %s, %s, %s' % (v(KVF + 4 * k + q), v(DT + 8 * k + 2 * q), v(DT + 8 * k + 2 * q + 1)))
        A.I('s_mov_b64 exec, -1')
        if h == 3:
            stage_kv(1)
        A.wait(vm=('h', h))
        for i in range(4):
            for tl in range(2):
                d = v(DT + i * 8 + tl * 4, 4)
                A.I('v_mfma_f32_16x16x32_bf16 %s, %s, %s, 0' % (d, v(KVF + 8 * tl, 4), v(pb + 4 * i, 4)))
        for i in range(4):
            for tl in range(2):
                d = v(DT + i * 8 + tl * 4, 4)
                A.I('v_mfma_f32_16x16x32_bf16 %s, %s, %s, %s' % (d, v(KVF + 8 * tl + 4, 4), a(APB + (h // 4) * 16 + 4 * i, 4), d))

    def fin_head(h):
        for i in range(4):
            d = DT + i * 8
            A.I('v_add_f32 %s, 0x358637bd, %s' % (v(d + 5), v(d + 5)))
        for i in range(4):
            d = DT + i * 8
            A.I('v_rcp_f32 %s, %s' % (v(d + 5), v(d + 5)))
        for i in range(4):
            d = DT + i * 8
            for r_ in range(5):
                A.I('v_mul_f32 %s, %s, %s' % (v(d + r_), v(d + r_), v(d + 5)))
            o = OF + (i * 5 + h // 2) * 4 + (h % 2) * 2
            A.I('v_cvt_pk_bf16_f32 %s, %s, %s' % (v(o), v(d), v(d + 1)))
            A.I('v_cvt_pk_bf16_f32 %s, %s, %s' % (v(o + 1), v(d + 2), v(d + 3)))
            o4 = OF + (i * 5 + 4) * 4 + h // 2
            if h % 2 == 0:
                A.I('v_mov_b32 %s, %s' % (v(V_TMP + 8 + i), v(d + 4)))
            else:
                A.I('v_cvt_pk_bf16_f32 %s, %s, %s' % (v(o4), v(V_TMP + 8 + i), v(d + 4)))

    def rd_frags(st):
        A.wait(vm=('w', st))
        off = (st % NSLOT) * SLOT
        for ft in range(5):
            w = WIN + ((st % 2) * 5 + ft) * 4
            A.I('ds_read_b64_tr_b16 %s, %s offset:%d' % (v(w, 2), v(V_RB), off + ft * 32), lg=('w', st, ft))
            A.I('ds_read_b64_tr_b16 %s, %s offset:%d' % (v(w + 2, 2), v(V_RB), off + 16 * 160 + ft * 32), lg=('w', st, ft))

    def mm(st, accb, bfrag, first):
        for ft in range(5):
            A.wait(lg=('w', st, ft))
            w = WIN + ((st % 2) * 5 + ft) * 4
            for i in range(4):
                d = a(accb + (ft * 4 + i) * 4, 4)
                A.I('v_mfma_f32_16x16x32_bf16 %s, %s, %s, %s' % (d, v(w, 4), bfrag(i), '0' if first else d))

    order = list(range(13)) + [14, 15, 16, 17, 18, 13]
    dma_w(2)
    ld_act(2)
    ld_head(0)
    ld_head(1)
    A.stamp(1)
    rd_frags(order[0])

    def dma_pos(p):
        st = order[p]
        A.I('s_add_u32 %s, %s, %d' % (s(S_TMP), s(S_WR), st * SLOT))
        A.I('s_add_u32 m0, %s, %d' % (s(S_M0B), (p % NSLOT) * SLOT))
        for q in range(4):
            A.I('buffer_load_dwordx4 %s, %s, %s offen offset:%d lds' % (v(V_L16), s(SRD_WS, 4), s(S_TMP), q * 1024), vm=('w', p))
        A.I('s_add_u32 %s, %s, 4096' % (s(S_TMP), s(S_TMP)))
        A.I('s_add_u32 m0, %s, %d' % (s(S_M0B), (p % NSLOT) * SLOT + 4096))
        A.I('buffer_load_dwordx4 %s, %s, %s offen lds' % (v(V_L16), s(SRD_WS, 4), s(S_TMP)), vm=('w', p))

    NP = len(order)
    H0 = 2
    for p in range(NP):
        st = order[p]
        if p in (4, 8, 13):
            A.stamp({4: 2, 8: 3, 13: 4}[p])
        if p == NP - 1:
            A.I('s_cmp_ge_u32 %s, 2' % s(S_W))
            A.I('s_cbranch_scc1 L_k2_skiplast')
        if p + 1 < NP:
            rd_frags(p + 1)
        if p + PFW < NP:
            dma_pos(p + PFW)
        h = p - H0
        if h >= 4:
            h -= 2
            if h < 4:
                h = -1
        if 0 <= h < 8:
            rd_kv(h)
        if st < 14:
            A.wait(vm=('act', st))
            b = ACT_B + (st % NACT) * 16
            mm(p, ACC_G, lambda i: a(b + 4 * i, 4), st == 0)
            nx = st + NACT - 1
            if nx < 14 and st < 13:
                ld_act(nx)
        else:
            j = st - 14
            mm(p, ACC_S, lambda i: v(OF + (i * 5 + j) * 4, 4), j == 0)
        if p == 0:
            ld_head(2)
        if 0 <= h < 8:
            do_head(h)
            if h + NHB < 8:
                ld_head(h + NHB)
            fin_head(h)
    A.label('L_k2_skiplast')
    A.flush_hazards()
    A.wait_all(vm=True, lg=True)
    A.stamp(8)
    XR = KVF
    A.I('s_lshl_b32 %s, %s, 6' % (s(S_TMP), s(S_RB)))
    A.I('s_lshl_b32 %s, %s, 4' % (s(S_T2), s(S_W)))
    A.I('s_add_u32 %s, %s, %s' % (s(S_TMP), s(S_TMP), s(S_T2)))
    A.I('s_mul_i32 %s, %s, 1280' % (s(S_TMP), s(S_TMP)))
    A.I('s_mul_i32 %s, %s, 160' % (s(S_T2), s(S_CB)))
    A.I('s_add_u32 %s, %s, %s' % (s(S_T3), s(S_TMP), s(S_T2)))
    VO = V_TMP
    A.I('v_mul_u32_u24 %s, 1280, %s' % (v(VO), v(V_T)))
    A.I('v_lshl_add_u32 %s, %s, 3, %s' % (v(VO), v(V_G), v(VO)))
    for ft in range(5):
        A.I('buffer_load_dwordx2 %s, %s, %s, %s offen offset:%d' % (v(XR + 2 * ft, 2), v(VO), s(SRD_X, 4), s(S_T3), ft * 32), vm='x')
    A.I('s_barrier')
    for i in range(1, 4):
        A.I('s_add_u32 %s, %s, %d' % (s(S_TMP), s(S_W), i))
        A.I('s_and_b32 %s, %s, 3' % (s(S_TMP), s(S_TMP)))
        A.I('s_mul_i32 %s, %s, 30720' % (s(S_TMP), s(S_TMP)))
        A.I('v_add_u32 %s, %s, %s' % (v(V_TMP + i), s(S_TMP), v(V_L16)))
        for k in range(10):
            src = (ACC_G if k < 5 else ACC_S) + ((k % 5) * 4 + i) * 4
            A.I('ds_write_b128 %s, %s offset:%d' % (v(V_TMP + i), a(src, 4), (i - 1) * 10240 + k * 1024), lg='ex')
    A.wait(lg='ex')
    A.stamp(9)
    A.I('s_barrier')
    A.I('s_mul_i32 %s, %s, 30720' % (s(S_TMP), s(S_W)))
    A.I('v_add_u32 %s, %s, %s' % (v(V_TMP + 1), s(S_TMP), v(V_L16)))
    R = 96
    for i in range(3):
        for k in range(10):
            A.I('ds_read_b128 %s, %s offset:%d' % (v(R + (i * 10 + k) * 4, 4), v(V_TMP + 1), i * 10240 + k * 1024), lg=('rx', k) if i == 2 else 'r')
    O = 216
    for k in range(10):
        src = (ACC_G if k < 5 else ACC_S) + ((k % 5) * 4) * 4
        for r_ in range(4):
            A.I('v_accvgpr_read_b32 %s, %s' % (v(O + k * 4 + r_), a(src + r_)))
    for k in range(10):
        A.wait(lg=('rx', k))
        for i in range(3):
            for r_ in range(4):
                A.I('v_add_f32 %s, %s, %s' % (v(O + k * 4 + r_), v(O + k * 4 + r_), v(R + (i * 10 + k) * 4 + r_)))
    A.wait(vm='x')
    T = 96
    for ft in range(5):
        g_, s_ = O + ft * 4, O + (5 + ft) * 4
        e = T + ft * 8
        for r_ in range(4):
            A.I('v_mul_f32 %s, %s, %s' % (v(e + r_), s(S_LOG2E), v(g_ + r_)))
        for r_ in range(4):
            A.I('v_exp_f32 %s, -%s' % (v(e + r_), v(e + r_)))
        for r_ in range(4):
            A.I('v_add_f32 %s, 1.0, %s' % (v(e + r_), v(e + r_)))
        for r_ in range(4):
            A.I('v_rcp_f32 %s, %s' % (v(e + r_), v(e + r_)))
        for r_ in range(4):
            A.I('v_mul_f32 %s, %s, %s' % (v(e + r_), v(e + r_), v(g_ + r_)))
        for h in range(2):
            A.I('v_lshlrev_b32 %s, 16, %s' % (v(e + 4 + 2 * h), v(XR + 2 * ft + h)))
            A.I('v_and_b32 %s, 0xffff0000, %s' % (v(e + 5 + 2 * h), v(XR + 2 * ft + h)))
        for r_ in range(4):
            A.I('v_fma_f32 %s, %s, %s, %s' % (v(e + r_), v(e + r_), v(s_ + r_), v(e + 4 + r_)))
        A.I('v_cvt_pk_bf16_f32 %s, %s, %s' % (v(e), v(e), v(e + 1)))
        A.I('v_cvt_pk_bf16_f32 %s, %s, %s' % (v(e + 1), v(e + 2), v(e + 3)))
        A.I('buffer_store_dwordx2 %s, %s, %s, %s offen offset:%d' % (v(e, 2), v(VO), s(SRD_OUT, 4), s(S_T3), ft * 32), vm='st')
    A.stamp(15)
    A.STAMP_OFF = (32 << 20) + (1 << 19)
    A.stamp_flush(12, S_W, 8)
    A.label('L_k2_end')
    A.I('s_endpgm')
```

```python
from asmlib import *

ACT_OFF = 0
PHIQ_OFF = 128 * 54 * 1024
KVA_OFF = PHIQ_OFF + 128 * 32 * 1280
STAT_OFF = KVA_OFF + 32 * 3360 + 1024
CSP_OFF = STAT_OFF + 2048 * 8
WR_OFF = CSP_OFF + 16 * 16 * 1024
WR_CB = 74 * 5120
O_OFF = WR_OFF + 8 * WR_CB
CNT_OFF = O_OFF + 128 * 20 * 1024
WS_END = CNT_OFF + 32 * 256

LOG2E = 0x3fb8aa3b
BIG = 0x7ffffff0

SRD_X, SRD_W, SRD_WS, SRD_AUX, SRD_DBG = 20, 24, 28, 32, 36
S_TB, S_FB, S_W, S_TG, S_GRP, S_M0B, S_TMP, S_M0X, S_LOG2E = 40, 41, 42, 43, 44, 45, 46, 47, 48
S_XOFF = 49
S_DT = 50
S_WO, S_XO = 51, 59
S_MASK = 52
S_T3, S_T4 = 54, 55
S_P0, S_M0Q, S_HF, S_T5 = 56, 56, 57, 58
V_LANE, V_T, V_G = 1, 2, 3
V_DM0, V_DM1, V_RB0, V_RB1, V_DX0, V_DX1, V_ONES = 4, 5, 6, 7, 8, 9, 20
V_XR0 = 10
V_NM = 14
V_N, V_HI = 16, 17
V_POLL, V_PA = 18, 19
V_TMP0, V_TMP1 = 22, 23
WIN, ACC, XF, HK = 24, 40, 104, 136
D_RING = 6
XP = 16384
DBG_STAT, DBG_CS = 16, 32


def srd(A, d, lo, size):
    A.I('s_mov_b32 %s, %s' % (s(d), s(lo)))
    A.I('s_and_b32 %s, %s, 0xffff' % (s(d + 1), s(lo + 1)))
    A.I('s_mov_b32 %s, 0x%x' % (s(d + 2), size))
    A.I('s_mov_b32 %s, 0x20000' % s(d + 3))


def swap23(A, dst, src, t0):
    A.I('v_and_b32 %s, 0x13, %s' % (v(dst), v(src)))
    A.I('v_and_b32 %s, 4, %s' % (v(t0), v(src)))
    A.I('v_lshl_or_b32 %s, %s, 1, %s' % (v(dst), v(t0), v(dst)))
    A.I('v_and_b32 %s, 8, %s' % (v(t0), v(src)))
    A.I('v_lshrrev_b32 %s, 1, %s' % (v(t0), v(t0)))
    A.I('v_or_b32 %s, %s, %s' % (v(dst), v(dst), v(t0)))


def divmod_const(A, q, r, x, c, magic):
    A.I('v_mul_u32_u24 %s, %d, %s' % (v(q), magic, v(x)))
    A.I('v_lshrrev_b32 %s, 16, %s' % (v(q), v(q)))
    A.I('v_mul_u32_u24 %s, %d, %s' % (v(r), c, v(q)))
    A.I('v_sub_u32 %s, %s, %s' % (v(r), v(x), v(r)))


def trbase(A, dst, rowbytes, t0, t1):
    A.I('v_lshrrev_b32 %s, 1, %s' % (v(t0), v(V_G)))
    A.I('v_lshlrev_b32 %s, 4, %s' % (v(t0), v(t0)))
    A.I('v_and_b32 %s, 1, %s' % (v(t1), v(V_G)))
    A.I('v_lshl_add_u32 %s, %s, 2, %s' % (v(t0), v(t1), v(t0)))
    A.I('v_bfe_u32 %s, %s, 2, 2' % (v(t1), v(V_LANE)))
    A.I('v_add_u32 %s, %s, %s' % (v(t0), v(t0), v(t1)))
    A.I('v_mul_u32_u24 %s, %d, %s' % (v(t0), rowbytes, v(t0)))
    A.I('v_and_b32 %s, 3, %s' % (v(t1), v(V_LANE)))
    A.I('v_lshl_add_u32 %s, %s, 3, %s' % (v(dst), v(t1), v(t0)))


def xf(sk, ks):
    return XF + ((sk % 4) * 2 + ks) * 4


def dma_x(A, p, xbase):
    A.I('s_add_u32 %s, %s, %s' % (s(S_DT), s(S_XOFF), s(S_XO)))
    A.I('s_add_u32 %s, %s, 128' % (s(S_XO), s(S_XO)))
    A.I('s_cmp_ge_u32 %s, 1280' % s(S_XO))
    A.I('s_cselect_b32 %s, 0, %s' % (s(S_XO), s(S_XO)))
    for j, d in enumerate((V_DX0, V_DX1)):
        A.I('s_add_u32 m0, %s, %d' % (s(S_M0X), xbase + (p % 3) * XP + j * 1024))
        A.I('buffer_load_dwordx4 %s, %s, %s offen lds' % (v(d), s(SRD_X, 4), s(S_DT)), vm=('xp', p))


class Loop:
    def __init__(self, A, name, tiles, ks_off, half_off, dma_issue, xbase, hooks=None, nwin=4, fillers=None):
        self.__dict__.update(locals())
        self.hooks = hooks or {}
        self.nf = 2 * len(tiles)

    def rd(self, F):
        A = self.A
        sk, fi = divmod(F, self.nf)
        ks, ti = divmod(fi, len(self.tiles))
        slot = sk % D_RING
        base = V_RB0 if slot < 3 else V_RB1
        off = (slot % 3) * F_SLOT + ks * self.ks_off + self.tiles[ti][0]
        w = WIN + (F % self.nwin) * 4
        A.I('ds_read_b64_tr_b16 %s, %s offset:%d' % (v(w, 2), v(base), off), lg=('f', F))
        A.I('ds_read_b64_tr_b16 %s, %s offset:%d' % (v(w + 2, 2), v(base), off + self.half_off), lg=('f', F))

    def sync_stage(self, sk):
        A = self.A
        tags = [('dma', sk)]
        if sk % 2 == 0:
            tags.append(('xp', sk // 2))
        A.wait(vm=tags)
        A.I('s_barrier')
        if sk % 2 == 0:
            p = sk // 2
            for s4 in range(4):
                A.I('ds_read_b128 %s, %s offset:%d' % (v(xf(sk + s4 // 2, s4 % 2), 4), v(V_XR0 + s4), (p % 3) * XP), lg=('x', sk + s4 // 2))
        if self.name.endswith('1') and sk >= 2:
            self.pending = sk
            return
        self.issue_after(sk)

    def issue_after(self, sk):
        A = self.A
        if sk == 0:
            self.dma_issue(2)
            dma_x(A, 2, self.xbase)
            self.dma_issue(3)
        elif sk == 1:
            self.dma_issue(4)
            self.dma_issue(5)
        elif sk + 4 <= 19:
            self.dma_issue(sk + 4)
        if sk % 2 == 1 and (sk // 2 + 3) < 10:
            dma_x(A, sk // 2 + 3, self.xbase)

    def run(self):
        A = self.A
        tot = 20 * self.nf
        la = self.nwin - 1
        self.pending = None
        self.sync_stage(0)
        A.stamp(1)
        for F in range(la):
            self.rd(F)
        for sk in range(20):
            if sk in (1, 5, 10):
                A.stamp({1: 2, 5: 3, 10: 4}[sk])
            if sk in self.hooks:
                self.hooks[sk]()
            for fi in range(self.nf):
                F = sk * self.nf + fi
                Fn = F + la
                if Fn < tot:
                    if Fn % self.nf == 0:
                        self.sync_stage(Fn // self.nf)
                    self.rd(Fn)
                A.wait(lg=[('f', F), ('x', sk)])
                w = WIN + (F % self.nwin) * 4
                ks, ti = divmod(fi, len(self.tiles))
                d = v(self.tiles[ti][1], 16)
                A.I('v_mfma_f32_32x32x16_bf16 %s, %s, %s, %s' % (d, v(w, 4), v(xf(sk, ks), 4), d if (sk or ks) else '0'))
                if self.pending is not None and fi == 1:
                    self.issue_after(self.pending)
                    self.pending = None
                if self.fillers:
                    A.drain(self.fillers, 4)
        assert not self.fillers
        A.stamp(5)


def stats_to_mr(A, vsum, vsq, nm, r, t0):
    A.I('v_mul_f32 %s, 0x3acccccd, %s' % (v(vsum), v(vsum)))
    A.I('v_mul_f32 %s, 0x3acccccd, %s' % (v(vsq), v(vsq)))
    A.I('v_fma_f32 %s, -%s, %s, %s' % (v(vsq), v(vsum), v(vsum), v(vsq)))
    A.I('v_max_f32 %s, 0, %s' % (v(vsq), v(vsq)))
    A.I('v_cvt_pk_bf16_f32 %s, %s, %s' % (v(t0), v(vsum), v(vsq)))
    A.I('v_lshlrev_b32 %s, 16, %s' % (v(nm), v(t0)))
    A.I('v_xor_b32 %s, 0x80000000, %s' % (v(nm), v(nm)))
    A.I('v_and_b32 %s, 0xffff0000, %s' % (v(t0), v(t0)))
    A.I('v_add_f32 %s, 0x3727c5ac, %s' % (v(t0), v(t0)))
    A.I('v_cvt_pk_bf16_f32 %s, %s, %s' % (v(t0), v(t0), v(t0)))
    A.I('v_and_b32 %s, 0xffff0000, %s' % (v(t0), v(t0)))
    A.I('v_sqrt_f32 %s, %s' % (v(t0), v(t0)))
    A.I('v_cvt_pk_bf16_f32 %s, %s, %s' % (v(t0), v(t0), v(t0)))
    A.I('v_and_b32 %s, 0xffff0000, %s' % (v(t0), v(t0)))
    A.I('v_rcp_f32 %s, %s' % (v(r), v(t0)))


def wave_sum(A, regs, t):
    for ctl in ('quad_perm:[1,0,3,2]', 'quad_perm:[2,3,0,1]', 'row_half_mirror', 'row_mirror'):
        A.nop(2)
        for r_ in regs:
            A.I('v_add_f32_dpp %s, %s, %s %s row_mask:0xf bank_mask:0xf' % (v(r_), v(r_), v(r_), ctl))
    for op in ('v_permlane16_swap_b32', 'v_permlane32_swap_b32'):
        for r_, t_ in zip(regs, t):
            A.I('v_mov_b32 %s, %s' % (v(t_), v(r_)))
        for r_, t_ in zip(regs, t):
            A.I('%s %s, %s' % (op, v(r_), v(t_)))
        for r_, t_ in zip(regs, t):
            A.I('v_add_f32 %s, %s, %s' % (v(r_), v(r_), v(t_)))


class Coop:
    def __init__(self, A, rowbytes, csw_lds, cs_lds, colmap):
        self.__dict__.update(locals())
        self.SR = ACC
        self.CR = ACC + 8
        self.T = ACC + 20

    def issue_loads(self):
        A, T = self.A, self.T
        A.I('s_lshl_b32 %s, %s, 7' % (s(S_TMP), s(S_TB)))
        A.I('s_lshl_b32 %s, %s, 3' % (s(S_T3), s(S_FB)))
        A.I('s_add_u32 %s, %s, %s' % (s(S_TMP), s(S_TMP), s(S_T3)))
        A.I('s_add_u32 %s, %s, %s' % (s(S_T5), s(S_TMP), s(S_W)))
        A.I('s_mul_i32 %s, %s, 1280' % (s(S_TMP), s(S_T5)))
        A.I('v_lshlrev_b32 %s, 4, %s' % (v(T), v(V_LANE)))
        A.I('buffer_load_dwordx4 %s, %s, %s, %s offen' % (v(self.SR, 4), v(T), s(SRD_X, 4), s(S_TMP)), vm='sl')
        A.I('v_mov_b32 %s, 0x%x' % (v(T + 1), BIG))
        A.I('v_cmp_gt_u32 vcc, 16, %s' % v(V_LANE))
        A.I('v_cndmask_b32 %s, %s, %s, vcc' % (v(T + 1), v(T + 1), v(T)))
        A.I('buffer_load_dwordx4 %s, %s, %s, %s offen offset:1024' % (v(self.SR + 4, 4), v(T + 1), s(SRD_X, 4), s(S_TMP)), vm='sl')
        self.colmap(T + 2, T + 3)
        A.I('s_mul_i32 %s, %s, 40' % (s(S_TMP), s(S_TB)))
        A.I('s_mul_i32 %s, %s, 5' % (s(S_T3), s(S_W)))
        A.I('s_add_u32 %s, %s, %s' % (s(S_TMP), s(S_TMP), s(S_T3)))
        A.I('s_mul_i32 %s, %s, %d' % (s(S_TMP), s(S_TMP), self.rowbytes))
        for i in range(5):
            A.I('buffer_load_dwordx2 %s, %s, %s, %s offen' % (v(self.CR + 2 * i, 2), v(T + 2), s(SRD_W, 4), s(S_TMP)), vm='cl')
            if i < 4:
                A.I('s_add_u32 %s, %s, %d' % (s(S_TMP), s(S_TMP), self.rowbytes))

    def compute(self):
        A, T = self.A, self.T
        SU, SQ = T + 4, T + 5
        A.I('v_mov_b32 %s, 0' % v(SU))
        A.I('v_mov_b32 %s, 0' % v(SQ))
        A.wait(vm='sl')
        for i in range(8):
            A.I('v_dot2c_f32_bf16 %s, %s, %s' % (v(SU), v(self.SR + i), v(V_ONES)))
            A.I('v_dot2c_f32_bf16 %s, %s, %s' % (v(SQ), v(self.SR + i), v(self.SR + i)))
        A.nop(3)
        wave_sum(A, [SU, SQ], [T + 6, T + 7])
        stats_to_mr(A, SU, SQ, T + 8, T + 9, T + 6)
        A.I('s_lshl_b32 %s, %s, 3' % (s(S_TMP), s(S_T5)))
        A.I('s_add_u32 %s, %s, %d' % (s(S_TMP), s(S_TMP), STAT_OFF))
        A.I('v_mov_b32 %s, 0' % v(T + 6))
        A.I('s_mov_b64 exec, 1')
        A.I('buffer_store_dwordx2 %s, %s, %s, %s offen sc1' % (v(T + 8, 2), v(T + 6), s(SRD_WS, 4), s(S_TMP)), vm='sst')
        A.I('s_mov_b64 exec, -1')
        A.I('v_lshlrev_b32 %s, 2, v0' % v(T + 7))
        A.I('v_mov_b32 %s, 0x%x' % (v(T + 14), BIG))
        A.I('v_cmp_gt_u32 vcc, 105, v0')
        A.I('v_cndmask_b32 %s, %s, %s, vcc' % (v(T + 7), v(T + 14), v(T + 7)))
        A.I('s_mul_i32 %s, s2, 420' % s(S_TMP))
        A.I('s_add_u32 %s, %s, %d' % (s(S_TMP), s(S_TMP), KVA_OFF))
        A.I('buffer_store_dword %s, %s, %s, %s offen sc1' % (v(T + 6), v(T + 7), s(SRD_WS, 4), s(S_TMP)), vm='sst')
        A.I('v_cmp_eq_u32 vcc, 0, v0')
        A.I('v_cndmask_b32 %s, %s, 0, vcc' % (v(T + 7), v(T + 14)))
        A.I('s_lshl_b32 %s, s2, 8' % s(S_TMP))
        A.I('s_add_u32 %s, %s, %d' % (s(S_TMP), s(S_TMP), CNT_OFF))
        A.I('buffer_store_dword %s, %s, %s, %s offen' % (v(T + 6), v(T + 7), s(SRD_WS, 4), s(S_TMP)), vm='z2')
        A.wait(vm='cl')
        C = T + 10
        for i in range(5):
            for h in range(2):
                r_ = self.CR + 2 * i + h
                if i == 0:
                    A.I('v_lshlrev_b32 %s, 16, %s' % (v(C + 2 * h), v(r_)))
                    A.I('v_and_b32 %s, 0xffff0000, %s' % (v(C + 2 * h + 1), v(r_)))
                else:
                    A.I('v_lshlrev_b32 %s, 16, %s' % (v(T + 6), v(r_)))
                    A.I('v_and_b32 %s, 0xffff0000, %s' % (v(T + 7), v(r_)))
                    A.I('v_add_f32 %s, %s, %s' % (v(C + 2 * h), v(C + 2 * h), v(T + 6)))
                    A.I('v_add_f32 %s, %s, %s' % (v(C + 2 * h + 1), v(C + 2 * h + 1), v(T + 7)))
        A.I('s_lshl_b32 %s, %s, 10' % (s(S_TMP), s(S_W)))
        A.I('s_add_u32 %s, %s, %d' % (s(S_TMP), s(S_TMP), self.csw_lds))
        A.I('v_lshlrev_b32 %s, 4, %s' % (v(T + 6), v(V_LANE)))
        A.I('v_add_u32 %s, %s, %s' % (v(T + 6), s(S_TMP), v(T + 6)))
        A.I('ds_write_b128 %s, %s' % (v(T + 6), v(C, 4)), lg='z')

    def hook_reduce(self):
        A = self.A
        R = HK
        A.I('s_lshl_b32 %s, %s, 8' % (s(S_TMP), s(S_TG)))
        A.I('s_add_u32 %s, %s, %d' % (s(S_TMP), s(S_TMP), self.csw_lds))
        A.I('v_lshlrev_b32 %s, 2, %s' % (v(R + 8), v(V_LANE)))
        A.I('v_add_u32 %s, %s, %s' % (v(R + 9), s(S_TMP), v(R + 8)))
        for i in range(8):
            A.I('ds_read_b32 %s, %s offset:%d' % (v(R + i), v(R + 9), i * 1024), lg='cr')

    def hook_reduce2(self):
        A = self.A
        R = HK
        A.wait(lg='cr')
        for i in range(1, 8):
            A.I('v_add_f32 %s, %s, %s' % (v(R), v(R), v(R + i)))
        A.I('s_lshl_b32 %s, %s, 4' % (s(S_TMP), s(S_FB)))
        A.I('s_add_u32 %s, %s, %s' % (s(S_TMP), s(S_TMP), s(S_TB)))
        A.I('s_lshl_b32 %s, %s, 10' % (s(S_TMP), s(S_TMP)))
        A.I('s_lshl_b32 %s, %s, 8' % (s(S_T3), s(S_TG)))
        A.I('s_add_u32 %s, %s, %s' % (s(S_TMP), s(S_TMP), s(S_T3)))
        A.I('s_add_u32 %s, %s, %d' % (s(S_TMP), s(S_TMP), CSP_OFF))
        A.I('buffer_store_dword %s, %s, %s, %s offen sc1' % (v(R), v(R + 8), s(SRD_WS, 4), s(S_TMP)), vm='cst')

    def hook_waitst(self):
        self.A.wait(vm=['sst', 'cst'])

    def hook_signal(self, grp, name):
        A = self.A
        if grp != 0:
            return
        R = HK + 10
        A.I('v_mov_b32 %s, 1' % v(R))
        A.I('s_and_b32 %s, s2, 1' % s(S_TMP))
        A.I('s_lshl_b32 %s, %s, 7' % (s(S_TMP), s(S_TMP)))
        A.I('v_mov_b32 %s, %s' % (v(R + 1), s(S_TMP)))
        A.I('v_lshlrev_b32 %s, 7, %s' % (v(V_PA), v(V_LANE)))
        A.I('v_and_b32 %s, 128, %s' % (v(V_PA), v(V_PA)))
        A.I('s_cmp_lg_u32 %s, 0' % s(S_TG))
        A.I('s_cbranch_scc1 L_%s_nosig' % name)
        A.I('s_mov_b64 exec, 1')
        A.I('buffer_atomic_add %s, %s, %s, 0 offen sc1' % (v(R), v(R + 1), s(SRD_DBG, 4)), vm='at')
        A.vmq.pop()
        A.I('s_mov_b64 exec, -1')
        A.label('L_%s_nosig' % name)

    def hook_poll(self, grp, name):
        A = self.A
        if grp != 0:
            return
        lp, ld = 'L_%s_poll' % name, 'L_%s_pdone' % name
        A.wait(vm='poll')
        A.I('s_cmp_lg_u32 %s, 0' % s(S_TG))
        A.I('s_cbranch_scc1 %s' % ld)
        A.label(lp)
        A.I('v_readlane_b32 %s, %s, 0' % (s(S_TMP), v(V_POLL)))
        A.I('v_readlane_b32 %s, %s, 1' % (s(S_T3), v(V_POLL)))
        A.I('s_min_u32 %s, %s, %s' % (s(S_TMP), s(S_TMP), s(S_T3)))
        A.I('s_cmp_ge_u32 %s, 128' % s(S_TMP))
        A.I('s_cbranch_scc1 %s' % ld)
        A.I('s_sleep 2')
        A.I('buffer_load_dword %s, %s, %s, 0 offen sc1' % (v(V_POLL), v(V_PA), s(SRD_DBG, 4)))
        A.vmq.pop()
        A.I('s_waitcnt vmcnt(0)')
        A.I('s_branch %s' % lp)
        A.label(ld)
        A.nop(4)

    def hook_poll_issue(self, grp):
        A = self.A
        if grp != 0:
            return
        A.I('s_mul_i32 %s, %s, 0x1000' % (s(S_TMP), s(S_TG)))
        A.I('buffer_load_dword %s, %s, %s, %s offen sc1' % (v(V_POLL), v(V_PA), s(SRD_DBG, 4), s(S_TMP)), vm='poll')

    def hook_consume(self, grp):
        A = self.A
        A.I('s_lshl_b32 %s, %s, 10' % (s(S_TMP), s(S_TB)))
        A.I('s_lshl_b32 %s, %s, 8' % (s(S_T3), s(S_TG)))
        A.I('s_add_u32 %s, %s, %s' % (s(S_TMP), s(S_TMP), s(S_T3)))
        A.I('s_add_u32 %s, %s, %d' % (s(S_TMP), s(S_TMP), STAT_OFF))
        A.I('v_lshlrev_b32 %s, 3, %s' % (v(V_TMP0), v(V_N)))
        A.I('buffer_load_dwordx2 %s, %s, %s, %s offen sc1' % (v(V_NM, 2), v(V_TMP0), s(SRD_WS, 4), s(S_TMP)), vm='nm')
        if grp == 0:
            A.I('s_lshl_b32 %s, %s, 14' % (s(S_TMP), s(S_FB)))
            A.I('s_lshl_b32 %s, %s, 8' % (s(S_T3), s(S_TG)))
            A.I('s_add_u32 %s, %s, %s' % (s(S_TMP), s(S_TMP), s(S_T3)))
            A.I('s_add_u32 %s, %s, %d' % (s(S_TMP), s(S_TMP), CSP_OFF))
            A.I('v_lshlrev_b32 %s, 2, %s' % (v(V_TMP1), v(V_LANE)))
            for p in range(16):
                A.I('buffer_load_dword %s, %s, %s, %s offen offset:%d sc1' % (v(HK + p), v(V_TMP1), s(SRD_WS, 4), s(S_TMP), (p % 4) * 1024), vm='csp')
                if p % 4 == 3 and p < 15:
                    A.I('s_add_u32 %s, %s, 4096' % (s(S_TMP), s(S_TMP)))

    def finish(self, grp):
        A = self.A
        if grp == 0:
            A.wait(vm='csp')
            for st in (8, 4, 2, 1):
                for i in range(st):
                    A.I('v_add_f32 %s, %s, %s' % (v(HK + i), v(HK + i), v(HK + i + st)))
            A.I('s_lshl_b32 %s, %s, 8' % (s(S_TMP), s(S_TG)))
            A.I('s_add_u32 %s, %s, %d' % (s(S_TMP), s(S_TMP), self.cs_lds))
            A.I('v_add_u32 %s, %s, %s' % (v(V_TMP1), s(S_TMP), v(V_TMP1)))
            A.I('ds_write_b32 %s, %s' % (v(V_TMP1), v(HK)), lg='pub')
            A.wait(lg='pub')
        A.wait(vm='nm')

    def hooks(self, grp, name):
        h = {}
        if grp == 0:
            h[0] = self.hook_reduce
            h[1] = self.hook_reduce2
        h[3] = self.hook_waitst
        h[4] = lambda: self.hook_signal(grp, name)
        h[13] = lambda: self.hook_poll_issue(grp)
        h[15] = lambda: self.hook_poll(grp, name)
        h[16] = lambda: self.hook_consume(grp)
        return h


SRD_R = 60


def relayout_issue(A, R):
    A.I('s_lshl_b32 s92, s2, 3')
    A.I('s_add_u32 s92, s92, %s' % s(S_W))
    A.group_begin()
    A.I('s_cmp_lt_u32 s92, 640')
    A.I('s_cselect_b32 s96, s88, s90')
    A.I('s_cselect_b32 s97, s89, s91')
    A.I('s_cselect_b32 s93, 0, 640')
    A.group_end()
    A.I('s_and_b32 s97, s97, 0xffff')
    A.I('s_mov_b32 s98, %d' % (1728 * 1280))
    A.I('s_mov_b32 s99, 0x20000')
    A.I('s_sub_u32 s93, s92, s93')
    A.I('s_mul_i32 s93, s93, 1280')
    A.I('v_lshlrev_b32 %s, 4, %s' % (v(R + 16), v(V_LANE)))
    A.I('v_mov_b32 %s, 0x%x' % (v(R + 17), BIG))
    A.I('v_cmp_gt_u32 vcc, 16, %s' % v(V_LANE))
    A.I('v_cndmask_b32 %s, %s, %s, vcc' % (v(R + 17), v(R + 17), v(R + 16)))
    A.I('buffer_load_dwordx4 %s, %s, s[96:99], s93 offen' % (v(R, 4), v(R + 16)), vm='rl')
    A.I('buffer_load_dwordx4 %s, %s, s[96:99], s93 offen offset:1024' % (v(R + 4, 4), v(R + 17)), vm='rl')
    A.I('s_mov_b32 s96, s90')
    A.I('s_and_b32 s97, s91, 0xffff')
    A.I('s_add_u32 s93, s92, 1408')
    A.I('s_mul_i32 s93, s93, 1280')
    A.I('buffer_load_dwordx4 %s, %s, s[96:99], s93 offen' % (v(R + 8, 4), v(R + 16)), vm='rl')
    A.I('buffer_load_dwordx4 %s, %s, s[96:99], s93 offen offset:1024' % (v(R + 12, 4), v(R + 17)), vm='rl')


def relayout_store(A, R):
    T = R + 18
    for j in range(2):
        A.I('v_add_u32 %s, %d, %s' % (v(T), 64 * j, v(V_LANE)))
        divmod_const(A, T + 1, T + 2, T, 10, 6554)
        A.I('s_mov_b32 s94, %d' % WR_CB)
        A.I('v_mul_lo_u32 %s, %s, s94' % (v(T + 1), v(T + 1)))
        A.I('v_lshl_add_u32 %s, %s, 4, %s' % (v(R + 16 + j), v(T + 2), v(T + 1)))
    A.I('v_mov_b32 %s, 0x%x' % (v(T), BIG))
    A.I('v_cmp_gt_u32 vcc, 16, %s' % v(V_LANE))
    A.I('v_cndmask_b32 %s, %s, %s, vcc' % (v(R + 17), v(T), v(R + 17)))

    def w2dest(srow):
        A.I('s_lshr_b32 s94, %s, 5' % srow)
        A.I('s_mul_i32 s95, s94, 5120')
        A.I('s_and_b32 s94, %s, 7' % srow)
        A.I('s_and_b32 s101, %s, 8' % srow)
        A.I('s_lshl_b32 s101, s101, 1')
        A.I('s_or_b32 s94, s94, s101')
        A.I('s_and_b32 s101, %s, 16' % srow)
        A.I('s_lshr_b32 s101, s101, 1')
        A.I('s_or_b32 s94, s94, s101')
        A.I('s_mul_i32 s94, s94, 160')
        A.I('s_add_u32 s95, s95, s94')
    A.I('s_sub_u32 s93, s92, 640')
    w2dest('s93')
    A.I('s_mov_b32 s100, s95')
    A.I('s_mul_i32 s93, s92, 3277')
    A.I('s_lshr_b32 s93, s93, 16')
    A.I('s_mul_i32 s94, s93, 20')
    A.I('s_sub_u32 s94, s92, s94')
    A.I('s_lshr_b32 s95, s93, 3')
    A.I('s_mul_i32 s95, s95, %d' % (5 * 5120))
    A.I('s_add_u32 s95, s95, %d' % (54 * 5120))
    A.I('s_and_b32 s93, s93, 7')
    A.I('s_lshr_b32 s96, s93, 1')
    A.I('s_mul_i32 s96, s96, 5120')
    A.I('s_and_b32 s97, s93, 1')
    A.I('s_lshl_b32 s97, s97, 4')
    A.I('s_add_u32 s97, s97, s94')
    A.I('s_mul_i32 s97, s97, 160')
    A.I('s_add_u32 s96, s96, s97')
    A.I('s_lshr_b32 s97, s93, 2')
    A.I('s_lshl_b32 s97, s97, 4')
    A.I('s_and_b32 s98, s93, 3')
    A.I('s_add_u32 s97, s97, s98')
    A.I('s_sub_u32 s98, s94, 16')
    A.I('s_lshl_b32 s98, s98, 2')
    A.I('s_add_u32 s97, s97, s98')
    A.I('s_mul_i32 s97, s97, 160')
    A.I('s_add_u32 s97, s97, %d' % (4 * 5120))
    A.group_begin()
    A.I('s_cmp_lt_u32 s94, 16')
    A.I('s_cselect_b32 s96, s96, s97')
    A.group_end()
    A.I('s_add_u32 s95, s95, s96')
    A.group_begin()
    A.I('s_cmp_lt_u32 s92, 640')
    A.I('s_cselect_b32 s95, s95, s100')
    A.group_end()
    A.I('s_add_u32 s100, s95, %d' % WR_OFF)
    A.wait(vm='rl')
    A.I('buffer_store_dwordx4 %s, %s, %s, s100 offen' % (v(R, 4), v(R + 16), s(SRD_WS, 4)), vm='rs')
    A.I('buffer_store_dwordx4 %s, %s, %s, s100 offen' % (v(R + 4, 4), v(R + 17), s(SRD_WS, 4)), vm='rs')
    A.I('s_add_u32 s93, s92, 1408')
    w2dest('s93')
    A.I('s_add_u32 s95, s95, %d' % WR_OFF)
    A.group_begin()
    A.I('s_cmp_lt_u32 s92, 320')
    A.I('s_cselect_b32 s95, s95, 0x%x' % BIG)
    A.group_end()
    A.I('buffer_store_dwordx4 %s, %s, %s, s95 offen' % (v(R + 8, 4), v(R + 16), s(SRD_WS, 4)), vm='rs')
    A.I('buffer_store_dwordx4 %s, %s, %s, s95 offen' % (v(R + 12, 4), v(R + 17), s(SRD_WS, 4)), vm='rs')


def read_cs_list(A, cs_lds, dsts, t0):
    A.I('v_lshlrev_b32 %s, 4, %s' % (v(t0), v(V_G)))
    A.I('v_add_u32 %s, %d, %s' % (v(t0), cs_lds, v(t0)))
    for ft, d in enumerate(dsts):
        A.I('ds_read_b128 %s, %s offset:%d' % (v(d, 4), v(t0), ft * 64), lg='cs')


def setup_x(A, xbase, t):
    A.I('s_lshl_b32 %s, %s, 7' % (s(S_TMP), s(S_W)))
    for j, dst in enumerate((V_DX0, V_DX1)):
        A.I('v_add_u32 %s, %s, %s' % (v(t[0]), s(S_TMP), v(V_LANE)))
        if j:
            A.I('v_add_u32 %s, 64, %s' % (v(t[0]), v(t[0])))
        A.I('v_lshrrev_b32 %s, 3, %s' % (v(t[1]), v(t[0])))
        A.I('v_bfe_u32 %s, %s, 4, 3' % (v(t[2]), v(t[0])))
        A.I('v_and_b32 %s, 7, %s' % (v(t[0]), v(t[0])))
        A.I('v_xor_b32 %s, %s, %s' % (v(t[0]), v(t[0]), v(t[2])))
        A.I('v_mul_u32_u24 %s, 1280, %s' % (v(t[1]), v(t[1])))
        A.I('v_lshl_add_u32 %s, %s, 4, %s' % (v(dst), v(t[0]), v(t[1])))
    A.I('s_mul_i32 %s, %s, %d' % (s(S_XOFF), s(S_TB), 128 * 1280))
    A.I('s_lshr_b32 %s, %s, 3' % (s(S_T4), s(S_FB)))
    A.I('s_mul_i32 %s, %s, 5' % (s(S_T4), s(S_T4)))
    A.I('s_add_u32 %s, %s, %s' % (s(S_T4), s(S_T4), s(S_TB)))
    for _ in range(2):
        A.I('s_cmp_ge_u32 %s, 10' % s(S_T4))
        A.I('s_cselect_b32 %s, 10, 0' % s(S_T3))
        A.I('s_sub_u32 %s, %s, %s' % (s(S_T4), s(S_T4), s(S_T3)))
    import os
    if os.environ.get('ROT1', '0') == '0':
        A.I('s_mov_b32 %s, 0' % s(S_T4))
    A.I('s_lshl_b32 %s, %s, 7' % (s(S_XO), s(S_T4)))
    A.I('s_lshl_b32 %s, %s, 11' % (s(S_M0X), s(S_W)))
    A.I('v_bfe_u32 %s, %s, 1, 3' % (v(t[0]), v(V_N)))
    A.I('v_xor_b32 %s, %s, %s' % (v(t[0]), v(t[0]), v(V_HI)))
    A.I('v_lshlrev_b32 %s, 4, %s' % (v(t[0]), v(t[0])))
    A.I('v_lshl_add_u32 %s, %s, 7, %s' % (v(t[0]), v(V_N), v(t[0])))
    A.I('s_lshl_b32 %s, %s, 12' % (s(S_TMP), s(S_TG)))
    A.I('s_add_u32 %s, %s, %d' % (s(S_TMP), s(S_TMP), xbase))
    for s4 in range(4):
        A.I('v_xor_b32 %s, %d, %s' % (v(t[1]), 32 * s4, v(t[0])))
        A.I('v_add_u32 %s, %s, %s' % (v(V_XR0 + s4), s(S_TMP), v(t[1])))


def gen_k1(A, mapping=0):
    A.label('k1_kernel')
    A.I('s_cmp_ge_u32 s2, 256')
    A.I('s_cbranch_scc1 L_k1_end')
    A.I('s_load_dwordx4 s[4:7], s[0:1], 0')
    A.I('s_load_dwordx2 s[8:9], s[0:1], 16')
    A.I('s_load_dwordx4 s[12:15], s[0:1], 40')
    A.I('s_load_dwordx4 s[16:19], s[0:1], 72')
    A.I('s_load_dwordx2 s[88:89], s[0:1], 24')
    A.I('s_load_dwordx2 s[90:91], s[0:1], 56')
    if mapping == 0:
        A.I('s_lshr_b32 %s, s2, 4' % s(S_TB))
        A.I('s_and_b32 %s, s2, 15' % s(S_FB))
    elif mapping == 1:
        A.I('s_bfe_u32 %s, s2, 0x10002' % s(S_TB))
        A.I('s_lshl_b32 %s, %s, 3' % (s(S_TB), s(S_TB)))
        A.I('s_bfe_u32 %s, s2, 0x30003' % s(S_TMP))
        A.I('s_add_u32 %s, %s, %s' % (s(S_TB), s(S_TB), s(S_TMP)))
        A.I('s_lshr_b32 %s, s2, 6' % s(S_FB))
        A.I('s_lshl_b32 %s, %s, 2' % (s(S_FB), s(S_FB)))
        A.I('s_and_b32 %s, s2, 3' % s(S_TMP))
        A.I('s_add_u32 %s, %s, %s' % (s(S_FB), s(S_FB), s(S_TMP)))
    elif mapping == 2:
        A.I('s_and_b32 %s, s2, 7' % s(S_TB))
        A.I('s_lshl_b32 %s, %s, 1' % (s(S_TB), s(S_TB)))
        A.I('s_bfe_u32 %s, s2, 0x10003' % s(S_TMP))
        A.I('s_add_u32 %s, %s, %s' % (s(S_TB), s(S_TB), s(S_TMP)))
        A.I('s_lshr_b32 %s, s2, 4' % s(S_FB))
    A.I('v_and_b32 %s, 63, v0' % v(V_LANE))
    A.I('v_and_b32 %s, 15, v0' % v(V_T))
    A.I('v_bfe_u32 %s, v0, 4, 2' % v(V_G))
    A.I('v_and_b32 %s, 31, v0' % v(V_N))
    A.I('v_bfe_u32 %s, v0, 5, 1' % v(V_HI))
    A.I('v_lshrrev_b32 %s, 6, v0' % v(V_TMP0))
    A.I('v_readfirstlane_b32 %s, %s' % (s(S_W), v(V_TMP0)))
    A.I('s_and_b32 %s, %s, 3' % (s(S_TG), s(S_W)))
    A.I('s_lshr_b32 %s, %s, 2' % (s(S_GRP), s(S_W)))
    A.I('s_mov_b32 %s, 0x%x' % (s(S_LOG2E), LOG2E))
    A.I('v_mov_b32 %s, 0x3f803f80' % v(V_ONES))
    A.I('s_waitcnt lgkmcnt(0)')
    if A.stamps_on:
        for i in range(16):
            A.I('s_mov_b32 s%d, 0' % (64 + i))
    A.stamp(0)
    srd(A, SRD_X, 4, 2048 * 640 * 2)
    srd(A, SRD_WS, 18, WS_END)
    srd(A, SRD_DBG, 16, 256)
    A.I('s_cmp_ge_u32 %s, 8' % s(S_FB))
    A.I('s_cbranch_scc1 L_k1_ffn')
    sn = A.snap()
    gen_k1_attn(A)
    A.restore(sn)
    A.label('L_k1_ffn')
    gen_k1_ffn(A)
    A.label('L_k1_end')
    A.I('s_endpgm')


F_SLOT = 15360
F_X = D_RING * F_SLOT
F_CSW = 5 * F_SLOT
F_CS = F_X + 3 * XP
F_BIAS = F_CS + 1024
F_LDS = F_BIAS + 1024


def mish_batch(A, vals, T):
    n = len(vals)
    E = [T + i for i in range(n)]
    U = [T + n + i for i in range(n)]
    for i, (ac, cs, b, nm, r) in enumerate(vals):
        A.I('v_fma_f32 %s, %s, %s, %s' % (v(ac), v(nm), v(cs), v(ac)))
    for i, (ac, cs, b, nm, r) in enumerate(vals):
        A.I('v_fma_f32 %s, %s, %s, %s' % (v(ac), v(ac), v(r), v(b)))
    for i, (ac, *_) in enumerate(vals):
        A.I('v_mul_f32 %s, %s, %s' % (v(E[i]), s(S_LOG2E), v(ac)))
    for i in range(n):
        A.I('v_exp_f32 %s, %s' % (v(E[i]), v(E[i])))
    for i in range(n):
        A.I('v_add_f32 %s, 2.0, %s' % (v(U[i]), v(E[i])))
    for i in range(n):
        A.I('v_fma_f32 %s, %s, %s, 2.0' % (v(U[i]), v(E[i]), v(U[i])))
    for i in range(n):
        A.I('v_rcp_f32 %s, %s' % (v(U[i]), v(U[i])))
    for i in range(n):
        A.I('v_fma_f32 %s, %s, -2.0, 1.0' % (v(U[i]), v(U[i])))
    for i, (ac, *_) in enumerate(vals):
        A.I('v_mul_f32 %s, %s, %s' % (v(ac), v(ac), v(U[i])))


def w_voffsets(A, t, kind):
    per = 112 if kind == 'ffn' else 120
    A.I('s_mul_i32 %s, %s, %d' % (s(S_TMP), s(S_W), per))
    if kind == 'ffn':
        A.I('s_lshl_b32 %s, %s, 6' % (s(S_T3), s(S_P0)))
    else:
        A.I('s_mul_i32 %s, %s, 160' % (s(S_T3), s(S_FB)))
    for j, dst in enumerate((V_DM0, V_DM1)):
        A.I('v_add_u32 %s, %s, %s' % (v(t[0]), s(S_TMP), v(V_LANE)))
        if j:
            A.I('v_add_u32 %s, 64, %s' % (v(t[0]), v(t[0])))
        if kind == 'ffn':
            divmod_const(A, t[1], t[2], t[0], 28, 2341)
            A.I('v_mul_u32_u24 %s, 3456, %s' % (v(t[3]), v(t[1])))
            A.I('v_lshl_add_u32 %s, %s, 4, %s' % (v(t[3]), v(t[2]), v(t[3])))
            A.I('v_add_u32 %s, %s, %s' % (v(dst), s(S_T3), v(t[3])))
        else:
            divmod_const(A, t[1], t[2], t[0], 30, 2185)
            divmod_const(A, t[5], t[7], t[2], 10, 6554)
            A.I('v_and_b32 %s, 24, %s' % (v(t[3]), v(t[1])))
            A.I('v_and_b32 %s, 1, %s' % (v(t[4]), v(t[1])))
            A.I('v_lshl_or_b32 %s, %s, 2, %s' % (v(t[3]), v(t[4]), v(t[3])))
            A.I('v_bfe_u32 %s, %s, 1, 2' % (v(t[4]), v(t[1])))
            A.I('v_or_b32 %s, %s, %s' % (v(t[3]), v(t[3]), v(t[4])))
            A.I('v_mul_u32_u24 %s, 3840, %s' % (v(t[3]), v(t[3])))
            A.I('v_lshl_add_u32 %s, %s, 4, %s' % (v(t[3]), v(t[7]), v(t[3])))
            A.I('v_add_u32 %s, 1, %s' % (v(t[6]), v(t[5])))
            A.I('v_cmp_gt_u32 vcc, 2, %s' % v(t[5]))
            A.I('v_cndmask_b32 %s, 0, %s, vcc' % (v(t[6]), v(t[6])))
            A.I('v_mul_u32_u24 %s, 1280, %s' % (v(t[6]), v(t[6])))
            A.I('v_add3_u32 %s, %s, %s, %s' % (v(dst), s(S_T3), v(t[3]), v(t[6])))
    A.I('s_mul_i32 %s, %s, %d' % (s(S_M0B), s(S_W), per * 16))


def mk_dma(A, rowbytes, himask):
    A.I('s_mul_i32 %s, %s, %d' % (s(S_WO), s(S_T4), 64 * rowbytes))

    def dma(stage):
        slot = stage % D_RING
        A.I('s_mov_b32 %s, %s' % (s(S_DT), s(S_WO)))
        A.I('s_add_u32 %s, %s, %d' % (s(S_WO), s(S_WO), 32 * rowbytes))
        A.I('s_cmp_ge_u32 %s, %d' % (s(S_WO), 640 * rowbytes))
        A.I('s_cselect_b32 %s, 0, %s' % (s(S_WO), s(S_WO)))
        A.I('s_add_u32 m0, %s, %d' % (s(S_M0B), slot * F_SLOT))
        A.I('buffer_load_dwordx4 %s, %s, %s offen lds' % (v(V_DM0), s(SRD_W, 4), s(S_DT)), vm=('dma', stage))
        A.I('s_add_u32 m0, %s, %d' % (s(S_M0B), slot * F_SLOT + 1024))
        A.I('s_mov_b32 exec_hi, 0x%x' % himask)
        A.I('buffer_load_dwordx4 %s, %s, %s offen lds' % (v(V_DM1), s(SRD_W, 4), s(S_DT)), vm=('dma', stage))
        A.I('s_mov_b64 exec, -1')
    return dma


def trbase32(A, dst, rowbytes, rmul, t0, t1):
    A.I('v_bfe_u32 %s, %s, 2, 2' % (v(t0), v(V_LANE)))
    if rmul == 2:
        A.I('v_lshlrev_b32 %s, 1, %s' % (v(t0), v(t0)))
    A.I('v_lshl_add_u32 %s, %s, 3, %s' % (v(t0), v(V_HI), v(t0)))
    A.I('v_mul_u32_u24 %s, %d, %s' % (v(t0), rowbytes, v(t0)))
    A.I('v_and_b32 %s, 1, %s' % (v(t1), v(V_G)))
    A.I('v_lshl_add_u32 %s, %s, 5, %s' % (v(t0), v(t1), v(t0)))
    A.I('v_and_b32 %s, 3, %s' % (v(t1), v(V_LANE)))
    A.I('v_lshl_add_u32 %s, %s, 3, %s' % (v(dst), v(t1), v(t0)))


def rd_vec32(A, areg, lds_off, dst, tag):
    for j in range(4):
        A.I('ds_read_b128 %s, %s offset:%d' % (v(dst + 4 * j, 4), v(areg), lds_off + j * 32), lg=tag)


RLY = 160


def gen_k1_ffn(A):
    srd(A, SRD_W, 12, 640 * 1728 * 2)
    A.I('s_sub_u32 %s, %s, 8' % (s(S_P0), s(S_FB)))
    A.I('s_mul_i32 %s, %s, 7' % (s(S_P0), s(S_P0)))
    A.I('s_min_u32 %s, %s, 47' % (s(S_P0), s(S_P0)))
    t = [200 + i for i in range(8)]
    setup_x(A, F_X, t)
    dma_x(A, 0, F_X)
    w_voffsets(A, t, 'ffn')
    dma = mk_dma(A, 3456, 0xffff)
    dma(0)
    dma(1)
    dma_x(A, 1, F_X)
    srd(A, SRD_AUX, 14, 1728 * 2)

    def colmap(dst, t0):
        A.I('s_lshl_b32 %s, %s, 6' % (s(S_T3), s(S_P0)))
        A.I('v_lshlrev_b32 %s, 3, %s' % (v(dst), v(V_LANE)))
        A.I('v_add_u32 %s, %s, %s' % (v(dst), s(S_T3), v(dst)))
        A.I('v_mov_b32 %s, 0x%x' % (v(t0), BIG))
        A.I('v_cmp_gt_u32 vcc, 56, %s' % v(V_LANE))
        A.I('v_cndmask_b32 %s, %s, %s, vcc' % (v(dst), v(t0), v(dst)))
    C = Coop(A, 3456, F_CSW, F_CS, colmap)
    C.issue_loads()
    A.stamp(8)
    trbase32(A, V_RB0, 448, 1, t[0], t[1])
    A.I('s_lshl_b32 %s, %s, 8' % (s(S_TMP), s(S_GRP)))
    A.I('v_add_u32 %s, %s, %s' % (v(V_RB0), s(S_TMP), v(V_RB0)))
    A.I('v_add_u32 %s, %d, %s' % (v(V_RB1), 3 * F_SLOT, v(V_RB0)))
    C.compute()
    A.wait(lg='z')
    A.stamp(14)

    def mk_fill(grp):
        A.defer_begin()
        relayout_issue(A, RLY)
        if grp == 0:
            A.I('s_lshl_b32 s85, %s, 6' % s(S_P0))
            A.I('v_lshlrev_b32 %s, 1, v0' % v(190))
            A.I('buffer_load_ushort %s, %s, %s, s85 offen' % (v(191), v(190), s(SRD_AUX, 4)), vm='bias')
        relayout_store(A, RLY)
        if grp == 0:
            A.wait(vm='bias')
            A.I('v_lshlrev_b32 %s, 16, %s' % (v(191), v(191)))
            A.I('v_lshlrev_b32 %s, 2, v0' % v(190))
            A.I('v_add_u32 %s, %d, %s' % (v(190), F_BIAS, v(190)))
            A.I('ds_write_b32 %s, %s' % (v(190), v(191)), lg='z')
        return A.defer_end()
    A.I('s_cmp_eq_u32 %s, 1' % s(S_GRP))
    A.I('s_cbranch_scc1 L_ffn_B')
    sn = A.snap()
    for grp in range(2):
        if grp:
            A.restore(sn)
            A.label('L_ffn_B')
        nt = 4 - grp
        tiles = [(ti * 64, ACC + 16 * ti) for ti in range(nt)]
        L = Loop(A, 'ffn%d' % grp, tiles, 16 * 448, 4 * 448, dma, F_X, C.hooks(grp, 'ffn%d' % grp), fillers=mk_fill(grp))
        L.run()
        CSR = [152, 184]
        BFR = [168, 200]
        TT = 216
        OUT = 232
        AD = 252
        C.finish(grp)
        A.stamp(6)
        A.I('s_barrier')
        A.stamp(7)
        A.I('v_lshlrev_b32 %s, 4, %s' % (v(AD + 1), v(V_HI)))
        A.I('v_add_u32 %s, %d, %s' % (v(AD + 1), F_CS + grp * 512, v(AD + 1)))

        def rdv(ti):
            rd_vec32(A, AD + 1, ti * 128, CSR[ti % 2], ('cs', ti))
            rd_vec32(A, AD + 1, 1024 + ti * 128, BFR[ti % 2], ('cs', ti))
        rdv(0)
        A.I('s_lshl_b32 %s, %s, 3' % (s(S_TMP), s(S_TB)))
        A.I('s_lshl_b32 %s, %s, 1' % (s(S_T3), s(S_TG)))
        A.I('s_add_u32 %s, %s, %s' % (s(S_TMP), s(S_TMP), s(S_T3)))
        A.I('s_mul_i32 %s, %s, 54' % (s(S_TMP), s(S_TMP)))
        A.I('s_add_u32 %s, %s, %s' % (s(S_TMP), s(S_TMP), s(S_P0)))
        A.I('s_lshl_b32 %s, %s, 10' % (s(S_TMP), s(S_TMP)))
        A.I('s_add_u32 %s, %s, %d' % (s(S_TMP), s(S_TMP), ACT_OFF + grp * 4 * 1024))
        A.I('v_and_b32 %s, 1, %s' % (v(AD), v(V_G)))
        A.I('v_mul_u32_u24 %s, %d, %s' % (v(AD), 54 * 1024, v(AD)))
        A.I('v_lshl_add_u32 %s, %s, 4, %s' % (v(AD), v(V_T), v(AD)))
        A.I('v_lshl_add_u32 %s, %s, 8, %s' % (v(AD), v(V_HI), v(AD)))
        for ti in range(nt):
            A.stamp(10 + ti)
            if ti + 1 < nt:
                rdv(ti + 1)
            A.wait(lg=('cs', ti))
            for hb in range(2):
                vals = []
                for r_ in range(8):
                    i_ = hb * 8 + r_
                    vals.append((ACC + 16 * ti + i_, CSR[ti % 2] + i_, BFR[ti % 2] + i_, V_NM, V_NM + 1))
                mish_batch(A, vals, TT)
                o = OUT + ((ti * 2 + hb) % 4) * 4
                for q in range(4):
                    ac = ACC + 16 * ti + hb * 8 + 2 * q
                    A.I('v_cvt_pk_bf16_f32 %s, %s, %s' % (v(o + q), v(ac), v(ac + 1)))
                A.I('buffer_store_dwordx4 %s, %s, %s, %s offen offset:%d' % (v(o, 4), v(AD), s(SRD_WS, 4), s(S_TMP), ti * 1024 + hb * 512), vm='st')
        A.stamp(15)
        A.stamp_flush(18, S_W, 8)
        A.I('s_endpgm')


A_X = D_RING * F_SLOT
PHIK_ROW = 352
A_PHIK = 0
A_VS = A_PHIK + 128 * PHIK_ROW
A_M = A_X + 3 * XP
A_CSW = 5 * F_SLOT
A_CS = A_M + 80 * 192
A_FLAG = A_CS + 1024
A_LDS = A_FLAG + 64


def softmax2(A, P, EP, EM, X, scl, sync):
    MX, MN, SP, SM = X, X + 1, X + 2, X + 3
    A.I('v_max3_f32 %s, %s, %s, %s' % (v(MX), v(P), v(P + 1), v(P + 2)))
    A.I('v_min3_f32 %s, %s, %s, %s' % (v(MN), v(P), v(P + 1), v(P + 2)))
    for i in range(3, 19, 2):
        A.I('v_max3_f32 %s, %s, %s, %s' % (v(MX), v(MX), v(P + i), v(P + i + 1)))
        A.I('v_min3_f32 %s, %s, %s, %s' % (v(MN), v(MN), v(P + i), v(P + i + 1)))
    A.I('v_max_f32 %s, %s, %s' % (v(MX), v(MX), v(P + 19)))
    A.I('v_min_f32 %s, %s, %s' % (v(MN), v(MN), v(P + 19)))
    A.I('v_mul_f32 %s, %s, %s' % (v(MX), v(scl), v(MX)))
    A.I('v_mul_f32 %s, %s, %s' % (v(MN), v(scl), v(MN)))
    for i in range(20):
        A.I('v_fma_f32 %s, %s, %s, -%s' % (v(EP + i), v(P + i), v(scl), v(MX)))
        A.I('v_fma_f32 %s, -%s, %s, %s' % (v(EM + i), v(P + i), v(scl), v(MN)))
    sync()
    for i in range(20):
        A.I('v_exp_f32 %s, %s' % (v(EP + i), v(EP + i)))
        A.I('v_exp_f32 %s, %s' % (v(EM + i), v(EM + i)))
    sync()
    A.I('v_add_f32 %s, %s, %s' % (v(SP), v(EP), v(EP + 1)))
    A.I('v_add_f32 %s, %s, %s' % (v(SM), v(EM), v(EM + 1)))
    A.I('v_add_f32 %s, %s, %s' % (v(X + 4), v(EP + 2), v(EP + 3)))
    A.I('v_add_f32 %s, %s, %s' % (v(X + 5), v(EM + 2), v(EM + 3)))
    for i in range(4, 20, 2):
        A.I('v_add_f32 %s, %s, %s' % (v(SP), v(SP), v(EP + i)))
        A.I('v_add_f32 %s, %s, %s' % (v(SM), v(SM), v(EM + i)))
        A.I('v_add_f32 %s, %s, %s' % (v(X + 4), v(X + 4), v(EP + i + 1)))
        A.I('v_add_f32 %s, %s, %s' % (v(X + 5), v(X + 5), v(EM + i + 1)))
    A.I('v_add_f32 %s, %s, %s' % (v(SP), v(SP), v(X + 4)))
    A.I('v_add_f32 %s, %s, %s' % (v(SM), v(SM), v(X + 5)))
    A.I('v_rcp_f32 %s, %s' % (v(SP), v(SP)))
    A.I('v_rcp_f32 %s, %s' % (v(SM), v(SM)))
    for i in range(20):
        A.I('v_mul_f32 %s, %s, %s' % (v(EP + i), v(EP + i), v(SP)))
        A.I('v_mul_f32 %s, %s, %s' % (v(EM + i), v(EM + i), v(SM)))
    for i in range(10):
        A.I('v_cvt_pk_bf16_f32 %s, %s, %s' % (v(P + i), v(EP + 2 * i), v(EP + 2 * i + 1)))
        A.I('v_cvt_pk_bf16_f32 %s, %s, %s' % (v(P + 10 + i), v(EM + 2 * i), v(EM + 2 * i + 1)))
    sync()


def gen_k1_attn(A):
    srd(A, SRD_W, 6, 640 * 1920 * 2)
    t = [200 + i for i in range(16)]
    setup_x(A, A_X, t)
    dma_x(A, 0, A_X)
    w_voffsets(A, t, 'attn')
    dma = mk_dma(A, 3840, 0x00ffffff)
    dma(0)
    dma(1)
    dma_x(A, 1, A_X)
    srd(A, SRD_AUX, 8, 32 * 400 * 2)

    def colmap(dst, t0):
        divmod_const(A, t[0], t[1], V_LANE, 20, 3277)
        A.I('v_add_u32 %s, 1, %s' % (v(t[2]), v(t[0])))
        A.I('v_cmp_eq_u32 vcc, 2, %s' % v(t[0]))
        A.I('v_cndmask_b32 %s, %s, 0, vcc' % (v(t[2]), v(t[2])))
        A.I('v_mul_u32_u24 %s, 1280, %s' % (v(t[2]), v(t[2])))
        A.I('v_lshl_add_u32 %s, %s, 3, %s' % (v(dst), v(t[1]), v(t[2])))
        A.I('s_mul_i32 %s, %s, 160' % (s(S_T3), s(S_FB)))
        A.I('v_add_u32 %s, %s, %s' % (v(dst), s(S_T3), v(dst)))
        A.I('v_mov_b32 %s, 0x%x' % (v(t0), BIG))
        A.I('v_cmp_gt_u32 vcc, 60, %s' % v(V_LANE))
        A.I('v_cndmask_b32 %s, %s, %s, vcc' % (v(dst), v(t0), v(dst)))
    C = Coop(A, 3840, A_CSW, A_CS, colmap)
    C.issue_loads()
    trbase32(A, V_RB0, 480, 2, t[0], t[1])
    A.I('s_lshl_b32 %s, %s, 8' % (s(S_TMP), s(S_GRP)))
    A.I('v_add_u32 %s, %s, %s' % (v(V_RB0), s(S_TMP), v(V_RB0)))
    A.I('v_add_u32 %s, %d, %s' % (v(V_RB1), 3 * F_SLOT, v(V_RB0)))
    C.compute()
    A.I('v_mov_b32 %s, %d' % (v(t[0]), A_FLAG))
    A.I('v_mov_b32 %s, 0' % v(t[1]))
    A.I('ds_write_b32 %s, %s' % (v(t[0]), v(t[1])), lg='z')
    A.wait(lg='z')

    def mk_fill():
        A.defer_begin()
        relayout_issue(A, RLY)
        MD, MA = 184, 192
        for i in range(4):
            A.I('v_add_u32 %s, %d, v0' % (v(t[0]), 512 * i))
            divmod_const(A, t[1], t[2], t[0], 24, 2731)
            divmod_const(A, t[3], t[4], t[1], 20, 3277)
            A.I('v_lshrrev_b32 %s, 1, %s' % (v(t[5]), v(t[2])))
            A.I('v_lshlrev_b32 %s, 2, %s' % (v(t[5]), v(t[5])))
            A.I('v_and_b32 %s, 1, %s' % (v(t[6]), v(t[2])))
            A.I('v_lshlrev_b32 %s, 1, %s' % (v(t[6]), v(t[6])))
            A.I('v_cmp_lt_u32 vcc, 19, %s' % v(t[5]))
            A.I('v_addc_co_u32 %s, vcc, 0, %s, vcc' % (v(t[6]), v(t[6])))
            A.I('v_cmp_lt_u32 vcc, 19, %s' % v(t[5]))
            A.I('v_subrev_u32 %s, 20, %s' % (v(t[8]), v(t[5])))
            A.I('v_cndmask_b32 %s, %s, %s, vcc' % (v(t[8]), v(t[5]), v(t[8])))
            A.I('v_mul_u32_u24 %s, 800, %s' % (v(t[7]), v(t[3])))
            A.I('v_mul_u32_u24 %s, 40, %s' % (v(t[4]), v(t[4])))
            A.I('v_add_u32 %s, %s, %s' % (v(t[7]), v(t[7]), v(t[4])))
            A.I('v_lshl_add_u32 %s, %s, 1, %s' % (v(t[7]), v(t[8]), v(t[7])))
            A.I('v_mov_b32 %s, 0x%x' % (v(t[4]), BIG))
            A.I('v_cmp_eq_u32 vcc, %s, %s' % (v(t[6]), v(t[3])))
            A.I('v_cndmask_b32 %s, %s, %s, vcc' % (v(t[7]), v(t[4]), v(t[7])))
            A.I('v_cmp_gt_u32 vcc, 40, %s' % v(t[5]))
            A.I('v_cndmask_b32 %s, %s, %s, vcc' % (v(t[7]), v(t[4]), v(t[7])))
            A.I('s_mul_i32 s85, %s, 3200' % s(S_FB))
            A.I('buffer_load_dwordx2 %s, %s, %s, %s offen' % (v(MD + 2 * i, 2), v(t[7]), s(SRD_AUX, 4), 's85'), vm='m')
            A.I('v_lshlrev_b32 %s, 3, %s' % (v(MA + i), v(t[0])))
            A.I('v_add_u32 %s, %d, %s' % (v(MA + i), A_M, v(MA + i)))

        relayout_store(A, RLY)
        A.wait(vm='m')
        for i in range(4):
            if i == 3:
                A.group_begin()
                A.I('v_cmp_gt_u32 vcc, 384, v0')
                A.I('s_and_saveexec_b64 %s, vcc' % s(S_MASK, 2))
            A.I('ds_write_b64 %s, %s' % (v(MA + i), v(MD + 2 * i, 2)), lg='z')
            if i == 3:
                A.I('s_mov_b64 exec, -1')
                A.group_end()
        return A.defer_end()

    NM = V_NM
    CSR = 104
    MF = 168
    AD = 228
    X = 240
    SCL = 246
    VMB = 247
    BO = 24
    A.I('s_cmp_eq_u32 %s, 1' % s(S_GRP))
    A.I('s_cbranch_scc1 L_att_B')
    sn = A.snap()
    for grp in range(2):
        if grp:
            A.restore(sn)
            A.label('L_att_B')
        tiles = [(ti * 64, ACC + 16 * ti) for ti in range(4)]
        L = Loop(A, 'att%d' % grp, tiles, 16 * 480, 480, dma, A_X, C.hooks(grp, 'att%d' % grp), fillers=mk_fill())
        L.run()
        C.finish(grp)
        A.I('v_bfe_u32 %s, %s, 2, 2' % (v(VMB), v(V_LANE)))
        A.I('v_lshl_add_u32 %s, %s, 2, %s' % (v(VMB), v(V_HI), v(VMB)))
        A.I('v_mul_u32_u24 %s, 192, %s' % (v(VMB), v(VMB)))
        A.I('v_and_b32 %s, 1, %s' % (v(AD), v(V_G)))
        A.I('v_lshl_add_u32 %s, %s, 5, %s' % (v(VMB), v(AD), v(VMB)))
        A.I('v_and_b32 %s, 3, %s' % (v(AD), v(V_LANE)))
        A.I('v_lshl_add_u32 %s, %s, 3, %s' % (v(VMB), v(AD), v(VMB)))
        A.I('v_add_u32 %s, %d, %s' % (v(VMB), A_M, v(VMB)))
        for u in range(3):
            for s2 in range(5):
                b = MF + (u * 5 + s2) * 4
                for h in range(2):
                    A.I('ds_read_b64_tr_b16 %s, %s offset:%d' % (v(b + 2 * h, 2), v(VMB), (16 * s2 + 8 * h) * 192 + u * 64), lg='mf')
        A.I('v_mul_f32 %s, %s, %s' % (v(SCL), s(S_LOG2E), v(NM + 1)))
        A.I('s_barrier')
        if grp == 0:
            A.I('s_setprio 2')
        A.stamp(6)
        A.I('v_lshlrev_b32 %s, 4, %s' % (v(AD + 1), v(V_HI)))
        A.I('v_add_u32 %s, %d, %s' % (v(AD + 1), A_CS + grp * 512, v(AD + 1)))
        for ti in range(4):
            rd_vec32(A, AD + 1, ti * 128, CSR + 16 * ti, ('cs', ti))
        A.I('s_mul_i32 %s, %s, %d' % (s(S_TMP), s(S_TG), 32 * 160))
        A.I('s_add_u32 %s, %s, %d' % (s(S_TMP), s(S_TMP), A_VS))
        A.I('v_mul_u32_u24 %s, 160, %s' % (v(AD), v(V_N)))
        A.I('v_lshl_add_u32 %s, %s, 3, %s' % (v(AD), v(V_HI), v(AD)))
        A.I('v_add_u32 %s, %s, %s' % (v(AD), s(S_TMP), v(AD)))
        if grp == 0:
            vq = [(2, 2, 0), (2, 3, 8)] + [(3, j, 16 + 8 * j) for j in range(4)]
            st2 = [(0, 0), (0, 8), (1, 0), (1, 8), (2, 0)]
        else:
            vq = [(0, j, 48 + 8 * j) for j in range(4)]
            st2 = [(1, 0), (1, 8), (2, 0), (2, 8), (3, 0)]
        BOS = [24, 28, 32, 36, 248]
        for (ti, j, f0) in vq:
            A.wait(lg=('cs', ti))
            ac = ACC + 16 * ti + 4 * j
            for r_ in range(4):
                A.I('v_fma_f32 %s, %s, %s, %s' % (v(ac + r_), v(NM), v(CSR + 16 * ti + 4 * j + r_), v(ac + r_)))
            for r_ in range(4):
                A.I('v_mul_f32 %s, %s, %s' % (v(ac + r_), v(ac + r_), v(NM + 1)))
            A.I('v_cvt_pk_bf16_f32 %s, %s, %s' % (v(ac), v(ac), v(ac + 1)))
            A.I('v_cvt_pk_bf16_f32 %s, %s, %s' % (v(ac + 1), v(ac + 2), v(ac + 3)))
            A.I('ds_write_b64 %s, %s offset:%d' % (v(AD), v(ac, 2), f0 * 2), lg='vs')
        for s2, (ti, r0) in enumerate(st2):
            A.wait(lg=('cs', ti))
            ac = ACC + 16 * ti + r0
            for r_ in range(8):
                A.I('v_fma_f32 %s, %s, %s, %s' % (v(ac + r_), v(NM), v(CSR + 16 * ti + r0 + r_), v(ac + r_)))
            for q in range(4):
                A.I('v_cvt_pk_bf16_f32 %s, %s, %s' % (v(BOS[s2] + q), v(ac + 2 * q), v(ac + 2 * q + 1)))
        A.wait(lg='mf')
        P = 104
        for s2 in range(5):
            for u in range(3):
                d = v(P + 16 * u, 16)
                A.I('v_mfma_f32_32x32x16_bf16 %s, %s, %s, %s' % (d, v(MF + (u * 5 + s2) * 4, 4), v(BOS[s2], 4), d if s2 else '0'))
        EP, EM = 40, 60
        calls = [0]
        if grp == 0:
            A.I('s_mul_i32 %s, %s, %d' % (s(S_TMP), s(S_TG), 32 * PHIK_ROW))
            A.I('s_add_u32 %s, %s, %d' % (s(S_TMP), s(S_TMP), A_PHIK))
            A.I('v_mul_u32_u24 %s, %d, %s' % (v(AD + 2), PHIK_ROW, v(V_N)))
            A.I('v_mul_u32_u24 %s, 160, %s' % (v(AD + 3), v(V_HI)))
            A.I('v_add3_u32 %s, %s, %s, %s' % (v(AD + 2), s(S_TMP), v(AD + 2), v(AD + 3)))
            for a_ in range(2):
                softmax2(A, P + 20 * a_, EP, EM, X, SCL, lambda: None)
                for j in range(5):
                    A.I('ds_write_b128 %s, %s offset:%d' % (v(AD + 2), v(P + 20 * a_ + 4 * j, 4), a_ * 80 + j * 16), lg='pk')
            A.stamp(8)
            KA, KB = AD + 4, AD + 5
            trbase(A, KA, PHIK_ROW, AD + 6, AD + 7)
            A.I('s_mul_i32 %s, %s, 80' % (s(S_TMP), s(S_TG)))
            A.I('s_add_u32 %s, %s, %d' % (s(S_TMP), s(S_TMP), A_PHIK))
            A.I('v_add_u32 %s, %s, %s' % (v(KA), s(S_TMP), v(KA)))
            trbase(A, KB, 160, AD + 6, AD + 7)
            A.I('s_mul_i32 %s, %s, 40' % (s(S_TMP), s(S_TG)))
            A.I('s_add_u32 %s, %s, %d' % (s(S_TMP), s(S_TMP), A_VS))
            A.I('v_add_u32 %s, %s, %s' % (v(KB), s(S_TMP), v(KB)))
            A.I('v_cmp_eq_u32 %s, 4, %s' % (s(S_MASK, 2), v(V_T)))
            A.wait(lg=['pk', 'vs'])
            A.I('v_mov_b32 %s, %d' % (v(AD + 6), A_FLAG))
            A.I('v_mov_b32 %s, 1' % v(AD + 7))
            A.I('s_mov_b64 exec, 1')
            A.I('ds_add_u32 %s, %s' % (v(AD + 6), v(AD + 7)), lg='fl')
            A.I('s_mov_b64 exec, -1')
            A.label('L_kvflag')
            A.I('ds_read_b32 %s, %s' % (v(AD + 7), v(AD + 6)), lg='fl')
            A.wait_all(lg=True)
            A.I('v_readfirstlane_b32 %s, %s' % (s(S_TMP), v(AD + 7)))
            A.I('s_cmp_ge_u32 %s, 8' % s(S_TMP))
            A.I('s_cbranch_scc0 L_kvflag')
            FR = 104
            for ks in range(4):
                for i in range(5):
                    r0 = FR + (ks * 5 + i) * 4
                    for h in range(2):
                        if i < 3:
                            A.I('ds_read_b64_tr_b16 %s, %s offset:%d' % (v(r0 + 2 * h, 2), v(KA), (ks * 32 + 8 * h) * PHIK_ROW + i * 32), lg=('kv', ks))
                        else:
                            A.I('ds_read_b64_tr_b16 %s, %s offset:%d' % (v(r0 + 2 * h, 2), v(KB), (ks * 32 + 8 * h) * 160 + (i - 3) * 32), lg=('kv', ks))
            KD = 40
            for ks in range(4):
                A.wait(lg=('kv', ks))
                rb = FR + (ks * 5 + 4) * 4
                for j in range(4):
                    A.I('v_cndmask_b32 %s, %s, %s, %s' % (v(rb + j), v(rb + j), v(V_ONES), s(S_MASK, 2)))
                for dt in range(2):
                    for i in range(3):
                        d = v(KD + (dt * 3 + i) * 4, 4)
                        A.I('v_mfma_f32_16x16x32_bf16 %s, %s, %s, %s' % (d, v(FR + (ks * 5 + 3 + dt) * 4, 4), v(FR + (ks * 5 + i) * 4, 4), d if ks else '0'))
            A.I('s_lshl_b32 %s, %s, 2' % (s(S_TMP), s(S_FB)))
            A.I('s_add_u32 %s, %s, %s' % (s(S_TMP), s(S_TMP), s(S_TG)))
            A.I('s_mul_i32 %s, %s, 3360' % (s(S_TMP), s(S_TMP)))
            A.I('s_add_u32 %s, %s, %d' % (s(S_TMP), s(S_TMP), KVA_OFF))
            A.I('v_mul_u32_u24 %s, 640, %s' % (v(AD), v(V_G)))
            A.I('v_lshl_add_u32 %s, %s, 2, %s' % (v(AD), v(V_T), v(AD)))
            for dt in range(2):
                for i in range(3):
                    for r_ in range(4):
                        lo, hi_ = 0xffffffff, 0xffffffff
                        if dt == 1:
                            hi_ = 0
                            lo = 0xffffffff if r_ == 0 else 0xffff
                        if i == 2:
                            lo &= 0x00ff00ff
                            hi_ &= 0x00ff00ff
                        A.I('s_mov_b32 exec_lo, 0x%x' % lo)
                        A.I('s_mov_b32 exec_hi, 0x%x' % hi_)
                        A.I('buffer_atomic_add_f32 %s, %s, %s, %s offen offset:%d' % (v(KD + (dt * 3 + i) * 4 + r_), v(AD), s(SRD_WS, 4), s(S_TMP), (16 * dt + r_) * 160 + i * 64), vm='kvp')
            A.I('s_mov_b64 exec, -1')
            A.stamp(9)
        else:
            A.wait(lg='vs')
            A.I('v_mov_b32 %s, %d' % (v(AD + 6), A_FLAG))
            A.I('v_mov_b32 %s, 1' % v(AD + 7))
            A.I('s_mov_b64 exec, 1')
            A.I('ds_add_u32 %s, %s' % (v(AD + 6), v(AD + 7)), lg='fl')
            A.I('s_mov_b64 exec, -1')
            A.I('s_lshl_b32 %s, %s, 3' % (s(S_TMP), s(S_TB)))
            A.I('s_lshl_b32 %s, %s, 1' % (s(S_T3), s(S_TG)))
            A.I('s_add_u32 %s, %s, %s' % (s(S_TMP), s(S_TMP), s(S_T3)))
            A.I('s_lshl_b32 %s, %s, 3' % (s(S_TMP), s(S_TMP)))
            A.I('s_add_u32 %s, %s, %s' % (s(S_TMP), s(S_TMP), s(S_FB)))
            A.I('s_mul_i32 %s, %s, 5120' % (s(S_TMP), s(S_TMP)))
            A.I('s_add_u32 %s, %s, %d' % (s(S_TMP), s(S_TMP), PHIQ_OFF))
            A.I('s_add_u32 %s, %s, 4096' % (s(S_T3), s(S_TMP)))
            A.I('v_and_b32 %s, 1, %s' % (v(AD + 2), v(V_G)))
            A.I('v_mul_u32_u24 %s, %d, %s' % (v(AD + 2), 8 * 5120, v(AD + 2)))
            A.I('v_lshl_add_u32 %s, %s, 4, %s' % (v(AD + 2), v(V_T), v(AD + 2)))
            A.I('v_lshl_add_u32 %s, %s, 9, %s' % (v(AD + 3), v(V_HI), v(AD + 2)))
            A.I('v_lshl_add_u32 %s, %s, 11, %s' % (v(AD + 2), v(V_HI), v(AD + 2)))
            def syncB():
                calls[0] += 1
                pass
            for a_ in range(2):
                softmax2(A, P + 20 * a_, EP, EM, X, SCL, syncB)
                for j in range(4):
                    A.I('buffer_store_dwordx4 %s, %s, %s, %s offen offset:%d' % (v(P + 20 * a_ + 4 * j, 4), v(AD + 2), s(SRD_WS, 4), s(S_TMP), a_ * 1024 + j * 256), vm='st')
                A.I('buffer_store_dwordx4 %s, %s, %s, %s offen offset:%d' % (v(P + 20 * a_ + 16, 4), v(AD + 3), s(SRD_WS, 4), s(S_T3), a_ * 256), vm='st')
        A.stamp(15)
        A.stamp_flush(18, S_W, 8)
        A.I('s_endpgm')
```

```python
from asmlib import *
from k1 import ACT_OFF, PHIQ_OFF, KVA_OFF, WR_OFF, WR_CB, O_OFF, CNT_OFF, WS_END, LOG2E, BIG, srd, divmod_const

SRD_X, SRD_DBG, SRD_OUT, SRD_WS = 20, 24, 32, 36
S_RB, S_CB, S_W, S_TMP, S_T2, S_T3, S_LOG2E, S_M0B = 40, 41, 42, 43, 44, 45, 46, 47
S_B = 48
S_WR = 57
S_H = 58
S_WO, S_BO, S_N0 = 59, 60, 61
V_LANE, V_T, V_G = 1, 2, 3
V_L16 = 4
V_RB = 10
V_L4 = 5
V_TMP = 11
SLOT = 5120
REG = 20480
K2_LDS = 8 * REG
NSLOT = 4
ACC, WIN, BB = 24, 104, 144
NB = 7


def gen_k2(A):
    A.label('k2_kernel')
    A.I('s_cmp_ge_u32 s2, 256')
    A.I('s_cbranch_scc1 L_k2_end')
    A.I('s_load_dwordx2 s[4:5], s[0:1], 0')
    A.I('s_load_dwordx4 s[8:11], s[0:1], 64')
    A.I('s_load_dwordx2 s[12:13], s[0:1], 80')
    import os
    m2 = int(os.environ.get('MAP2', '1'))
    if m2 == 0:
        A.I('s_and_b32 %s, s2, 7' % s(S_RB))
        A.I('s_lshl_b32 %s, %s, 2' % (s(S_RB), s(S_RB)))
        A.I('s_bfe_u32 %s, s2, 0x20003' % s(S_TMP))
        A.I('s_add_u32 %s, %s, %s' % (s(S_RB), s(S_RB), s(S_TMP)))
        A.I('s_lshr_b32 %s, s2, 5' % s(S_CB))
    elif m2 == 1:
        A.I('s_bfe_u32 %s, s2, 0x20001' % s(S_RB))
        A.I('s_lshl_b32 %s, %s, 3' % (s(S_RB), s(S_RB)))
        A.I('s_bfe_u32 %s, s2, 0x30003' % s(S_TMP))
        A.I('s_add_u32 %s, %s, %s' % (s(S_RB), s(S_RB), s(S_TMP)))
        A.I('s_and_b32 %s, s2, 1' % s(S_CB))
        A.I('s_lshl_b32 %s, %s, 2' % (s(S_CB), s(S_CB)))
        A.I('s_lshr_b32 %s, s2, 6' % s(S_TMP))
        A.I('s_add_u32 %s, %s, %s' % (s(S_CB), s(S_CB), s(S_TMP)))
    elif m2 == 2:
        A.I('s_lshr_b32 %s, s2, 3' % s(S_RB))
        A.I('s_and_b32 %s, s2, 7' % s(S_CB))
    A.I('v_and_b32 %s, 63, v0' % v(V_LANE))
    A.I('v_and_b32 %s, 15, v0' % v(V_T))
    A.I('v_bfe_u32 %s, v0, 4, 2' % v(V_G))
    A.I('v_lshrrev_b32 %s, 6, v0' % v(V_TMP))
    A.I('v_readfirstlane_b32 %s, %s' % (s(S_W), v(V_TMP)))
    A.I('s_mov_b32 %s, 0x%x' % (s(S_LOG2E), LOG2E))
    A.I('v_lshlrev_b32 %s, 4, %s' % (v(V_L16), v(V_LANE)))
    A.I('s_mul_i32 %s, %s, %d' % (s(S_M0B), s(S_W), REG))
    A.I('s_mov_b32 %s, %s' % (s(S_T2), s(S_W)))
    A.I('s_cmp_eq_u32 %s, 6' % s(S_W))
    A.I('s_cselect_b32 %s, 54, %s' % (s(S_T2), s(S_T2)))
    A.I('s_cmp_eq_u32 %s, 7' % s(S_W))
    A.I('s_cselect_b32 %s, 64, %s' % (s(S_T2), s(S_T2)))
    A.I('s_mul_i32 %s, %s, %d' % (s(S_WR), s(S_CB), WR_CB))
    A.I('s_mul_i32 %s, %s, %d' % (s(S_TMP), s(S_T2), SLOT))
    A.I('s_add_u32 %s, %s, %s' % (s(S_WR), s(S_WR), s(S_TMP)))
    A.I('s_add_u32 %s, %s, %d' % (s(S_WR), s(S_WR), WR_OFF))
    t = [V_TMP + i for i in range(10)]
    A.I('v_lshrrev_b32 %s, 2, %s' % (v(t[0]), v(V_LANE)))
    A.I('v_mul_u32_u24 %s, 160, %s' % (v(t[0]), v(t[0])))
    A.I('v_and_b32 %s, 3, %s' % (v(t[1]), v(V_LANE)))
    A.I('v_lshl_add_u32 %s, %s, 3, %s' % (v(t[0]), v(t[1]), v(t[0])))
    A.I('v_add_u32 %s, %s, %s' % (v(V_RB), s(S_M0B), v(t[0])))
    A.I('s_waitcnt lgkmcnt(0)')
    if A.stamps_on:
        for i in range(16):
            A.I('s_mov_b32 s%d, 0' % (64 + i))
    A.stamp(0)
    srd(A, SRD_WS, 12, WS_END)

    stride = [6]

    nstage = [9]

    def rot_init():
        if os.environ.get('ROT2', '0') == '0':
            A.I('s_mov_b32 %s, 0' % s(S_WO))
            A.I('s_mov_b32 %s, 0' % s(S_BO))
            return
        A.I('s_and_b32 %s, %s, 7' % (s(S_N0), s(S_RB)))
        A.I('s_and_b32 %s, %s, 3' % (s(S_TMP), s(S_CB)))
        A.I('s_lshl_b32 %s, %s, 1' % (s(S_TMP), s(S_TMP)))
        A.I('s_add_u32 %s, %s, %s' % (s(S_N0), s(S_N0), s(S_TMP)))
        A.I('s_cmp_ge_u32 %s, %d' % (s(S_N0), nstage[0]))
        A.I('s_cselect_b32 %s, %d, 0' % (s(S_TMP), nstage[0]))
        A.I('s_sub_u32 %s, %s, %s' % (s(S_N0), s(S_N0), s(S_TMP)))
        A.I('s_mul_i32 %s, %s, %d' % (s(S_WO), s(S_N0), SLOT * stride[0]))
        A.I('s_mul_i32 %s, %s, %d' % (s(S_BO), s(S_N0), 1024 * stride[0]))

    def rot_step(reg, unit):
        A.I('s_add_u32 %s, %s, %d' % (s(reg), s(reg), unit * stride[0]))
        A.I('s_cmp_ge_u32 %s, %d' % (s(reg), unit * stride[0] * nstage[0]))
        A.I('s_cselect_b32 %s, 0, %s' % (s(reg), s(reg)))

    def dma_w(p):
        slot = p % NSLOT
        A.I('s_add_u32 %s, %s, %s' % (s(S_TMP), s(S_WR), s(S_WO)))
        rot_step(S_WO, SLOT)
        A.I('s_add_u32 m0, %s, %d' % (s(S_M0B), slot * SLOT))
        for q in range(4):
            A.I('buffer_load_dwordx4 %s, %s, %s offen offset:%d lds' % (v(V_L16), s(SRD_WS, 4), s(S_TMP), q * 1024), vm=('w', p))
        A.I('s_add_u32 %s, %s, 4096' % (s(S_TMP), s(S_TMP)))
        A.I('s_add_u32 m0, %s, %d' % (s(S_M0B), slot * SLOT + 4096))
        A.I('buffer_load_dwordx4 %s, %s, %s offen lds' % (v(V_L16), s(SRD_WS, 4), s(S_TMP)), vm=('w', p))

    def rd_frags(p):
        A.wait(vm=('w', p))
        off = (p % NSLOT) * SLOT
        for ft in range(5):
            w = WIN + ((p % 2) * 5 + ft) * 4
            A.I('ds_read_b64_tr_b16 %s, %s offset:%d' % (v(w, 2), v(V_RB), off + ft * 32), lg=('w', p, ft))
            A.I('ds_read_b64_tr_b16 %s, %s offset:%d' % (v(w + 2, 2), v(V_RB), off + 16 * 160 + ft * 32), lg=('w', p, ft))

    def ld_b(n, sc=''):
        b = BB + (n % NB) * 16
        for i in range(4):
            A.I('s_add_u32 %s, %s, %s' % (s(S_TMP), s(S_B + i), s(S_BO)))
            if sc and n % 5 == 4:
                for j in range(4):
                    A.I('buffer_load_dword %s, %s, %s, %s offen offset:%d%s' % (v(b + 4 * i + j), v(V_L4), s(SRD_WS, 4), s(S_TMP), j * 256, sc), vm=('b', n))
            else:
                A.I('buffer_load_dwordx4 %s, %s, %s, %s offen%s' % (v(b + 4 * i, 4), v(V_L16), s(SRD_WS, 4), s(S_TMP), sc), vm=('b', n))
        rot_step(S_BO, 1024)

    def gemm(n, nb0, nw0, sc='', prios=None):
        nb, nw = nb0, nw0
        rd_frags(0)
        for p in range(n):
            if prios and p in prios:
                A.I('s_setprio %d' % prios[p])
            if p in (3, 6):
                A.stamp({3: 2, 6: 3}[p])
            if p + 1 < n:
                rd_frags(p + 1)
            while nw < n and nw <= p + 3 - (0 if p else 0) and (nw < NSLOT or nw - NSLOT < p):
                dma_w(nw)
                nw += 1
            while nb < n and nb <= p + NB - 1 and nb <= 2 * p + 3:
                ld_b(nb, sc)
                nb += 1
            A.wait(vm=('b', p))
            b = BB + (p % NB) * 16
            for ft in range(5):
                A.wait(lg=('w', p, ft))
                w = WIN + ((p % 2) * 5 + ft) * 4
                for i in range(4):
                    d = v(ACC + (ft * 4 + i) * 4, 4)
                    A.I('v_mfma_f32_16x16x32_bf16 %s, %s, %s, %s' % (d, v(w, 4), v(b + 4 * i, 4), d if p else '0'))

    A.I('s_cmp_ge_u32 %s, 6' % s(S_W))
    A.I('s_cbranch_scc1 L_k2_att')
    sn = A.snap()
    A.I('s_setprio 2')
    rot_init()
    dma_w(0)
    for i in range(4):
        A.I('s_lshl_b32 %s, %s, 2' % (s(S_TMP), s(S_RB)))
        A.I('s_add_u32 %s, %s, %d' % (s(S_TMP), s(S_TMP), i))
        A.I('s_mul_i32 %s, %s, 54' % (s(S_TMP), s(S_TMP)))
        A.I('s_add_u32 %s, %s, %s' % (s(S_TMP), s(S_TMP), s(S_T2)))
        A.I('s_lshl_b32 %s, %s, 10' % (s(S_B + i), s(S_TMP)))
    ld_b(0)
    dma_w(1)
    ld_b(1)
    A.stamp(1)
    gemm(9, 2, 2, prios={2: 1, 5: 0})
    A.I('s_branch L_k2_fin')
    endF = A.snap()

    A.restore(sn)
    stride[0] = 1
    nstage[0] = 10
    A.label('L_k2_att')
    A.I('s_setprio 3')
    rot_init()
    A.I('s_sub_u32 %s, %s, 6' % (s(S_H), s(S_W)))
    A.I('s_lshl_b32 %s, %s, 1' % (s(S_H), s(S_H)))
    PA, PB, KR, KVF, DT = 24, 56, 72, 136, 168
    for i in range(4):
        A.I('s_lshl_b32 %s, %s, 2' % (s(S_TMP), s(S_RB)))
        A.I('s_add_u32 %s, %s, %d' % (s(S_TMP), s(S_TMP), i))
        A.I('s_lshl_b32 %s, %s, 3' % (s(S_TMP), s(S_TMP)))
        A.I('s_add_u32 %s, %s, %s' % (s(S_TMP), s(S_TMP), s(S_CB)))
        A.I('s_mul_i32 %s, %s, 5120' % (s(S_TMP), s(S_TMP)))
        A.I('s_add_u32 %s, %s, %d' % (s(S_TMP), s(S_TMP), PHIQ_OFF))
        A.I('s_add_u32 %s, %s, 4096' % (s(S_T3), s(S_TMP)))
        A.I('buffer_load_dwordx4 %s, %s, %s, %s offen' % (v(PB + 4 * i, 4), v(V_L16), s(SRD_WS, 4), s(S_T3)), vm='ph')
        A.I('s_lshl_b32 %s, %s, 10' % (s(S_T3), s(S_H)))
        A.I('s_add_u32 %s, %s, %s' % (s(S_TMP), s(S_TMP), s(S_T3)))
        for e in range(2):
            A.I('buffer_load_dwordx4 %s, %s, %s, %s offen offset:%d' % (v(PA + 16 * e + 4 * i, 4), v(V_L16), s(SRD_WS, 4), s(S_TMP), e * 1024), vm='ph')
    KL = 2 * SLOT
    A.I('s_lshl_b32 %s, %s, 2' % (s(S_TMP), s(S_CB)))
    A.I('s_add_u32 %s, %s, %s' % (s(S_TMP), s(S_TMP), s(S_H)))
    A.I('s_mul_i32 %s, %s, 3360' % (s(S_TMP), s(S_TMP)))
    A.I('s_add_u32 %s, %s, %d' % (s(S_TMP), s(S_TMP), KVA_OFF))
    for q in range(7):
        if q % 4 == 0:
            A.I('s_add_u32 m0, %s, %d' % (s(S_M0B), KL + q * 1024))
            if q:
                A.I('s_add_u32 %s, %s, 4096' % (s(S_TMP), s(S_TMP)))
        A.I('buffer_load_dwordx4 %s, %s, %s offen offset:%d lds' % (v(V_L16), s(SRD_WS, 4), s(S_TMP), (q % 4) * 1024), vm='kv')
    dma_w(0)
    dma_w(1)
    A.I('v_mul_u32_u24 %s, 160, %s' % (v(t[0]), v(V_T)))
    A.I('v_lshrrev_b32 %s, 2, %s' % (v(t[1]), v(V_T)))
    A.I('v_add_u32 %s, 16, %s' % (v(t[1]), v(t[1])))
    A.I('v_and_b32 %s, 3, %s' % (v(t[2]), v(V_T)))
    A.I('v_cmp_eq_u32 vcc, 0, %s' % v(t[2]))
    A.I('v_mov_b32 %s, 20' % v(t[2]))
    A.I('v_cndmask_b32 %s, %s, %s, vcc' % (v(t[1]), v(t[2]), v(t[1])))
    A.I('v_mul_u32_u24 %s, 160, %s' % (v(t[1]), v(t[1])))
    A.I('v_add_u32 %s, %s, %s' % (v(t[0]), s(S_M0B), v(t[0])))
    A.I('v_add_u32 %s, %s, %s' % (v(t[1]), s(S_M0B), v(t[1])))
    A.I('v_lshl_add_u32 %s, %s, 5, %s' % (v(t[2]), v(V_G), v(t[0])))
    A.I('v_lshl_add_u32 %s, %s, 5, %s' % (v(t[3]), v(V_G), v(t[1])))
    A.stamp(1)
    A.wait(vm='kv')
    for e in range(2):
        for k, (areg, off) in enumerate(((t[2], 0), (t[0], 128), (t[3], 0), (t[1], 128))):
            for q in range(2):
                A.I('ds_read_b128 %s, %s offset:%d' % (v(KR + 32 * e + 8 * k + 4 * q, 4), v(areg), KL + e * 3360 + off + 16 * q), lg='kv')
    A.wait(lg='kv')
    dma_w(2)
    dma_w(3)
    for e in range(2):
        for k in range(4):
            for q in range(4):
                A.I('v_cvt_pk_bf16_f32 %s, %s, %s' % (v(KVF + 16 * e + 4 * k + q), v(KR + 32 * e + 8 * k + 2 * q), v(KR + 32 * e + 8 * k + 2 * q + 1)))
    for e in range(2):
        A.I('s_add_u32 %s, %s, %d' % (s(S_T3), s(S_H), e))
        A.I('v_cmp_eq_u32 vcc, %s, %s' % (s(S_T3), v(V_G)))
        for k in (1, 3):
            for q in range(4):
                A.I('v_cndmask_b32 %s, 0, %s, vcc' % (v(KVF + 16 * e + 4 * k + q), v(KVF + 16 * e + 4 * k + q)))
    A.wait(vm='ph')
    for e in range(2):
        for i in range(4):
            for tl in range(2):
                d = v(DT + 32 * e + i * 8 + tl * 4, 4)
                A.I('v_mfma_f32_16x16x32_bf16 %s, %s, %s, 0' % (d, v(KVF + 16 * e + 8 * tl, 4), v(PA + 16 * e + 4 * i, 4)))
        for i in range(4):
            for tl in range(2):
                d = v(DT + 32 * e + i * 8 + tl * 4, 4)
                A.I('v_mfma_f32_16x16x32_bf16 %s, %s, %s, %s' % (d, v(KVF + 16 * e + 8 * tl + 4, 4), v(PB + 4 * i, 4), d))
    A.I('s_lshl_b32 %s, %s, 2' % (s(S_TMP), s(S_CB)))
    A.I('s_add_u32 %s, %s, %s' % (s(S_TMP), s(S_TMP), s(S_H)))
    A.I('s_lshr_b32 %s, %s, 3' % (s(S_T2), s(S_TMP)))
    A.I('s_mul_i32 %s, %s, 5' % (s(S_T2), s(S_T2)))
    A.I('s_bfe_u32 %s, %s, 0x20001' % (s(S_TMP), s(S_TMP)))
    A.I('s_add_u32 %s, %s, %s' % (s(S_T3), s(S_T2), s(S_TMP)))
    A.I('s_lshl_b32 %s, %s, 10' % (s(S_T3), s(S_T3)))
    A.I('s_add_u32 %s, %s, 4' % (s(S_T2), s(S_T2)))
    A.I('s_lshl_b32 %s, %s, 10' % (s(S_T2), s(S_T2)))
    A.I('s_lshl_b32 %s, %s, 8' % (s(S_TMP), s(S_TMP)))
    A.I('s_add_u32 %s, %s, %s' % (s(S_T2), s(S_T2), s(S_TMP)))
    A.I('v_lshlrev_b32 %s, 2, %s' % (v(V_L4), v(V_LANE)))
    A.I('s_mul_i32 %s, %s, %d' % (s(S_TMP), s(S_RB), 4 * 20 * 1024))
    A.I('s_add_u32 %s, %s, %d' % (s(S_TMP), s(S_TMP), O_OFF))
    A.I('s_add_u32 %s, %s, %s' % (s(S_T3), s(S_T3), s(S_TMP)))
    A.I('s_add_u32 %s, %s, %s' % (s(S_T2), s(S_T2), s(S_TMP)))
    for e in range(2):
        for i in range(4):
            d = DT + 32 * e + i * 8
            A.I('v_add_f32 %s, 0x358637bd, %s' % (v(d + 5), v(d + 5)))
        for i in range(4):
            d = DT + 32 * e + i * 8
            A.I('v_rcp_f32 %s, %s' % (v(d + 5), v(d + 5)))
        for i in range(4):
            d = DT + 32 * e + i * 8
            for r_ in range(5):
                A.I('v_mul_f32 %s, %s, %s' % (v(d + r_), v(d + r_), v(d + 5)))
    OQ = 72
    for i in range(4):
        for e in range(2):
            d = DT + 32 * e + i * 8
            A.I('v_cvt_pk_bf16_f32 %s, %s, %s' % (v(OQ + 8 * i + 2 * e), v(d), v(d + 1)))
            A.I('v_cvt_pk_bf16_f32 %s, %s, %s' % (v(OQ + 8 * i + 2 * e + 1), v(d + 2), v(d + 3)))
        A.I('v_cvt_pk_bf16_f32 %s, %s, %s' % (v(OQ + 8 * i + 4), v(DT + i * 8 + 4), v(DT + 32 + i * 8 + 4)))
        A.I('buffer_store_dwordx4 %s, %s, %s, %s offen sc1' % (v(OQ + 8 * i, 4), v(V_L16), s(SRD_WS, 4), s(S_T3)), vm='ost')
        A.I('buffer_store_dword %s, %s, %s, %s offen sc1' % (v(OQ + 8 * i + 4), v(V_L4), s(SRD_WS, 4), s(S_T2)), vm='ost')
        A.I('s_add_u32 %s, %s, %d' % (s(S_T3), s(S_T3), 20 * 1024))
        A.I('s_add_u32 %s, %s, %d' % (s(S_T2), s(S_T2), 20 * 1024))
    for i in range(4):
        A.I('s_lshl_b32 %s, %s, 2' % (s(S_TMP), s(S_RB)))
        A.I('s_add_u32 %s, %s, %d' % (s(S_TMP), s(S_TMP), i))
        A.I('s_mul_i32 %s, %s, 20' % (s(S_TMP), s(S_TMP)))
        A.I('s_mul_i32 %s, %s, 5' % (s(S_T3), s(S_H)))
        A.I('s_add_u32 %s, %s, %s' % (s(S_TMP), s(S_TMP), s(S_T3)))
        A.I('s_lshl_b32 %s, %s, 10' % (s(S_TMP), s(S_TMP)))
        A.I('s_add_u32 %s, %s, %d' % (s(S_B + i), s(S_TMP), O_OFF))
    A.I('v_mov_b32 %s, 1' % v(t[0]))
    A.I('s_lshl_b32 %s, %s, 8' % (s(S_TMP), s(S_RB)))
    A.I('s_add_u32 %s, %s, %d' % (s(S_TMP), s(S_TMP), CNT_OFF))
    A.I('v_mov_b32 %s, %s' % (v(t[1]), s(S_TMP)))
    A.wait(vm='ost')
    A.I('s_mov_b64 exec, 1')
    A.I('buffer_atomic_add %s, %s, %s, 0 offen sc1' % (v(t[0]), v(t[1]), s(SRD_WS, 4)), vm='at')
    A.I('s_mov_b64 exec, -1')
    A.stamp(4)
    A.I('s_setprio 0')
    A.label('L_k2_poll')
    A.I('s_sleep 8')
    A.I('buffer_load_dword %s, %s, %s, 0 offen sc1' % (v(t[0]), v(t[1]), s(SRD_WS, 4)), vm='poll')
    A.wait_all(vm=True)
    A.I('v_readfirstlane_b32 %s, %s' % (s(S_TMP), v(t[0])))
    A.I('s_cmp_ge_u32 %s, 16' % s(S_TMP))
    A.I('s_cbranch_scc0 L_k2_poll')
    A.I('s_setprio 3')
    A.stamp(5)
    A.label('L_k2_g')
    for n in range(4):
        ld_b(n, ' sc1')
    gemm(10, 4, 4, ' sc1', prios={4: 2, 7: 1})

    A.label('L_k2_fin')
    A.flush_hazards()
    A.wait_all(vm=True, lg=True)
    A.stamp(8)
    A.I('v_add_u32 %s, %s, %s' % (v(V_TMP + 1), s(S_M0B), v(V_L16)))
    for i in range(4):
        for k in range(5):
            A.I('ds_write_b128 %s, %s offset:%d' % (v(V_TMP + 1), v(ACC + (k * 4 + i) * 4, 4), i * 5120 + k * 1024), lg='ex')
    srd(A, SRD_X, 4, 2048 * 640 * 2)
    srd(A, SRD_OUT, 8, 2048 * 640 * 2)
    A.I('s_and_b32 %s, %s, 3' % (s(S_T2), s(S_W)))
    A.I('s_lshr_b32 %s, %s, 2' % (s(S_H), s(S_W)))
    A.I('s_mul_i32 %s, %s, 3' % (s(S_H), s(S_H)))
    A.I('s_lshl_b32 %s, %s, 6' % (s(S_TMP), s(S_RB)))
    A.I('s_lshl_b32 %s, %s, 4' % (s(S_T3), s(S_T2)))
    A.I('s_add_u32 %s, %s, %s' % (s(S_TMP), s(S_TMP), s(S_T3)))
    A.I('s_mul_i32 %s, %s, 1280' % (s(S_TMP), s(S_TMP)))
    A.I('s_mul_i32 %s, %s, 160' % (s(S_T3), s(S_CB)))
    A.I('s_add_u32 %s, %s, %s' % (s(S_T3), s(S_TMP), s(S_T3)))
    A.I('s_lshl_b32 %s, %s, 5' % (s(S_TMP), s(S_H)))
    A.I('s_add_u32 %s, %s, %s' % (s(S_T3), s(S_T3), s(S_TMP)))
    VO = V_TMP
    A.I('v_mul_u32_u24 %s, 1280, %s' % (v(VO), v(V_T)))
    A.I('v_lshl_add_u32 %s, %s, 3, %s' % (v(VO), v(V_G), v(VO)))
    A.I('v_mov_b32 %s, 0x%x' % (v(V_TMP + 3), BIG))
    A.I('s_cmp_lt_u32 %s, 4' % s(S_W))
    A.I('s_cselect_b64 vcc, -1, 0')
    A.I('v_cndmask_b32 %s, %s, %s, vcc' % (v(V_TMP + 3), v(V_TMP + 3), v(VO)))
    XR = 104
    for u in range(3):
        A.I('buffer_load_dwordx2 %s, %s, %s, %s offen offset:%d' % (v(XR + 2 * u, 2), v(VO if u < 2 else V_TMP + 3), s(SRD_X, 4), s(S_T3), u * 32), vm='x')
    A.I('s_mul_i32 %s, %s, 5120' % (s(S_TMP), s(S_T2)))
    A.I('s_lshl_b32 %s, %s, 10' % (s(S_H), s(S_H)))
    A.I('s_add_u32 %s, %s, %s' % (s(S_TMP), s(S_TMP), s(S_H)))
    A.I('v_add_u32 %s, %s, %s' % (v(V_TMP + 2), s(S_TMP), v(V_L16)))
    A.I('v_add_u32 %s, %d, %s' % (v(V_TMP + 4), 3 * REG, v(V_TMP + 2)))
    A.I('v_add_u32 %s, %d, %s' % (v(V_TMP + 5), 6 * REG, v(V_TMP + 2)))
    A.wait(lg='ex')
    A.stamp(9)
    A.I('s_barrier')
    R = 112
    for u in range(3):
        for w_ in range(8):
            A.I('ds_read_b128 %s, %s offset:%d' % (v(R + (u * 8 + w_) * 4, 4), v((V_TMP + 2, V_TMP + 4, V_TMP + 5)[w_ // 3]), (w_ % 3) * REG + u * 1024), lg=('r', u))
    A.wait(vm='x')
    for u in range(3):
        A.wait(lg=('r', u))
        g_ = R + u * 32
        for r_ in range(4):
            A.I('v_add_f32 %s, %s, %s' % (v(g_ + r_), v(g_ + r_), v(g_ + 4 + r_)))
            A.I('v_add_f32 %s, %s, %s' % (v(g_ + 8 + r_), v(g_ + 8 + r_), v(g_ + 12 + r_)))
            A.I('v_add_f32 %s, %s, %s' % (v(g_ + 16 + r_), v(g_ + 16 + r_), v(g_ + 20 + r_)))
            A.I('v_add_f32 %s, %s, %s' % (v(g_ + 24 + r_), v(g_ + 24 + r_), v(g_ + 28 + r_)))
        for r_ in range(4):
            A.I('v_add3_f32 %s, %s, %s, %s' % (v(g_ + r_), v(g_ + r_), v(g_ + 8 + r_), v(g_ + 16 + r_)) if False else 'v_add_f32 %s, %s, %s' % (v(g_ + r_), v(g_ + r_), v(g_ + 8 + r_)))
        for r_ in range(4):
            A.I('v_add_f32 %s, %s, %s' % (v(g_ + r_), v(g_ + r_), v(g_ + 16 + r_)))
        e = g_ + 4
        for r_ in range(4):
            A.I('v_mul_f32 %s, %s, %s' % (v(e + r_), s(S_LOG2E), v(g_ + r_)))
        for r_ in range(4):
            A.I('v_exp_f32 %s, -%s' % (v(e + r_), v(e + r_)))
        for r_ in range(4):
            A.I('v_add_f32 %s, 1.0, %s' % (v(e + r_), v(e + r_)))
        for r_ in range(4):
            A.I('v_rcp_f32 %s, %s' % (v(e + r_), v(e + r_)))
        for r_ in range(4):
            A.I('v_mul_f32 %s, %s, %s' % (v(e + r_), v(e + r_), v(g_ + r_)))
        for h in range(2):
            A.I('v_lshlrev_b32 %s, 16, %s' % (v(e + 4 + 2 * h), v(XR + 2 * u + h)))
            A.I('v_and_b32 %s, 0xffff0000, %s' % (v(e + 5 + 2 * h), v(XR + 2 * u + h)))
        for r_ in range(4):
            A.I('v_fma_f32 %s, %s, %s, %s' % (v(e + r_), v(e + r_), v(g_ + 24 + r_), v(e + 4 + r_)))
        A.I('v_cvt_pk_bf16_f32 %s, %s, %s' % (v(e), v(e), v(e + 1)))
        A.I('v_cvt_pk_bf16_f32 %s, %s, %s' % (v(e + 1), v(e + 2), v(e + 3)))
        A.I('buffer_store_dwordx2 %s, %s, %s, %s offen offset:%d' % (v(e, 2), v(VO if u < 2 else V_TMP + 3), s(SRD_OUT, 4), s(S_T3), u * 32), vm='st')
    A.stamp(15)
    A.STAMP_OFF = (32 << 20) + (1 << 19)
    A.stamp_flush(12, S_W, 8)
    A.label('L_k2_end')
    A.I('s_endpgm')
```

```python
from asmlib import *

ACT_OFF = 0
PHIQ_OFF = 128 * 54 * 1024
KVA_OFF = PHIQ_OFF + 128 * 32 * 1280
KVA_REP = 32 * 3360
NREP = 3
STAT_OFF = KVA_OFF + NREP * KVA_REP + 1024
CSP_OFF = STAT_OFF + 2048 * 8
WR_OFF = CSP_OFF + 16 * 16 * 1024
WR_CB = 74 * 5120
O_OFF = WR_OFF + 8 * WR_CB
CNT_OFF = O_OFF + 128 * 20 * 1024
WS_END = CNT_OFF + 32 * 256

LOG2E = 0x3fb8aa3b
BIG = 0x7ffffff0

SRD_X, SRD_W, SRD_WS, SRD_AUX, SRD_DBG = 20, 24, 28, 32, 36
S_TB, S_FB, S_W, S_TG, S_GRP, S_M0B, S_TMP, S_M0X, S_LOG2E = 40, 41, 42, 43, 44, 45, 46, 47, 48
S_XOFF = 49
S_DT = 50
S_WO, S_XO = 51, 59
S_MASK = 52
S_T3, S_T4 = 54, 55
S_P0, S_M0Q, S_HF, S_T5 = 56, 56, 57, 58
V_LANE, V_T, V_G = 1, 2, 3
V_DM0, V_DM1, V_RB0, V_RB1, V_DX0, V_DX1, V_ONES = 4, 5, 6, 7, 8, 9, 20
V_XR0 = 10
V_NM = 14
V_N, V_HI = 16, 17
V_POLL, V_PA = 18, 19
V_TMP0, V_TMP1 = 22, 23
WIN, ACC, XF, HK = 24, 40, 104, 136
V_K2, V_K1 = 248, 250
D_RING = 6
XP = 16384
DBG_STAT, DBG_CS = 16, 32


def srd(A, d, lo, size):
    A.I('s_mov_b32 %s, %s' % (s(d), s(lo)))
    A.I('s_and_b32 %s, %s, 0xffff' % (s(d + 1), s(lo + 1)))
    A.I('s_mov_b32 %s, 0x%x' % (s(d + 2), size))
    A.I('s_mov_b32 %s, 0x20000' % s(d + 3))


def swap23(A, dst, src, t0):
    A.I('v_and_b32 %s, 0x13, %s' % (v(dst), v(src)))
    A.I('v_and_b32 %s, 4, %s' % (v(t0), v(src)))
    A.I('v_lshl_or_b32 %s, %s, 1, %s' % (v(dst), v(t0), v(dst)))
    A.I('v_and_b32 %s, 8, %s' % (v(t0), v(src)))
    A.I('v_lshrrev_b32 %s, 1, %s' % (v(t0), v(t0)))
    A.I('v_or_b32 %s, %s, %s' % (v(dst), v(dst), v(t0)))


def divmod_const(A, q, r, x, c, magic):
    A.I('v_mul_u32_u24 %s, %d, %s' % (v(q), magic, v(x)))
    A.I('v_lshrrev_b32 %s, 16, %s' % (v(q), v(q)))
    A.I('v_mul_u32_u24 %s, %d, %s' % (v(r), c, v(q)))
    A.I('v_sub_u32 %s, %s, %s' % (v(r), v(x), v(r)))


def trbase(A, dst, rowbytes, t0, t1):
    A.I('v_lshrrev_b32 %s, 1, %s' % (v(t0), v(V_G)))
    A.I('v_lshlrev_b32 %s, 4, %s' % (v(t0), v(t0)))
    A.I('v_and_b32 %s, 1, %s' % (v(t1), v(V_G)))
    A.I('v_lshl_add_u32 %s, %s, 2, %s' % (v(t0), v(t1), v(t0)))
    A.I('v_bfe_u32 %s, %s, 2, 2' % (v(t1), v(V_LANE)))
    A.I('v_add_u32 %s, %s, %s' % (v(t0), v(t0), v(t1)))
    A.I('v_mul_u32_u24 %s, %d, %s' % (v(t0), rowbytes, v(t0)))
    A.I('v_and_b32 %s, 3, %s' % (v(t1), v(V_LANE)))
    A.I('v_lshl_add_u32 %s, %s, 3, %s' % (v(dst), v(t1), v(t0)))


def xf(sk, ks):
    return XF + ((sk % 4) * 2 + ks) * 4


def dma_x(A, p, xbase):
    A.I('s_add_u32 %s, %s, %s' % (s(S_DT), s(S_XOFF), s(S_XO)))
    A.I('s_add_u32 %s, %s, 128' % (s(S_XO), s(S_XO)))
    A.I('s_cmp_ge_u32 %s, 1280' % s(S_XO))
    A.I('s_cselect_b32 %s, 0, %s' % (s(S_XO), s(S_XO)))
    for j, d in enumerate((V_DX0, V_DX1)):
        A.I('s_add_u32 m0, %s, %d' % (s(S_M0X), xbase + (p % 3) * XP + j * 1024))
        A.I('buffer_load_dwordx4 %s, %s, %s offen lds' % (v(d), s(SRD_X, 4), s(S_DT)), vm=('xp', p))


class Loop:
    def __init__(self, A, name, tiles, ks_off, half_off, dma_issue, xbase, hooks=None, nwin=4, fillers=None):
        self.__dict__.update(locals())
        self.hooks = hooks or {}
        self.nf = 2 * len(tiles)

    def rd(self, F):
        A = self.A
        sk, fi = divmod(F, self.nf)
        ks, ti = divmod(fi, len(self.tiles))
        slot = sk % D_RING
        base = V_RB0 if slot < 3 else V_RB1
        off = (slot % 3) * F_SLOT + ks * self.ks_off + self.tiles[ti][0]
        w = WIN + (F % self.nwin) * 4
        A.I('ds_read_b64_tr_b16 %s, %s offset:%d' % (v(w, 2), v(base), off), lg=('f', F))
        A.I('ds_read_b64_tr_b16 %s, %s offset:%d' % (v(w + 2, 2), v(base), off + self.half_off), lg=('f', F))

    def sync_stage(self, sk):
        A = self.A
        tags = [('dma', sk)]
        if sk % 2 == 0:
            tags.append(('xp', sk // 2))
        A.wait(vm=tags)
        A.I('s_barrier')
        if sk % 2 == 0:
            p = sk // 2
            for s4 in range(4):
                A.I('ds_read_b128 %s, %s offset:%d' % (v(xf(sk + s4 // 2, s4 % 2), 4), v(V_XR0 + s4), (p % 3) * XP), lg=('x', sk + s4 // 2))
        if self.name.endswith('1') and sk >= 2:
            self.pending = sk
            return
        self.issue_after(sk)

    def issue_after(self, sk):
        A = self.A
        if sk == 0:
            dma_x(A, 2, self.xbase)
            self.dma_issue(3)
            self.dma_issue(4)
        elif sk == 1:
            self.dma_issue(5)
        elif sk + 4 <= 19:
            self.dma_issue(sk + 4)
        if sk % 2 == 1 and (sk // 2 + 3) < 10:
            dma_x(A, sk // 2 + 3, self.xbase)

    def run(self):
        A = self.A
        tot = 20 * self.nf
        la = self.nwin - 1
        self.pending = None
        self.sync_stage(0)
        A.stamp(1)
        for F in range(la):
            self.rd(F)
        for sk in range(20):
            if sk in (1, 5, 10):
                A.stamp({1: 2, 5: 3, 10: 4}[sk])
            if sk in self.hooks:
                self.hooks[sk]()
            for fi in range(self.nf):
                F = sk * self.nf + fi
                Fn = F + la
                if Fn < tot:
                    if Fn % self.nf == 0:
                        self.sync_stage(Fn // self.nf)
                    self.rd(Fn)
                A.wait(lg=[('f', F), ('x', sk)])
                w = WIN + (F % self.nwin) * 4
                ks, ti = divmod(fi, len(self.tiles))
                d = v(self.tiles[ti][1], 16)
                A.I('v_mfma_f32_32x32x16_bf16 %s, %s, %s, %s' % (d, v(w, 4), v(xf(sk, ks), 4), d if (sk or ks) else '0'))
                if self.pending is not None and fi == 1:
                    self.issue_after(self.pending)
                    self.pending = None
                if self.fillers:
                    A.drain(self.fillers, 4)
        assert not self.fillers
        A.stamp(5)


def stats_to_mr(A, vsum, vsq, nm, r, t0):
    A.I('v_mul_f32 %s, 0x3acccccd, %s' % (v(vsum), v(vsum)))
    A.I('v_mul_f32 %s, 0x3acccccd, %s' % (v(vsq), v(vsq)))
    A.I('v_fma_f32 %s, -%s, %s, %s' % (v(vsq), v(vsum), v(vsum), v(vsq)))
    A.I('v_max_f32 %s, 0, %s' % (v(vsq), v(vsq)))
    A.I('v_cvt_pk_bf16_f32 %s, %s, %s' % (v(t0), v(vsum), v(vsq)))
    A.I('v_lshlrev_b32 %s, 16, %s' % (v(nm), v(t0)))
    A.I('v_xor_b32 %s, 0x80000000, %s' % (v(nm), v(nm)))
    A.I('v_and_b32 %s, 0xffff0000, %s' % (v(t0), v(t0)))
    A.I('v_add_f32 %s, 0x3727c5ac, %s' % (v(t0), v(t0)))
    A.I('v_cvt_pk_bf16_f32 %s, %s, %s' % (v(t0), v(t0), v(t0)))
    A.I('v_and_b32 %s, 0xffff0000, %s' % (v(t0), v(t0)))
    A.I('v_sqrt_f32 %s, %s' % (v(t0), v(t0)))
    A.I('v_cvt_pk_bf16_f32 %s, %s, %s' % (v(t0), v(t0), v(t0)))
    A.I('v_and_b32 %s, 0xffff0000, %s' % (v(t0), v(t0)))
    A.I('v_rcp_f32 %s, %s' % (v(r), v(t0)))


def wave_sum(A, regs, t):
    for ctl in ('quad_perm:[1,0,3,2]', 'quad_perm:[2,3,0,1]', 'row_half_mirror', 'row_mirror'):
        A.nop(2)
        for r_ in regs:
            A.I('v_add_f32_dpp %s, %s, %s %s row_mask:0xf bank_mask:0xf' % (v(r_), v(r_), v(r_), ctl))
    for op in ('v_permlane16_swap_b32', 'v_permlane32_swap_b32'):
        for r_, t_ in zip(regs, t):
            A.I('v_mov_b32 %s, %s' % (v(t_), v(r_)))
        for r_, t_ in zip(regs, t):
            A.I('%s %s, %s' % (op, v(r_), v(t_)))
        for r_, t_ in zip(regs, t):
            A.I('v_add_f32 %s, %s, %s' % (v(r_), v(r_), v(t_)))


class Coop:
    def __init__(self, A, rowbytes, csw_lds, cs_lds, colmap):
        self.__dict__.update(locals())
        self.SR = ACC
        self.CR = ACC + 8
        self.T = ACC + 20

    def issue_loads(self):
        A, T = self.A, self.T
        A.I('s_lshl_b32 %s, %s, 7' % (s(S_TMP), s(S_TB)))
        A.I('s_lshl_b32 %s, %s, 3' % (s(S_T3), s(S_FB)))
        A.I('s_add_u32 %s, %s, %s' % (s(S_TMP), s(S_TMP), s(S_T3)))
        A.I('s_add_u32 %s, %s, %s' % (s(S_T5), s(S_TMP), s(S_W)))
        A.I('s_mul_i32 %s, %s, 1280' % (s(S_TMP), s(S_T5)))
        A.I('v_lshlrev_b32 %s, 4, %s' % (v(T), v(V_LANE)))
        A.I('buffer_load_dwordx4 %s, %s, %s, %s offen' % (v(self.SR, 4), v(T), s(SRD_X, 4), s(S_TMP)), vm='sl')
        A.I('v_mov_b32 %s, 0x%x' % (v(T + 1), BIG))
        A.I('v_cmp_gt_u32 vcc, 16, %s' % v(V_LANE))
        A.I('v_cndmask_b32 %s, %s, %s, vcc' % (v(T + 1), v(T + 1), v(T)))
        A.I('buffer_load_dwordx4 %s, %s, %s, %s offen offset:1024' % (v(self.SR + 4, 4), v(T + 1), s(SRD_X, 4), s(S_TMP)), vm='sl')
        self.colmap(T + 2, T + 3)
        A.I('s_mul_i32 %s, %s, 40' % (s(S_TMP), s(S_TB)))
        A.I('s_mul_i32 %s, %s, 5' % (s(S_T3), s(S_W)))
        A.I('s_add_u32 %s, %s, %s' % (s(S_TMP), s(S_TMP), s(S_T3)))
        A.I('s_mul_i32 %s, %s, %d' % (s(S_TMP), s(S_TMP), self.rowbytes))
        for i in range(5):
            A.I('buffer_load_dwordx2 %s, %s, %s, %s offen' % (v(self.CR + 2 * i, 2), v(T + 2), s(SRD_W, 4), s(S_TMP)), vm='cl')
            if i < 4:
                A.I('s_add_u32 %s, %s, %d' % (s(S_TMP), s(S_TMP), self.rowbytes))

    def compute(self):
        A, T = self.A, self.T
        SU, SQ = T + 4, T + 5
        A.I('v_mov_b32 %s, 0' % v(SU))
        A.I('v_mov_b32 %s, 0' % v(SQ))
        A.wait(vm='sl')
        for i in range(8):
            A.I('v_dot2c_f32_bf16 %s, %s, %s' % (v(SU), v(self.SR + i), v(V_ONES)))
            A.I('v_dot2c_f32_bf16 %s, %s, %s' % (v(SQ), v(self.SR + i), v(self.SR + i)))
        A.nop(3)
        wave_sum(A, [SU, SQ], [T + 6, T + 7])
        stats_to_mr(A, SU, SQ, T + 8, T + 9, T + 6)
        A.I('s_lshl_b32 %s, %s, 3' % (s(S_TMP), s(S_T5)))
        A.I('s_add_u32 %s, %s, %d' % (s(S_TMP), s(S_TMP), STAT_OFF))
        A.I('v_mov_b32 %s, 0' % v(T + 6))
        A.I('s_mov_b64 exec, 1')
        A.I('buffer_store_dwordx2 %s, %s, %s, %s offen sc1' % (v(T + 8, 2), v(T + 6), s(SRD_WS, 4), s(S_TMP)), vm='sst')
        A.I('s_mov_b64 exec, -1')
        A.I('v_lshlrev_b32 %s, 2, v0' % v(T + 7))
        A.I('v_mov_b32 %s, 0x%x' % (v(T + 14), BIG))
        A.I('v_cmp_gt_u32 vcc, %d, v0' % (105 * NREP))
        A.I('v_cndmask_b32 %s, %s, %s, vcc' % (v(T + 7), v(T + 14), v(T + 7)))
        A.I('s_mul_i32 %s, s2, %d' % (s(S_TMP), 420 * NREP))
        A.I('s_add_u32 %s, %s, %d' % (s(S_TMP), s(S_TMP), KVA_OFF))
        A.I('buffer_store_dword %s, %s, %s, %s offen sc1' % (v(T + 6), v(T + 7), s(SRD_WS, 4), s(S_TMP)), vm='sst')
        A.I('v_cmp_eq_u32 vcc, 0, v0')
        A.I('v_cndmask_b32 %s, %s, 0, vcc' % (v(T + 7), v(T + 14)))
        A.I('s_lshl_b32 %s, s2, 8' % s(S_TMP))
        A.I('s_add_u32 %s, %s, %d' % (s(S_TMP), s(S_TMP), CNT_OFF))
        A.I('buffer_store_dword %s, %s, %s, %s offen' % (v(T + 6), v(T + 7), s(SRD_WS, 4), s(S_TMP)), vm='z2')
        A.wait(vm='cl')
        C = T + 10
        for i in range(5):
            for h in range(2):
                r_ = self.CR + 2 * i + h
                if i == 0:
                    A.I('v_lshlrev_b32 %s, 16, %s' % (v(C + 2 * h), v(r_)))
                    A.I('v_and_b32 %s, 0xffff0000, %s' % (v(C + 2 * h + 1), v(r_)))
                else:
                    A.I('v_lshlrev_b32 %s, 16, %s' % (v(T + 6), v(r_)))
                    A.I('v_and_b32 %s, 0xffff0000, %s' % (v(T + 7), v(r_)))
                    A.I('v_add_f32 %s, %s, %s' % (v(C + 2 * h), v(C + 2 * h), v(T + 6)))
                    A.I('v_add_f32 %s, %s, %s' % (v(C + 2 * h + 1), v(C + 2 * h + 1), v(T + 7)))
        A.I('s_lshl_b32 %s, %s, 10' % (s(S_TMP), s(S_W)))
        A.I('s_add_u32 %s, %s, %d' % (s(S_TMP), s(S_TMP), self.csw_lds))
        A.I('v_lshlrev_b32 %s, 4, %s' % (v(T + 6), v(V_LANE)))
        A.I('v_add_u32 %s, %s, %s' % (v(T + 6), s(S_TMP), v(T + 6)))
        A.I('ds_write_b128 %s, %s' % (v(T + 6), v(C, 4)), lg='z')

    def hook_reduce(self):
        A = self.A
        R = HK
        A.I('s_lshl_b32 %s, %s, 8' % (s(S_TMP), s(S_TG)))
        A.I('s_add_u32 %s, %s, %d' % (s(S_TMP), s(S_TMP), self.csw_lds))
        A.I('v_lshlrev_b32 %s, 2, %s' % (v(R + 8), v(V_LANE)))
        A.I('v_add_u32 %s, %s, %s' % (v(R + 9), s(S_TMP), v(R + 8)))
        for i in range(8):
            A.I('ds_read_b32 %s, %s offset:%d' % (v(R + i), v(R + 9), i * 1024), lg='cr')

    def hook_reduce2(self):
        A = self.A
        R = HK
        A.wait(lg='cr')
        for i in range(1, 8):
            A.I('v_add_f32 %s, %s, %s' % (v(R), v(R), v(R + i)))
        A.I('s_lshl_b32 %s, %s, 4' % (s(S_TMP), s(S_FB)))
        A.I('s_add_u32 %s, %s, %s' % (s(S_TMP), s(S_TMP), s(S_TB)))
        A.I('s_lshl_b32 %s, %s, 10' % (s(S_TMP), s(S_TMP)))
        A.I('s_lshl_b32 %s, %s, 8' % (s(S_T3), s(S_TG)))
        A.I('s_add_u32 %s, %s, %s' % (s(S_TMP), s(S_TMP), s(S_T3)))
        A.I('s_add_u32 %s, %s, %d' % (s(S_TMP), s(S_TMP), CSP_OFF))
        A.I('buffer_store_dword %s, %s, %s, %s offen sc1' % (v(R), v(R + 8), s(SRD_WS, 4), s(S_TMP)), vm='cst')

    def hook_waitst(self):
        self.A.wait(vm=['sst', 'cst'])

    def hook_signal(self, grp, name):
        A = self.A
        if grp != 0:
            return
        R = HK + 10
        A.I('v_mov_b32 %s, 1' % v(R))
        A.I('s_and_b32 %s, s2, 1' % s(S_TMP))
        A.I('s_lshl_b32 %s, %s, 7' % (s(S_TMP), s(S_TMP)))
        A.I('v_mov_b32 %s, %s' % (v(R + 1), s(S_TMP)))
        A.I('v_lshlrev_b32 %s, 7, %s' % (v(V_PA), v(V_LANE)))
        A.I('v_and_b32 %s, 128, %s' % (v(V_PA), v(V_PA)))
        A.I('s_cmp_lg_u32 %s, 0' % s(S_TG))
        A.I('s_cbranch_scc1 L_%s_nosig' % name)
        A.I('s_mov_b64 exec, 1')
        A.I('buffer_atomic_add %s, %s, %s, 0 offen sc1' % (v(R), v(R + 1), s(SRD_DBG, 4)), vm='at')
        A.vmq.pop()
        A.I('s_mov_b64 exec, -1')
        A.label('L_%s_nosig' % name)

    def hook_poll(self, grp, name):
        A = self.A
        if grp != 0:
            return
        lp, ld = 'L_%s_poll' % name, 'L_%s_pdone' % name
        A.wait(vm='poll')
        A.I('s_cmp_lg_u32 %s, 0' % s(S_TG))
        A.I('s_cbranch_scc1 %s' % ld)
        A.label(lp)
        A.I('v_readlane_b32 %s, %s, 0' % (s(S_TMP), v(V_POLL)))
        A.I('v_readlane_b32 %s, %s, 1' % (s(S_T3), v(V_POLL)))
        A.I('s_min_u32 %s, %s, %s' % (s(S_TMP), s(S_TMP), s(S_T3)))
        A.I('s_cmp_ge_u32 %s, 128' % s(S_TMP))
        A.I('s_cbranch_scc1 %s' % ld)
        A.I('s_sleep 2')
        A.I('buffer_load_dword %s, %s, %s, 0 offen sc1' % (v(V_POLL), v(V_PA), s(SRD_DBG, 4)))
        A.vmq.pop()
        A.I('s_waitcnt vmcnt(0)')
        A.I('s_branch %s' % lp)
        A.label(ld)
        A.nop(4)

    def hook_poll_issue(self, grp):
        A = self.A
        if grp != 0:
            return
        A.I('s_mul_i32 %s, %s, 0x1000' % (s(S_TMP), s(S_TG)))
        A.I('buffer_load_dword %s, %s, %s, %s offen sc1' % (v(V_POLL), v(V_PA), s(SRD_DBG, 4), s(S_TMP)), vm='poll')

    def hook_consume(self, grp):
        A = self.A
        A.I('s_lshl_b32 %s, %s, 10' % (s(S_TMP), s(S_TB)))
        A.I('s_lshl_b32 %s, %s, 8' % (s(S_T3), s(S_TG)))
        A.I('s_add_u32 %s, %s, %s' % (s(S_TMP), s(S_TMP), s(S_T3)))
        A.I('s_add_u32 %s, %s, %d' % (s(S_TMP), s(S_TMP), STAT_OFF))
        A.I('v_lshlrev_b32 %s, 3, %s' % (v(V_TMP0), v(V_N)))
        A.I('buffer_load_dwordx2 %s, %s, %s, %s offen sc1' % (v(V_NM, 2), v(V_TMP0), s(SRD_WS, 4), s(S_TMP)), vm='nm')
        if grp == 0:
            A.I('s_lshl_b32 %s, %s, 14' % (s(S_TMP), s(S_FB)))
            A.I('s_lshl_b32 %s, %s, 8' % (s(S_T3), s(S_TG)))
            A.I('s_add_u32 %s, %s, %s' % (s(S_TMP), s(S_TMP), s(S_T3)))
            A.I('s_add_u32 %s, %s, %d' % (s(S_TMP), s(S_TMP), CSP_OFF))
            A.I('v_lshlrev_b32 %s, 2, %s' % (v(V_TMP1), v(V_LANE)))
            for p in range(16):
                A.I('buffer_load_dword %s, %s, %s, %s offen offset:%d sc1' % (v(HK + p), v(V_TMP1), s(SRD_WS, 4), s(S_TMP), (p % 4) * 1024), vm='csp')
                if p % 4 == 3 and p < 15:
                    A.I('s_add_u32 %s, %s, 4096' % (s(S_TMP), s(S_TMP)))

    def finish(self, grp):
        A = self.A
        if grp == 0:
            A.wait(vm='csp')
            for st in (8, 4, 2, 1):
                for i in range(st):
                    A.I('v_add_f32 %s, %s, %s' % (v(HK + i), v(HK + i), v(HK + i + st)))
            A.I('s_lshl_b32 %s, %s, 8' % (s(S_TMP), s(S_TG)))
            A.I('s_add_u32 %s, %s, %d' % (s(S_TMP), s(S_TMP), self.cs_lds))
            A.I('v_add_u32 %s, %s, %s' % (v(V_TMP1), s(S_TMP), v(V_TMP1)))
            A.I('ds_write_b32 %s, %s' % (v(V_TMP1), v(HK)), lg='pub')
            A.wait(lg='pub')
        A.wait(vm='nm')

    def hooks(self, grp, name):
        h = {}
        if grp == 0:
            h[0] = self.hook_reduce
            h[1] = self.hook_reduce2
        h[3] = self.hook_waitst
        h[4] = lambda: self.hook_signal(grp, name)
        h[13] = lambda: self.hook_poll_issue(grp)
        h[15] = lambda: self.hook_poll(grp, name)
        h[16] = lambda: self.hook_consume(grp)
        return h


SRD_R = 60


def relayout_issue(A, R):
    A.I('s_lshl_b32 s92, s2, 3')
    A.I('s_add_u32 s92, s92, %s' % s(S_W))
    A.group_begin()
    A.I('s_cmp_lt_u32 s92, 640')
    A.I('s_cselect_b32 s96, s88, s90')
    A.I('s_cselect_b32 s97, s89, s91')
    A.I('s_cselect_b32 s93, 0, 640')
    A.group_end()
    A.I('s_and_b32 s97, s97, 0xffff')
    A.I('s_mov_b32 s98, %d' % (1728 * 1280))
    A.I('s_mov_b32 s99, 0x20000')
    A.I('s_sub_u32 s93, s92, s93')
    A.I('s_mul_i32 s93, s93, 1280')
    A.I('v_lshlrev_b32 %s, 4, %s' % (v(R + 16), v(V_LANE)))
    A.I('v_mov_b32 %s, 0x%x' % (v(R + 17), BIG))
    A.I('v_cmp_gt_u32 vcc, 16, %s' % v(V_LANE))
    A.I('v_cndmask_b32 %s, %s, %s, vcc' % (v(R + 17), v(R + 17), v(R + 16)))
    A.I('buffer_load_dwordx4 %s, %s, s[96:99], s93 offen' % (v(R, 4), v(R + 16)), vm='rl')
    A.I('buffer_load_dwordx4 %s, %s, s[96:99], s93 offen offset:1024' % (v(R + 4, 4), v(R + 17)), vm='rl')
    A.I('s_mov_b32 s96, s90')
    A.I('s_and_b32 s97, s91, 0xffff')
    A.I('s_add_u32 s93, s92, 1408')
    A.I('s_mul_i32 s93, s93, 1280')
    A.I('buffer_load_dwordx4 %s, %s, s[96:99], s93 offen' % (v(R + 8, 4), v(R + 16)), vm='rl')
    A.I('buffer_load_dwordx4 %s, %s, s[96:99], s93 offen offset:1024' % (v(R + 12, 4), v(R + 17)), vm='rl')


def relayout_store(A, R):
    T = R + 18
    for j in range(2):
        A.I('v_add_u32 %s, %d, %s' % (v(T), 64 * j, v(V_LANE)))
        divmod_const(A, T + 1, T + 2, T, 10, 6554)
        A.I('s_mov_b32 s94, %d' % WR_CB)
        A.I('v_mul_lo_u32 %s, %s, s94' % (v(T + 1), v(T + 1)))
        A.I('v_lshl_add_u32 %s, %s, 4, %s' % (v(R + 16 + j), v(T + 2), v(T + 1)))
    A.I('v_mov_b32 %s, 0x%x' % (v(T), BIG))
    A.I('v_cmp_gt_u32 vcc, 16, %s' % v(V_LANE))
    A.I('v_cndmask_b32 %s, %s, %s, vcc' % (v(R + 17), v(T), v(R + 17)))

    def w2dest(srow):
        A.I('s_lshr_b32 s94, %s, 5' % srow)
        A.I('s_mul_i32 s95, s94, 5120')
        A.I('s_and_b32 s94, %s, 7' % srow)
        A.I('s_and_b32 s101, %s, 8' % srow)
        A.I('s_lshl_b32 s101, s101, 1')
        A.I('s_or_b32 s94, s94, s101')
        A.I('s_and_b32 s101, %s, 16' % srow)
        A.I('s_lshr_b32 s101, s101, 1')
        A.I('s_or_b32 s94, s94, s101')
        A.I('s_mul_i32 s94, s94, 160')
        A.I('s_add_u32 s95, s95, s94')
    A.I('s_sub_u32 s93, s92, 640')
    w2dest('s93')
    A.I('s_mov_b32 s100, s95')
    A.I('s_mul_i32 s93, s92, 3277')
    A.I('s_lshr_b32 s93, s93, 16')
    A.I('s_mul_i32 s94, s93, 20')
    A.I('s_sub_u32 s94, s92, s94')
    A.I('s_lshr_b32 s95, s93, 3')
    A.I('s_mul_i32 s95, s95, %d' % (5 * 5120))
    A.I('s_add_u32 s95, s95, %d' % (54 * 5120))
    A.I('s_and_b32 s93, s93, 7')
    A.I('s_lshr_b32 s96, s93, 1')
    A.I('s_mul_i32 s96, s96, 5120')
    A.I('s_and_b32 s97, s93, 1')
    A.I('s_lshl_b32 s97, s97, 4')
    A.I('s_add_u32 s97, s97, s94')
    A.I('s_mul_i32 s97, s97, 160')
    A.I('s_add_u32 s96, s96, s97')
    A.I('s_lshr_b32 s97, s93, 2')
    A.I('s_lshl_b32 s97, s97, 4')
    A.I('s_and_b32 s98, s93, 3')
    A.I('s_add_u32 s97, s97, s98')
    A.I('s_sub_u32 s98, s94, 16')
    A.I('s_lshl_b32 s98, s98, 2')
    A.I('s_add_u32 s97, s97, s98')
    A.I('s_mul_i32 s97, s97, 160')
    A.I('s_add_u32 s97, s97, %d' % (4 * 5120))
    A.group_begin()
    A.I('s_cmp_lt_u32 s94, 16')
    A.I('s_cselect_b32 s96, s96, s97')
    A.group_end()
    A.I('s_add_u32 s95, s95, s96')
    A.group_begin()
    A.I('s_cmp_lt_u32 s92, 640')
    A.I('s_cselect_b32 s95, s95, s100')
    A.group_end()
    A.I('s_add_u32 s100, s95, %d' % WR_OFF)
    A.wait(vm='rl')
    A.I('buffer_store_dwordx4 %s, %s, %s, s100 offen sc1' % (v(R, 4), v(R + 16), s(SRD_WS, 4)), vm='rs')
    A.I('buffer_store_dwordx4 %s, %s, %s, s100 offen sc1' % (v(R + 4, 4), v(R + 17), s(SRD_WS, 4)), vm='rs')
    A.I('s_add_u32 s93, s92, 1408')
    w2dest('s93')
    A.I('s_add_u32 s95, s95, %d' % WR_OFF)
    A.group_begin()
    A.I('s_cmp_lt_u32 s92, 320')
    A.I('s_cselect_b32 s95, s95, 0x%x' % BIG)
    A.group_end()
    A.I('buffer_store_dwordx4 %s, %s, %s, s95 offen sc1' % (v(R + 8, 4), v(R + 16), s(SRD_WS, 4)), vm='rs')
    A.I('buffer_store_dwordx4 %s, %s, %s, s95 offen sc1' % (v(R + 12, 4), v(R + 17), s(SRD_WS, 4)), vm='rs')


def read_cs_list(A, cs_lds, dsts, t0):
    A.I('v_lshlrev_b32 %s, 4, %s' % (v(t0), v(V_G)))
    A.I('v_add_u32 %s, %d, %s' % (v(t0), cs_lds, v(t0)))
    for ft, d in enumerate(dsts):
        A.I('ds_read_b128 %s, %s offset:%d' % (v(d, 4), v(t0), ft * 64), lg='cs')


def setup_x(A, xbase, t):
    A.I('s_lshl_b32 %s, %s, 7' % (s(S_TMP), s(S_W)))
    for j, dst in enumerate((V_DX0, V_DX1)):
        A.I('v_add_u32 %s, %s, %s' % (v(t[0]), s(S_TMP), v(V_LANE)))
        if j:
            A.I('v_add_u32 %s, 64, %s' % (v(t[0]), v(t[0])))
        A.I('v_lshrrev_b32 %s, 3, %s' % (v(t[1]), v(t[0])))
        A.I('v_bfe_u32 %s, %s, 4, 3' % (v(t[2]), v(t[0])))
        A.I('v_and_b32 %s, 7, %s' % (v(t[0]), v(t[0])))
        A.I('v_xor_b32 %s, %s, %s' % (v(t[0]), v(t[0]), v(t[2])))
        A.I('v_mul_u32_u24 %s, 1280, %s' % (v(t[1]), v(t[1])))
        A.I('v_lshl_add_u32 %s, %s, 4, %s' % (v(dst), v(t[0]), v(t[1])))
    A.I('s_mul_i32 %s, %s, %d' % (s(S_XOFF), s(S_TB), 128 * 1280))
    A.I('s_lshr_b32 %s, %s, 3' % (s(S_T4), s(S_FB)))
    A.I('s_mul_i32 %s, %s, 5' % (s(S_T4), s(S_T4)))
    A.I('s_add_u32 %s, %s, %s' % (s(S_T4), s(S_T4), s(S_TB)))
    for _ in range(2):
        A.I('s_cmp_ge_u32 %s, 10' % s(S_T4))
        A.I('s_cselect_b32 %s, 10, 0' % s(S_T3))
        A.I('s_sub_u32 %s, %s, %s' % (s(S_T4), s(S_T4), s(S_T3)))
    import os
    if os.environ.get('ROT1', '0') == '0':
        A.I('s_mov_b32 %s, 0' % s(S_T4))
    A.I('s_lshl_b32 %s, %s, 7' % (s(S_XO), s(S_T4)))
    A.I('s_lshl_b32 %s, %s, 11' % (s(S_M0X), s(S_W)))
    A.I('v_bfe_u32 %s, %s, 1, 3' % (v(t[0]), v(V_N)))
    A.I('v_xor_b32 %s, %s, %s' % (v(t[0]), v(t[0]), v(V_HI)))
    A.I('v_lshlrev_b32 %s, 4, %s' % (v(t[0]), v(t[0])))
    A.I('v_lshl_add_u32 %s, %s, 7, %s' % (v(t[0]), v(V_N), v(t[0])))
    A.I('s_lshl_b32 %s, %s, 12' % (s(S_TMP), s(S_TG)))
    A.I('s_add_u32 %s, %s, %d' % (s(S_TMP), s(S_TMP), xbase))
    for s4 in range(4):
        A.I('v_xor_b32 %s, %d, %s' % (v(t[1]), 32 * s4, v(t[0])))
        A.I('v_add_u32 %s, %s, %s' % (v(V_XR0 + s4), s(S_TMP), v(t[1])))


def gen_k1(A, mapping=0):
    A.label('k1_kernel')
    A.I('s_cmp_ge_u32 s2, 256')
    A.I('s_cbranch_scc1 L_k1_end')
    A.I('s_load_dwordx4 s[4:7], s[0:1], 0')
    A.I('s_load_dwordx2 s[8:9], s[0:1], 16')
    A.I('s_load_dwordx4 s[12:15], s[0:1], 40')
    A.I('s_load_dwordx4 s[16:19], s[0:1], 72')
    A.I('s_load_dwordx2 s[88:89], s[0:1], 24')
    A.I('s_load_dwordx2 s[90:91], s[0:1], 56')
    if mapping == 0:
        A.I('s_lshr_b32 %s, s2, 4' % s(S_TB))
        A.I('s_and_b32 %s, s2, 15' % s(S_FB))
    elif mapping == 1:
        A.I('s_bfe_u32 %s, s2, 0x10002' % s(S_TB))
        A.I('s_lshl_b32 %s, %s, 3' % (s(S_TB), s(S_TB)))
        A.I('s_bfe_u32 %s, s2, 0x30003' % s(S_TMP))
        A.I('s_add_u32 %s, %s, %s' % (s(S_TB), s(S_TB), s(S_TMP)))
        A.I('s_lshr_b32 %s, s2, 6' % s(S_FB))
        A.I('s_lshl_b32 %s, %s, 2' % (s(S_FB), s(S_FB)))
        A.I('s_and_b32 %s, s2, 3' % s(S_TMP))
        A.I('s_add_u32 %s, %s, %s' % (s(S_FB), s(S_FB), s(S_TMP)))
    elif mapping == 2:
        A.I('s_and_b32 %s, s2, 7' % s(S_TB))
        A.I('s_lshl_b32 %s, %s, 1' % (s(S_TB), s(S_TB)))
        A.I('s_bfe_u32 %s, s2, 0x10003' % s(S_TMP))
        A.I('s_add_u32 %s, %s, %s' % (s(S_TB), s(S_TB), s(S_TMP)))
        A.I('s_lshr_b32 %s, s2, 4' % s(S_FB))
    A.I('v_and_b32 %s, 63, v0' % v(V_LANE))
    A.I('v_and_b32 %s, 15, v0' % v(V_T))
    A.I('v_bfe_u32 %s, v0, 4, 2' % v(V_G))
    A.I('v_and_b32 %s, 31, v0' % v(V_N))
    A.I('v_bfe_u32 %s, v0, 5, 1' % v(V_HI))
    A.I('v_lshrrev_b32 %s, 6, v0' % v(V_TMP0))
    A.I('v_readfirstlane_b32 %s, %s' % (s(S_W), v(V_TMP0)))
    A.I('s_and_b32 %s, %s, 3' % (s(S_TG), s(S_W)))
    A.I('s_lshr_b32 %s, %s, 2' % (s(S_GRP), s(S_W)))
    A.I('s_mov_b32 %s, 0x%x' % (s(S_LOG2E), LOG2E))
    A.I('v_mov_b32 %s, 0x3f803f80' % v(V_ONES))
    A.I('s_waitcnt lgkmcnt(0)')
    if A.stamps_on:
        for i in range(16):
            A.I('s_mov_b32 s%d, 0' % (64 + i))
    A.stamp(0)
    srd(A, SRD_X, 4, 2048 * 640 * 2)
    srd(A, SRD_WS, 18, WS_END)
    srd(A, SRD_DBG, 16, 256)
    A.I('s_cmp_ge_u32 %s, 8' % s(S_FB))
    A.I('s_cbranch_scc1 L_k1_ffn')
    sn = A.snap()
    gen_k1_attn(A)
    A.restore(sn)
    A.label('L_k1_ffn')
    gen_k1_ffn(A)
    A.label('L_k1_end')
    A.I('s_endpgm')


F_SLOT = 15360
F_X = D_RING * F_SLOT
F_CSW = 5 * F_SLOT
F_CS = F_X + 3 * XP
F_BIAS = F_CS + 1024
F_LDS = F_BIAS + 1024


def mish_batch(A, vals, T):
    n = len(vals)
    E, U = T, T + n
    ac0, cs0, b0 = vals[0][0], vals[0][1], vals[0][2]
    for i in range(0, n, 2):
        A.I('v_pk_fma_f32 %s, %s, %s, %s op_sel_hi:[1,0,1]' % (v(ac0 + i, 2), v(cs0 + i, 2), v(V_NM, 2), v(ac0 + i, 2)))
    for i in range(0, n, 2):
        A.I('v_pk_fma_f32 %s, %s, %s, %s op_sel:[0,1,0] op_sel_hi:[1,1,1]' % (v(ac0 + i, 2), v(ac0 + i, 2), v(V_NM, 2), v(b0 + i, 2)))
    for i in range(0, n, 2):
        A.I('v_pk_mul_f32 %s, %s, %s op_sel:[0,1] op_sel_hi:[1,1]' % (v(E + i, 2), v(ac0 + i, 2), v(V_K2, 2)))
    for i in range(n):
        A.I('v_exp_f32 %s, %s' % (v(E + i), v(E + i)))
    for i in range(0, n, 2):
        A.I('v_pk_add_f32 %s, %s, %s op_sel_hi:[1,0]' % (v(U + i, 2), v(E + i, 2), v(V_K2, 2)))
    for i in range(0, n, 2):
        A.I('v_pk_fma_f32 %s, %s, %s, %s op_sel_hi:[1,1,0]' % (v(U + i, 2), v(E + i, 2), v(U + i, 2), v(V_K2, 2)))
    for i in range(n):
        A.I('v_rcp_f32 %s, %s' % (v(U + i), v(U + i)))
    for i in range(0, n, 2):
        A.I('v_pk_fma_f32 %s, %s, %s, %s op_sel:[0,0,1] op_sel_hi:[1,0,1]' % (v(U + i, 2), v(U + i, 2), v(V_K1, 2), v(V_K1, 2)))
    for i in range(0, n, 2):
        A.I('v_pk_mul_f32 %s, %s, %s' % (v(ac0 + i, 2), v(ac0 + i, 2), v(U + i, 2)))


def w_voffsets(A, t, kind):
    per = 112 if kind == 'ffn' else 120
    A.I('s_mul_i32 %s, %s, %d' % (s(S_TMP), s(S_W), per))
    if kind == 'ffn':
        A.I('s_lshl_b32 %s, %s, 6' % (s(S_T3), s(S_P0)))
    else:
        A.I('s_mul_i32 %s, %s, 160' % (s(S_T3), s(S_FB)))
    for j, dst in enumerate((V_DM0, V_DM1)):
        A.I('v_add_u32 %s, %s, %s' % (v(t[0]), s(S_TMP), v(V_LANE)))
        if j:
            A.I('v_add_u32 %s, 64, %s' % (v(t[0]), v(t[0])))
        if kind == 'ffn':
            divmod_const(A, t[1], t[2], t[0], 28, 2341)
            A.I('v_mul_u32_u24 %s, 3456, %s' % (v(t[3]), v(t[1])))
            A.I('v_lshl_add_u32 %s, %s, 4, %s' % (v(t[3]), v(t[2]), v(t[3])))
            A.I('v_add_u32 %s, %s, %s' % (v(dst), s(S_T3), v(t[3])))
        else:
            divmod_const(A, t[1], t[2], t[0], 30, 2185)
            divmod_const(A, t[5], t[7], t[2], 10, 6554)
            A.I('v_and_b32 %s, 24, %s' % (v(t[3]), v(t[1])))
            A.I('v_and_b32 %s, 1, %s' % (v(t[4]), v(t[1])))
            A.I('v_lshl_or_b32 %s, %s, 2, %s' % (v(t[3]), v(t[4]), v(t[3])))
            A.I('v_bfe_u32 %s, %s, 1, 2' % (v(t[4]), v(t[1])))
            A.I('v_or_b32 %s, %s, %s' % (v(t[3]), v(t[3]), v(t[4])))
            A.I('v_mul_u32_u24 %s, 3840, %s' % (v(t[3]), v(t[3])))
            A.I('v_lshl_add_u32 %s, %s, 4, %s' % (v(t[3]), v(t[7]), v(t[3])))
            A.I('v_add_u32 %s, 1, %s' % (v(t[6]), v(t[5])))
            A.I('v_cmp_gt_u32 vcc, 2, %s' % v(t[5]))
            A.I('v_cndmask_b32 %s, 0, %s, vcc' % (v(t[6]), v(t[6])))
            A.I('v_mul_u32_u24 %s, 1280, %s' % (v(t[6]), v(t[6])))
            A.I('v_add3_u32 %s, %s, %s, %s' % (v(dst), s(S_T3), v(t[3]), v(t[6])))
    A.I('s_mul_i32 %s, %s, %d' % (s(S_M0B), s(S_W), per * 16))


def mk_dma(A, rowbytes, himask):
    A.I('s_mul_i32 %s, %s, %d' % (s(S_WO), s(S_T4), 64 * rowbytes))

    def dma(stage):
        slot = stage % D_RING
        A.I('s_mov_b32 %s, %s' % (s(S_DT), s(S_WO)))
        A.I('s_add_u32 %s, %s, %d' % (s(S_WO), s(S_WO), 32 * rowbytes))
        A.I('s_cmp_ge_u32 %s, %d' % (s(S_WO), 640 * rowbytes))
        A.I('s_cselect_b32 %s, 0, %s' % (s(S_WO), s(S_WO)))
        A.I('s_add_u32 m0, %s, %d' % (s(S_M0B), slot * F_SLOT))
        A.I('buffer_load_dwordx4 %s, %s, %s offen lds' % (v(V_DM0), s(SRD_W, 4), s(S_DT)), vm=('dma', stage))
        A.I('s_add_u32 m0, %s, %d' % (s(S_M0B), slot * F_SLOT + 1024))
        A.I('s_mov_b32 exec_hi, 0x%x' % himask)
        A.I('buffer_load_dwordx4 %s, %s, %s offen lds' % (v(V_DM1), s(SRD_W, 4), s(S_DT)), vm=('dma', stage))
        A.I('s_mov_b64 exec, -1')
    return dma


def trbase32(A, dst, rowbytes, rmul, t0, t1):
    A.I('v_bfe_u32 %s, %s, 2, 2' % (v(t0), v(V_LANE)))
    if rmul == 2:
        A.I('v_lshlrev_b32 %s, 1, %s' % (v(t0), v(t0)))
    A.I('v_lshl_add_u32 %s, %s, 3, %s' % (v(t0), v(V_HI), v(t0)))
    A.I('v_mul_u32_u24 %s, %d, %s' % (v(t0), rowbytes, v(t0)))
    A.I('v_and_b32 %s, 1, %s' % (v(t1), v(V_G)))
    A.I('v_lshl_add_u32 %s, %s, 5, %s' % (v(t0), v(t1), v(t0)))
    A.I('v_and_b32 %s, 3, %s' % (v(t1), v(V_LANE)))
    A.I('v_lshl_add_u32 %s, %s, 3, %s' % (v(dst), v(t1), v(t0)))


def rd_vec32(A, areg, lds_off, dst, tag):
    for j in range(4):
        A.I('ds_read_b128 %s, %s offset:%d' % (v(dst + 4 * j, 4), v(areg), lds_off + j * 32), lg=tag)


RLY = 160


def gen_k1_ffn(A):
    srd(A, SRD_W, 12, 640 * 1728 * 2)
    A.I('s_sub_u32 %s, %s, 8' % (s(S_P0), s(S_FB)))
    A.I('s_mul_i32 %s, %s, 7' % (s(S_P0), s(S_P0)))
    A.I('s_min_u32 %s, %s, 47' % (s(S_P0), s(S_P0)))
    t = [200 + i for i in range(8)]
    def colmap(dst, t0):
        A.I('s_lshl_b32 %s, %s, 6' % (s(S_T3), s(S_P0)))
        A.I('v_lshlrev_b32 %s, 3, %s' % (v(dst), v(V_LANE)))
        A.I('v_add_u32 %s, %s, %s' % (v(dst), s(S_T3), v(dst)))
        A.I('v_mov_b32 %s, 0x%x' % (v(t0), BIG))
        A.I('v_cmp_gt_u32 vcc, 56, %s' % v(V_LANE))
        A.I('v_cndmask_b32 %s, %s, %s, vcc' % (v(dst), v(t0), v(dst)))
    C = Coop(A, 3456, F_CSW, F_CS, colmap)
    C.issue_loads()
    setup_x(A, F_X, t)
    dma_x(A, 0, F_X)
    w_voffsets(A, t, 'ffn')
    dma = mk_dma(A, 3456, 0xffff)
    dma(0)
    dma(1)
    dma_x(A, 1, F_X)
    srd(A, SRD_AUX, 14, 1728 * 2)

    dma(2)
    A.stamp(8)
    trbase32(A, V_RB0, 448, 1, t[0], t[1])
    A.I('s_lshl_b32 %s, %s, 8' % (s(S_TMP), s(S_GRP)))
    A.I('v_add_u32 %s, %s, %s' % (v(V_RB0), s(S_TMP), v(V_RB0)))
    A.I('v_add_u32 %s, %d, %s' % (v(V_RB1), 3 * F_SLOT, v(V_RB0)))
    C.compute()
    A.wait(lg='z')
    A.stamp(14)

    def mk_fill(grp):
        A.defer_begin()
        relayout_issue(A, RLY)
        if grp == 0:
            A.I('s_lshl_b32 s85, %s, 6' % s(S_P0))
            A.I('v_lshlrev_b32 %s, 1, v0' % v(190))
            A.I('buffer_load_ushort %s, %s, %s, s85 offen' % (v(191), v(190), s(SRD_AUX, 4)), vm='bias')
        relayout_store(A, RLY)
        if grp == 0:
            A.wait(vm='bias')
            A.I('v_lshlrev_b32 %s, 16, %s' % (v(191), v(191)))
            A.I('v_lshlrev_b32 %s, 2, v0' % v(190))
            A.I('v_add_u32 %s, %d, %s' % (v(190), F_BIAS, v(190)))
            A.I('ds_write_b32 %s, %s' % (v(190), v(191)), lg='z')
        return A.defer_end()
    A.I('s_cmp_eq_u32 %s, 1' % s(S_GRP))
    A.I('s_cbranch_scc1 L_ffn_B')
    sn = A.snap()
    for grp in range(2):
        if grp:
            A.restore(sn)
            A.label('L_ffn_B')
        nt = 4 - grp
        tiles = [(ti * 64, ACC + 16 * ti) for ti in range(nt)]
        L = Loop(A, 'ffn%d' % grp, tiles, 16 * 448, 4 * 448, dma, F_X, C.hooks(grp, 'ffn%d' % grp), fillers=mk_fill(grp))
        L.run()
        CSR = [152, 184]
        BFR = [168, 200]
        TT = 216
        OUT = 232
        AD = 252
        C.finish(grp)
        A.stamp(6)
        A.I('s_barrier')
        A.stamp(7)
        A.I('v_lshlrev_b32 %s, 4, %s' % (v(AD + 1), v(V_HI)))
        A.I('v_add_u32 %s, %d, %s' % (v(AD + 1), F_CS + grp * 512, v(AD + 1)))
        A.I('v_mov_b32 %s, 2.0' % v(V_K2))
        A.I('v_mov_b32 %s, %s' % (v(V_K2 + 1), s(S_LOG2E)))
        A.I('v_mov_b32 %s, -2.0' % v(V_K1))
        A.I('v_mov_b32 %s, 1.0' % v(V_K1 + 1))

        def rdv(ti):
            rd_vec32(A, AD + 1, ti * 128, CSR[ti % 2], ('cs', ti))
            rd_vec32(A, AD + 1, 1024 + ti * 128, BFR[ti % 2], ('cs', ti))
        rdv(0)
        A.I('s_lshl_b32 %s, %s, 3' % (s(S_TMP), s(S_TB)))
        A.I('s_lshl_b32 %s, %s, 1' % (s(S_T3), s(S_TG)))
        A.I('s_add_u32 %s, %s, %s' % (s(S_TMP), s(S_TMP), s(S_T3)))
        A.I('s_mul_i32 %s, %s, 54' % (s(S_TMP), s(S_TMP)))
        A.I('s_add_u32 %s, %s, %s' % (s(S_TMP), s(S_TMP), s(S_P0)))
        A.I('s_lshl_b32 %s, %s, 10' % (s(S_TMP), s(S_TMP)))
        A.I('s_add_u32 %s, %s, %d' % (s(S_TMP), s(S_TMP), ACT_OFF + grp * 4 * 1024))
        A.I('v_and_b32 %s, 1, %s' % (v(AD), v(V_G)))
        A.I('v_mul_u32_u24 %s, %d, %s' % (v(AD), 54 * 1024, v(AD)))
        A.I('v_lshl_add_u32 %s, %s, 4, %s' % (v(AD), v(V_T), v(AD)))
        A.I('v_lshl_add_u32 %s, %s, 8, %s' % (v(AD), v(V_HI), v(AD)))
        for ti in range(nt):
            A.stamp(10 + ti)
            if ti + 1 < nt:
                rdv(ti + 1)
            A.wait(lg=('cs', ti))
            for hb in range(2):
                vals = []
                for r_ in range(8):
                    i_ = hb * 8 + r_
                    vals.append((ACC + 16 * ti + i_, CSR[ti % 2] + i_, BFR[ti % 2] + i_, V_NM, V_NM + 1))
                mish_batch(A, vals, TT)
                o = OUT + ((ti * 2 + hb) % 4) * 4
                for q in range(4):
                    ac = ACC + 16 * ti + hb * 8 + 2 * q
                    A.I('v_cvt_pk_bf16_f32 %s, %s, %s' % (v(o + q), v(ac), v(ac + 1)))
                A.I('buffer_store_dwordx4 %s, %s, %s, %s offen offset:%d' % (v(o, 4), v(AD), s(SRD_WS, 4), s(S_TMP), ti * 1024 + hb * 512) + ' sc1', vm='st')
        A.stamp(15)
        A.stamp_flush(18, S_W, 8)
        A.I('s_endpgm')


A_X = D_RING * F_SLOT
PHIK_ROW = 352
A_PHIK = 0
A_VS = A_PHIK + 128 * PHIK_ROW
A_M = A_X + 3 * XP
A_CSW = 5 * F_SLOT
A_CS = A_M + 80 * 192
A_FLAG = A_CS + 1024
A_LDS = A_FLAG + 64


def softmax2(A, P, EP, EM, X, scl, sync):
    MX, MN = X, X + 1
    A.I('v_max3_f32 %s, %s, %s, %s' % (v(MX), v(P), v(P + 1), v(P + 2)))
    A.I('v_min3_f32 %s, %s, %s, %s' % (v(MN), v(P), v(P + 1), v(P + 2)))
    for i in range(3, 19, 2):
        A.I('v_max3_f32 %s, %s, %s, %s' % (v(MX), v(MX), v(P + i), v(P + i + 1)))
        A.I('v_min3_f32 %s, %s, %s, %s' % (v(MN), v(MN), v(P + i), v(P + i + 1)))
    A.I('v_max_f32 %s, %s, %s' % (v(MX), v(MX), v(P + 19)))
    A.I('v_min_f32 %s, %s, %s' % (v(MN), v(MN), v(P + 19)))
    A.I('v_pk_mul_f32 %s, %s, %s op_sel_hi:[1,0]' % (v(X, 2), v(X, 2), v(scl, 2)))
    for i in range(0, 20, 2):
        A.I('v_pk_fma_f32 %s, %s, %s, %s op_sel_hi:[1,0,0] neg_lo:[0,0,1] neg_hi:[0,0,1]' % (v(EP + i, 2), v(P + i, 2), v(scl, 2), v(X, 2)))
        A.I('v_pk_fma_f32 %s, %s, %s, %s op_sel:[0,0,1] op_sel_hi:[1,0,1] neg_lo:[1,0,0] neg_hi:[1,0,0]' % (v(EM + i, 2), v(P + i, 2), v(scl, 2), v(X, 2)))
    sync()
    for i in range(20):
        A.I('v_exp_f32 %s, %s' % (v(EP + i), v(EP + i)))
        A.I('v_exp_f32 %s, %s' % (v(EM + i), v(EM + i)))
    sync()
    SP, SM, RS = X + 2, X + 4, X + 6
    A.I('v_pk_add_f32 %s, %s, %s' % (v(SP, 2), v(EP, 2), v(EP + 2, 2)))
    A.I('v_pk_add_f32 %s, %s, %s' % (v(SM, 2), v(EM, 2), v(EM + 2, 2)))
    for i in range(4, 20, 2):
        A.I('v_pk_add_f32 %s, %s, %s' % (v(SP, 2), v(SP, 2), v(EP + i, 2)))
        A.I('v_pk_add_f32 %s, %s, %s' % (v(SM, 2), v(SM, 2), v(EM + i, 2)))
    A.I('v_add_f32 %s, %s, %s' % (v(RS), v(SP), v(SP + 1)))
    A.I('v_add_f32 %s, %s, %s' % (v(RS + 1), v(SM), v(SM + 1)))
    A.I('v_rcp_f32 %s, %s' % (v(RS), v(RS)))
    A.I('v_rcp_f32 %s, %s' % (v(RS + 1), v(RS + 1)))
    for i in range(0, 20, 2):
        A.I('v_pk_mul_f32 %s, %s, %s op_sel_hi:[1,0]' % (v(EP + i, 2), v(EP + i, 2), v(RS, 2)))
        A.I('v_pk_mul_f32 %s, %s, %s op_sel:[0,1] op_sel_hi:[1,1]' % (v(EM + i, 2), v(EM + i, 2), v(RS, 2)))
    for i in range(10):
        A.I('v_cvt_pk_bf16_f32 %s, %s, %s' % (v(P + i), v(EP + 2 * i), v(EP + 2 * i + 1)))
        A.I('v_cvt_pk_bf16_f32 %s, %s, %s' % (v(P + 10 + i), v(EM + 2 * i), v(EM + 2 * i + 1)))
    sync()


def gen_k1_attn(A):
    srd(A, SRD_W, 6, 640 * 1920 * 2)
    t = [200 + i for i in range(16)]
    def colmap(dst, t0):
        divmod_const(A, t[0], t[1], V_LANE, 20, 3277)
        A.I('v_add_u32 %s, 1, %s' % (v(t[2]), v(t[0])))
        A.I('v_cmp_eq_u32 vcc, 2, %s' % v(t[0]))
        A.I('v_cndmask_b32 %s, %s, 0, vcc' % (v(t[2]), v(t[2])))
        A.I('v_mul_u32_u24 %s, 1280, %s' % (v(t[2]), v(t[2])))
        A.I('v_lshl_add_u32 %s, %s, 3, %s' % (v(dst), v(t[1]), v(t[2])))
        A.I('s_mul_i32 %s, %s, 160' % (s(S_T3), s(S_FB)))
        A.I('v_add_u32 %s, %s, %s' % (v(dst), s(S_T3), v(dst)))
        A.I('v_mov_b32 %s, 0x%x' % (v(t0), BIG))
        A.I('v_cmp_gt_u32 vcc, 60, %s' % v(V_LANE))
        A.I('v_cndmask_b32 %s, %s, %s, vcc' % (v(dst), v(t0), v(dst)))
    C = Coop(A, 3840, A_CSW, A_CS, colmap)
    C.issue_loads()
    setup_x(A, A_X, t)
    dma_x(A, 0, A_X)
    w_voffsets(A, t, 'attn')
    dma = mk_dma(A, 3840, 0x00ffffff)
    dma(0)
    dma(1)
    dma_x(A, 1, A_X)
    srd(A, SRD_AUX, 8, 32 * 400 * 2)

    dma(2)
    trbase32(A, V_RB0, 480, 2, t[0], t[1])
    A.I('s_lshl_b32 %s, %s, 8' % (s(S_TMP), s(S_GRP)))
    A.I('v_add_u32 %s, %s, %s' % (v(V_RB0), s(S_TMP), v(V_RB0)))
    A.I('v_add_u32 %s, %d, %s' % (v(V_RB1), 3 * F_SLOT, v(V_RB0)))
    C.compute()
    A.I('v_mov_b32 %s, %d' % (v(t[0]), A_FLAG))
    A.I('v_mov_b32 %s, 0' % v(t[1]))
    A.I('ds_write_b32 %s, %s' % (v(t[0]), v(t[1])), lg='z')
    A.wait(lg='z')

    def mk_fill():
        A.defer_begin()
        relayout_issue(A, RLY)
        MD, MA = 184, 192
        for i in range(4):
            A.I('v_add_u32 %s, %d, v0' % (v(t[0]), 512 * i))
            divmod_const(A, t[1], t[2], t[0], 24, 2731)
            divmod_const(A, t[3], t[4], t[1], 20, 3277)
            A.I('v_lshrrev_b32 %s, 1, %s' % (v(t[5]), v(t[2])))
            A.I('v_lshlrev_b32 %s, 2, %s' % (v(t[5]), v(t[5])))
            A.I('v_and_b32 %s, 1, %s' % (v(t[6]), v(t[2])))
            A.I('v_lshlrev_b32 %s, 1, %s' % (v(t[6]), v(t[6])))
            A.I('v_cmp_lt_u32 vcc, 19, %s' % v(t[5]))
            A.I('v_addc_co_u32 %s, vcc, 0, %s, vcc' % (v(t[6]), v(t[6])))
            A.I('v_cmp_lt_u32 vcc, 19, %s' % v(t[5]))
            A.I('v_subrev_u32 %s, 20, %s' % (v(t[8]), v(t[5])))
            A.I('v_cndmask_b32 %s, %s, %s, vcc' % (v(t[8]), v(t[5]), v(t[8])))
            A.I('v_mul_u32_u24 %s, 800, %s' % (v(t[7]), v(t[3])))
            A.I('v_mul_u32_u24 %s, 40, %s' % (v(t[4]), v(t[4])))
            A.I('v_add_u32 %s, %s, %s' % (v(t[7]), v(t[7]), v(t[4])))
            A.I('v_lshl_add_u32 %s, %s, 1, %s' % (v(t[7]), v(t[8]), v(t[7])))
            A.I('v_mov_b32 %s, 0x%x' % (v(t[4]), BIG))
            A.I('v_cmp_eq_u32 vcc, %s, %s' % (v(t[6]), v(t[3])))
            A.I('v_cndmask_b32 %s, %s, %s, vcc' % (v(t[7]), v(t[4]), v(t[7])))
            A.I('v_cmp_gt_u32 vcc, 40, %s' % v(t[5]))
            A.I('v_cndmask_b32 %s, %s, %s, vcc' % (v(t[7]), v(t[4]), v(t[7])))
            A.I('s_mul_i32 s85, %s, 3200' % s(S_FB))
            A.I('buffer_load_dwordx2 %s, %s, %s, %s offen' % (v(MD + 2 * i, 2), v(t[7]), s(SRD_AUX, 4), 's85'), vm='m')
            A.I('v_lshlrev_b32 %s, 3, %s' % (v(MA + i), v(t[0])))
            A.I('v_add_u32 %s, %d, %s' % (v(MA + i), A_M, v(MA + i)))

        relayout_store(A, RLY)
        A.wait(vm='m')
        for i in range(4):
            if i == 3:
                A.group_begin()
                A.I('v_cmp_gt_u32 vcc, 384, v0')
                A.I('s_and_saveexec_b64 %s, vcc' % s(S_MASK, 2))
            A.I('ds_write_b64 %s, %s' % (v(MA + i), v(MD + 2 * i, 2)), lg='z')
            if i == 3:
                A.I('s_mov_b64 exec, -1')
                A.group_end()
        return A.defer_end()

    NM = V_NM
    CSR = 104
    MF = 168
    AD = 228
    X = 238
    SCL = 246
    VMB = 247
    BO = 24
    A.I('s_cmp_eq_u32 %s, 1' % s(S_GRP))
    A.I('s_cbranch_scc1 L_att_B')
    sn = A.snap()
    for grp in range(2):
        if grp:
            A.restore(sn)
            A.label('L_att_B')
        tiles = [(ti * 64, ACC + 16 * ti) for ti in range(4)]
        L = Loop(A, 'att%d' % grp, tiles, 16 * 480, 480, dma, A_X, C.hooks(grp, 'att%d' % grp), fillers=mk_fill())
        L.run()
        C.finish(grp)
        A.I('v_bfe_u32 %s, %s, 2, 2' % (v(VMB), v(V_LANE)))
        A.I('v_lshl_add_u32 %s, %s, 2, %s' % (v(VMB), v(V_HI), v(VMB)))
        A.I('v_mul_u32_u24 %s, 192, %s' % (v(VMB), v(VMB)))
        A.I('v_and_b32 %s, 1, %s' % (v(AD), v(V_G)))
        A.I('v_lshl_add_u32 %s, %s, 5, %s' % (v(VMB), v(AD), v(VMB)))
        A.I('v_and_b32 %s, 3, %s' % (v(AD), v(V_LANE)))
        A.I('v_lshl_add_u32 %s, %s, 3, %s' % (v(VMB), v(AD), v(VMB)))
        A.I('v_add_u32 %s, %d, %s' % (v(VMB), A_M, v(VMB)))
        for u in range(3):
            for s2 in range(5):
                b = MF + (u * 5 + s2) * 4
                for h in range(2):
                    A.I('ds_read_b64_tr_b16 %s, %s offset:%d' % (v(b + 2 * h, 2), v(VMB), (16 * s2 + 8 * h) * 192 + u * 64), lg='mf')
        A.I('v_mul_f32 %s, %s, %s' % (v(SCL), s(S_LOG2E), v(NM + 1)))
        A.I('s_barrier')
        if grp == 0:
            A.I('s_setprio 2')
        A.stamp(6)
        A.I('v_lshlrev_b32 %s, 4, %s' % (v(AD + 1), v(V_HI)))
        A.I('v_add_u32 %s, %d, %s' % (v(AD + 1), A_CS + grp * 512, v(AD + 1)))
        for ti in range(4):
            rd_vec32(A, AD + 1, ti * 128, CSR + 16 * ti, ('cs', ti))
        A.I('s_mul_i32 %s, %s, %d' % (s(S_TMP), s(S_TG), 32 * 160))
        A.I('s_add_u32 %s, %s, %d' % (s(S_TMP), s(S_TMP), A_VS))
        A.I('v_mul_u32_u24 %s, 160, %s' % (v(AD), v(V_N)))
        A.I('v_lshl_add_u32 %s, %s, 3, %s' % (v(AD), v(V_HI), v(AD)))
        A.I('v_add_u32 %s, %s, %s' % (v(AD), s(S_TMP), v(AD)))
        if grp == 0:
            vq = [(2, 2, 0), (2, 3, 8)] + [(3, j, 16 + 8 * j) for j in range(4)]
            st2 = [(0, 0), (0, 8), (1, 0), (1, 8), (2, 0)]
        else:
            vq = [(0, j, 48 + 8 * j) for j in range(4)]
            st2 = [(1, 0), (1, 8), (2, 0), (2, 8), (3, 0)]
        BOS = [24, 28, 32, 36, 248]
        for (ti, j, f0) in vq:
            A.wait(lg=('cs', ti))
            ac = ACC + 16 * ti + 4 * j
            for r_ in range(0, 4, 2):
                A.I('v_pk_fma_f32 %s, %s, %s, %s op_sel_hi:[1,0,1]' % (v(ac + r_, 2), v(CSR + 16 * ti + 4 * j + r_, 2), v(NM, 2), v(ac + r_, 2)))
            for r_ in range(0, 4, 2):
                A.I('v_pk_mul_f32 %s, %s, %s op_sel:[0,1] op_sel_hi:[1,1]' % (v(ac + r_, 2), v(ac + r_, 2), v(NM, 2)))
            A.I('v_cvt_pk_bf16_f32 %s, %s, %s' % (v(ac), v(ac), v(ac + 1)))
            A.I('v_cvt_pk_bf16_f32 %s, %s, %s' % (v(ac + 1), v(ac + 2), v(ac + 3)))
            A.I('ds_write_b64 %s, %s offset:%d' % (v(AD), v(ac, 2), f0 * 2), lg='vs')
        for s2, (ti, r0) in enumerate(st2):
            A.wait(lg=('cs', ti))
            ac = ACC + 16 * ti + r0
            for r_ in range(0, 8, 2):
                A.I('v_pk_fma_f32 %s, %s, %s, %s op_sel_hi:[1,0,1]' % (v(ac + r_, 2), v(CSR + 16 * ti + r0 + r_, 2), v(NM, 2), v(ac + r_, 2)))
            for q in range(4):
                A.I('v_cvt_pk_bf16_f32 %s, %s, %s' % (v(BOS[s2] + q), v(ac + 2 * q), v(ac + 2 * q + 1)))
        A.wait(lg='mf')
        P = 104
        for s2 in range(5):
            for u in range(3):
                d = v(P + 16 * u, 16)
                A.I('v_mfma_f32_32x32x16_bf16 %s, %s, %s, %s' % (d, v(MF + (u * 5 + s2) * 4, 4), v(BOS[s2], 4), d if s2 else '0'))
        EP, EM = 40, 60
        calls = [0]
        if grp == 0:
            A.I('s_mul_i32 %s, %s, %d' % (s(S_TMP), s(S_TG), 32 * PHIK_ROW))
            A.I('s_add_u32 %s, %s, %d' % (s(S_TMP), s(S_TMP), A_PHIK))
            A.I('v_mul_u32_u24 %s, %d, %s' % (v(AD + 2), PHIK_ROW, v(V_N)))
            A.I('v_mul_u32_u24 %s, 160, %s' % (v(AD + 3), v(V_HI)))
            A.I('v_add3_u32 %s, %s, %s, %s' % (v(AD + 2), s(S_TMP), v(AD + 2), v(AD + 3)))
            for a_ in range(2):
                softmax2(A, P + 20 * a_, EP, EM, X, SCL, lambda: None)
                for j in range(5):
                    A.I('ds_write_b128 %s, %s offset:%d' % (v(AD + 2), v(P + 20 * a_ + 4 * j, 4), a_ * 80 + j * 16), lg='pk')
            A.stamp(8)
            KA, KB = AD + 4, AD + 5
            trbase(A, KA, PHIK_ROW, AD + 6, AD + 7)
            A.I('s_mul_i32 %s, %s, 80' % (s(S_TMP), s(S_TG)))
            A.I('s_add_u32 %s, %s, %d' % (s(S_TMP), s(S_TMP), A_PHIK))
            A.I('v_add_u32 %s, %s, %s' % (v(KA), s(S_TMP), v(KA)))
            trbase(A, KB, 160, AD + 6, AD + 7)
            A.I('s_mul_i32 %s, %s, 40' % (s(S_TMP), s(S_TG)))
            A.I('s_add_u32 %s, %s, %d' % (s(S_TMP), s(S_TMP), A_VS))
            A.I('v_add_u32 %s, %s, %s' % (v(KB), s(S_TMP), v(KB)))
            A.I('v_cmp_eq_u32 %s, 4, %s' % (s(S_MASK, 2), v(V_T)))
            A.wait(lg=['pk', 'vs'])
            A.I('v_mov_b32 %s, %d' % (v(AD + 6), A_FLAG))
            A.I('v_mov_b32 %s, 1' % v(AD + 7))
            A.I('s_mov_b64 exec, 1')
            A.I('ds_add_u32 %s, %s' % (v(AD + 6), v(AD + 7)), lg='fl')
            A.I('s_mov_b64 exec, -1')
            A.label('L_kvflag')
            A.I('ds_read_b32 %s, %s' % (v(AD + 7), v(AD + 6)), lg='fl')
            A.wait_all(lg=True)
            A.I('v_readfirstlane_b32 %s, %s' % (s(S_TMP), v(AD + 7)))
            A.I('s_cmp_ge_u32 %s, 8' % s(S_TMP))
            A.I('s_cbranch_scc0 L_kvflag')
            FR = 104
            for ks in range(4):
                for i in range(5):
                    r0 = FR + (ks * 5 + i) * 4
                    for h in range(2):
                        if i < 3:
                            A.I('ds_read_b64_tr_b16 %s, %s offset:%d' % (v(r0 + 2 * h, 2), v(KA), (ks * 32 + 8 * h) * PHIK_ROW + i * 32), lg=('kv', ks))
                        else:
                            A.I('ds_read_b64_tr_b16 %s, %s offset:%d' % (v(r0 + 2 * h, 2), v(KB), (ks * 32 + 8 * h) * 160 + (i - 3) * 32), lg=('kv', ks))
            KD = 40
            for ks in range(4):
                A.wait(lg=('kv', ks))
                rb = FR + (ks * 5 + 4) * 4
                for j in range(4):
                    A.I('v_cndmask_b32 %s, %s, %s, %s' % (v(rb + j), v(rb + j), v(V_ONES), s(S_MASK, 2)))
                for dt in range(2):
                    for i in range(3):
                        d = v(KD + (dt * 3 + i) * 4, 4)
                        A.I('v_mfma_f32_16x16x32_bf16 %s, %s, %s, %s' % (d, v(FR + (ks * 5 + 3 + dt) * 4, 4), v(FR + (ks * 5 + i) * 4, 4), d if ks else '0'))
            A.I('s_lshl_b32 %s, %s, 2' % (s(S_TMP), s(S_FB)))
            A.I('s_add_u32 %s, %s, %s' % (s(S_TMP), s(S_TMP), s(S_TG)))
            A.I('s_mul_i32 %s, %s, 3360' % (s(S_TMP), s(S_TMP)))
            A.I('s_add_u32 %s, %s, %d' % (s(S_TMP), s(S_TMP), KVA_OFF))
            A.I('s_mul_i32 %s, %s, 43' % (s(S_T3), s(S_TB)))
            A.I('s_lshr_b32 %s, %s, 7' % (s(S_T3), s(S_T3)))
            A.I('s_mul_i32 %s, %s, 3' % (s(S_T3), s(S_T3)))
            A.I('s_sub_u32 %s, %s, %s' % (s(S_T3), s(S_TB), s(S_T3)))
            A.I('s_mul_i32 %s, %s, %d' % (s(S_T3), s(S_T3), KVA_REP))
            A.I('s_add_u32 %s, %s, %s' % (s(S_TMP), s(S_TMP), s(S_T3)))
            A.I('s_lshl_b32 %s, %s, 12' % (s(S_T3), s(S_TG)))
            A.I('s_add_u32 %s, %s, %d' % (s(S_T3), s(S_T3), A_VS + 128 * 160))
            A.I('v_mul_u32_u24 %s, 640, %s' % (v(AD), v(V_G)))
            A.I('v_lshl_add_u32 %s, %s, 2, %s' % (v(AD), v(V_T), v(AD)))
            A.I('v_add_u32 %s, %s, %s' % (v(AD), s(S_T3), v(AD)))
            for dt in range(2):
                for i in range(3):
                    for r_ in range(4):
                        lo, hi_ = 0xffffffff, 0xffffffff
                        if dt == 1:
                            hi_ = 0
                            lo = 0xffffffff if r_ == 0 else 0xffff
                        if i == 2:
                            lo &= 0x00ff00ff
                            hi_ &= 0x00ff00ff
                        A.I('s_mov_b32 exec_lo, 0x%x' % lo)
                        A.I('s_mov_b32 exec_hi, 0x%x' % hi_)
                        A.I('ds_write_b32 %s, %s offset:%d' % (v(AD), v(KD + (dt * 3 + i) * 4 + r_), (16 * dt + r_) * 160 + i * 64), lg='rp')
            A.I('s_mov_b64 exec, -1')
            A.I('v_lshlrev_b32 %s, 2, %s' % (v(AD + 1), v(V_LANE)))
            A.I('v_add_u32 %s, %s, %s' % (v(AD), s(S_T3), v(AD + 1)))
            for q in range(14):
                A.I('ds_read_b32 %s, %s offset:%d' % (v(104 + q), v(AD), q * 256), lg=('rq', q))
            for q in range(14):
                A.wait(lg=('rq', q))
                if q == 13:
                    A.I('s_mov_b64 exec, 0xff')
                A.I('buffer_atomic_add_f32 %s, %s, %s, %s offen offset:%d' % (v(104 + q), v(AD + 1), s(SRD_WS, 4), s(S_TMP), q * 256), vm='kvp')
            A.I('s_mov_b64 exec, -1')
            A.stamp(9)
        else:
            A.wait(lg='vs')
            A.I('v_mov_b32 %s, %d' % (v(AD + 6), A_FLAG))
            A.I('v_mov_b32 %s, 1' % v(AD + 7))
            A.I('s_mov_b64 exec, 1')
            A.I('ds_add_u32 %s, %s' % (v(AD + 6), v(AD + 7)), lg='fl')
            A.I('s_mov_b64 exec, -1')
            A.I('s_lshl_b32 %s, %s, 3' % (s(S_TMP), s(S_TB)))
            A.I('s_lshl_b32 %s, %s, 1' % (s(S_T3), s(S_TG)))
            A.I('s_add_u32 %s, %s, %s' % (s(S_TMP), s(S_TMP), s(S_T3)))
            A.I('s_lshl_b32 %s, %s, 3' % (s(S_TMP), s(S_TMP)))
            A.I('s_add_u32 %s, %s, %s' % (s(S_TMP), s(S_TMP), s(S_FB)))
            A.I('s_mul_i32 %s, %s, 5120' % (s(S_TMP), s(S_TMP)))
            A.I('s_add_u32 %s, %s, %d' % (s(S_TMP), s(S_TMP), PHIQ_OFF))
            A.I('s_add_u32 %s, %s, 4096' % (s(S_T3), s(S_TMP)))
            A.I('v_and_b32 %s, 1, %s' % (v(AD + 2), v(V_G)))
            A.I('v_mul_u32_u24 %s, %d, %s' % (v(AD + 2), 8 * 5120, v(AD + 2)))
            A.I('v_lshl_add_u32 %s, %s, 4, %s' % (v(AD + 2), v(V_T), v(AD + 2)))
            A.I('v_lshl_add_u32 %s, %s, 9, %s' % (v(AD + 3), v(V_HI), v(AD + 2)))
            A.I('v_lshl_add_u32 %s, %s, 11, %s' % (v(AD + 2), v(V_HI), v(AD + 2)))
            def syncB():
                calls[0] += 1
                pass
            for a_ in range(2):
                softmax2(A, P + 20 * a_, EP, EM, X, SCL, syncB)
                for j in range(4):
                    A.I('buffer_store_dwordx4 %s, %s, %s, %s offen offset:%d' % (v(P + 20 * a_ + 4 * j, 4), v(AD + 2), s(SRD_WS, 4), s(S_TMP), a_ * 1024 + j * 256) + ' sc1', vm='st')
                A.I('buffer_store_dwordx4 %s, %s, %s, %s offen offset:%d' % (v(P + 20 * a_ + 16, 4), v(AD + 3), s(SRD_WS, 4), s(S_T3), a_ * 256) + ' sc1', vm='st')
        A.stamp(15)
        A.stamp_flush(18, S_W, 8)
        A.I('s_endpgm')
```

```python
from asmlib import *
from k1 import ACT_OFF, PHIQ_OFF, KVA_OFF, KVA_REP, NREP, WR_OFF, WR_CB, O_OFF, CNT_OFF, WS_END, LOG2E, BIG, srd, divmod_const

SRD_X, SRD_DBG, SRD_OUT, SRD_WS = 20, 24, 32, 36
S_RB, S_CB, S_W, S_TMP, S_T2, S_T3, S_LOG2E, S_M0B = 40, 41, 42, 43, 44, 45, 46, 47
S_B = 48
S_WR = 57
S_H = 58
S_WO, S_BO, S_N0 = 59, 60, 61
V_LANE, V_T, V_G = 1, 2, 3
V_L16 = 4
V_RB = 10
V_L4 = 5
V_TMP = 11
SLOT = 5120
REG = 20480
K2_LDS = 8 * REG
NSLOT = 4
ACC, WIN, BB = 24, 104, 144
NB = 7


def gen_k2(A):
    A.label('k2_kernel')
    A.I('s_cmp_ge_u32 s2, 256')
    A.I('s_cbranch_scc1 L_k2_end')
    A.I('s_load_dwordx2 s[4:5], s[0:1], 0')
    A.I('s_load_dwordx4 s[8:11], s[0:1], 64')
    A.I('s_load_dwordx2 s[12:13], s[0:1], 80')
    import os
    m2 = int(os.environ.get('MAP2', '1'))
    if m2 == 0:
        A.I('s_and_b32 %s, s2, 7' % s(S_RB))
        A.I('s_lshl_b32 %s, %s, 2' % (s(S_RB), s(S_RB)))
        A.I('s_bfe_u32 %s, s2, 0x20003' % s(S_TMP))
        A.I('s_add_u32 %s, %s, %s' % (s(S_RB), s(S_RB), s(S_TMP)))
        A.I('s_lshr_b32 %s, s2, 5' % s(S_CB))
    elif m2 == 1:
        A.I('s_bfe_u32 %s, s2, 0x20001' % s(S_RB))
        A.I('s_lshl_b32 %s, %s, 3' % (s(S_RB), s(S_RB)))
        A.I('s_bfe_u32 %s, s2, 0x30003' % s(S_TMP))
        A.I('s_add_u32 %s, %s, %s' % (s(S_RB), s(S_RB), s(S_TMP)))
        A.I('s_and_b32 %s, s2, 1' % s(S_CB))
        A.I('s_lshl_b32 %s, %s, 2' % (s(S_CB), s(S_CB)))
        A.I('s_lshr_b32 %s, s2, 6' % s(S_TMP))
        A.I('s_add_u32 %s, %s, %s' % (s(S_CB), s(S_CB), s(S_TMP)))
    elif m2 == 2:
        A.I('s_lshr_b32 %s, s2, 3' % s(S_RB))
        A.I('s_and_b32 %s, s2, 7' % s(S_CB))
    A.I('v_and_b32 %s, 63, v0' % v(V_LANE))
    A.I('v_and_b32 %s, 15, v0' % v(V_T))
    A.I('v_bfe_u32 %s, v0, 4, 2' % v(V_G))
    A.I('v_lshrrev_b32 %s, 6, v0' % v(V_TMP))
    A.I('v_readfirstlane_b32 %s, %s' % (s(S_W), v(V_TMP)))
    A.I('s_mov_b32 %s, 0x%x' % (s(S_LOG2E), LOG2E))
    A.I('v_lshlrev_b32 %s, 4, %s' % (v(V_L16), v(V_LANE)))
    A.I('s_mul_i32 %s, %s, %d' % (s(S_M0B), s(S_W), REG))
    A.I('s_mov_b32 %s, %s' % (s(S_T2), s(S_W)))
    A.I('s_cmp_eq_u32 %s, 6' % s(S_W))
    A.I('s_cselect_b32 %s, 54, %s' % (s(S_T2), s(S_T2)))
    A.I('s_cmp_eq_u32 %s, 7' % s(S_W))
    A.I('s_cselect_b32 %s, 64, %s' % (s(S_T2), s(S_T2)))
    A.I('s_mul_i32 %s, %s, %d' % (s(S_WR), s(S_CB), WR_CB))
    A.I('s_mul_i32 %s, %s, %d' % (s(S_TMP), s(S_T2), SLOT))
    A.I('s_add_u32 %s, %s, %s' % (s(S_WR), s(S_WR), s(S_TMP)))
    A.I('s_add_u32 %s, %s, %d' % (s(S_WR), s(S_WR), WR_OFF))
    t = [V_TMP + i for i in range(10)]
    A.I('v_lshrrev_b32 %s, 2, %s' % (v(t[0]), v(V_LANE)))
    A.I('v_mul_u32_u24 %s, 160, %s' % (v(t[0]), v(t[0])))
    A.I('v_and_b32 %s, 3, %s' % (v(t[1]), v(V_LANE)))
    A.I('v_lshl_add_u32 %s, %s, 3, %s' % (v(t[0]), v(t[1]), v(t[0])))
    A.I('v_add_u32 %s, %s, %s' % (v(V_RB), s(S_M0B), v(t[0])))
    A.I('s_waitcnt lgkmcnt(0)')
    if A.stamps_on:
        for i in range(16):
            A.I('s_mov_b32 s%d, 0' % (64 + i))
    A.stamp(0)
    srd(A, SRD_WS, 12, WS_END)

    stride = [6]

    nstage = [9]

    def rot_init():
        if os.environ.get('ROT2', '0') == '0':
            A.I('s_mov_b32 %s, 0' % s(S_WO))
            A.I('s_mov_b32 %s, 0' % s(S_BO))
            return
        A.I('s_and_b32 %s, %s, 7' % (s(S_N0), s(S_RB)))
        A.I('s_and_b32 %s, %s, 3' % (s(S_TMP), s(S_CB)))
        A.I('s_lshl_b32 %s, %s, 1' % (s(S_TMP), s(S_TMP)))
        A.I('s_add_u32 %s, %s, %s' % (s(S_N0), s(S_N0), s(S_TMP)))
        A.I('s_cmp_ge_u32 %s, %d' % (s(S_N0), nstage[0]))
        A.I('s_cselect_b32 %s, %d, 0' % (s(S_TMP), nstage[0]))
        A.I('s_sub_u32 %s, %s, %s' % (s(S_N0), s(S_N0), s(S_TMP)))
        A.I('s_mul_i32 %s, %s, %d' % (s(S_WO), s(S_N0), SLOT * stride[0]))
        A.I('s_mul_i32 %s, %s, %d' % (s(S_BO), s(S_N0), 1024 * stride[0]))

    def rot_step(reg, unit):
        A.I('s_add_u32 %s, %s, %d' % (s(reg), s(reg), unit * stride[0]))
        A.I('s_cmp_ge_u32 %s, %d' % (s(reg), unit * stride[0] * nstage[0]))
        A.I('s_cselect_b32 %s, 0, %s' % (s(reg), s(reg)))

    def stage_off(p, unit, dst, base):
        if stride[0] == 1:
            A.I('s_add_u32 %s, %s, %d' % (s(dst), s(base), p * unit))
        elif p < 7:
            A.I('s_add_u32 %s, %s, %d' % (s(dst), s(base), p * 6 * unit))
        else:
            A.I('s_mul_i32 %s, %s, %d' % (s(dst), s(S_N0), unit))
            A.I('s_add_u32 %s, %s, %s' % (s(dst), s(dst), s(base)))
            A.I('s_add_u32 %s, %s, %d' % (s(dst), s(dst), (42 + 4 * (p - 7)) * unit))

    def dma_w(p):
        slot = p % NSLOT
        stage_off(p, SLOT, S_TMP, S_WR)
        A.I('s_add_u32 m0, %s, %d' % (s(S_M0B), slot * SLOT))
        for q in range(4):
            A.I('buffer_load_dwordx4 %s, %s, %s offen offset:%d lds' % (v(V_L16), s(SRD_WS, 4), s(S_TMP), q * 1024), vm=('w', p))
        A.I('s_add_u32 %s, %s, 4096' % (s(S_TMP), s(S_TMP)))
        A.I('s_add_u32 m0, %s, %d' % (s(S_M0B), slot * SLOT + 4096))
        A.I('buffer_load_dwordx4 %s, %s, %s offen lds' % (v(V_L16), s(SRD_WS, 4), s(S_TMP)), vm=('w', p))

    def rd_frags(p):
        A.wait(vm=('w', p))
        off = (p % NSLOT) * SLOT
        for ft in range(5):
            w = WIN + ((p % 2) * 5 + ft) * 4
            A.I('ds_read_b64_tr_b16 %s, %s offset:%d' % (v(w, 2), v(V_RB), off + ft * 32), lg=('w', p, ft))
            A.I('ds_read_b64_tr_b16 %s, %s offset:%d' % (v(w + 2, 2), v(V_RB), off + 16 * 160 + ft * 32), lg=('w', p, ft))

    def ld_b(n, sc=''):
        b = BB + (n % NB) * 16
        for i in range(4):
            stage_off(n, 1024, S_TMP, S_B + i)
            if sc and n % 5 == 4:
                for j in range(4):
                    A.I('buffer_load_dword %s, %s, %s, %s offen offset:%d%s' % (v(b + 4 * i + j), v(V_L4), s(SRD_WS, 4), s(S_TMP), j * 256, sc), vm=('b', n))
            else:
                A.I('buffer_load_dwordx4 %s, %s, %s, %s offen%s' % (v(b + 4 * i, 4), v(V_L16), s(SRD_WS, 4), s(S_TMP), sc), vm=('b', n))

    def gemm(n, nb0, nw0, sc='', prios=None):
        nb, nw = nb0, nw0
        rd_frags(0)
        for p in range(n):
            if prios and p in prios:
                A.I('s_setprio %d' % prios[p])
            if p in (3, 6):
                A.stamp({3: 2, 6: 3}[p])
            if p + 1 < n:
                rd_frags(p + 1)
            la = int(os.environ.get('LA', '3')) if not sc else 3
            while nw < n and nw <= p + la and (nw < NSLOT or nw - NSLOT < p):
                dma_w(nw)
                nw += 1
            while nb < n and nb <= p + la and nb <= p + NB - 1:
                ld_b(nb, sc)
                nb += 1
            A.wait(vm=('b', p))
            b = BB + (p % NB) * 16
            for ft in range(5):
                A.wait(lg=('w', p, ft))
                w = WIN + ((p % 2) * 5 + ft) * 4
                for i in range(4):
                    d = v(ACC + (ft * 4 + i) * 4, 4)
                    A.I('v_mfma_f32_16x16x32_bf16 %s, %s, %s, %s' % (d, v(w, 4), v(b + 4 * i, 4), d if p else '0'))

    A.I('s_cmp_ge_u32 %s, 6' % s(S_W))
    A.I('s_cbranch_scc1 L_k2_att')
    sn = A.snap()
    A.I('s_setprio 2')
    A.I('s_cmp_ge_u32 %s, 4' % s(S_W))
    A.I('s_cselect_b32 %s, -2, 0' % s(S_N0))
    dma_w(0)
    for i in range(4):
        A.I('s_lshl_b32 %s, %s, 2' % (s(S_TMP), s(S_RB)))
        A.I('s_add_u32 %s, %s, %d' % (s(S_TMP), s(S_TMP), i))
        A.I('s_mul_i32 %s, %s, 54' % (s(S_TMP), s(S_TMP)))
        A.I('s_add_u32 %s, %s, %s' % (s(S_TMP), s(S_TMP), s(S_T2)))
        A.I('s_lshl_b32 %s, %s, 10' % (s(S_B + i), s(S_TMP)))
    ld_b(0)
    dma_w(1)
    ld_b(1)
    A.stamp(1)
    A.I('s_and_b32 %s, %s, 6' % (s(S_TMP), s(S_W)))
    A.I('s_cmp_eq_u32 %s, 2' % s(S_TMP))
    A.I('s_cbranch_scc1 L_k2_f7')
    sn7 = A.snap()
    gemm(10, 2, 2, prios={2: 1, 5: 0})
    A.I('s_branch L_k2_fin')
    A.restore(sn7)
    A.label('L_k2_f7')
    gemm(7, 2, 2, prios={3: 1})
    A.I('s_branch L_k2_fin')
    endF = A.snap()

    A.restore(sn)
    stride[0] = 1
    nstage[0] = 10
    A.label('L_k2_att')
    A.I('s_setprio 3')
    A.I('s_sub_u32 %s, %s, 6' % (s(S_H), s(S_W)))
    A.I('s_lshl_b32 %s, %s, 1' % (s(S_H), s(S_H)))
    PA, PB, KR, KVF, DT = 24, 56, 72, 136, 168
    for i in range(4):
        A.I('s_lshl_b32 %s, %s, 2' % (s(S_TMP), s(S_RB)))
        A.I('s_add_u32 %s, %s, %d' % (s(S_TMP), s(S_TMP), i))
        A.I('s_lshl_b32 %s, %s, 3' % (s(S_TMP), s(S_TMP)))
        A.I('s_add_u32 %s, %s, %s' % (s(S_TMP), s(S_TMP), s(S_CB)))
        A.I('s_mul_i32 %s, %s, 5120' % (s(S_TMP), s(S_TMP)))
        A.I('s_add_u32 %s, %s, %d' % (s(S_TMP), s(S_TMP), PHIQ_OFF))
        A.I('s_add_u32 %s, %s, 4096' % (s(S_T3), s(S_TMP)))
        A.I('buffer_load_dwordx4 %s, %s, %s, %s offen' % (v(PB + 4 * i, 4), v(V_L16), s(SRD_WS, 4), s(S_T3)), vm='ph')
        A.I('s_lshl_b32 %s, %s, 10' % (s(S_T3), s(S_H)))
        A.I('s_add_u32 %s, %s, %s' % (s(S_TMP), s(S_TMP), s(S_T3)))
        for e in range(2):
            A.I('buffer_load_dwordx4 %s, %s, %s, %s offen offset:%d' % (v(PA + 16 * e + 4 * i, 4), v(V_L16), s(SRD_WS, 4), s(S_TMP), e * 1024), vm='ph')
    KL = 0
    A.I('s_lshl_b32 %s, %s, 2' % (s(S_T3), s(S_CB)))
    A.I('s_add_u32 %s, %s, %s' % (s(S_T3), s(S_T3), s(S_H)))
    A.I('s_mul_i32 %s, %s, 3360' % (s(S_T3), s(S_T3)))
    for rp in range(NREP):
        A.I('s_add_u32 %s, %s, %d' % (s(S_TMP), s(S_T3), KVA_OFF + rp * KVA_REP))
        for q in range(7):
            if q % 4 == 0:
                A.I('s_add_u32 m0, %s, %d' % (s(S_M0B), rp * 6720 + q * 1024))
                if q:
                    A.I('s_add_u32 %s, %s, 4096' % (s(S_TMP), s(S_TMP)))
            if q == 6:
                A.I('s_mov_b32 exec_hi, 0xf')
            A.I('buffer_load_dwordx4 %s, %s, %s offen offset:%d lds' % (v(V_L16), s(SRD_WS, 4), s(S_TMP), (q % 4) * 1024), vm='kv')
        A.I('s_mov_b64 exec, -1')
    A.I('v_mul_u32_u24 %s, 160, %s' % (v(t[0]), v(V_T)))
    A.I('v_lshrrev_b32 %s, 2, %s' % (v(t[1]), v(V_T)))
    A.I('v_add_u32 %s, 16, %s' % (v(t[1]), v(t[1])))
    A.I('v_and_b32 %s, 3, %s' % (v(t[2]), v(V_T)))
    A.I('v_cmp_eq_u32 vcc, 0, %s' % v(t[2]))
    A.I('v_mov_b32 %s, 20' % v(t[2]))
    A.I('v_cndmask_b32 %s, %s, %s, vcc' % (v(t[1]), v(t[2]), v(t[1])))
    A.I('v_mul_u32_u24 %s, 160, %s' % (v(t[1]), v(t[1])))
    A.I('v_add_u32 %s, %s, %s' % (v(t[0]), s(S_M0B), v(t[0])))
    A.I('v_add_u32 %s, %s, %s' % (v(t[1]), s(S_M0B), v(t[1])))
    A.I('v_lshl_add_u32 %s, %s, 5, %s' % (v(t[2]), v(V_G), v(t[0])))
    A.I('v_lshl_add_u32 %s, %s, 5, %s' % (v(t[3]), v(V_G), v(t[1])))
    A.stamp(1)
    A.wait(vm='kv')
    for rp in range(NREP):
        dst = KR if rp == 0 else DT
        for e in range(2):
            for k, (areg, off) in enumerate(((t[2], 0), (t[0], 128), (t[3], 0), (t[1], 128))):
                for q in range(2):
                    A.I('ds_read_b128 %s, %s offset:%d' % (v(dst + 32 * e + 8 * k + 4 * q, 4), v(areg), rp * 6720 + e * 3360 + off + 16 * q), lg='kv')
        A.wait(lg='kv')
        if rp:
            for i in range(0, 64, 2):
                A.I('v_pk_add_f32 %s, %s, %s' % (v(KR + i, 2), v(KR + i, 2), v(DT + i, 2)))
    for e in range(2):
        for k in range(4):
            for q in range(4):
                A.I('v_cvt_pk_bf16_f32 %s, %s, %s' % (v(KVF + 16 * e + 4 * k + q), v(KR + 32 * e + 8 * k + 2 * q), v(KR + 32 * e + 8 * k + 2 * q + 1)))
    for e in range(2):
        A.I('s_add_u32 %s, %s, %d' % (s(S_T3), s(S_H), e))
        A.I('v_cmp_eq_u32 vcc, %s, %s' % (s(S_T3), v(V_G)))
        for k in (1, 3):
            for q in range(4):
                A.I('v_cndmask_b32 %s, 0, %s, vcc' % (v(KVF + 16 * e + 4 * k + q), v(KVF + 16 * e + 4 * k + q)))
    A.wait(vm='ph')
    for e in range(2):
        for i in range(4):
            for tl in range(2):
                d = v(DT + 32 * e + i * 8 + tl * 4, 4)
                A.I('v_mfma_f32_16x16x32_bf16 %s, %s, %s, 0' % (d, v(KVF + 16 * e + 8 * tl, 4), v(PA + 16 * e + 4 * i, 4)))
        for i in range(4):
            for tl in range(2):
                d = v(DT + 32 * e + i * 8 + tl * 4, 4)
                A.I('v_mfma_f32_16x16x32_bf16 %s, %s, %s, %s' % (d, v(KVF + 16 * e + 8 * tl + 4, 4), v(PB + 4 * i, 4), d))
    A.I('s_lshl_b32 %s, %s, 2' % (s(S_TMP), s(S_CB)))
    A.I('s_add_u32 %s, %s, %s' % (s(S_TMP), s(S_TMP), s(S_H)))
    A.I('s_lshr_b32 %s, %s, 3' % (s(S_T2), s(S_TMP)))
    A.I('s_mul_i32 %s, %s, 5' % (s(S_T2), s(S_T2)))
    A.I('s_bfe_u32 %s, %s, 0x20001' % (s(S_TMP), s(S_TMP)))
    A.I('s_add_u32 %s, %s, %s' % (s(S_T3), s(S_T2), s(S_TMP)))
    A.I('s_lshl_b32 %s, %s, 10' % (s(S_T3), s(S_T3)))
    A.I('s_add_u32 %s, %s, 4' % (s(S_T2), s(S_T2)))
    A.I('s_lshl_b32 %s, %s, 10' % (s(S_T2), s(S_T2)))
    A.I('s_lshl_b32 %s, %s, 8' % (s(S_TMP), s(S_TMP)))
    A.I('s_add_u32 %s, %s, %s' % (s(S_T2), s(S_T2), s(S_TMP)))
    A.I('v_lshlrev_b32 %s, 2, %s' % (v(V_L4), v(V_LANE)))
    A.I('s_mul_i32 %s, %s, %d' % (s(S_TMP), s(S_RB), 4 * 20 * 1024))
    A.I('s_add_u32 %s, %s, %d' % (s(S_TMP), s(S_TMP), O_OFF))
    A.I('s_add_u32 %s, %s, %s' % (s(S_T3), s(S_T3), s(S_TMP)))
    A.I('s_add_u32 %s, %s, %s' % (s(S_T2), s(S_T2), s(S_TMP)))
    for e in range(2):
        for i in range(4):
            d = DT + 32 * e + i * 8
            A.I('v_add_f32 %s, 0x358637bd, %s' % (v(d + 5), v(d + 5)))
        for i in range(4):
            d = DT + 32 * e + i * 8
            A.I('v_rcp_f32 %s, %s' % (v(d + 5), v(d + 5)))
        for i in range(4):
            d = DT + 32 * e + i * 8
            for r_ in range(5):
                A.I('v_mul_f32 %s, %s, %s' % (v(d + r_), v(d + r_), v(d + 5)))
    OQ = 72
    for i in range(4):
        for e in range(2):
            d = DT + 32 * e + i * 8
            A.I('v_cvt_pk_bf16_f32 %s, %s, %s' % (v(OQ + 8 * i + 2 * e), v(d), v(d + 1)))
            A.I('v_cvt_pk_bf16_f32 %s, %s, %s' % (v(OQ + 8 * i + 2 * e + 1), v(d + 2), v(d + 3)))
        A.I('v_cvt_pk_bf16_f32 %s, %s, %s' % (v(OQ + 8 * i + 4), v(DT + i * 8 + 4), v(DT + 32 + i * 8 + 4)))
        A.I('buffer_store_dwordx4 %s, %s, %s, %s offen sc1' % (v(OQ + 8 * i, 4), v(V_L16), s(SRD_WS, 4), s(S_T3)), vm='ost')
        A.I('buffer_store_dword %s, %s, %s, %s offen sc1' % (v(OQ + 8 * i + 4), v(V_L4), s(SRD_WS, 4), s(S_T2)), vm='ost')
        A.I('s_add_u32 %s, %s, %d' % (s(S_T3), s(S_T3), 20 * 1024))
        A.I('s_add_u32 %s, %s, %d' % (s(S_T2), s(S_T2), 20 * 1024))
    for i in range(4):
        A.I('s_lshl_b32 %s, %s, 2' % (s(S_TMP), s(S_RB)))
        A.I('s_add_u32 %s, %s, %d' % (s(S_TMP), s(S_TMP), i))
        A.I('s_mul_i32 %s, %s, 20' % (s(S_TMP), s(S_TMP)))
        A.I('s_mul_i32 %s, %s, 5' % (s(S_T3), s(S_H)))
        A.I('s_add_u32 %s, %s, %s' % (s(S_TMP), s(S_TMP), s(S_T3)))
        A.I('s_lshl_b32 %s, %s, 10' % (s(S_TMP), s(S_TMP)))
        A.I('s_add_u32 %s, %s, %d' % (s(S_B + i), s(S_TMP), O_OFF))
    A.I('v_mov_b32 %s, 1' % v(t[0]))
    A.I('s_lshl_b32 %s, %s, 8' % (s(S_TMP), s(S_RB)))
    A.I('s_add_u32 %s, %s, %d' % (s(S_TMP), s(S_TMP), CNT_OFF))
    A.I('v_mov_b32 %s, %s' % (v(t[1]), s(S_TMP)))
    A.wait(vm='ost')
    A.I('s_mov_b64 exec, 1')
    A.I('buffer_atomic_add %s, %s, %s, 0 offen sc1' % (v(t[0]), v(t[1]), s(SRD_WS, 4)), vm='at')
    A.I('s_mov_b64 exec, -1')
    A.stamp(4)
    for p_ in range(4):
        dma_w(p_)
    A.I('s_setprio 0')
    A.label('L_k2_poll')
    A.I('s_sleep 4')
    A.I('buffer_load_dword %s, %s, %s, 0 offen sc1' % (v(t[0]), v(t[1]), s(SRD_WS, 4)), vm='poll')
    A.wait_all(vm=True)
    A.I('v_readfirstlane_b32 %s, %s' % (s(S_TMP), v(t[0])))
    A.I('s_cmp_ge_u32 %s, 16' % s(S_TMP))
    A.I('s_cbranch_scc0 L_k2_poll')
    A.I('s_setprio 3')
    A.stamp(5)
    A.label('L_k2_g')
    for n in range(4):
        ld_b(n, ' sc1')
    gemm(10, 4, 4, ' sc1', prios={4: 2, 7: 1})

    A.label('L_k2_fin')
    A.flush_hazards()
    A.wait_all(vm=True, lg=True)
    A.stamp(8)
    A.I('v_add_u32 %s, %s, %s' % (v(V_TMP + 1), s(S_M0B), v(V_L16)))
    for i in range(4):
        for k in range(5):
            A.I('ds_write_b128 %s, %s offset:%d' % (v(V_TMP + 1), v(ACC + (k * 4 + i) * 4, 4), i * 5120 + k * 1024), lg='ex')
    srd(A, SRD_X, 4, 2048 * 640 * 2)
    srd(A, SRD_OUT, 8, 2048 * 640 * 2)
    A.I('s_and_b32 %s, %s, 3' % (s(S_T2), s(S_W)))
    A.I('s_lshr_b32 %s, %s, 2' % (s(S_H), s(S_W)))
    A.I('s_mul_i32 %s, %s, 3' % (s(S_H), s(S_H)))
    A.I('s_lshl_b32 %s, %s, 6' % (s(S_TMP), s(S_RB)))
    A.I('s_lshl_b32 %s, %s, 4' % (s(S_T3), s(S_T2)))
    A.I('s_add_u32 %s, %s, %s' % (s(S_TMP), s(S_TMP), s(S_T3)))
    A.I('s_mul_i32 %s, %s, 1280' % (s(S_TMP), s(S_TMP)))
    A.I('s_mul_i32 %s, %s, 160' % (s(S_T3), s(S_CB)))
    A.I('s_add_u32 %s, %s, %s' % (s(S_T3), s(S_TMP), s(S_T3)))
    A.I('s_lshl_b32 %s, %s, 5' % (s(S_TMP), s(S_H)))
    A.I('s_add_u32 %s, %s, %s' % (s(S_T3), s(S_T3), s(S_TMP)))
    VO = V_TMP
    A.I('v_mul_u32_u24 %s, 1280, %s' % (v(VO), v(V_T)))
    A.I('v_lshl_add_u32 %s, %s, 3, %s' % (v(VO), v(V_G), v(VO)))
    A.I('v_mov_b32 %s, 0x%x' % (v(V_TMP + 3), BIG))
    A.I('s_cmp_lt_u32 %s, 4' % s(S_W))
    A.I('s_cselect_b64 vcc, -1, 0')
    A.I('v_cndmask_b32 %s, %s, %s, vcc' % (v(V_TMP + 3), v(V_TMP + 3), v(VO)))
    XR = 104
    for u in range(3):
        A.I('buffer_load_dwordx2 %s, %s, %s, %s offen offset:%d' % (v(XR + 2 * u, 2), v(VO if u < 2 else V_TMP + 3), s(SRD_X, 4), s(S_T3), u * 32), vm='x')
    A.I('s_mul_i32 %s, %s, 5120' % (s(S_TMP), s(S_T2)))
    A.I('s_lshl_b32 %s, %s, 10' % (s(S_H), s(S_H)))
    A.I('s_add_u32 %s, %s, %s' % (s(S_TMP), s(S_TMP), s(S_H)))
    A.I('v_add_u32 %s, %s, %s' % (v(V_TMP + 2), s(S_TMP), v(V_L16)))
    A.I('v_add_u32 %s, %d, %s' % (v(V_TMP + 4), 3 * REG, v(V_TMP + 2)))
    A.I('v_add_u32 %s, %d, %s' % (v(V_TMP + 5), 6 * REG, v(V_TMP + 2)))
    A.wait(lg='ex')
    A.stamp(9)
    A.I('s_barrier')
    R = 112
    for u in range(3):
        for w_ in range(8):
            A.I('ds_read_b128 %s, %s offset:%d' % (v(R + (u * 8 + w_) * 4, 4), v((V_TMP + 2, V_TMP + 4, V_TMP + 5)[w_ // 3]), (w_ % 3) * REG + u * 1024), lg=('r', u))
    A.wait(vm='x')
    for u in range(3):
        A.wait(lg=('r', u))
        g_ = R + u * 32
        for r_ in range(4):
            A.I('v_add_f32 %s, %s, %s' % (v(g_ + r_), v(g_ + r_), v(g_ + 4 + r_)))
            A.I('v_add_f32 %s, %s, %s' % (v(g_ + 8 + r_), v(g_ + 8 + r_), v(g_ + 12 + r_)))
            A.I('v_add_f32 %s, %s, %s' % (v(g_ + 16 + r_), v(g_ + 16 + r_), v(g_ + 20 + r_)))
            A.I('v_add_f32 %s, %s, %s' % (v(g_ + 24 + r_), v(g_ + 24 + r_), v(g_ + 28 + r_)))
        for r_ in range(4):
            A.I('v_add3_f32 %s, %s, %s, %s' % (v(g_ + r_), v(g_ + r_), v(g_ + 8 + r_), v(g_ + 16 + r_)) if False else 'v_add_f32 %s, %s, %s' % (v(g_ + r_), v(g_ + r_), v(g_ + 8 + r_)))
        for r_ in range(4):
            A.I('v_add_f32 %s, %s, %s' % (v(g_ + r_), v(g_ + r_), v(g_ + 16 + r_)))
        e = g_ + 4
        for r_ in range(4):
            A.I('v_mul_f32 %s, %s, %s' % (v(e + r_), s(S_LOG2E), v(g_ + r_)))
        for r_ in range(4):
            A.I('v_exp_f32 %s, -%s' % (v(e + r_), v(e + r_)))
        for r_ in range(4):
            A.I('v_add_f32 %s, 1.0, %s' % (v(e + r_), v(e + r_)))
        for r_ in range(4):
            A.I('v_rcp_f32 %s, %s' % (v(e + r_), v(e + r_)))
        for r_ in range(4):
            A.I('v_mul_f32 %s, %s, %s' % (v(e + r_), v(e + r_), v(g_ + r_)))
        for h in range(2):
            A.I('v_lshlrev_b32 %s, 16, %s' % (v(e + 4 + 2 * h), v(XR + 2 * u + h)))
            A.I('v_and_b32 %s, 0xffff0000, %s' % (v(e + 5 + 2 * h), v(XR + 2 * u + h)))
        for r_ in range(4):
            A.I('v_fma_f32 %s, %s, %s, %s' % (v(e + r_), v(e + r_), v(g_ + 24 + r_), v(e + 4 + r_)))
        A.I('v_cvt_pk_bf16_f32 %s, %s, %s' % (v(e), v(e), v(e + 1)))
        A.I('v_cvt_pk_bf16_f32 %s, %s, %s' % (v(e + 1), v(e + 2), v(e + 3)))
        A.I('buffer_store_dwordx2 %s, %s, %s, %s offen offset:%d' % (v(e, 2), v(VO if u < 2 else V_TMP + 3), s(SRD_OUT, 4), s(S_T3), u * 32), vm='st')
    A.stamp(15)
    A.STAMP_OFF = (32 << 20) + (1 << 19)
    A.stamp_flush(12, S_W, 8)
    A.label('L_k2_end')
    A.I('s_waitcnt vmcnt(0)')
    A.I('s_endpgm')
```

```python
import re

TRANS = ('v_exp_f32', 'v_log_f32', 'v_rcp_f32', 'v_rsq_f32', 'v_sqrt_f32', 'v_sin_f32', 'v_cos_f32')
REG_RE = re.compile(r'^(-?)(\|?)(abs\()?([vas])(\d+|\[(\d+):(\d+)\])\)?(\|?)$')


def regs_of(op):
    op = op.strip()
    if op in ('vcc',):
        return [('s', 106), ('s', 107)]
    if op in ('exec',):
        return [('s', 126), ('s', 127)]
    if op == 'm0':
        return [('s', 124)]
    if op == 'vcc_lo':
        return [('s', 106)]
    if op == 'exec_lo':
        return [('s', 126)]
    if op == 'exec_hi':
        return [('s', 127)]
    m = REG_RE.match(op)
    if not m:
        return []
    f = m.group(4)
    if m.group(6) is not None:
        return [(f, i) for i in range(int(m.group(6)), int(m.group(7)) + 1)]
    return [(f, int(m.group(5)))]


def split_ops(s):
    ops, depth, cur = [], 0, ''
    for ch in s:
        if ch in '[(':
            depth += 1
        if ch in '])':
            depth -= 1
        if ch == ',' and depth == 0:
            ops.append(cur.strip())
            cur = ''
        else:
            cur += ch
    if cur.strip():
        ops.append(cur.strip())
    res = []
    for o in ops:
        res.append(o.split(' ')[0])
    return res


class Ins:
    __slots__ = ('slot', 'kind', 'mn', 'reads', 'writes', 'passes', 'srcc', 'srcab', 'wide')


class Asm:
    def __init__(self):
        self.out = []
        self.hist = []
        self.slot = 0
        self.vmq = []
        self.lgq = []
        self.nins = 0
        self.maxv = -1
        self.maxa = -1
        self.maxs = -1

    def snap(self):
        return (list(self.hist), self.slot, list(self.vmq), list(self.lgq))

    def restore(self, s):
        self.hist, self.slot, self.vmq, self.lgq = list(s[0]), s[1], list(s[2]), list(s[3])

    def raw(self, text):
        self.out.append(text)

    def label(self, name):
        if self.deferring is not None:
            return self._rec(self.label, name)
        self.out.append(name + ':')

    def comment(self, t):
        self.out.append('  ; ' + t)

    def flush_hazards(self):
        self.nop(12)

    def nop(self, n):
        if self.deferring is not None:
            return self._rec(self.nop, n)
        while n > 0:
            k = min(n, 16)
            self.out.append('  s_nop %d' % (k - 1))
            self.slot += k
            self.nins += 1
            n -= k

    def classify(self, text):
        t = text.strip()
        sp = t.find(' ')
        mn = t if sp < 0 else t[:sp]
        rest = '' if sp < 0 else t[sp + 1:]
        ops = split_ops(rest)
        i = Ins()
        i.mn = mn
        i.reads, i.writes, i.passes, i.srcc, i.srcab, i.wide = [], [], 0, [], [], False
        R = regs_of
        if mn.startswith('v_mfma'):
            i.kind = 'mfma'
            i.passes = 8 if '32x32' in mn else 4
            i.writes = R(ops[0])
            i.srcab = R(ops[1]) + R(ops[2])
            i.srcc = R(ops[3])
            i.reads = i.srcab + i.srcc
        elif mn.startswith('v_'):
            i.kind = 'valu'
            if mn in TRANS:
                i.kind = 'trans'
            if mn.startswith('v_dot'):
                i.kind = 'dl'
            if mn.startswith('v_permlane'):
                i.kind = 'perm'
                i.writes = R(ops[0]) + R(ops[1])
                i.reads = R(ops[0]) + R(ops[1])
            elif mn.startswith('v_readfirstlane') or mn.startswith('v_readlane'):
                i.kind = 'rdl'
                i.writes = R(ops[0])
                for o in ops[1:]:
                    i.reads += R(o)
            elif mn.startswith('v_add_co') or mn.startswith('v_sub_co') or mn.startswith('v_addc_co'):
                i.writes = R(ops[0]) + R(ops[1])
                for o in ops[2:]:
                    i.reads += R(o)
            else:
                i.writes = R(ops[0])
                for o in ops[1:]:
                    i.reads += R(o)
                if mn.startswith('v_fmac') or mn.startswith('v_dot2c') or mn.startswith('v_pk_fmac'):
                    i.reads += R(ops[0])
                if mn.startswith('v_cndmask') and len(ops) == 3:
                    i.reads += R('vcc')
        elif mn.startswith('ds_'):
            i.kind = 'lds'
            if mn.startswith('ds_read') or mn.startswith('ds_bpermute') or mn.startswith('ds_swizzle'):
                i.writes = R(ops[0])
                for o in ops[1:]:
                    i.reads += R(o)
            else:
                for o in ops:
                    i.reads += R(o)
        elif mn.startswith('buffer_') or mn.startswith('global_'):
            i.kind = 'vmem'
            islds = re.search(r'\blds\b', rest) is not None
            if mn.startswith('buffer_load') and not islds:
                i.writes = R(ops[0])
                for o in ops[1:]:
                    i.reads += R(o)
            elif islds:
                i.kind = 'dma'
                for o in ops:
                    i.reads += R(o)
                i.reads += R('m0')
            else:
                for o in ops:
                    i.reads += R(o)
                if mn.startswith('buffer_atomic') and re.search(r'\bsc0\b', rest):
                    i.writes = R(ops[0])
                if mn.startswith('buffer_store') and ('x4' in mn or 'x3' in mn):
                    i.wide = True
                    i.srcab = R(ops[0])
        elif mn.startswith('s_'):
            i.kind = 'salu'
            if mn in ('s_waitcnt', 's_barrier', 's_nop', 's_branch', 's_endpgm', 's_sleep', 's_setprio') or mn.startswith('s_cbranch') or mn.startswith('s_cmp'):
                for o in ops:
                    i.reads += R(o)
            elif ops:
                i.writes = R(ops[0])
                for o in ops[1:]:
                    i.reads += R(o)
        else:
            raise ValueError('unknown instr ' + text)
        for f, n in i.reads + i.writes:
            if f == 'v':
                self.maxv = max(self.maxv, n)
            elif f == 'a':
                self.maxa = max(self.maxa, n)
            elif f == 's' and n < 102:
                self.maxs = max(self.maxs, n)
        return i

    def need(self, p, c):
        VAL = ('valu', 'trans', 'dl', 'perm', 'rdl')
        n = 0
        pw = set(p.writes)
        cr, cw = set(c.reads), set(c.writes)
        if p.kind in VAL:
            vw = {r for r in pw if r[0] in 'va'}
            sw = {r for r in pw if r[0] == 's'}
            if c.kind == 'mfma' and vw & cr:
                n = max(n, 3 if p.kind == 'dl' else 2)
            if p.kind == 'trans' and c.kind in VAL and c.kind != 'trans' and vw & cr:
                n = max(n, 1)
            if c.kind == 'rdl' and vw & cr:
                n = max(n, 1)
            if c.kind == 'perm' and vw & cr:
                n = max(n, 2)
            if p.kind == 'dl' and vw & (cr | cw):
                if c.mn == p.mn:
                    n = max(n, 0)
                else:
                    n = max(n, 3)
            if sw:
                if c.kind in VAL and sw & cr:
                    n = max(n, 4 if c.kind == 'rdl' else 2)
                if c.kind in ('vmem', 'dma') and sw & cr:
                    n = max(n, 5)
                if c.kind == 'salu' and sw & cr:
                    n = max(n, 1)
        if p.kind == 'mfma':
            big = {4: 8, 8: 12}[p.passes]
            ovl = {4: 6, 8: 10}[p.passes]
            if c.kind == 'mfma':
                if pw & set(c.srcab):
                    n = max(n, big)
                if pw & set(c.srcc):
                    if not (c.srcc == p.writes and c.passes == p.passes):
                        n = max(n, ovl)
                if pw & cw and not (c.srcc == p.writes and c.passes == p.passes):
                    n = max(n, ovl)
            elif c.kind in VAL or c.kind in ('vmem', 'lds', 'dma'):
                if pw & (cr | cw):
                    n = max(n, big)
            if c.kind in VAL and set(p.srcc) & cw:
                n = max(n, {4: 3, 8: 7}[p.passes])
        if p.kind == 'vmem' and p.wide and c.kind in VAL + ('lds', 'vmem') and set(p.srcab) & cw:
            n = max(n, 2)
        if p.kind == 'salu' and ('s', 124) in pw and c.kind == 'dma':
            n = max(n, 1)
        return n

    deferring = None

    def defer_begin(self):
        self.deferring = []
        self._grp = None

    def defer_end(self):
        q, self.deferring = self.deferring, None
        return q

    def group_begin(self):
        if self.deferring is not None:
            self._grp = []

    def group_end(self):
        if self.deferring is not None:
            self.deferring.append(self._grp)
            self._grp = None

    def _rec(self, fn, *args, **kw):
        item = (fn, args, kw)
        if self._grp is not None:
            self._grp.append(item)
        else:
            self.deferring.append([item])

    def gate(self, g):
        self.deferring.append(('gate', g))

    def drain(self, q, n, now=1 << 30):
        k = 0
        while q and k < n:
            if isinstance(q[0], tuple):
                if now < q[0][1]:
                    return
                q.pop(0)
                continue
            for fn, args, kw in q.pop(0):
                fn(*args, **kw)
                k += 1

    def skip(self, n):
        for _ in range(n):
            self._rec(lambda: None)

    def pop_vm(self):
        if self.deferring is not None:
            return self._rec(self.pop_vm)
        self.vmq.pop()

    def I(self, text, vm=None, lg=None):
        if self.deferring is not None:
            return self._rec(self.I, text, vm=vm, lg=lg)
        ins = self.classify(text)
        pad = 0
        for p in self.hist:
            nd = self.need(p, ins)
            if nd:
                dist = self.slot - p.slot - 1
                pad = max(pad, nd - dist)
        if pad > 0:
            self.nop(pad)
        ins.slot = self.slot
        self.slot += 1
        self.hist.append(ins)
        while self.hist and self.slot - self.hist[0].slot > 24:
            self.hist.pop(0)
        self.out.append('  ' + text)
        self.nins += 1
        if ins.kind in ('vmem', 'dma'):
            isload = ins.mn.startswith('buffer_load') or ins.mn.startswith('global_load')
            self.vmq.append((vm, 'L' if isload else 'S'))
        if ins.kind == 'lds':
            self.lgq.append(lg)
        return ins

    def _count_after(self, q, tags):
        last = -1
        for idx, t in enumerate(q):
            if t in tags:
                last = idx
        if last < 0:
            return None
        return len(q) - 1 - last

    def wait(self, vm=None, lg=None):
        if self.deferring is not None:
            return self._rec(self.wait, vm=vm, lg=lg)
        parts = []
        if vm is not None:
            tags = vm if isinstance(vm, (list, set)) else [vm]
            best = None
            for kind in 'LS':
                last = -1
                for idx, (t, k) in enumerate(self.vmq):
                    if k == kind and t in tags:
                        last = idx
                if last < 0:
                    continue
                n = sum(1 for (t, k) in self.vmq[last + 1:] if k == kind)
                best = n if best is None else min(best, n)
                self.vmq = [e for idx, e in enumerate(self.vmq) if not (e[1] == kind and idx <= last)]
            if best is not None:
                parts.append('vmcnt(%d)' % min(best, 63))
                if best == 0:
                    self.vmq = []
        if lg is not None:
            tags = lg if isinstance(lg, (list, set)) else [lg]
            n = self._count_after(self.lgq, tags)
            if n is not None:
                n2 = min(n, 15)
                parts.append('lgkmcnt(%d)' % n2)
                self.lgq = self.lgq[len(self.lgq) - n2:] if n2 else []
        if parts:
            self.I('s_waitcnt ' + ' '.join(parts))

    def wait_all(self, vm=False, lg=False):
        parts = []
        if vm:
            parts.append('vmcnt(0)')
            self.vmq = []
        if lg:
            parts.append('lgkmcnt(0)')
            self.lgq = []
        self.I('s_waitcnt ' + ' '.join(parts))

    stamps_on = False
    STAMP_OFF = 32 << 20

    def stamp(self, idx):
        if not self.stamps_on:
            return
        self.I('s_memtime s[86:87]')
        self.wait_all(lg=True)
        self.I('s_mov_b32 s%d, s86' % (64 + idx))

    def stamp_flush(self, wsptr_lo, s_wave, nwaves):
        if not self.stamps_on:
            return
        self.I('s_mov_b32 s80, s%d' % wsptr_lo)
        self.I('s_and_b32 s81, s%d, 0xffff' % (wsptr_lo + 1))
        self.I('s_mov_b32 s82, 0x4000000')
        self.I('s_mov_b32 s83, 0x20000')
        self.I('s_mul_i32 s84, s2, %d' % nwaves)
        self.I('s_add_u32 s84, s84, s%d' % s_wave)
        self.I('s_lshl_b32 s84, s84, 6')
        self.I('s_add_u32 s84, s84, %d' % self.STAMP_OFF)
        self.I('v_mov_b32 v22, 0')
        self.I('s_mov_b64 exec, 1')
        for i in range(16):
            self.I('v_mov_b32 v23, s%d' % (64 + i))
            self.I('buffer_store_dword v23, v22, s[80:83], s84 offen offset:%d' % (4 * i))
        self.I('s_mov_b64 exec, -1')

    def text(self):
        return '\n'.join(self.out) + '\n'


def v(n, cnt=1):
    return 'v%d' % n if cnt == 1 else 'v[%d:%d]' % (n, n + cnt - 1)


def a(n, cnt=1):
    return 'a%d' % n if cnt == 1 else 'a[%d:%d]' % (n, n + cnt - 1)


def s(n, cnt=1):
    return 's%d' % n if cnt == 1 else 's[%d:%d]' % (n, n + cnt - 1)
```

```python
from asmlib import *

ACT_OFF = 0
PHIQ_OFF = 128 * 54 * 1024
KVA_OFF = PHIQ_OFF + 128 * 32 * 1280
KVA_REP = 32 * 3360
NREP = 3
STAT_OFF = KVA_OFF + NREP * KVA_REP + 1024
CSP_OFF = STAT_OFF + 256 * 128
WR_OFF = CSP_OFF + 16 * 16 * 1024
WR_CB = 74 * 5120
O_OFF = WR_OFF + 8 * WR_CB
CNT_OFF = O_OFF + 128 * 20 * 1024
WS_END = CNT_OFF + 32 * 256

LOG2E = 0x3fb8aa3b
BIG = 0x7ffffff0

SRD_X, SRD_W, SRD_WS, SRD_AUX, SRD_DBG = 20, 24, 28, 32, 36
S_TB, S_FB, S_W, S_TG, S_GRP, S_M0B, S_TMP, S_M0X, S_LOG2E = 40, 41, 42, 43, 44, 45, 46, 47, 48
S_XOFF = 49
S_DT = 50
S_WO, S_XO = 51, 59
S_MASK = 52
S_T3, S_T4 = 54, 55
S_P0, S_M0Q, S_HF, S_T5 = 56, 56, 57, 58
V_LANE, V_T, V_G = 1, 2, 3
V_DM0, V_DM1, V_RB0, V_RB1, V_DX0, V_DX1, V_ONES = 4, 5, 6, 7, 8, 9, 20
V_XR0 = 10
V_NM = 14
V_N, V_HI = 16, 17
V_POLL, V_PA = 18, 19
V_TMP0, V_TMP1 = 22, 23
WIN, ACC, XF, HK = 24, 40, 104, 136
V_K2, V_K1 = 248, 250
D_RING = 6
XP = 16384
DBG_STAT, DBG_CS = 16, 32


def srd(A, d, lo, size):
    A.I('s_mov_b32 %s, %s' % (s(d), s(lo)))
    A.I('s_and_b32 %s, %s, 0xffff' % (s(d + 1), s(lo + 1)))
    A.I('s_mov_b32 %s, 0x%x' % (s(d + 2), size))
    A.I('s_mov_b32 %s, 0x20000' % s(d + 3))


def swap23(A, dst, src, t0):
    A.I('v_and_b32 %s, 0x13, %s' % (v(dst), v(src)))
    A.I('v_and_b32 %s, 4, %s' % (v(t0), v(src)))
    A.I('v_lshl_or_b32 %s, %s, 1, %s' % (v(dst), v(t0), v(dst)))
    A.I('v_and_b32 %s, 8, %s' % (v(t0), v(src)))
    A.I('v_lshrrev_b32 %s, 1, %s' % (v(t0), v(t0)))
    A.I('v_or_b32 %s, %s, %s' % (v(dst), v(dst), v(t0)))


def divmod_const(A, q, r, x, c, magic):
    A.I('v_mul_u32_u24 %s, %d, %s' % (v(q), magic, v(x)))
    A.I('v_lshrrev_b32 %s, 16, %s' % (v(q), v(q)))
    A.I('v_mul_u32_u24 %s, %d, %s' % (v(r), c, v(q)))
    A.I('v_sub_u32 %s, %s, %s' % (v(r), v(x), v(r)))


def trbase(A, dst, rowbytes, t0, t1):
    A.I('v_lshrrev_b32 %s, 1, %s' % (v(t0), v(V_G)))
    A.I('v_lshlrev_b32 %s, 4, %s' % (v(t0), v(t0)))
    A.I('v_and_b32 %s, 1, %s' % (v(t1), v(V_G)))
    A.I('v_lshl_add_u32 %s, %s, 2, %s' % (v(t0), v(t1), v(t0)))
    A.I('v_bfe_u32 %s, %s, 2, 2' % (v(t1), v(V_LANE)))
    A.I('v_add_u32 %s, %s, %s' % (v(t0), v(t0), v(t1)))
    A.I('v_mul_u32_u24 %s, %d, %s' % (v(t0), rowbytes, v(t0)))
    A.I('v_and_b32 %s, 3, %s' % (v(t1), v(V_LANE)))
    A.I('v_lshl_add_u32 %s, %s, 3, %s' % (v(dst), v(t1), v(t0)))


def xf(sk, ks):
    return XF + ((sk % 4) * 2 + ks) * 4


def dma_x(A, p, xbase):
    A.I('s_add_u32 %s, %s, %d' % (s(S_DT), s(S_XOFF), p * 128))
    for j, d in enumerate((V_DX0, V_DX1)):
        A.I('s_add_u32 m0, %s, %d' % (s(S_M0X), xbase + (p % 3) * XP + j * 1024))
        A.I('buffer_load_dwordx4 %s, %s, %s offen lds' % (v(d), s(SRD_X, 4), s(S_DT)), vm=('xp', p))


class Loop:
    def __init__(self, A, name, tiles, ks_off, half_off, dma_issue, xbase, hooks=None, nwin=4, fillers=None):
        self.__dict__.update(locals())
        self.hooks = hooks or {}
        self.nf = 2 * len(tiles)

    def rd(self, F):
        A = self.A
        sk, fi = divmod(F, self.nf)
        ks, ti = divmod(fi, len(self.tiles))
        slot = sk % D_RING
        base = V_RB0 if slot < 3 else V_RB1
        off = (slot % 3) * F_SLOT + ks * self.ks_off + self.tiles[ti][0]
        w = WIN + (F % self.nwin) * 4
        A.I('ds_read_b64_tr_b16 %s, %s offset:%d' % (v(w, 2), v(base), off), lg=('f', F))
        A.I('ds_read_b64_tr_b16 %s, %s offset:%d' % (v(w + 2, 2), v(base), off + self.half_off), lg=('f', F))

    def sync_stage(self, sk):
        A = self.A
        if sk % 2:
            return
        A.wait(vm=[('dma', sk), ('dma', sk + 1), ('xp', sk // 2)], lg='z')
        A.I('s_barrier')
        p = sk // 2
        for s4 in range(4):
            A.I('ds_read_b128 %s, %s offset:%d' % (v(xf(sk + s4 // 2, s4 % 2), 4), v(V_XR0 + s4), (p % 3) * XP), lg=('x', sk + s4 // 2))
        if sk + 3 <= 19:
            self.dma_issue(sk + 3)
        self.pending = sk

    def issue_after(self, sk):
        A = self.A
        if sk + 4 <= 19:
            self.dma_issue(sk + 4)
        if sk // 2 + 2 < 10:
            dma_x(A, sk // 2 + 2, self.xbase)

    def run(self):
        A = self.A
        tot = 20 * self.nf
        la = self.nwin - 1
        self.pending = None
        self.sync_stage(0)
        A.stamp(1)
        for F in range(la):
            self.rd(F)
        for sk in range(20):
            if sk in (1, 5, 10):
                A.stamp({1: 2, 5: 3, 10: 4}[sk])
            if sk in self.hooks:
                self.hooks[sk]()
            for fi in range(self.nf):
                F = sk * self.nf + fi
                Fn = F + la
                if Fn < tot:
                    if Fn % self.nf == 0:
                        self.sync_stage(Fn // self.nf)
                    self.rd(Fn)
                A.wait(lg=[('f', F), ('x', sk)])
                w = WIN + (F % self.nwin) * 4
                ks, ti = divmod(fi, len(self.tiles))
                d = v(self.tiles[ti][1], 16)
                A.I('v_mfma_f32_32x32x16_bf16 %s, %s, %s, %s' % (d, v(w, 4), v(xf(sk, ks), 4), d if (sk or ks) else '0'))
                if self.pending is not None and fi == (1 if self.name.endswith('0') else 3):
                    self.issue_after(self.pending)
                    self.pending = None
                if self.fillers:
                    A.drain(self.fillers, 8 if sk < 3 else 4, sk)
        assert not self.fillers
        A.stamp(5)


def stats_to_mr(A, vsum, vsq, nm, r, t0):
    A.I('v_mul_f32 %s, 0x3acccccd, %s' % (v(vsum), v(vsum)))
    A.I('v_mul_f32 %s, 0x3acccccd, %s' % (v(vsq), v(vsq)))
    A.I('v_fma_f32 %s, -%s, %s, %s' % (v(vsq), v(vsum), v(vsum), v(vsq)))
    A.I('v_max_f32 %s, 0, %s' % (v(vsq), v(vsq)))
    A.I('v_cvt_pk_bf16_f32 %s, %s, %s' % (v(t0), v(vsum), v(vsq)))
    A.I('v_lshlrev_b32 %s, 16, %s' % (v(nm), v(t0)))
    A.I('v_xor_b32 %s, 0x80000000, %s' % (v(nm), v(nm)))
    A.I('v_and_b32 %s, 0xffff0000, %s' % (v(t0), v(t0)))
    A.I('v_add_f32 %s, 0x3727c5ac, %s' % (v(t0), v(t0)))
    A.I('v_cvt_pk_bf16_f32 %s, %s, %s' % (v(t0), v(t0), v(t0)))
    A.I('v_and_b32 %s, 0xffff0000, %s' % (v(t0), v(t0)))
    A.I('v_sqrt_f32 %s, %s' % (v(t0), v(t0)))
    A.I('v_cvt_pk_bf16_f32 %s, %s, %s' % (v(t0), v(t0), v(t0)))
    A.I('v_and_b32 %s, 0xffff0000, %s' % (v(t0), v(t0)))
    A.I('v_rcp_f32 %s, %s' % (v(r), v(t0)))


def wave_sum(A, regs, t):
    for ctl in ('quad_perm:[1,0,3,2]', 'quad_perm:[2,3,0,1]', 'row_half_mirror', 'row_mirror'):
        A.nop(2)
        for r_ in regs:
            A.I('v_add_f32_dpp %s, %s, %s %s row_mask:0xf bank_mask:0xf' % (v(r_), v(r_), v(r_), ctl))
    for op in ('v_permlane16_swap_b32', 'v_permlane32_swap_b32'):
        for r_, t_ in zip(regs, t):
            A.I('v_mov_b32 %s, %s' % (v(t_), v(r_)))
        for r_, t_ in zip(regs, t):
            A.I('%s %s, %s' % (op, v(r_), v(t_)))
        for r_, t_ in zip(regs, t):
            A.I('v_add_f32 %s, %s, %s' % (v(r_), v(r_), v(t_)))


class Coop:
    def __init__(self, A, rowbytes, csw_lds, cs_lds, colmap):
        self.__dict__.update(locals())
        self.SR = 216
        self.CR = 224
        self.T = 234

    def issue_loads(self):
        A, T = self.A, self.T
        A.I('s_lshl_b32 %s, %s, 7' % (s(S_TMP), s(S_TB)))
        A.I('s_lshl_b32 %s, %s, 3' % (s(S_T3), s(S_FB)))
        A.I('s_add_u32 %s, %s, %s' % (s(S_TMP), s(S_TMP), s(S_T3)))
        A.I('s_add_u32 %s, %s, %s' % (s(S_T5), s(S_TMP), s(S_W)))
        A.I('s_mul_i32 %s, %s, 1280' % (s(S_TMP), s(S_T5)))
        A.I('v_lshlrev_b32 %s, 4, %s' % (v(T), v(V_LANE)))
        A.I('buffer_load_dwordx4 %s, %s, %s, %s offen' % (v(self.SR, 4), v(T), s(SRD_X, 4), s(S_TMP)), vm='sl')
        A.I('v_mov_b32 %s, 0x%x' % (v(T + 1), BIG))
        A.I('v_cmp_gt_u32 vcc, 16, %s' % v(V_LANE))
        A.I('v_cndmask_b32 %s, %s, %s, vcc' % (v(T + 1), v(T + 1), v(T)))
        A.I('buffer_load_dwordx4 %s, %s, %s, %s offen offset:1024' % (v(self.SR + 4, 4), v(T + 1), s(SRD_X, 4), s(S_TMP)), vm='sl')
        self.colmap(T + 2, T + 3)
        A.I('s_mul_i32 %s, %s, 40' % (s(S_TMP), s(S_TB)))
        A.I('s_mul_i32 %s, %s, 5' % (s(S_T3), s(S_W)))
        A.I('s_add_u32 %s, %s, %s' % (s(S_TMP), s(S_TMP), s(S_T3)))
        A.I('s_mul_i32 %s, %s, %d' % (s(S_TMP), s(S_TMP), self.rowbytes))
        for i in range(5):
            A.I('buffer_load_dwordx2 %s, %s, %s, %s offen' % (v(self.CR + 2 * i, 2), v(T + 2), s(SRD_W, 4), s(S_TMP)), vm='cl')
            if i < 4:
                A.I('s_add_u32 %s, %s, %d' % (s(S_TMP), s(S_TMP), self.rowbytes))

    def compute(self):
        A, T = self.A, self.T
        SU, SQ = T + 4, T + 5
        A.I('v_mov_b32 %s, 0' % v(SU))
        A.I('v_mov_b32 %s, 0' % v(SQ))
        A.wait(vm='sl')
        for i in range(8):
            A.I('v_dot2c_f32_bf16 %s, %s, %s' % (v(SU), v(self.SR + i), v(V_ONES)))
            A.I('v_dot2c_f32_bf16 %s, %s, %s' % (v(SQ), v(self.SR + i), v(self.SR + i)))
        A.nop(3)
        wave_sum(A, [SU, SQ], [T + 6, T + 7])
        stats_to_mr(A, SU, SQ, T + 8, T + 9, T + 6)
        A.I('v_mov_b32 %s, 0' % v(T + 6))
        A.I('v_lshlrev_b32 %s, 2, v0' % v(T + 7))
        A.I('v_mov_b32 %s, 0x%x' % (v(T + 14), BIG))
        A.I('v_cmp_gt_u32 vcc, 320, v0')
        A.I('v_cndmask_b32 %s, %s, %s, vcc' % (v(T + 7), v(T + 14), v(T + 7)))
        A.I('s_mul_i32 %s, s2, 1280' % s(62))
        A.I('s_add_u32 %s, %s, %d' % (s(62), s(62), KVA_OFF))
        A.group_begin()
        A.I('s_cmp_lt_u32 s2, 252')
        A.I('s_cselect_b32 %s, %s, 0x%x' % (s(62), s(62), BIG))
        A.group_end()
        A.I('buffer_store_dword %s, %s, %s, %s offen sc1' % (v(T + 6), v(T + 7), s(SRD_WS, 4), s(62)), vm='sst')
        A.I('v_cmp_eq_u32 vcc, 0, v0')
        A.I('v_cndmask_b32 %s, %s, 0, vcc' % (v(T + 7), v(T + 14)))
        A.I('s_lshl_b32 %s, s2, 8' % s(62))
        A.I('s_add_u32 %s, %s, %d' % (s(62), s(62), CNT_OFF))
        A.I('buffer_store_dword %s, %s, %s, %s offen' % (v(T + 6), v(T + 7), s(SRD_WS, 4), s(62)), vm='z2')
        A.wait(vm='cl')
        C = T + 10
        for i in range(5):
            for h in range(2):
                r_ = self.CR + 2 * i + h
                if i == 0:
                    A.I('v_lshlrev_b32 %s, 16, %s' % (v(C + 2 * h), v(r_)))
                    A.I('v_and_b32 %s, 0xffff0000, %s' % (v(C + 2 * h + 1), v(r_)))
                else:
                    A.I('v_lshlrev_b32 %s, 16, %s' % (v(T + 6), v(r_)))
                    A.I('v_and_b32 %s, 0xffff0000, %s' % (v(T + 7), v(r_)))
                    A.I('v_add_f32 %s, %s, %s' % (v(C + 2 * h), v(C + 2 * h), v(T + 6)))
                    A.I('v_add_f32 %s, %s, %s' % (v(C + 2 * h + 1), v(C + 2 * h + 1), v(T + 7)))
        A.I('s_lshl_b32 %s, %s, 10' % (s(62), s(S_W)))
        A.I('s_add_u32 %s, %s, %d' % (s(62), s(62), self.csw_lds))
        A.I('v_lshlrev_b32 %s, 4, %s' % (v(T + 6), v(V_LANE)))
        A.I('v_add_u32 %s, %s, %s' % (v(T + 6), s(62), v(T + 6)))
        A.I('ds_write_b128 %s, %s' % (v(T + 6), v(C, 4)), lg='z')
        A.I('v_mov_b32 %s, %s' % (v(T + 6), s(62)))
        A.I('ds_write_b64 %s, %s offset:1016' % (v(T + 6), v(T + 8, 2)), lg='z')

    def hook_reduce(self):
        A = self.A
        R = HK
        A.I('s_lshl_b32 %s, %s, 8' % (s(S_TMP), s(S_TG)))
        A.I('s_add_u32 %s, %s, %d' % (s(S_TMP), s(S_TMP), self.csw_lds))
        A.I('v_lshlrev_b32 %s, 2, %s' % (v(R + 8), v(V_LANE)))
        A.I('v_add_u32 %s, %s, %s' % (v(R + 9), s(S_TMP), v(R + 8)))
        for i in range(8):
            A.I('ds_read_b32 %s, %s offset:%d' % (v(R + i), v(R + 9), i * 1024), lg='cr')
        A.I('v_and_b32 %s, 7, %s' % (v(R + 9), v(V_LANE)))
        A.I('v_lshlrev_b32 %s, 10, %s' % (v(R + 9), v(R + 9)))
        A.I('v_add_u32 %s, %d, %s' % (v(R + 9), self.csw_lds + 1016, v(R + 9)))
        A.I('ds_read_b64 %s, %s' % (v(R + 10, 2), v(R + 9)), lg='cr')

    def hook_reduce2(self):
        A = self.A
        R = HK
        A.wait(lg='cr')
        for i in range(1, 8):
            A.I('v_add_f32 %s, %s, %s' % (v(R), v(R), v(R + i)))
        A.I('s_lshl_b32 %s, %s, 4' % (s(S_TMP), s(S_FB)))
        A.I('s_add_u32 %s, %s, %s' % (s(S_TMP), s(S_TMP), s(S_TB)))
        A.I('s_lshl_b32 %s, %s, 10' % (s(S_TMP), s(S_TMP)))
        A.I('s_lshl_b32 %s, %s, 8' % (s(S_T3), s(S_TG)))
        A.I('s_add_u32 %s, %s, %s' % (s(S_TMP), s(S_TMP), s(S_T3)))
        A.I('s_add_u32 %s, %s, %d' % (s(S_TMP), s(S_TMP), CSP_OFF))
        A.I('buffer_store_dword %s, %s, %s, %s offen sc1' % (v(R), v(R + 8), s(SRD_WS, 4), s(S_TMP)), vm='cst')
        A.I('s_lshl_b32 %s, %s, 4' % (s(S_TMP), s(S_TB)))
        A.I('s_add_u32 %s, %s, %s' % (s(S_TMP), s(S_TMP), s(S_FB)))
        A.I('s_lshl_b32 %s, %s, 7' % (s(S_TMP), s(S_TMP)))
        A.I('s_add_u32 %s, %s, %d' % (s(S_TMP), s(S_TMP), STAT_OFF))
        A.I('s_cmp_eq_u32 %s, 0' % s(S_TG))
        A.I('s_cselect_b32 %s, %s, 0x%x' % (s(S_TMP), s(S_TMP), BIG))
        A.I('v_lshlrev_b32 %s, 3, %s' % (v(R + 9), v(V_LANE)))
        A.I('s_mov_b64 exec, 0xffff')
        A.I('buffer_store_dwordx2 %s, %s, %s, %s offen sc1' % (v(R + 10, 2), v(R + 9), s(SRD_WS, 4), s(S_TMP)), vm='cst')
        A.I('s_mov_b64 exec, -1')

    def hook_waitst(self):
        self.A.wait(vm=['sst', 'cst'])

    def hook_signal(self, grp, name):
        A = self.A
        if grp != 0:
            return
        R = HK + 10
        A.I('v_mov_b32 %s, 1' % v(R))
        A.I('s_and_b32 %s, s2, 1' % s(S_TMP))
        A.I('s_lshl_b32 %s, %s, 7' % (s(S_TMP), s(S_TMP)))
        A.I('v_mov_b32 %s, %s' % (v(R + 1), s(S_TMP)))
        A.I('v_lshlrev_b32 %s, 7, %s' % (v(V_PA), v(V_LANE)))
        A.I('v_and_b32 %s, 128, %s' % (v(V_PA), v(V_PA)))
        A.I('s_cmp_lg_u32 %s, 0' % s(S_TG))
        A.I('s_cbranch_scc1 L_%s_nosig' % name)
        A.I('s_mov_b64 exec, 1')
        A.I('buffer_atomic_add %s, %s, %s, 0 offen sc1' % (v(R), v(R + 1), s(SRD_DBG, 4)), vm='at')
        A.vmq.pop()
        A.I('s_mov_b64 exec, -1')
        A.label('L_%s_nosig' % name)

    def hook_poll(self, grp, name):
        A = self.A
        if grp != 0:
            return
        lp, ld = 'L_%s_poll' % name, 'L_%s_pdone' % name
        A.wait(vm='poll')
        A.I('s_cmp_lg_u32 %s, 0' % s(S_TG))
        A.I('s_cbranch_scc1 %s' % ld)
        A.label(lp)
        A.I('v_readlane_b32 %s, %s, 0' % (s(S_TMP), v(V_POLL)))
        A.I('v_readlane_b32 %s, %s, 1' % (s(S_T3), v(V_POLL)))
        A.I('s_min_u32 %s, %s, %s' % (s(S_TMP), s(S_TMP), s(S_T3)))
        A.I('s_cmp_ge_u32 %s, 128' % s(S_TMP))
        A.I('s_cbranch_scc1 %s' % ld)
        A.I('s_sleep 2')
        A.I('buffer_load_dword %s, %s, %s, 0 offen sc1' % (v(V_POLL), v(V_PA), s(SRD_DBG, 4)))
        A.vmq.pop()
        A.I('s_waitcnt vmcnt(0)')
        A.I('s_branch %s' % lp)
        A.label(ld)
        A.nop(4)

    def hook_poll_issue(self, grp):
        A = self.A
        if grp != 0:
            return
        A.I('s_mul_i32 %s, %s, 0x1000' % (s(S_TMP), s(S_TG)))
        A.I('buffer_load_dword %s, %s, %s, %s offen sc1' % (v(V_POLL), v(V_PA), s(SRD_DBG, 4), s(S_TMP)), vm='poll')

    def hook_consume(self, grp):
        A = self.A
        A.I('s_lshl_b32 %s, %s, 11' % (s(S_TMP), s(S_TB)))
        A.I('s_lshl_b32 %s, %s, 9' % (s(S_T3), s(S_TG)))
        A.I('s_add_u32 %s, %s, %s' % (s(S_TMP), s(S_TMP), s(S_T3)))
        A.I('s_add_u32 %s, %s, %d' % (s(S_TMP), s(S_TMP), STAT_OFF))
        A.I('v_lshrrev_b32 %s, 3, %s' % (v(V_TMP0), v(V_N)))
        A.I('v_lshlrev_b32 %s, 7, %s' % (v(V_TMP0), v(V_TMP0)))
        A.I('v_and_b32 %s, 7, %s' % (v(V_POLL), v(V_N)))
        A.I('v_lshl_add_u32 %s, %s, 3, %s' % (v(V_TMP0), v(V_POLL), v(V_TMP0)))
        A.I('buffer_load_dwordx2 %s, %s, %s, %s offen sc1' % (v(V_NM, 2), v(V_TMP0), s(SRD_WS, 4), s(S_TMP)), vm='nm')
        if grp == 0:
            A.I('s_lshl_b32 %s, %s, 14' % (s(S_TMP), s(S_FB)))
            A.I('s_lshl_b32 %s, %s, 8' % (s(S_T3), s(S_TG)))
            A.I('s_add_u32 %s, %s, %s' % (s(S_TMP), s(S_TMP), s(S_T3)))
            A.I('s_add_u32 %s, %s, %d' % (s(S_TMP), s(S_TMP), CSP_OFF))
            A.I('v_lshlrev_b32 %s, 2, %s' % (v(V_TMP1), v(V_LANE)))
            for p in range(16):
                A.I('buffer_load_dword %s, %s, %s, %s offen offset:%d sc1' % (v(HK + p), v(V_TMP1), s(SRD_WS, 4), s(S_TMP), (p % 4) * 1024), vm='csp')
                if p % 4 == 3 and p < 15:
                    A.I('s_add_u32 %s, %s, 4096' % (s(S_TMP), s(S_TMP)))

    def finish(self, grp):
        A = self.A
        if grp == 0:
            A.wait(vm='csp')
            for st in (8, 4, 2, 1):
                for i in range(st):
                    A.I('v_add_f32 %s, %s, %s' % (v(HK + i), v(HK + i), v(HK + i + st)))
            A.I('s_lshl_b32 %s, %s, 8' % (s(S_TMP), s(S_TG)))
            A.I('s_add_u32 %s, %s, %d' % (s(S_TMP), s(S_TMP), self.cs_lds))
            A.I('v_add_u32 %s, %s, %s' % (v(V_TMP1), s(S_TMP), v(V_TMP1)))
            A.I('ds_write_b32 %s, %s' % (v(V_TMP1), v(HK)), lg='pub')
            A.wait(lg='pub')
        A.wait(vm='nm')

    def hooks(self, grp, name):
        h = {}
        if grp == 0:
            h[4] = self.hook_reduce
            h[5] = self.hook_reduce2
        h[7] = self.hook_waitst
        h[8] = lambda: self.hook_signal(grp, name)
        h[16] = lambda: self.hook_poll_issue(grp)
        h[17] = lambda: self.hook_poll(grp, name)
        h[18] = lambda: self.hook_consume(grp)
        return h


SRD_R = 60


def relayout_issue(A, R):
    A.I('s_lshl_b32 s92, %s, 3' % s(S_TB))
    A.I('s_add_u32 s92, s92, %s' % s(S_FB))
    A.I('s_sub_u32 s92, s92, 8')
    A.I('s_lshl_b32 s92, s92, 3')
    A.I('s_add_u32 s92, s92, %s' % s(S_W))
    A.group_begin()
    A.I('s_cmp_lt_u32 s92, 640')
    A.I('s_cselect_b32 s96, s88, s90')
    A.I('s_cselect_b32 s97, s89, s91')
    A.I('s_cselect_b32 s93, 0, 640')
    A.group_end()
    A.I('s_and_b32 s97, s97, 0xffff')
    A.I('s_mov_b32 s98, %d' % (1728 * 1280))
    A.I('s_mov_b32 s99, 0x20000')
    A.I('s_sub_u32 s93, s92, s93')
    A.I('s_mul_i32 s93, s93, 1280')
    A.I('v_lshlrev_b32 %s, 4, %s' % (v(R + 16), v(V_LANE)))
    A.I('v_mov_b32 %s, 0x%x' % (v(R + 17), BIG))
    A.I('v_cmp_gt_u32 vcc, 16, %s' % v(V_LANE))
    A.I('v_cndmask_b32 %s, %s, %s, vcc' % (v(R + 17), v(R + 17), v(R + 16)))
    A.I('buffer_load_dwordx4 %s, %s, s[96:99], s93 offen' % (v(R, 4), v(R + 16)), vm='rl')
    A.I('buffer_load_dwordx4 %s, %s, s[96:99], s93 offen offset:1024' % (v(R + 4, 4), v(R + 17)), vm='rl')
    A.I('s_mov_b32 s96, s90')
    A.I('s_and_b32 s97, s91, 0xffff')
    A.I('s_add_u32 s93, s92, 1408')
    A.I('s_mul_i32 s93, s93, 1280')
    A.I('buffer_load_dwordx4 %s, %s, s[96:99], s93 offen' % (v(R + 8, 4), v(R + 16)), vm='rl')
    A.I('buffer_load_dwordx4 %s, %s, s[96:99], s93 offen offset:1024' % (v(R + 12, 4), v(R + 17)), vm='rl')
    A.I('s_add_u32 s93, s92, 384')
    A.I('s_mul_i32 s93, s93, 1280')
    A.I('buffer_load_dwordx4 %s, %s, s[96:99], s93 offen' % (v(R + 24, 4), v(R + 16)), vm='rl')
    A.I('buffer_load_dwordx4 %s, %s, s[96:99], s93 offen offset:1024' % (v(R + 28, 4), v(R + 17)), vm='rl')


def relayout_store(A, R):
    T = R + 18
    for j in range(2):
        A.I('v_add_u32 %s, %d, %s' % (v(T), 64 * j, v(V_LANE)))
        divmod_const(A, T + 1, T + 2, T, 10, 6554)
        A.I('s_mov_b32 s94, %d' % WR_CB)
        A.I('v_mul_lo_u32 %s, %s, s94' % (v(T + 1), v(T + 1)))
        A.I('v_lshl_add_u32 %s, %s, 4, %s' % (v(R + 16 + j), v(T + 2), v(T + 1)))
    A.I('v_mov_b32 %s, 0x%x' % (v(T), BIG))
    A.I('v_cmp_gt_u32 vcc, 16, %s' % v(V_LANE))
    A.I('v_cndmask_b32 %s, %s, %s, vcc' % (v(R + 17), v(T), v(R + 17)))

    def w2dest(srow):
        A.I('s_lshr_b32 s94, %s, 5' % srow)
        A.I('s_mul_i32 s95, s94, 5120')
        A.I('s_and_b32 s94, %s, 7' % srow)
        A.I('s_and_b32 s101, %s, 8' % srow)
        A.I('s_lshl_b32 s101, s101, 1')
        A.I('s_or_b32 s94, s94, s101')
        A.I('s_and_b32 s101, %s, 16' % srow)
        A.I('s_lshr_b32 s101, s101, 1')
        A.I('s_or_b32 s94, s94, s101')
        A.I('s_mul_i32 s94, s94, 160')
        A.I('s_add_u32 s95, s95, s94')
    A.I('s_sub_u32 s93, s92, 640')
    w2dest('s93')
    A.I('s_mov_b32 s100, s95')
    A.I('s_mul_i32 s93, s92, 3277')
    A.I('s_lshr_b32 s93, s93, 16')
    A.I('s_mul_i32 s94, s93, 20')
    A.I('s_sub_u32 s94, s92, s94')
    A.I('s_lshr_b32 s95, s93, 3')
    A.I('s_mul_i32 s95, s95, %d' % (5 * 5120))
    A.I('s_add_u32 s95, s95, %d' % (54 * 5120))
    A.I('s_and_b32 s93, s93, 7')
    A.I('s_lshr_b32 s96, s93, 1')
    A.I('s_mul_i32 s96, s96, 5120')
    A.I('s_and_b32 s97, s93, 1')
    A.I('s_lshl_b32 s97, s97, 4')
    A.I('s_add_u32 s97, s97, s94')
    A.I('s_mul_i32 s97, s97, 160')
    A.I('s_add_u32 s96, s96, s97')
    A.I('s_lshr_b32 s97, s93, 2')
    A.I('s_lshl_b32 s97, s97, 4')
    A.I('s_and_b32 s98, s93, 3')
    A.I('s_add_u32 s97, s97, s98')
    A.I('s_sub_u32 s98, s94, 16')
    A.I('s_lshl_b32 s98, s98, 2')
    A.I('s_add_u32 s97, s97, s98')
    A.I('s_mul_i32 s97, s97, 160')
    A.I('s_add_u32 s97, s97, %d' % (4 * 5120))
    A.group_begin()
    A.I('s_cmp_lt_u32 s94, 16')
    A.I('s_cselect_b32 s96, s96, s97')
    A.group_end()
    A.I('s_add_u32 s95, s95, s96')
    A.group_begin()
    A.I('s_cmp_lt_u32 s92, 640')
    A.I('s_cselect_b32 s95, s95, s100')
    A.group_end()
    A.I('s_add_u32 s100, s95, %d' % WR_OFF)
    A.wait(vm='rl')
    A.I('buffer_store_dwordx4 %s, %s, %s, s100 offen sc1' % (v(R, 4), v(R + 16), s(SRD_WS, 4)), vm='rs')
    A.I('buffer_store_dwordx4 %s, %s, %s, s100 offen sc1' % (v(R + 4, 4), v(R + 17), s(SRD_WS, 4)), vm='rs')
    A.I('s_add_u32 s93, s92, 1408')
    w2dest('s93')
    A.I('s_add_u32 s95, s95, %d' % WR_OFF)
    A.group_begin()
    A.I('s_cmp_lt_u32 s92, 320')
    A.I('s_cselect_b32 s95, s95, 0x%x' % BIG)
    A.group_end()
    A.I('buffer_store_dwordx4 %s, %s, %s, s95 offen sc1' % (v(R + 8, 4), v(R + 16), s(SRD_WS, 4)), vm='rs')
    A.I('buffer_store_dwordx4 %s, %s, %s, s95 offen sc1' % (v(R + 12, 4), v(R + 17), s(SRD_WS, 4)), vm='rs')
    A.I('s_add_u32 s93, s92, 384')
    w2dest('s93')
    A.I('s_add_u32 s95, s95, %d' % WR_OFF)
    A.I('buffer_store_dwordx4 %s, %s, %s, s95 offen sc1' % (v(R + 24, 4), v(R + 16), s(SRD_WS, 4)), vm='rs')
    A.I('buffer_store_dwordx4 %s, %s, %s, s95 offen sc1' % (v(R + 28, 4), v(R + 17), s(SRD_WS, 4)), vm='rs')


def read_cs_list(A, cs_lds, dsts, t0):
    A.I('v_lshlrev_b32 %s, 4, %s' % (v(t0), v(V_G)))
    A.I('v_add_u32 %s, %d, %s' % (v(t0), cs_lds, v(t0)))
    for ft, d in enumerate(dsts):
        A.I('ds_read_b128 %s, %s offset:%d' % (v(d, 4), v(t0), ft * 64), lg='cs')


def setup_x(A, xbase, t):
    A.I('s_lshl_b32 %s, %s, 7' % (s(S_TMP), s(S_W)))
    for j, dst in enumerate((V_DX0, V_DX1)):
        A.I('v_add_u32 %s, %s, %s' % (v(t[0]), s(S_TMP), v(V_LANE)))
        if j:
            A.I('v_add_u32 %s, 64, %s' % (v(t[0]), v(t[0])))
        A.I('v_lshrrev_b32 %s, 3, %s' % (v(t[1]), v(t[0])))
        A.I('v_bfe_u32 %s, %s, 4, 3' % (v(t[2]), v(t[0])))
        A.I('v_and_b32 %s, 7, %s' % (v(t[0]), v(t[0])))
        A.I('v_xor_b32 %s, %s, %s' % (v(t[0]), v(t[0]), v(t[2])))
        A.I('v_mul_u32_u24 %s, 1280, %s' % (v(t[1]), v(t[1])))
        A.I('v_lshl_add_u32 %s, %s, 4, %s' % (v(dst), v(t[0]), v(t[1])))
    A.I('s_mul_i32 %s, %s, %d' % (s(S_XOFF), s(S_TB), 128 * 1280))
    A.I('s_lshl_b32 %s, %s, 11' % (s(S_M0X), s(S_W)))
    A.I('v_bfe_u32 %s, %s, 1, 3' % (v(t[0]), v(V_N)))
    A.I('v_xor_b32 %s, %s, %s' % (v(t[0]), v(t[0]), v(V_HI)))
    A.I('v_lshlrev_b32 %s, 4, %s' % (v(t[0]), v(t[0])))
    A.I('v_lshl_add_u32 %s, %s, 7, %s' % (v(t[0]), v(V_N), v(t[0])))
    A.I('s_lshl_b32 %s, %s, 12' % (s(S_TMP), s(S_TG)))
    A.I('s_add_u32 %s, %s, %d' % (s(S_TMP), s(S_TMP), xbase))
    for s4 in range(4):
        A.I('v_xor_b32 %s, %d, %s' % (v(t[1]), 32 * s4, v(t[0])))
        A.I('v_add_u32 %s, %s, %s' % (v(V_XR0 + s4), s(S_TMP), v(t[1])))


def gen_k1(A, mapping=0):
    A.label('k1_kernel')
    A.I('s_cmp_ge_u32 s2, 256')
    A.I('s_cbranch_scc1 L_k1_end')
    A.I('s_load_dwordx4 s[4:7], s[0:1], 0')
    A.I('s_load_dwordx2 s[8:9], s[0:1], 16')
    A.I('s_load_dwordx4 s[12:15], s[0:1], 40')
    A.I('s_load_dwordx4 s[16:19], s[0:1], 72')
    A.I('s_load_dwordx2 s[88:89], s[0:1], 24')
    A.I('s_load_dwordx2 s[90:91], s[0:1], 56')
    if mapping == 0:
        A.I('s_lshr_b32 %s, s2, 4' % s(S_TB))
        A.I('s_and_b32 %s, s2, 15' % s(S_FB))
    elif mapping == 1:
        A.I('s_bfe_u32 %s, s2, 0x10002' % s(S_TB))
        A.I('s_lshl_b32 %s, %s, 3' % (s(S_TB), s(S_TB)))
        A.I('s_bfe_u32 %s, s2, 0x30003' % s(S_TMP))
        A.I('s_add_u32 %s, %s, %s' % (s(S_TB), s(S_TB), s(S_TMP)))
        A.I('s_lshr_b32 %s, s2, 6' % s(S_FB))
        A.I('s_lshl_b32 %s, %s, 2' % (s(S_FB), s(S_FB)))
        A.I('s_and_b32 %s, s2, 3' % s(S_TMP))
        A.I('s_add_u32 %s, %s, %s' % (s(S_FB), s(S_FB), s(S_TMP)))
    elif mapping == 2:
        A.I('s_and_b32 %s, s2, 7' % s(S_TB))
        A.I('s_lshl_b32 %s, %s, 1' % (s(S_TB), s(S_TB)))
        A.I('s_bfe_u32 %s, s2, 0x10003' % s(S_TMP))
        A.I('s_add_u32 %s, %s, %s' % (s(S_TB), s(S_TB), s(S_TMP)))
        A.I('s_lshr_b32 %s, s2, 4' % s(S_FB))
    A.I('v_and_b32 %s, 63, v0' % v(V_LANE))
    A.I('v_and_b32 %s, 15, v0' % v(V_T))
    A.I('v_bfe_u32 %s, v0, 4, 2' % v(V_G))
    A.I('v_and_b32 %s, 31, v0' % v(V_N))
    A.I('v_bfe_u32 %s, v0, 5, 1' % v(V_HI))
    A.I('v_lshrrev_b32 %s, 6, v0' % v(V_TMP0))
    A.I('v_readfirstlane_b32 %s, %s' % (s(S_W), v(V_TMP0)))
    A.I('s_and_b32 %s, %s, 3' % (s(S_TG), s(S_W)))
    A.I('s_lshr_b32 %s, %s, 2' % (s(S_GRP), s(S_W)))
    A.I('s_mov_b32 %s, 0x%x' % (s(S_LOG2E), LOG2E))
    A.I('v_mov_b32 %s, 0x3f803f80' % v(V_ONES))
    A.I('s_waitcnt lgkmcnt(0)')
    if A.stamps_on:
        for i in range(16):
            A.I('s_mov_b32 s%d, 0' % (64 + i))
    A.stamp(0)
    srd(A, SRD_X, 4, 2048 * 640 * 2)
    srd(A, SRD_WS, 18, WS_END)
    srd(A, SRD_DBG, 16, 256)
    A.I('s_cmp_ge_u32 %s, 8' % s(S_FB))
    A.I('s_cbranch_scc1 L_k1_ffn')
    sn = A.snap()
    gen_k1_attn(A)
    A.restore(sn)
    A.label('L_k1_ffn')
    gen_k1_ffn(A)
    A.label('L_k1_end')
    A.I('s_waitcnt vmcnt(0)')
    A.I('s_endpgm')


F_SLOT = 15360
F_X = D_RING * F_SLOT
F_CSW = F_X + 3 * XP + 2048
F_CS = F_X + 3 * XP
F_BIAS = F_CS + 1024
F_LDS = F_CSW + 8192


def mish_batch(A, vals, T):
    n = len(vals)
    E, U = T, T + n
    ac0, cs0, b0 = vals[0][0], vals[0][1], vals[0][2]
    for i in range(0, n, 2):
        A.I('v_pk_fma_f32 %s, %s, %s, %s op_sel_hi:[1,0,1]' % (v(ac0 + i, 2), v(cs0 + i, 2), v(V_NM, 2), v(ac0 + i, 2)))
    for i in range(0, n, 2):
        A.I('v_pk_fma_f32 %s, %s, %s, %s op_sel:[0,1,0] op_sel_hi:[1,1,1]' % (v(ac0 + i, 2), v(ac0 + i, 2), v(V_NM, 2), v(b0 + i, 2)))
    for i in range(0, n, 2):
        A.I('v_pk_mul_f32 %s, %s, %s op_sel:[0,1] op_sel_hi:[1,1]' % (v(E + i, 2), v(ac0 + i, 2), v(V_K2, 2)))
    for i in range(n):
        A.I('v_exp_f32 %s, %s' % (v(E + i), v(E + i)))
    for i in range(0, n, 2):
        A.I('v_pk_add_f32 %s, %s, %s op_sel_hi:[1,0]' % (v(U + i, 2), v(E + i, 2), v(V_K2, 2)))
    for i in range(0, n, 2):
        A.I('v_pk_fma_f32 %s, %s, %s, %s op_sel_hi:[1,1,0]' % (v(U + i, 2), v(E + i, 2), v(U + i, 2), v(V_K2, 2)))
    for i in range(n):
        A.I('v_rcp_f32 %s, %s' % (v(U + i), v(U + i)))
    for i in range(0, n, 2):
        A.I('v_pk_fma_f32 %s, %s, %s, %s op_sel:[0,0,1] op_sel_hi:[1,0,1]' % (v(U + i, 2), v(U + i, 2), v(V_K1, 2), v(V_K1, 2)))
    for i in range(0, n, 2):
        A.I('v_pk_mul_f32 %s, %s, %s' % (v(ac0 + i, 2), v(ac0 + i, 2), v(U + i, 2)))


def w_voffsets(A, t, kind):
    per = 112 if kind == 'ffn' else 120
    A.I('s_mul_i32 %s, %s, %d' % (s(S_TMP), s(S_W), per))
    if kind == 'ffn':
        A.I('s_lshl_b32 %s, %s, 6' % (s(S_T3), s(S_P0)))
    else:
        A.I('s_mul_i32 %s, %s, 160' % (s(S_T3), s(S_FB)))
    for j, dst in enumerate((V_DM0, V_DM1)):
        A.I('v_add_u32 %s, %s, %s' % (v(t[0]), s(S_TMP), v(V_LANE)))
        if j:
            A.I('v_add_u32 %s, 64, %s' % (v(t[0]), v(t[0])))
        if kind == 'ffn':
            divmod_const(A, t[1], t[2], t[0], 28, 2341)
            A.I('v_mul_u32_u24 %s, 3456, %s' % (v(t[3]), v(t[1])))
            A.I('v_lshl_add_u32 %s, %s, 4, %s' % (v(t[3]), v(t[2]), v(t[3])))
            A.I('v_add_u32 %s, %s, %s' % (v(dst), s(S_T3), v(t[3])))
        else:
            divmod_const(A, t[1], t[2], t[0], 30, 2185)
            divmod_const(A, t[5], t[7], t[2], 10, 6554)
            A.I('v_and_b32 %s, 24, %s' % (v(t[3]), v(t[1])))
            A.I('v_and_b32 %s, 1, %s' % (v(t[4]), v(t[1])))
            A.I('v_lshl_or_b32 %s, %s, 2, %s' % (v(t[3]), v(t[4]), v(t[3])))
            A.I('v_bfe_u32 %s, %s, 1, 2' % (v(t[4]), v(t[1])))
            A.I('v_or_b32 %s, %s, %s' % (v(t[3]), v(t[3]), v(t[4])))
            A.I('v_mul_u32_u24 %s, 3840, %s' % (v(t[3]), v(t[3])))
            A.I('v_lshl_add_u32 %s, %s, 4, %s' % (v(t[3]), v(t[7]), v(t[3])))
            A.I('v_add_u32 %s, 1, %s' % (v(t[6]), v(t[5])))
            A.I('v_cmp_gt_u32 vcc, 2, %s' % v(t[5]))
            A.I('v_cndmask_b32 %s, 0, %s, vcc' % (v(t[6]), v(t[6])))
            A.I('v_mul_u32_u24 %s, 1280, %s' % (v(t[6]), v(t[6])))
            A.I('v_add3_u32 %s, %s, %s, %s' % (v(dst), s(S_T3), v(t[3]), v(t[6])))
    A.I('s_mul_i32 %s, %s, %d' % (s(S_M0B), s(S_W), per * 16))


def mk_dma(A, rowbytes, himask):
    def dma(stage):
        slot = stage % D_RING
        A.I('s_mov_b32 %s, %d' % (s(S_DT), stage * 32 * rowbytes))
        A.I('s_add_u32 m0, %s, %d' % (s(S_M0B), slot * F_SLOT))
        A.I('buffer_load_dwordx4 %s, %s, %s offen lds' % (v(V_DM0), s(SRD_W, 4), s(S_DT)), vm=('dma', stage))
        A.I('s_add_u32 m0, %s, %d' % (s(S_M0B), slot * F_SLOT + 1024))
        A.I('s_mov_b32 exec_hi, 0x%x' % himask)
        A.I('buffer_load_dwordx4 %s, %s, %s offen lds' % (v(V_DM1), s(SRD_W, 4), s(S_DT)), vm=('dma', stage))
        A.I('s_mov_b64 exec, -1')
    return dma


def trbase32(A, dst, rowbytes, rmul, t0, t1):
    A.I('v_bfe_u32 %s, %s, 2, 2' % (v(t0), v(V_LANE)))
    if rmul == 2:
        A.I('v_lshlrev_b32 %s, 1, %s' % (v(t0), v(t0)))
    A.I('v_lshl_add_u32 %s, %s, 3, %s' % (v(t0), v(V_HI), v(t0)))
    A.I('v_mul_u32_u24 %s, %d, %s' % (v(t0), rowbytes, v(t0)))
    A.I('v_and_b32 %s, 1, %s' % (v(t1), v(V_G)))
    A.I('v_lshl_add_u32 %s, %s, 5, %s' % (v(t0), v(t1), v(t0)))
    A.I('v_and_b32 %s, 3, %s' % (v(t1), v(V_LANE)))
    A.I('v_lshl_add_u32 %s, %s, 3, %s' % (v(dst), v(t1), v(t0)))


def rd_vec32(A, areg, lds_off, dst, tag):
    for j in range(4):
        A.I('ds_read_b128 %s, %s offset:%d' % (v(dst + 4 * j, 4), v(areg), lds_off + j * 32), lg=tag)


RLY = 160


def gen_k1_ffn(A):
    srd(A, SRD_W, 12, 640 * 1728 * 2)
    A.I('s_sub_u32 %s, %s, 8' % (s(S_P0), s(S_FB)))
    A.I('s_mul_i32 %s, %s, 7' % (s(S_P0), s(S_P0)))
    A.I('s_min_u32 %s, %s, 47' % (s(S_P0), s(S_P0)))
    t = [200 + i for i in range(8)]
    def colmap(dst, t0):
        A.I('s_lshl_b32 %s, %s, 6' % (s(S_T3), s(S_P0)))
        A.I('v_lshlrev_b32 %s, 3, %s' % (v(dst), v(V_LANE)))
        A.I('v_add_u32 %s, %s, %s' % (v(dst), s(S_T3), v(dst)))
        A.I('v_mov_b32 %s, 0x%x' % (v(t0), BIG))
        A.I('v_cmp_gt_u32 vcc, 56, %s' % v(V_LANE))
        A.I('v_cndmask_b32 %s, %s, %s, vcc' % (v(dst), v(t0), v(dst)))
    C = Coop(A, 3456, F_CSW, F_CS, colmap)
    C.issue_loads()
    setup_x(A, F_X, t)
    dma_x(A, 0, F_X)
    w_voffsets(A, t, 'ffn')
    dma = mk_dma(A, 3456, 0xffff)
    dma(0)
    dma(1)
    dma_x(A, 1, F_X)
    srd(A, SRD_AUX, 14, 1728 * 2)

    dma(2)
    A.stamp(8)
    trbase32(A, V_RB0, 448, 1, t[0], t[1])
    A.I('s_lshl_b32 %s, %s, 8' % (s(S_TMP), s(S_GRP)))
    A.I('v_add_u32 %s, %s, %s' % (v(V_RB0), s(S_TMP), v(V_RB0)))
    A.I('v_add_u32 %s, %d, %s' % (v(V_RB1), 3 * F_SLOT, v(V_RB0)))
    A.stamp(14)

    def mk_fill(grp):
        A.defer_begin()
        C.compute()
        relayout_issue(A, RLY)
        if grp == 0:
            A.I('s_lshl_b32 s85, %s, 6' % s(S_P0))
            A.I('v_lshlrev_b32 %s, 1, v0' % v(194))
            A.I('buffer_load_ushort %s, %s, %s, s85 offen' % (v(195), v(194), s(SRD_AUX, 4)), vm='bias')
        relayout_store(A, RLY)
        if grp == 0:
            A.wait(vm='bias')
            A.I('v_lshlrev_b32 %s, 16, %s' % (v(195), v(195)))
            A.I('v_lshlrev_b32 %s, 2, v0' % v(194))
            A.I('v_add_u32 %s, %d, %s' % (v(194), F_BIAS, v(194)))
            A.I('ds_write_b32 %s, %s' % (v(194), v(195)), lg='z')
        return A.defer_end()
    A.I('s_cmp_eq_u32 %s, 1' % s(S_GRP))
    A.I('s_cbranch_scc1 L_ffn_B')
    sn = A.snap()
    for grp in range(2):
        if grp:
            A.restore(sn)
            A.label('L_ffn_B')
        nt = 4 - grp
        tiles = [(ti * 64, ACC + 16 * ti) for ti in range(nt)]
        L = Loop(A, 'ffn%d' % grp, tiles, 16 * 448, 4 * 448, dma, F_X, C.hooks(grp, 'ffn%d' % grp), fillers=mk_fill(grp))
        L.run()
        CSR = [152, 184]
        BFR = [168, 200]
        TT = 216
        OUT = 232
        AD = 252
        C.finish(grp)
        A.stamp(6)
        A.I('s_barrier')
        A.stamp(7)
        A.I('v_lshlrev_b32 %s, 4, %s' % (v(AD + 1), v(V_HI)))
        A.I('v_add_u32 %s, %d, %s' % (v(AD + 1), F_CS + grp * 512, v(AD + 1)))
        A.I('v_mov_b32 %s, 2.0' % v(V_K2))
        A.I('v_mov_b32 %s, %s' % (v(V_K2 + 1), s(S_LOG2E)))
        A.I('v_mov_b32 %s, -2.0' % v(V_K1))
        A.I('v_mov_b32 %s, 1.0' % v(V_K1 + 1))

        def rdv(ti):
            rd_vec32(A, AD + 1, ti * 128, CSR[ti % 2], ('cs', ti))
            rd_vec32(A, AD + 1, 1024 + ti * 128, BFR[ti % 2], ('cs', ti))
        rdv(0)
        A.I('s_lshl_b32 %s, %s, 3' % (s(S_TMP), s(S_TB)))
        A.I('s_lshl_b32 %s, %s, 1' % (s(S_T3), s(S_TG)))
        A.I('s_add_u32 %s, %s, %s' % (s(S_TMP), s(S_TMP), s(S_T3)))
        A.I('s_mul_i32 %s, %s, 54' % (s(S_TMP), s(S_TMP)))
        A.I('s_add_u32 %s, %s, %s' % (s(S_TMP), s(S_TMP), s(S_P0)))
        A.I('s_lshl_b32 %s, %s, 10' % (s(S_TMP), s(S_TMP)))
        A.I('s_add_u32 %s, %s, %d' % (s(S_TMP), s(S_TMP), ACT_OFF + grp * 4 * 1024))
        A.I('v_and_b32 %s, 1, %s' % (v(AD), v(V_G)))
        A.I('v_mul_u32_u24 %s, %d, %s' % (v(AD), 54 * 1024, v(AD)))
        A.I('v_lshl_add_u32 %s, %s, 4, %s' % (v(AD), v(V_T), v(AD)))
        A.I('v_lshl_add_u32 %s, %s, 8, %s' % (v(AD), v(V_HI), v(AD)))
        for ti in range(nt):
            A.stamp(10 + ti)
            if ti + 1 < nt:
                rdv(ti + 1)
            A.wait(lg=('cs', ti))
            for hb in range(2):
                vals = []
                for r_ in range(8):
                    i_ = hb * 8 + r_
                    vals.append((ACC + 16 * ti + i_, CSR[ti % 2] + i_, BFR[ti % 2] + i_, V_NM, V_NM + 1))
                mish_batch(A, vals, TT)
                o = OUT + ((ti * 2 + hb) % 4) * 4
                for q in range(4):
                    ac = ACC + 16 * ti + hb * 8 + 2 * q
                    A.I('v_cvt_pk_bf16_f32 %s, %s, %s' % (v(o + q), v(ac), v(ac + 1)))
                A.I('buffer_store_dwordx4 %s, %s, %s, %s offen offset:%d' % (v(o, 4), v(AD), s(SRD_WS, 4), s(S_TMP), ti * 1024 + hb * 512) + ' sc1', vm='st')
        A.stamp(15)
        A.stamp_flush(18, S_W, 8)
        A.I('s_waitcnt vmcnt(0)')
        A.I('s_endpgm')


A_X = D_RING * F_SLOT
PHIK_ROW = 352
A_PHIK = 0
A_VS = A_PHIK + 128 * PHIK_ROW
A_M = A_X + 3 * XP
A_CSW = A_M
A_CS = A_M + 80 * 192
A_FLAG = A_CS + 1024
A_LDS = A_FLAG + 64


def softmax2(A, P, EP, EM, X, scl, sync):
    MX, MN = X, X + 1
    A.I('v_max3_f32 %s, %s, %s, %s' % (v(MX), v(P), v(P + 1), v(P + 2)))
    A.I('v_min3_f32 %s, %s, %s, %s' % (v(MN), v(P), v(P + 1), v(P + 2)))
    for i in range(3, 19, 2):
        A.I('v_max3_f32 %s, %s, %s, %s' % (v(MX), v(MX), v(P + i), v(P + i + 1)))
        A.I('v_min3_f32 %s, %s, %s, %s' % (v(MN), v(MN), v(P + i), v(P + i + 1)))
    A.I('v_max_f32 %s, %s, %s' % (v(MX), v(MX), v(P + 19)))
    A.I('v_min_f32 %s, %s, %s' % (v(MN), v(MN), v(P + 19)))
    A.I('v_pk_mul_f32 %s, %s, %s op_sel_hi:[1,0]' % (v(X, 2), v(X, 2), v(scl, 2)))
    for i in range(0, 20, 2):
        A.I('v_pk_fma_f32 %s, %s, %s, %s op_sel_hi:[1,0,0] neg_lo:[0,0,1] neg_hi:[0,0,1]' % (v(EP + i, 2), v(P + i, 2), v(scl, 2), v(X, 2)))
        A.I('v_pk_fma_f32 %s, %s, %s, %s op_sel:[0,0,1] op_sel_hi:[1,0,1] neg_lo:[1,0,0] neg_hi:[1,0,0]' % (v(EM + i, 2), v(P + i, 2), v(scl, 2), v(X, 2)))
    sync()
    for i in range(20):
        A.I('v_exp_f32 %s, %s' % (v(EP + i), v(EP + i)))
        A.I('v_exp_f32 %s, %s' % (v(EM + i), v(EM + i)))
    sync()
    SP, SM, RS = X + 2, X + 4, X + 6
    A.I('v_pk_add_f32 %s, %s, %s' % (v(SP, 2), v(EP, 2), v(EP + 2, 2)))
    A.I('v_pk_add_f32 %s, %s, %s' % (v(SM, 2), v(EM, 2), v(EM + 2, 2)))
    for i in range(4, 20, 2):
        A.I('v_pk_add_f32 %s, %s, %s' % (v(SP, 2), v(SP, 2), v(EP + i, 2)))
        A.I('v_pk_add_f32 %s, %s, %s' % (v(SM, 2), v(SM, 2), v(EM + i, 2)))
    A.I('v_add_f32 %s, %s, %s' % (v(RS), v(SP), v(SP + 1)))
    A.I('v_add_f32 %s, %s, %s' % (v(RS + 1), v(SM), v(SM + 1)))
    A.I('v_rcp_f32 %s, %s' % (v(RS), v(RS)))
    A.I('v_rcp_f32 %s, %s' % (v(RS + 1), v(RS + 1)))
    for i in range(0, 20, 2):
        A.I('v_pk_mul_f32 %s, %s, %s op_sel_hi:[1,0]' % (v(EP + i, 2), v(EP + i, 2), v(RS, 2)))
        A.I('v_pk_mul_f32 %s, %s, %s op_sel:[0,1] op_sel_hi:[1,1]' % (v(EM + i, 2), v(EM + i, 2), v(RS, 2)))
    for i in range(10):
        A.I('v_cvt_pk_bf16_f32 %s, %s, %s' % (v(P + i), v(EP + 2 * i), v(EP + 2 * i + 1)))
        A.I('v_cvt_pk_bf16_f32 %s, %s, %s' % (v(P + 10 + i), v(EM + 2 * i), v(EM + 2 * i + 1)))
    sync()


def gen_k1_attn(A):
    srd(A, SRD_W, 6, 640 * 1920 * 2)
    t = [200 + i for i in range(16)]
    def colmap(dst, t0):
        divmod_const(A, t[0], t[1], V_LANE, 20, 3277)
        A.I('v_add_u32 %s, 1, %s' % (v(t[2]), v(t[0])))
        A.I('v_cmp_eq_u32 vcc, 2, %s' % v(t[0]))
        A.I('v_cndmask_b32 %s, %s, 0, vcc' % (v(t[2]), v(t[2])))
        A.I('v_mul_u32_u24 %s, 1280, %s' % (v(t[2]), v(t[2])))
        A.I('v_lshl_add_u32 %s, %s, 3, %s' % (v(dst), v(t[1]), v(t[2])))
        A.I('s_mul_i32 %s, %s, 160' % (s(S_T3), s(S_FB)))
        A.I('v_add_u32 %s, %s, %s' % (v(dst), s(S_T3), v(dst)))
        A.I('v_mov_b32 %s, 0x%x' % (v(t0), BIG))
        A.I('v_cmp_gt_u32 vcc, 60, %s' % v(V_LANE))
        A.I('v_cndmask_b32 %s, %s, %s, vcc' % (v(dst), v(t0), v(dst)))
    C = Coop(A, 3840, A_CSW, A_CS, colmap)
    C.issue_loads()
    setup_x(A, A_X, t)
    dma_x(A, 0, A_X)
    w_voffsets(A, t, 'attn')
    dma = mk_dma(A, 3840, 0x00ffffff)
    dma(0)
    dma(1)
    dma_x(A, 1, A_X)
    srd(A, SRD_AUX, 8, 32 * 400 * 2)

    dma(2)
    trbase32(A, V_RB0, 480, 2, t[0], t[1])
    A.I('s_lshl_b32 %s, %s, 8' % (s(S_TMP), s(S_GRP)))
    A.I('v_add_u32 %s, %s, %s' % (v(V_RB0), s(S_TMP), v(V_RB0)))
    A.I('v_add_u32 %s, %d, %s' % (v(V_RB1), 3 * F_SLOT, v(V_RB0)))
    A.I('v_mov_b32 %s, %d' % (v(t[0]), A_FLAG))
    A.I('v_mov_b32 %s, 0' % v(t[1]))
    A.I('ds_write_b32 %s, %s' % (v(t[0]), v(t[1])), lg='z')
    A.wait(lg='z')

    def mk_fill():
        A.defer_begin()
        C.compute()
        MD, MA = 184, 192
        for i in range(4):
            A.I('v_add_u32 %s, %d, v0' % (v(t[0]), 512 * i))
            divmod_const(A, t[1], t[2], t[0], 24, 2731)
            divmod_const(A, t[3], t[4], t[1], 20, 3277)
            A.I('v_lshrrev_b32 %s, 1, %s' % (v(t[5]), v(t[2])))
            A.I('v_lshlrev_b32 %s, 2, %s' % (v(t[5]), v(t[5])))
            A.I('v_and_b32 %s, 1, %s' % (v(t[6]), v(t[2])))
            A.I('v_lshlrev_b32 %s, 1, %s' % (v(t[6]), v(t[6])))
            A.I('v_cmp_lt_u32 vcc, 19, %s' % v(t[5]))
            A.I('v_addc_co_u32 %s, vcc, 0, %s, vcc' % (v(t[6]), v(t[6])))
            A.I('v_cmp_lt_u32 vcc, 19, %s' % v(t[5]))
            A.I('v_subrev_u32 %s, 20, %s' % (v(t[8]), v(t[5])))
            A.I('v_cndmask_b32 %s, %s, %s, vcc' % (v(t[8]), v(t[5]), v(t[8])))
            A.I('v_mul_u32_u24 %s, 800, %s' % (v(t[7]), v(t[3])))
            A.I('v_mul_u32_u24 %s, 40, %s' % (v(t[4]), v(t[4])))
            A.I('v_add_u32 %s, %s, %s' % (v(t[7]), v(t[7]), v(t[4])))
            A.I('v_lshl_add_u32 %s, %s, 1, %s' % (v(t[7]), v(t[8]), v(t[7])))
            A.I('v_mov_b32 %s, 0x%x' % (v(t[4]), BIG))
            A.I('v_cmp_eq_u32 vcc, %s, %s' % (v(t[6]), v(t[3])))
            A.I('v_cndmask_b32 %s, %s, %s, vcc' % (v(t[7]), v(t[4]), v(t[7])))
            A.I('v_cmp_gt_u32 vcc, 40, %s' % v(t[5]))
            A.I('v_cndmask_b32 %s, %s, %s, vcc' % (v(t[7]), v(t[4]), v(t[7])))
            A.I('s_mul_i32 s85, %s, 3200' % s(S_FB))
            A.I('buffer_load_dwordx2 %s, %s, %s, %s offen' % (v(MD + 2 * i, 2), v(t[7]), s(SRD_AUX, 4), 's85'), vm='m')
            A.I('v_lshlrev_b32 %s, 3, %s' % (v(MA + i), v(t[0])))
            A.I('v_add_u32 %s, %d, %s' % (v(MA + i), A_M, v(MA + i)))

        A.gate(7)
        A.wait(vm='m')
        for i in range(4):
            if i == 3:
                A.group_begin()
                A.I('v_cmp_gt_u32 vcc, 384, v0')
                A.I('s_and_saveexec_b64 %s, vcc' % s(S_MASK, 2))
            A.I('ds_write_b64 %s, %s' % (v(MA + i), v(MD + 2 * i, 2)), lg='z')
            if i == 3:
                A.I('s_mov_b64 exec, -1')
                A.group_end()
        return A.defer_end()

    NM = V_NM
    CSR = 104
    MF = 168
    AD = 228
    X = 238
    SCL = 246
    VMB = 247
    BO = 24
    A.I('s_cmp_eq_u32 %s, 1' % s(S_GRP))
    A.I('s_cbranch_scc1 L_att_B')
    sn = A.snap()
    for grp in range(2):
        if grp:
            A.restore(sn)
            A.label('L_att_B')
        tiles = [(ti * 64, ACC + 16 * ti) for ti in range(4)]
        L = Loop(A, 'att%d' % grp, tiles, 16 * 480, 480, dma, A_X, C.hooks(grp, 'att%d' % grp), fillers=mk_fill())
        L.run()
        C.finish(grp)
        A.I('v_bfe_u32 %s, %s, 2, 2' % (v(VMB), v(V_LANE)))
        A.I('v_lshl_add_u32 %s, %s, 2, %s' % (v(VMB), v(V_HI), v(VMB)))
        A.I('v_mul_u32_u24 %s, 192, %s' % (v(VMB), v(VMB)))
        A.I('v_and_b32 %s, 1, %s' % (v(AD), v(V_G)))
        A.I('v_lshl_add_u32 %s, %s, 5, %s' % (v(VMB), v(AD), v(VMB)))
        A.I('v_and_b32 %s, 3, %s' % (v(AD), v(V_LANE)))
        A.I('v_lshl_add_u32 %s, %s, 3, %s' % (v(VMB), v(AD), v(VMB)))
        A.I('v_add_u32 %s, %d, %s' % (v(VMB), A_M, v(VMB)))
        for u in range(3):
            for s2 in range(5):
                b = MF + (u * 5 + s2) * 4
                for h in range(2):
                    A.I('ds_read_b64_tr_b16 %s, %s offset:%d' % (v(b + 2 * h, 2), v(VMB), (16 * s2 + 8 * h) * 192 + u * 64), lg='mf')
        A.I('v_mul_f32 %s, %s, %s' % (v(SCL), s(S_LOG2E), v(NM + 1)))
        A.I('s_barrier')
        if grp == 0:
            A.I('s_setprio 2')
        A.stamp(6)
        A.I('v_lshlrev_b32 %s, 4, %s' % (v(AD + 1), v(V_HI)))
        A.I('v_add_u32 %s, %d, %s' % (v(AD + 1), A_CS + grp * 512, v(AD + 1)))
        for ti in range(4):
            rd_vec32(A, AD + 1, ti * 128, CSR + 16 * ti, ('cs', ti))
        A.I('s_mul_i32 %s, %s, %d' % (s(S_TMP), s(S_TG), 32 * 160))
        A.I('s_add_u32 %s, %s, %d' % (s(S_TMP), s(S_TMP), A_VS))
        A.I('v_mul_u32_u24 %s, 160, %s' % (v(AD), v(V_N)))
        A.I('v_lshl_add_u32 %s, %s, 3, %s' % (v(AD), v(V_HI), v(AD)))
        A.I('v_add_u32 %s, %s, %s' % (v(AD), s(S_TMP), v(AD)))
        if grp == 0:
            vq = [(2, 2, 0), (2, 3, 8)] + [(3, j, 16 + 8 * j) for j in range(4)]
            st2 = [(0, 0), (0, 8), (1, 0), (1, 8), (2, 0)]
        else:
            vq = [(0, j, 48 + 8 * j) for j in range(4)]
            st2 = [(1, 0), (1, 8), (2, 0), (2, 8), (3, 0)]
        BOS = [24, 28, 32, 36, 248]
        for (ti, j, f0) in vq:
            A.wait(lg=('cs', ti))
            ac = ACC + 16 * ti + 4 * j
            for r_ in range(0, 4, 2):
                A.I('v_pk_fma_f32 %s, %s, %s, %s op_sel_hi:[1,0,1]' % (v(ac + r_, 2), v(CSR + 16 * ti + 4 * j + r_, 2), v(NM, 2), v(ac + r_, 2)))
            for r_ in range(0, 4, 2):
                A.I('v_pk_mul_f32 %s, %s, %s op_sel:[0,1] op_sel_hi:[1,1]' % (v(ac + r_, 2), v(ac + r_, 2), v(NM, 2)))
            A.I('v_cvt_pk_bf16_f32 %s, %s, %s' % (v(ac), v(ac), v(ac + 1)))
            A.I('v_cvt_pk_bf16_f32 %s, %s, %s' % (v(ac + 1), v(ac + 2), v(ac + 3)))
            A.I('ds_write_b64 %s, %s offset:%d' % (v(AD), v(ac, 2), f0 * 2), lg='vs')
        for s2, (ti, r0) in enumerate(st2):
            A.wait(lg=('cs', ti))
            ac = ACC + 16 * ti + r0
            for r_ in range(0, 8, 2):
                A.I('v_pk_fma_f32 %s, %s, %s, %s op_sel_hi:[1,0,1]' % (v(ac + r_, 2), v(CSR + 16 * ti + r0 + r_, 2), v(NM, 2), v(ac + r_, 2)))
            for q in range(4):
                A.I('v_cvt_pk_bf16_f32 %s, %s, %s' % (v(BOS[s2] + q), v(ac + 2 * q), v(ac + 2 * q + 1)))
        A.wait(lg='mf')
        P = 104
        for s2 in range(5):
            for u in range(3):
                d = v(P + 16 * u, 16)
                A.I('v_mfma_f32_32x32x16_bf16 %s, %s, %s, %s' % (d, v(MF + (u * 5 + s2) * 4, 4), v(BOS[s2], 4), d if s2 else '0'))
        EP, EM = 40, 60
        calls = [0]
        if grp == 0:
            A.I('s_mul_i32 %s, %s, %d' % (s(S_TMP), s(S_TG), 32 * PHIK_ROW))
            A.I('s_add_u32 %s, %s, %d' % (s(S_TMP), s(S_TMP), A_PHIK))
            A.I('v_mul_u32_u24 %s, %d, %s' % (v(AD + 2), PHIK_ROW, v(V_N)))
            A.I('v_mul_u32_u24 %s, 160, %s' % (v(AD + 3), v(V_HI)))
            A.I('v_add3_u32 %s, %s, %s, %s' % (v(AD + 2), s(S_TMP), v(AD + 2), v(AD + 3)))
            for a_ in range(2):
                softmax2(A, P + 20 * a_, EP, EM, X, SCL, lambda: None)
                for j in range(5):
                    A.I('ds_write_b128 %s, %s offset:%d' % (v(AD + 2), v(P + 20 * a_ + 4 * j, 4), a_ * 80 + j * 16), lg='pk')
            A.stamp(8)
            KA, KB = AD + 4, AD + 5
            trbase(A, KA, PHIK_ROW, AD + 6, AD + 7)
            A.I('s_mul_i32 %s, %s, 80' % (s(S_TMP), s(S_TG)))
            A.I('s_add_u32 %s, %s, %d' % (s(S_TMP), s(S_TMP), A_PHIK))
            A.I('v_add_u32 %s, %s, %s' % (v(KA), s(S_TMP), v(KA)))
            trbase(A, KB, 160, AD + 6, AD + 7)
            A.I('s_mul_i32 %s, %s, 40' % (s(S_TMP), s(S_TG)))
            A.I('s_add_u32 %s, %s, %d' % (s(S_TMP), s(S_TMP), A_VS))
            A.I('v_add_u32 %s, %s, %s' % (v(KB), s(S_TMP), v(KB)))
            A.I('v_cmp_eq_u32 %s, 4, %s' % (s(S_MASK, 2), v(V_T)))
            A.wait(lg=['pk', 'vs'])
            A.I('v_mov_b32 %s, %d' % (v(AD + 6), A_FLAG))
            A.I('v_mov_b32 %s, 1' % v(AD + 7))
            A.I('s_mov_b64 exec, 1')
            A.I('ds_add_u32 %s, %s' % (v(AD + 6), v(AD + 7)), lg='fl')
            A.I('s_mov_b64 exec, -1')
            A.label('L_kvflag')
            A.I('ds_read_b32 %s, %s' % (v(AD + 7), v(AD + 6)), lg='fl')
            A.wait_all(lg=True)
            A.I('v_readfirstlane_b32 %s, %s' % (s(S_TMP), v(AD + 7)))
            A.I('s_cmp_ge_u32 %s, 8' % s(S_TMP))
            A.I('s_cbranch_scc0 L_kvflag')
            FR = 104
            for ks in range(4):
                for i in range(5):
                    r0 = FR + (ks * 5 + i) * 4
                    for h in range(2):
                        if i < 3:
                            A.I('ds_read_b64_tr_b16 %s, %s offset:%d' % (v(r0 + 2 * h, 2), v(KA), (ks * 32 + 8 * h) * PHIK_ROW + i * 32), lg=('kv', ks))
                        else:
                            A.I('ds_read_b64_tr_b16 %s, %s offset:%d' % (v(r0 + 2 * h, 2), v(KB), (ks * 32 + 8 * h) * 160 + (i - 3) * 32), lg=('kv', ks))
            KD = 40
            for ks in range(4):
                A.wait(lg=('kv', ks))
                rb = FR + (ks * 5 + 4) * 4
                for j in range(4):
                    A.I('v_cndmask_b32 %s, %s, %s, %s' % (v(rb + j), v(rb + j), v(V_ONES), s(S_MASK, 2)))
                for dt in range(2):
                    for i in range(3):
                        d = v(KD + (dt * 3 + i) * 4, 4)
                        A.I('v_mfma_f32_16x16x32_bf16 %s, %s, %s, %s' % (d, v(FR + (ks * 5 + 3 + dt) * 4, 4), v(FR + (ks * 5 + i) * 4, 4), d if ks else '0'))
            A.I('s_lshl_b32 %s, %s, 2' % (s(S_TMP), s(S_FB)))
            A.I('s_add_u32 %s, %s, %s' % (s(S_TMP), s(S_TMP), s(S_TG)))
            A.I('s_mul_i32 %s, %s, 3360' % (s(S_TMP), s(S_TMP)))
            A.I('s_add_u32 %s, %s, %d' % (s(S_TMP), s(S_TMP), KVA_OFF))
            A.I('s_mul_i32 %s, %s, 43' % (s(S_T3), s(S_TB)))
            A.I('s_lshr_b32 %s, %s, 7' % (s(S_T3), s(S_T3)))
            A.I('s_mul_i32 %s, %s, 3' % (s(S_T3), s(S_T3)))
            A.I('s_sub_u32 %s, %s, %s' % (s(S_T3), s(S_TB), s(S_T3)))
            A.I('s_mul_i32 %s, %s, %d' % (s(S_T3), s(S_T3), KVA_REP))
            A.I('s_add_u32 %s, %s, %s' % (s(S_TMP), s(S_TMP), s(S_T3)))
            A.I('s_lshl_b32 %s, %s, 12' % (s(S_T3), s(S_TG)))
            A.I('s_add_u32 %s, %s, %d' % (s(S_T3), s(S_T3), A_VS + 128 * 160))
            A.I('v_mul_u32_u24 %s, 640, %s' % (v(AD), v(V_G)))
            A.I('v_lshl_add_u32 %s, %s, 2, %s' % (v(AD), v(V_T), v(AD)))
            A.I('v_add_u32 %s, %s, %s' % (v(AD), s(S_T3), v(AD)))
            for dt in range(2):
                for i in range(3):
                    for r_ in range(4):
                        lo, hi_ = 0xffffffff, 0xffffffff
                        if dt == 1:
                            hi_ = 0
                            lo = 0xffffffff if r_ == 0 else 0xffff
                        if i == 2:
                            lo &= 0x00ff00ff
                            hi_ &= 0x00ff00ff
                        A.I('s_mov_b32 exec_lo, 0x%x' % lo)
                        A.I('s_mov_b32 exec_hi, 0x%x' % hi_)
                        A.I('ds_write_b32 %s, %s offset:%d' % (v(AD), v(KD + (dt * 3 + i) * 4 + r_), (16 * dt + r_) * 160 + i * 64), lg='rp')
            A.I('s_mov_b64 exec, -1')
            A.I('v_lshlrev_b32 %s, 2, %s' % (v(AD + 1), v(V_LANE)))
            A.I('v_add_u32 %s, %s, %s' % (v(AD), s(S_T3), v(AD + 1)))
            for q in range(14):
                A.I('ds_read_b32 %s, %s offset:%d' % (v(104 + q), v(AD), q * 256), lg=('rq', q))
            for q in range(14):
                A.wait(lg=('rq', q))
                if q == 13:
                    A.I('s_mov_b64 exec, 0xff')
                A.I('buffer_atomic_add_f32 %s, %s, %s, %s offen offset:%d' % (v(104 + q), v(AD + 1), s(SRD_WS, 4), s(S_TMP), q * 256), vm='kvp')
            A.I('s_mov_b64 exec, -1')
            A.stamp(9)
        else:
            A.wait(lg='vs')
            A.I('v_mov_b32 %s, %d' % (v(AD + 6), A_FLAG))
            A.I('v_mov_b32 %s, 1' % v(AD + 7))
            A.I('s_mov_b64 exec, 1')
            A.I('ds_add_u32 %s, %s' % (v(AD + 6), v(AD + 7)), lg='fl')
            A.I('s_mov_b64 exec, -1')
            A.I('s_lshl_b32 %s, %s, 3' % (s(S_TMP), s(S_TB)))
            A.I('s_lshl_b32 %s, %s, 1' % (s(S_T3), s(S_TG)))
            A.I('s_add_u32 %s, %s, %s' % (s(S_TMP), s(S_TMP), s(S_T3)))
            A.I('s_lshl_b32 %s, %s, 3' % (s(S_TMP), s(S_TMP)))
            A.I('s_add_u32 %s, %s, %s' % (s(S_TMP), s(S_TMP), s(S_FB)))
            A.I('s_mul_i32 %s, %s, 5120' % (s(S_TMP), s(S_TMP)))
            A.I('s_add_u32 %s, %s, %d' % (s(S_TMP), s(S_TMP), PHIQ_OFF))
            A.I('s_add_u32 %s, %s, 4096' % (s(S_T3), s(S_TMP)))
            A.I('v_and_b32 %s, 1, %s' % (v(AD + 2), v(V_G)))
            A.I('v_mul_u32_u24 %s, %d, %s' % (v(AD + 2), 8 * 5120, v(AD + 2)))
            A.I('v_lshl_add_u32 %s, %s, 4, %s' % (v(AD + 2), v(V_T), v(AD + 2)))
            A.I('v_lshl_add_u32 %s, %s, 9, %s' % (v(AD + 3), v(V_HI), v(AD + 2)))
            A.I('v_lshl_add_u32 %s, %s, 11, %s' % (v(AD + 2), v(V_HI), v(AD + 2)))
            def syncB():
                calls[0] += 1
                pass
            for a_ in range(2):
                softmax2(A, P + 20 * a_, EP, EM, X, SCL, syncB)
                for j in range(4):
                    A.I('buffer_store_dwordx4 %s, %s, %s, %s offen offset:%d' % (v(P + 20 * a_ + 4 * j, 4), v(AD + 2), s(SRD_WS, 4), s(S_TMP), a_ * 1024 + j * 256) + ' sc1', vm='st')
                A.I('buffer_store_dwordx4 %s, %s, %s, %s offen offset:%d' % (v(P + 20 * a_ + 16, 4), v(AD + 3), s(SRD_WS, 4), s(S_T3), a_ * 256) + ' sc1', vm='st')
        A.stamp(15)
        A.stamp_flush(18, S_W, 8)
        A.I('s_waitcnt vmcnt(0)')
        A.I('s_endpgm')
```

```python
import re

TRANS = ('v_exp_f32', 'v_log_f32', 'v_rcp_f32', 'v_rsq_f32', 'v_sqrt_f32', 'v_sin_f32', 'v_cos_f32')
REG_RE = re.compile(r'^(-?)(\|?)(abs\()?([vas])(\d+|\[(\d+):(\d+)\])\)?(\|?)$')


def regs_of(op):
    op = op.strip()
    if op in ('vcc',):
        return [('s', 106), ('s', 107)]
    if op in ('exec',):
        return [('s', 126), ('s', 127)]
    if op == 'm0':
        return [('s', 124)]
    if op == 'vcc_lo':
        return [('s', 106)]
    if op == 'exec_lo':
        return [('s', 126)]
    if op == 'exec_hi':
        return [('s', 127)]
    m = REG_RE.match(op)
    if not m:
        return []
    f = m.group(4)
    if m.group(6) is not None:
        return [(f, i) for i in range(int(m.group(6)), int(m.group(7)) + 1)]
    return [(f, int(m.group(5)))]


def split_ops(s):
    ops, depth, cur = [], 0, ''
    for ch in s:
        if ch in '[(':
            depth += 1
        if ch in '])':
            depth -= 1
        if ch == ',' and depth == 0:
            ops.append(cur.strip())
            cur = ''
        else:
            cur += ch
    if cur.strip():
        ops.append(cur.strip())
    res = []
    for o in ops:
        res.append(o.split(' ')[0])
    return res


def expand_pk(t):
    m = re.match(r'(v_pk_(fma|mul|add)_f32) (.*)', t)
    kind, rest = m.group(2), m.group(3)
    ops = [int(x) for x in re.findall(r'v\[(\d+):\d+\]', rest)]
    n = len(ops) - 1

    def mod(name, default):
        mm = re.search(name + r':\[([01,]+)\]', rest)
        return [int(x) for x in mm.group(1).split(',')] if mm else [default] * n
    sel, selhi, nlo, nhi = mod(r'\bop_sel', 0), mod('op_sel_hi', 1), mod('neg_lo', 0), mod('neg_hi', 0)
    d, srcs = ops[0], ops[1:]
    lo = [('-' if nlo[i] else '') + 'v%d' % (srcs[i] + sel[i]) for i in range(n)]
    hi = [('-' if nhi[i] else '') + 'v%d' % (srcs[i] + selhi[i]) for i in range(n)]
    assert ('v%d' % d) not in {h.lstrip('-') for h in hi}, t
    mn = 'v_%s_f32' % kind
    return '%s v%d, %s' % (mn, d, ', '.join(lo)), '%s v%d, %s' % (mn, d + 1, ', '.join(hi))


class Ins:
    __slots__ = ('slot', 'kind', 'mn', 'reads', 'writes', 'passes', 'srcc', 'srcab', 'wide')


class Asm:
    def __init__(self):
        self.out = []
        self.hist = []
        self.slot = 0
        self.vmq = []
        self.lgq = []
        self.nins = 0
        self.maxv = -1
        self.maxa = -1
        self.maxs = -1

    def snap(self):
        return (list(self.hist), self.slot, list(self.vmq), list(self.lgq))

    def restore(self, s):
        self.hist, self.slot, self.vmq, self.lgq = list(s[0]), s[1], list(s[2]), list(s[3])

    def raw(self, text):
        self.out.append(text)

    def label(self, name):
        if self.deferring is not None:
            return self._rec(self.label, name)
        self.out.append(name + ':')

    def comment(self, t):
        self.out.append('  ; ' + t)

    def flush_hazards(self):
        self.nop(12)

    def nop(self, n):
        if self.deferring is not None:
            return self._rec(self.nop, n)
        while n > 0:
            k = min(n, 16)
            self.out.append('  s_nop %d' % (k - 1))
            self.slot += k
            self.nins += 1
            n -= k

    def classify(self, text):
        t = text.strip()
        sp = t.find(' ')
        mn = t if sp < 0 else t[:sp]
        rest = '' if sp < 0 else t[sp + 1:]
        ops = split_ops(rest)
        i = Ins()
        i.mn = mn
        i.reads, i.writes, i.passes, i.srcc, i.srcab, i.wide = [], [], 0, [], [], False
        R = regs_of
        if mn.startswith('v_mfma'):
            i.kind = 'mfma'
            i.passes = 8 if '32x32' in mn else 4
            i.writes = R(ops[0])
            i.srcab = R(ops[1]) + R(ops[2])
            i.srcc = R(ops[3])
            i.reads = i.srcab + i.srcc
        elif mn.startswith('v_'):
            i.kind = 'valu'
            if mn in TRANS:
                i.kind = 'trans'
            if mn.startswith('v_dot'):
                i.kind = 'dl'
            if mn.startswith('v_permlane'):
                i.kind = 'perm'
                i.writes = R(ops[0]) + R(ops[1])
                i.reads = R(ops[0]) + R(ops[1])
            elif mn.startswith('v_readfirstlane') or mn.startswith('v_readlane'):
                i.kind = 'rdl'
                i.writes = R(ops[0])
                for o in ops[1:]:
                    i.reads += R(o)
            elif mn.startswith('v_add_co') or mn.startswith('v_sub_co') or mn.startswith('v_addc_co'):
                i.writes = R(ops[0]) + R(ops[1])
                for o in ops[2:]:
                    i.reads += R(o)
            else:
                i.writes = R(ops[0])
                for o in ops[1:]:
                    i.reads += R(o)
                if mn.startswith('v_fmac') or mn.startswith('v_dot2c') or mn.startswith('v_pk_fmac'):
                    i.reads += R(ops[0])
                if mn.startswith('v_cndmask') and len(ops) == 3:
                    i.reads += R('vcc')
        elif mn.startswith('ds_'):
            i.kind = 'lds'
            if mn.startswith('ds_read') or mn.startswith('ds_bpermute') or mn.startswith('ds_swizzle'):
                i.writes = R(ops[0])
                for o in ops[1:]:
                    i.reads += R(o)
            else:
                for o in ops:
                    i.reads += R(o)
        elif mn.startswith('buffer_') or mn.startswith('global_'):
            i.kind = 'vmem'
            islds = re.search(r'\blds\b', rest) is not None
            if mn.startswith('buffer_load') and not islds:
                i.writes = R(ops[0])
                for o in ops[1:]:
                    i.reads += R(o)
            elif islds:
                i.kind = 'dma'
                for o in ops:
                    i.reads += R(o)
                i.reads += R('m0')
            else:
                for o in ops:
                    i.reads += R(o)
                if mn.startswith('buffer_atomic') and re.search(r'\bsc0\b', rest):
                    i.writes = R(ops[0])
                if mn.startswith('buffer_store') and ('x4' in mn or 'x3' in mn):
                    i.wide = True
                    i.srcab = R(ops[0])
        elif mn.startswith('s_'):
            i.kind = 'salu'
            if mn in ('s_waitcnt', 's_barrier', 's_nop', 's_branch', 's_endpgm', 's_sleep', 's_setprio') or mn.startswith('s_cbranch') or mn.startswith('s_cmp'):
                for o in ops:
                    i.reads += R(o)
            elif ops:
                i.writes = R(ops[0])
                for o in ops[1:]:
                    i.reads += R(o)
        else:
            raise ValueError('unknown instr ' + text)
        for f, n in i.reads + i.writes:
            if f == 'v':
                self.maxv = max(self.maxv, n)
            elif f == 'a':
                self.maxa = max(self.maxa, n)
            elif f == 's' and n < 102:
                self.maxs = max(self.maxs, n)
        return i

    def need(self, p, c):
        VAL = ('valu', 'trans', 'dl', 'perm', 'rdl')
        n = 0
        pw = set(p.writes)
        cr, cw = set(c.reads), set(c.writes)
        if p.kind in VAL:
            vw = {r for r in pw if r[0] in 'va'}
            sw = {r for r in pw if r[0] == 's'}
            if c.kind == 'mfma' and vw & cr:
                n = max(n, 3 if p.kind == 'dl' else 2)
            if p.kind == 'trans' and c.kind in VAL and c.kind != 'trans' and vw & cr:
                n = max(n, 1)
            if c.kind == 'rdl' and vw & cr:
                n = max(n, 1)
            if c.kind == 'perm' and vw & cr:
                n = max(n, 2)
            if p.kind == 'dl' and vw & (cr | cw):
                if c.mn == p.mn:
                    n = max(n, 0)
                else:
                    n = max(n, 3)
            if sw:
                if c.kind in VAL and sw & cr:
                    n = max(n, 4 if c.kind == 'rdl' else 2)
                if c.kind in ('vmem', 'dma') and sw & cr:
                    n = max(n, 5)
                if c.kind == 'salu' and sw & cr:
                    n = max(n, 1)
        if p.kind == 'mfma':
            big = {4: 8, 8: 12}[p.passes]
            ovl = {4: 6, 8: 10}[p.passes]
            if c.kind == 'mfma':
                if pw & set(c.srcab):
                    n = max(n, big)
                if pw & set(c.srcc):
                    if not (c.srcc == p.writes and c.passes == p.passes):
                        n = max(n, ovl)
                if pw & cw and not (c.srcc == p.writes and c.passes == p.passes):
                    n = max(n, ovl)
            elif c.kind in VAL or c.kind in ('vmem', 'lds', 'dma'):
                if pw & (cr | cw):
                    n = max(n, big)
            if c.kind in VAL and set(p.srcc) & cw:
                n = max(n, {4: 3, 8: 7}[p.passes])
        if p.kind == 'vmem' and p.wide and c.kind in VAL + ('lds', 'vmem') and set(p.srcab) & cw:
            n = max(n, 2)
        if p.kind == 'salu' and ('s', 124) in pw and c.kind == 'dma':
            n = max(n, 1)
        return n

    deferring = None

    def defer_begin(self):
        self.deferring = []
        self._grp = None

    def defer_end(self):
        q, self.deferring = self.deferring, None
        return q

    def group_begin(self):
        if self.deferring is not None:
            self._grp = []

    def group_end(self):
        if self.deferring is not None:
            self.deferring.append(self._grp)
            self._grp = None

    def _rec(self, fn, *args, **kw):
        item = (fn, args, kw)
        if self._grp is not None:
            self._grp.append(item)
        else:
            self.deferring.append([item])

    def gate(self, g):
        self.deferring.append(('gate', g))

    def drain(self, q, n, now=1 << 30):
        k = 0
        while q and k < n:
            if isinstance(q[0], tuple):
                if now < q[0][1]:
                    return
                q.pop(0)
                continue
            for fn, args, kw in q.pop(0):
                fn(*args, **kw)
                k += 1

    def skip(self, n):
        for _ in range(n):
            self._rec(lambda: None)

    def pop_vm(self):
        if self.deferring is not None:
            return self._rec(self.pop_vm)
        self.vmq.pop()

    def I(self, text, vm=None, lg=None):
        if self.deferring is not None:
            return self._rec(self.I, text, vm=vm, lg=lg)
        if text.startswith('v_pk_') and '_f32' in text:
            a_, b_ = expand_pk(text)
            self.I(a_)
            return self.I(b_)
        ins = self.classify(text)
        pad = 0
        for p in self.hist:
            nd = self.need(p, ins)
            if nd:
                dist = self.slot - p.slot - 1
                pad = max(pad, nd - dist)
        if pad > 0:
            self.nop(pad)
        ins.slot = self.slot
        self.slot += 1
        self.hist.append(ins)
        while self.hist and self.slot - self.hist[0].slot > 24:
            self.hist.pop(0)
        self.out.append('  ' + text)
        self.nins += 1
        if ins.kind in ('vmem', 'dma'):
            isload = ins.mn.startswith('buffer_load') or ins.mn.startswith('global_load')
            self.vmq.append((vm, 'L'))
        if ins.kind == 'lds':
            self.lgq.append(lg)
        return ins

    def _count_after(self, q, tags):
        last = -1
        for idx, t in enumerate(q):
            if t in tags:
                last = idx
        if last < 0:
            return None
        return len(q) - 1 - last

    def wait(self, vm=None, lg=None):
        if self.deferring is not None:
            return self._rec(self.wait, vm=vm, lg=lg)
        parts = []
        if vm is not None:
            tags = vm if isinstance(vm, (list, set)) else [vm]
            best = None
            for kind in 'LS':
                last = -1
                for idx, (t, k) in enumerate(self.vmq):
                    if k == kind and t in tags:
                        last = idx
                if last < 0:
                    continue
                n = sum(1 for (t, k) in self.vmq[last + 1:] if k == kind)
                best = n if best is None else min(best, n)
                self.vmq = [e for idx, e in enumerate(self.vmq) if not (e[1] == kind and idx <= last)]
            if best is not None:
                parts.append('vmcnt(%d)' % min(best, 63))
                if best == 0:
                    self.vmq = []
        if lg is not None:
            tags = lg if isinstance(lg, (list, set)) else [lg]
            n = self._count_after(self.lgq, tags)
            if n is not None:
                n2 = min(n, 15)
                parts.append('lgkmcnt(%d)' % n2)
                self.lgq = self.lgq[len(self.lgq) - n2:] if n2 else []
        if parts:
            self.I('s_waitcnt ' + ' '.join(parts))

    def wait_all(self, vm=False, lg=False):
        parts = []
        if vm:
            parts.append('vmcnt(0)')
            self.vmq = []
        if lg:
            parts.append('lgkmcnt(0)')
            self.lgq = []
        self.I('s_waitcnt ' + ' '.join(parts))

    stamps_on = False
    STAMP_OFF = 32 << 20

    def stamp(self, idx):
        if not self.stamps_on:
            return
        self.I('s_memtime s[86:87]')
        self.wait_all(lg=True)
        self.I('s_mov_b32 s%d, s86' % (64 + idx))

    def stamp_flush(self, wsptr_lo, s_wave, nwaves):
        if not self.stamps_on:
            return
        self.I('s_mov_b32 s80, s%d' % wsptr_lo)
        self.I('s_and_b32 s81, s%d, 0xffff' % (wsptr_lo + 1))
        self.I('s_mov_b32 s82, 0x4000000')
        self.I('s_mov_b32 s83, 0x20000')
        self.I('s_mul_i32 s84, s2, %d' % nwaves)
        self.I('s_add_u32 s84, s84, s%d' % s_wave)
        self.I('s_lshl_b32 s84, s84, 6')
        self.I('s_add_u32 s84, s84, %d' % self.STAMP_OFF)
        self.I('v_mov_b32 v22, 0')
        self.I('s_mov_b64 exec, 1')
        for i in range(16):
            self.I('v_mov_b32 v23, s%d' % (64 + i))
            self.I('buffer_store_dword v23, v22, s[80:83], s84 offen offset:%d' % (4 * i))
        self.I('s_mov_b64 exec, -1')

    def text(self):
        return '\n'.join(self.out) + '\n'


def v(n, cnt=1):
    return 'v%d' % n if cnt == 1 else 'v[%d:%d]' % (n, n + cnt - 1)


def a(n, cnt=1):
    return 'a%d' % n if cnt == 1 else 'a[%d:%d]' % (n, n + cnt - 1)


def s(n, cnt=1):
    return 's%d' % n if cnt == 1 else 's[%d:%d]' % (n, n + cnt - 1)
```

```python
from asmlib import *

ACT_OFF = 0
PHIQ_OFF = 128 * 54 * 1024
KVA_OFF = PHIQ_OFF + 128 * 32 * 1280
KVA_REP = 32 * 3360
NREP = 3
STAT_OFF = KVA_OFF + NREP * KVA_REP + 1024
CSP_OFF = STAT_OFF + 256 * 128
WR_OFF = CSP_OFF + 16 * 16 * 1024
WR_CB = 74 * 5120
O_OFF = WR_OFF + 8 * WR_CB
CNT_OFF = O_OFF + 128 * 20 * 1024
WS_END = CNT_OFF + 32 * 256

LOG2E = 0x3fb8aa3b
BIG = 0x7ffffff0

SRD_X, SRD_W, SRD_WS, SRD_AUX, SRD_DBG = 20, 24, 28, 32, 36
S_TB, S_FB, S_W, S_TG, S_GRP, S_M0B, S_TMP, S_M0X, S_LOG2E = 40, 41, 42, 43, 44, 45, 46, 47, 48
S_XOFF = 49
S_DT = 50
S_WO, S_XO = 51, 59
S_MASK = 52
S_T3, S_T4 = 54, 55
S_P0, S_M0Q, S_HF, S_T5 = 56, 56, 57, 58
V_LANE, V_T, V_G = 1, 2, 3
V_DM0, V_DM1, V_RB0, V_RB1, V_DX0, V_DX1, V_ONES = 4, 5, 6, 7, 8, 9, 20
V_XR0 = 10
V_NM = 14
V_N, V_HI = 16, 17
V_POLL, V_PA = 18, 19
V_TMP0, V_TMP1 = 22, 23
WIN, ACC, XF, HK = 24, 40, 104, 136
V_K2, V_K1 = 248, 250
D_RING = 6
XP = 16384
DBG_STAT, DBG_CS = 16, 32


def srd(A, d, lo, size):
    A.I('s_mov_b32 %s, %s' % (s(d), s(lo)))
    A.I('s_and_b32 %s, %s, 0xffff' % (s(d + 1), s(lo + 1)))
    A.I('s_mov_b32 %s, 0x%x' % (s(d + 2), size))
    A.I('s_mov_b32 %s, 0x20000' % s(d + 3))


def swap23(A, dst, src, t0):
    A.I('v_and_b32 %s, 0x13, %s' % (v(dst), v(src)))
    A.I('v_and_b32 %s, 4, %s' % (v(t0), v(src)))
    A.I('v_lshl_or_b32 %s, %s, 1, %s' % (v(dst), v(t0), v(dst)))
    A.I('v_and_b32 %s, 8, %s' % (v(t0), v(src)))
    A.I('v_lshrrev_b32 %s, 1, %s' % (v(t0), v(t0)))
    A.I('v_or_b32 %s, %s, %s' % (v(dst), v(dst), v(t0)))


def divmod_const(A, q, r, x, c, magic):
    A.I('v_mul_u32_u24 %s, %d, %s' % (v(q), magic, v(x)))
    A.I('v_lshrrev_b32 %s, 16, %s' % (v(q), v(q)))
    A.I('v_mul_u32_u24 %s, %d, %s' % (v(r), c, v(q)))
    A.I('v_sub_u32 %s, %s, %s' % (v(r), v(x), v(r)))


def trbase(A, dst, rowbytes, t0, t1):
    A.I('v_lshrrev_b32 %s, 1, %s' % (v(t0), v(V_G)))
    A.I('v_lshlrev_b32 %s, 4, %s' % (v(t0), v(t0)))
    A.I('v_and_b32 %s, 1, %s' % (v(t1), v(V_G)))
    A.I('v_lshl_add_u32 %s, %s, 2, %s' % (v(t0), v(t1), v(t0)))
    A.I('v_bfe_u32 %s, %s, 2, 2' % (v(t1), v(V_LANE)))
    A.I('v_add_u32 %s, %s, %s' % (v(t0), v(t0), v(t1)))
    A.I('v_mul_u32_u24 %s, %d, %s' % (v(t0), rowbytes, v(t0)))
    A.I('v_and_b32 %s, 3, %s' % (v(t1), v(V_LANE)))
    A.I('v_lshl_add_u32 %s, %s, 3, %s' % (v(dst), v(t1), v(t0)))


def xf(sk, ks):
    return XF + ((sk % 4) * 2 + ks) * 4


def dma_x(A, p, xbase):
    A.I('s_add_u32 %s, %s, %d' % (s(S_DT), s(S_XOFF), p * 128))
    for j, d in enumerate((V_DX0, V_DX1)):
        A.I('s_add_u32 m0, %s, %d' % (s(S_M0X), xbase + (p % 3) * XP + j * 1024))
        A.I('buffer_load_dwordx4 %s, %s, %s offen lds' % (v(d), s(SRD_X, 4), s(S_DT)), vm=('xp', p))


class Loop:
    def __init__(self, A, name, tiles, ks_off, half_off, dma_issue, xbase, hooks=None, nwin=4, fillers=None):
        self.__dict__.update(locals())
        self.hooks = hooks or {}
        self.nf = 2 * len(tiles)

    def rd(self, F):
        A = self.A
        sk, fi = divmod(F, self.nf)
        ks, ti = divmod(fi, len(self.tiles))
        slot = sk % D_RING
        base = V_RB0 if slot < 3 else V_RB1
        off = (slot % 3) * F_SLOT + ks * self.ks_off + self.tiles[ti][0]
        w = WIN + (F % self.nwin) * 4
        A.I('ds_read_b64_tr_b16 %s, %s offset:%d' % (v(w, 2), v(base), off), lg=('f', F))
        A.I('ds_read_b64_tr_b16 %s, %s offset:%d' % (v(w + 2, 2), v(base), off + self.half_off), lg=('f', F))

    def sync_stage(self, sk):
        A = self.A
        if sk % 2:
            return
        A.wait(vm=[('dma', sk), ('dma', sk + 1), ('xp', sk // 2)], lg='z')
        A.I('s_barrier')
        p = sk // 2
        for s4 in range(4):
            A.I('ds_read_b128 %s, %s offset:%d' % (v(xf(sk + s4 // 2, s4 % 2), 4), v(V_XR0 + s4), (p % 3) * XP), lg=('x', sk + s4 // 2))
        if sk + 3 <= 19:
            self.dma_issue(sk + 3)
        self.pending = sk

    def issue_after(self, sk):
        A = self.A
        if sk + 4 <= 19:
            self.dma_issue(sk + 4)
        if sk // 2 + 2 < 10:
            dma_x(A, sk // 2 + 2, self.xbase)

    def run(self):
        A = self.A
        tot = 20 * self.nf
        la = self.nwin - 1
        self.pending = None
        self.sync_stage(0)
        A.stamp(1)
        for F in range(la):
            self.rd(F)
        for sk in range(20):
            if sk in (1, 5, 10):
                A.stamp({1: 2, 5: 3, 10: 4}[sk])
            if sk in self.hooks:
                self.hooks[sk]()
            for fi in range(self.nf):
                F = sk * self.nf + fi
                Fn = F + la
                if Fn < tot:
                    if Fn % self.nf == 0:
                        self.sync_stage(Fn // self.nf)
                    self.rd(Fn)
                A.wait(lg=[('f', F), ('x', sk)])
                w = WIN + (F % self.nwin) * 4
                ks, ti = divmod(fi, len(self.tiles))
                d = v(self.tiles[ti][1], 16)
                A.I('v_mfma_f32_32x32x16_bf16 %s, %s, %s, %s' % (d, v(w, 4), v(xf(sk, ks), 4), d if (sk or ks) else '0'))
                if self.pending is not None and fi == (1 if self.name.endswith('0') else 3):
                    self.issue_after(self.pending)
                    self.pending = None
                if self.fillers:
                    A.drain(self.fillers, 10 if sk < 3 else 4, sk)
        assert not self.fillers
        A.stamp(5)


def stats_to_mr(A, vsum, vsq, nm, r, t0):
    A.I('v_mul_f32 %s, 0x3acccccd, %s' % (v(vsum), v(vsum)))
    A.I('v_mul_f32 %s, 0x3acccccd, %s' % (v(vsq), v(vsq)))
    A.I('v_fma_f32 %s, -%s, %s, %s' % (v(vsq), v(vsum), v(vsum), v(vsq)))
    A.I('v_max_f32 %s, 0, %s' % (v(vsq), v(vsq)))
    A.I('v_cvt_pk_bf16_f32 %s, %s, %s' % (v(t0), v(vsum), v(vsq)))
    A.I('v_lshlrev_b32 %s, 16, %s' % (v(nm), v(t0)))
    A.I('v_xor_b32 %s, 0x80000000, %s' % (v(nm), v(nm)))
    A.I('v_and_b32 %s, 0xffff0000, %s' % (v(t0), v(t0)))
    A.I('v_add_f32 %s, 0x3727c5ac, %s' % (v(t0), v(t0)))
    A.I('v_cvt_pk_bf16_f32 %s, %s, %s' % (v(t0), v(t0), v(t0)))
    A.I('v_and_b32 %s, 0xffff0000, %s' % (v(t0), v(t0)))
    A.I('v_sqrt_f32 %s, %s' % (v(t0), v(t0)))
    A.I('v_cvt_pk_bf16_f32 %s, %s, %s' % (v(t0), v(t0), v(t0)))
    A.I('v_and_b32 %s, 0xffff0000, %s' % (v(t0), v(t0)))
    A.I('v_rcp_f32 %s, %s' % (v(r), v(t0)))


def wave_sum(A, regs, t):
    for ctl in ('quad_perm:[1,0,3,2]', 'quad_perm:[2,3,0,1]', 'row_half_mirror', 'row_mirror'):
        A.nop(2)
        for r_ in regs:
            A.I('v_add_f32_dpp %s, %s, %s %s row_mask:0xf bank_mask:0xf' % (v(r_), v(r_), v(r_), ctl))
    for op in ('v_permlane16_swap_b32', 'v_permlane32_swap_b32'):
        for r_, t_ in zip(regs, t):
            A.I('v_mov_b32 %s, %s' % (v(t_), v(r_)))
        for r_, t_ in zip(regs, t):
            A.I('%s %s, %s' % (op, v(r_), v(t_)))
        for r_, t_ in zip(regs, t):
            A.I('v_add_f32 %s, %s, %s' % (v(r_), v(r_), v(t_)))


class Coop:
    def __init__(self, A, rowbytes, csw_lds, cs_lds, colmap):
        self.__dict__.update(locals())
        self.SR = 216
        self.CR = 224
        self.T = 234

    def issue_loads(self):
        A, T = self.A, self.T
        A.I('s_lshl_b32 %s, %s, 7' % (s(S_TMP), s(S_TB)))
        A.I('s_lshl_b32 %s, %s, 3' % (s(S_T3), s(S_FB)))
        A.I('s_add_u32 %s, %s, %s' % (s(S_TMP), s(S_TMP), s(S_T3)))
        A.I('s_add_u32 %s, %s, %s' % (s(S_T5), s(S_TMP), s(S_W)))
        A.I('s_mul_i32 %s, %s, 1280' % (s(S_TMP), s(S_T5)))
        A.I('v_lshlrev_b32 %s, 4, %s' % (v(T), v(V_LANE)))
        A.I('buffer_load_dwordx4 %s, %s, %s, %s offen' % (v(self.SR, 4), v(T), s(SRD_X, 4), s(S_TMP)), vm='sl')
        A.I('v_mov_b32 %s, 0x%x' % (v(T + 1), BIG))
        A.I('v_cmp_gt_u32 vcc, 16, %s' % v(V_LANE))
        A.I('v_cndmask_b32 %s, %s, %s, vcc' % (v(T + 1), v(T + 1), v(T)))
        A.I('buffer_load_dwordx4 %s, %s, %s, %s offen offset:1024' % (v(self.SR + 4, 4), v(T + 1), s(SRD_X, 4), s(S_TMP)), vm='sl')
        self.colmap(T + 2, T + 3)
        A.I('s_mul_i32 %s, %s, 40' % (s(S_TMP), s(S_TB)))
        A.I('s_mul_i32 %s, %s, 5' % (s(S_T3), s(S_W)))
        A.I('s_add_u32 %s, %s, %s' % (s(S_TMP), s(S_TMP), s(S_T3)))
        A.I('s_mul_i32 %s, %s, %d' % (s(S_TMP), s(S_TMP), self.rowbytes))
        for i in range(5):
            A.I('buffer_load_dwordx2 %s, %s, %s, %s offen' % (v(self.CR + 2 * i, 2), v(T + 2), s(SRD_W, 4), s(S_TMP)), vm='cl')
            if i < 4:
                A.I('s_add_u32 %s, %s, %d' % (s(S_TMP), s(S_TMP), self.rowbytes))

    def compute(self):
        A, T = self.A, self.T
        SU, SQ = T + 4, T + 5
        A.I('v_mov_b32 %s, 0' % v(SU))
        A.I('v_mov_b32 %s, 0' % v(SQ))
        A.wait(vm='sl')
        for i in range(8):
            A.I('v_lshlrev_b32 %s, 16, %s' % (v(T + 6), v(self.SR + i)))
            A.I('v_and_b32 %s, 0xffff0000, %s' % (v(T + 7), v(self.SR + i)))
            A.I('v_add_f32 %s, %s, %s' % (v(SU), v(SU), v(T + 6)))
            A.I('v_fmac_f32 %s, %s, %s' % (v(SQ), v(T + 6), v(T + 6)))
            A.I('v_add_f32 %s, %s, %s' % (v(SU), v(SU), v(T + 7)))
            A.I('v_fmac_f32 %s, %s, %s' % (v(SQ), v(T + 7), v(T + 7)))
        wave_sum(A, [SU, SQ], [T + 6, T + 7])
        stats_to_mr(A, SU, SQ, T + 8, T + 9, T + 6)
        A.I('v_mov_b32 %s, 0' % v(T + 6))
        A.I('v_lshlrev_b32 %s, 2, v0' % v(T + 7))
        A.I('v_mov_b32 %s, 0x%x' % (v(T + 14), BIG))
        A.I('v_cmp_gt_u32 vcc, 320, v0')
        A.I('v_cndmask_b32 %s, %s, %s, vcc' % (v(T + 7), v(T + 14), v(T + 7)))
        A.I('s_mul_i32 %s, s2, 1280' % s(62))
        A.I('s_add_u32 %s, %s, %d' % (s(62), s(62), KVA_OFF))
        A.group_begin()
        A.I('s_cmp_lt_u32 s2, 252')
        A.I('s_cselect_b32 %s, %s, 0x%x' % (s(62), s(62), BIG))
        A.group_end()
        A.I('buffer_store_dword %s, %s, %s, %s offen sc1' % (v(T + 6), v(T + 7), s(SRD_WS, 4), s(62)), vm='sst')
        A.I('v_cmp_eq_u32 vcc, 0, v0')
        A.I('v_cndmask_b32 %s, %s, 0, vcc' % (v(T + 7), v(T + 14)))
        A.I('s_lshl_b32 %s, s2, 8' % s(62))
        A.I('s_add_u32 %s, %s, %d' % (s(62), s(62), CNT_OFF))
        A.I('buffer_store_dword %s, %s, %s, %s offen' % (v(T + 6), v(T + 7), s(SRD_WS, 4), s(62)), vm='z2')
        A.wait(vm='cl')
        C = T + 10
        for i in range(5):
            for h in range(2):
                r_ = self.CR + 2 * i + h
                if i == 0:
                    A.I('v_lshlrev_b32 %s, 16, %s' % (v(C + 2 * h), v(r_)))
                    A.I('v_and_b32 %s, 0xffff0000, %s' % (v(C + 2 * h + 1), v(r_)))
                else:
                    A.I('v_lshlrev_b32 %s, 16, %s' % (v(T + 6), v(r_)))
                    A.I('v_and_b32 %s, 0xffff0000, %s' % (v(T + 7), v(r_)))
                    A.I('v_add_f32 %s, %s, %s' % (v(C + 2 * h), v(C + 2 * h), v(T + 6)))
                    A.I('v_add_f32 %s, %s, %s' % (v(C + 2 * h + 1), v(C + 2 * h + 1), v(T + 7)))
        A.I('s_lshl_b32 %s, %s, 10' % (s(62), s(S_W)))
        A.I('s_add_u32 %s, %s, %d' % (s(62), s(62), self.csw_lds))
        A.I('v_lshlrev_b32 %s, 4, %s' % (v(T + 6), v(V_LANE)))
        A.I('v_add_u32 %s, %s, %s' % (v(T + 6), s(62), v(T + 6)))
        A.I('ds_write_b128 %s, %s' % (v(T + 6), v(C, 4)), lg='z')
        A.I('v_mov_b32 %s, %s' % (v(T + 6), s(62)))
        A.I('ds_write_b64 %s, %s offset:1016' % (v(T + 6), v(T + 8, 2)), lg='z')

    def hook_reduce(self):
        A = self.A
        R = HK
        A.I('s_lshl_b32 %s, %s, 8' % (s(S_TMP), s(S_TG)))
        A.I('s_add_u32 %s, %s, %d' % (s(S_TMP), s(S_TMP), self.csw_lds))
        A.I('v_lshlrev_b32 %s, 2, %s' % (v(R + 8), v(V_LANE)))
        A.I('v_add_u32 %s, %s, %s' % (v(R + 9), s(S_TMP), v(R + 8)))
        for i in range(8):
            A.I('ds_read_b32 %s, %s offset:%d' % (v(R + i), v(R + 9), i * 1024), lg='cr')
        A.I('v_and_b32 %s, 7, %s' % (v(R + 9), v(V_LANE)))
        A.I('v_lshlrev_b32 %s, 10, %s' % (v(R + 9), v(R + 9)))
        A.I('v_add_u32 %s, %d, %s' % (v(R + 9), self.csw_lds + 1016, v(R + 9)))
        A.I('ds_read_b64 %s, %s' % (v(R + 10, 2), v(R + 9)), lg='cr')

    def hook_reduce2(self):
        A = self.A
        R = HK
        A.wait(lg='cr')
        for i in range(1, 8):
            A.I('v_add_f32 %s, %s, %s' % (v(R), v(R), v(R + i)))
        A.I('s_lshl_b32 %s, %s, 4' % (s(S_TMP), s(S_FB)))
        A.I('s_add_u32 %s, %s, %s' % (s(S_TMP), s(S_TMP), s(S_TB)))
        A.I('s_lshl_b32 %s, %s, 10' % (s(S_TMP), s(S_TMP)))
        A.I('s_lshl_b32 %s, %s, 8' % (s(S_T3), s(S_TG)))
        A.I('s_add_u32 %s, %s, %s' % (s(S_TMP), s(S_TMP), s(S_T3)))
        A.I('s_add_u32 %s, %s, %d' % (s(S_TMP), s(S_TMP), CSP_OFF))
        A.I('buffer_store_dword %s, %s, %s, %s offen sc1' % (v(R), v(R + 8), s(SRD_WS, 4), s(S_TMP)), vm='cst')
        A.I('s_lshl_b32 %s, %s, 4' % (s(S_TMP), s(S_TB)))
        A.I('s_add_u32 %s, %s, %s' % (s(S_TMP), s(S_TMP), s(S_FB)))
        A.I('s_lshl_b32 %s, %s, 7' % (s(S_TMP), s(S_TMP)))
        A.I('s_add_u32 %s, %s, %d' % (s(S_TMP), s(S_TMP), STAT_OFF))
        A.I('s_cmp_eq_u32 %s, 0' % s(S_TG))
        A.I('s_cselect_b32 %s, %s, 0x%x' % (s(S_TMP), s(S_TMP), BIG))
        A.I('v_lshlrev_b32 %s, 3, %s' % (v(R + 9), v(V_LANE)))
        A.I('s_mov_b64 exec, 0xffff')
        A.I('buffer_store_dwordx2 %s, %s, %s, %s offen sc1' % (v(R + 10, 2), v(R + 9), s(SRD_WS, 4), s(S_TMP)), vm='cst')
        A.I('s_mov_b64 exec, -1')

    def hook_waitst(self):
        self.A.wait(vm=['sst', 'cst'])

    def hook_signal(self, grp, name):
        A = self.A
        if grp != 0:
            return
        R = HK + 10
        A.I('v_mov_b32 %s, 1' % v(R))
        A.I('s_and_b32 %s, s2, 1' % s(S_TMP))
        A.I('s_lshl_b32 %s, %s, 7' % (s(S_TMP), s(S_TMP)))
        A.I('v_mov_b32 %s, %s' % (v(R + 1), s(S_TMP)))
        A.I('v_lshlrev_b32 %s, 7, %s' % (v(V_PA), v(V_LANE)))
        A.I('v_and_b32 %s, 128, %s' % (v(V_PA), v(V_PA)))
        A.I('s_cmp_lg_u32 %s, 0' % s(S_TG))
        A.I('s_cbranch_scc1 L_%s_nosig' % name)
        A.I('s_mov_b64 exec, 1')
        A.I('buffer_atomic_add %s, %s, %s, 0 offen sc1' % (v(R), v(R + 1), s(SRD_DBG, 4)), vm='at')
        A.vmq.pop()
        A.I('s_mov_b64 exec, -1')
        A.label('L_%s_nosig' % name)

    def hook_poll(self, grp, name):
        A = self.A
        if grp != 0:
            return
        lp, ld = 'L_%s_poll' % name, 'L_%s_pdone' % name
        A.wait(vm='poll')
        A.I('s_cmp_lg_u32 %s, 0' % s(S_TG))
        A.I('s_cbranch_scc1 %s' % ld)
        A.label(lp)
        A.I('v_readlane_b32 %s, %s, 0' % (s(S_TMP), v(V_POLL)))
        A.I('v_readlane_b32 %s, %s, 1' % (s(S_T3), v(V_POLL)))
        A.I('s_min_u32 %s, %s, %s' % (s(S_TMP), s(S_TMP), s(S_T3)))
        A.I('s_cmp_ge_u32 %s, 128' % s(S_TMP))
        A.I('s_cbranch_scc1 %s' % ld)
        A.I('s_sleep 2')
        A.I('buffer_load_dword %s, %s, %s, 0 offen sc1' % (v(V_POLL), v(V_PA), s(SRD_DBG, 4)))
        A.vmq.pop()
        A.I('s_waitcnt vmcnt(0)')
        A.I('s_branch %s' % lp)
        A.label(ld)
        A.nop(4)

    def hook_poll_issue(self, grp):
        A = self.A
        if grp != 0:
            return
        A.I('s_mul_i32 %s, %s, 0x1000' % (s(S_TMP), s(S_TG)))
        A.I('buffer_load_dword %s, %s, %s, %s offen sc1' % (v(V_POLL), v(V_PA), s(SRD_DBG, 4), s(S_TMP)), vm='poll')

    def hook_consume(self, grp):
        A = self.A
        A.I('s_lshl_b32 %s, %s, 11' % (s(S_TMP), s(S_TB)))
        A.I('s_lshl_b32 %s, %s, 9' % (s(S_T3), s(S_TG)))
        A.I('s_add_u32 %s, %s, %s' % (s(S_TMP), s(S_TMP), s(S_T3)))
        A.I('s_add_u32 %s, %s, %d' % (s(S_TMP), s(S_TMP), STAT_OFF))
        A.I('v_lshrrev_b32 %s, 3, %s' % (v(V_TMP0), v(V_N)))
        A.I('v_lshlrev_b32 %s, 7, %s' % (v(V_TMP0), v(V_TMP0)))
        A.I('v_and_b32 %s, 7, %s' % (v(V_POLL), v(V_N)))
        A.I('v_lshl_add_u32 %s, %s, 3, %s' % (v(V_TMP0), v(V_POLL), v(V_TMP0)))
        A.I('buffer_load_dwordx2 %s, %s, %s, %s offen sc1' % (v(V_NM, 2), v(V_TMP0), s(SRD_WS, 4), s(S_TMP)), vm='nm')
        if grp == 0:
            A.I('s_lshl_b32 %s, %s, 14' % (s(S_TMP), s(S_FB)))
            A.I('s_lshl_b32 %s, %s, 8' % (s(S_T3), s(S_TG)))
            A.I('s_add_u32 %s, %s, %s' % (s(S_TMP), s(S_TMP), s(S_T3)))
            A.I('s_add_u32 %s, %s, %d' % (s(S_TMP), s(S_TMP), CSP_OFF))
            A.I('v_lshlrev_b32 %s, 2, %s' % (v(V_TMP1), v(V_LANE)))
            for p in range(16):
                A.I('buffer_load_dword %s, %s, %s, %s offen offset:%d sc1' % (v(HK + p), v(V_TMP1), s(SRD_WS, 4), s(S_TMP), (p % 4) * 1024), vm='csp')
                if p % 4 == 3 and p < 15:
                    A.I('s_add_u32 %s, %s, 4096' % (s(S_TMP), s(S_TMP)))

    def finish(self, grp):
        A = self.A
        if grp == 0:
            A.wait(vm='csp')
            for st in (8, 4, 2, 1):
                for i in range(st):
                    A.I('v_add_f32 %s, %s, %s' % (v(HK + i), v(HK + i), v(HK + i + st)))
            A.I('s_lshl_b32 %s, %s, 8' % (s(S_TMP), s(S_TG)))
            A.I('s_add_u32 %s, %s, %d' % (s(S_TMP), s(S_TMP), self.cs_lds))
            A.I('v_add_u32 %s, %s, %s' % (v(V_TMP1), s(S_TMP), v(V_TMP1)))
            A.I('ds_write_b32 %s, %s' % (v(V_TMP1), v(HK)), lg='pub')
            A.wait(lg='pub')
        A.wait(vm='nm')

    def hooks(self, grp, name):
        h = {}
        if grp == 0:
            h[4] = self.hook_reduce
            h[5] = self.hook_reduce2
        h[7] = self.hook_waitst
        h[8] = lambda: self.hook_signal(grp, name)
        h[16] = lambda: self.hook_poll_issue(grp)
        h[17] = lambda: self.hook_poll(grp, name)
        h[18] = lambda: self.hook_consume(grp)
        return h


SRD_R = 60


def x_prefetch(A, R):
    import os
    if os.environ.get('XPF', '1') == '0':
        return
    A.I('s_lshr_b32 s63, %s, 3' % s(S_FB))
    A.I('s_lshl_b32 s63, s63, 7')
    A.I('s_add_u32 s63, s63, %s' % s(S_XOFF))
    for p in range(3, 10, 2):
        for j, d in enumerate((V_DX0, V_DX1)):
            A.I('buffer_load_dwordx4 %s, %s, %s, s63 offen offset:%d' % (v(R, 4), v(d), s(SRD_X, 4), p * 128), vm='xpf')


def relayout_issue(A, R):
    A.I('s_lshl_b32 s92, %s, 3' % s(S_TB))
    A.I('s_add_u32 s92, s92, %s' % s(S_FB))
    A.I('s_sub_u32 s92, s92, 8')
    A.I('s_lshl_b32 s92, s92, 3')
    A.I('s_add_u32 s92, s92, %s' % s(S_W))
    A.group_begin()
    A.I('s_cmp_lt_u32 s92, 640')
    A.I('s_cselect_b32 s96, s88, s90')
    A.I('s_cselect_b32 s97, s89, s91')
    A.I('s_cselect_b32 s93, 0, 640')
    A.group_end()
    A.I('s_and_b32 s97, s97, 0xffff')
    A.I('s_mov_b32 s98, %d' % (1728 * 1280))
    A.I('s_mov_b32 s99, 0x20000')
    A.I('s_sub_u32 s93, s92, s93')
    A.I('s_mul_i32 s93, s93, 1280')
    A.I('v_lshlrev_b32 %s, 4, %s' % (v(R + 16), v(V_LANE)))
    A.I('v_mov_b32 %s, 0x%x' % (v(R + 17), BIG))
    A.I('v_cmp_gt_u32 vcc, 16, %s' % v(V_LANE))
    A.I('v_cndmask_b32 %s, %s, %s, vcc' % (v(R + 17), v(R + 17), v(R + 16)))
    A.I('buffer_load_dwordx4 %s, %s, s[96:99], s93 offen' % (v(R, 4), v(R + 16)), vm='rl')
    A.I('buffer_load_dwordx4 %s, %s, s[96:99], s93 offen offset:1024' % (v(R + 4, 4), v(R + 17)), vm='rl')
    A.I('s_mov_b32 s96, s90')
    A.I('s_and_b32 s97, s91, 0xffff')
    A.I('s_add_u32 s93, s92, 1408')
    A.I('s_mul_i32 s93, s93, 1280')
    A.I('buffer_load_dwordx4 %s, %s, s[96:99], s93 offen' % (v(R + 8, 4), v(R + 16)), vm='rl')
    A.I('buffer_load_dwordx4 %s, %s, s[96:99], s93 offen offset:1024' % (v(R + 12, 4), v(R + 17)), vm='rl')
    A.I('s_add_u32 s93, s92, 384')
    A.I('s_mul_i32 s93, s93, 1280')
    A.I('buffer_load_dwordx4 %s, %s, s[96:99], s93 offen' % (v(R + 24, 4), v(R + 16)), vm='rl')
    A.I('buffer_load_dwordx4 %s, %s, s[96:99], s93 offen offset:1024' % (v(R + 28, 4), v(R + 17)), vm='rl')


def relayout_store(A, R):
    T = R + 18
    for j in range(2):
        A.I('v_add_u32 %s, %d, %s' % (v(T), 64 * j, v(V_LANE)))
        divmod_const(A, T + 1, T + 2, T, 10, 6554)
        A.I('s_mov_b32 s94, %d' % WR_CB)
        A.I('v_mul_lo_u32 %s, %s, s94' % (v(T + 1), v(T + 1)))
        A.I('v_lshl_add_u32 %s, %s, 4, %s' % (v(R + 16 + j), v(T + 2), v(T + 1)))
    A.I('v_mov_b32 %s, 0x%x' % (v(T), BIG))
    A.I('v_cmp_gt_u32 vcc, 16, %s' % v(V_LANE))
    A.I('v_cndmask_b32 %s, %s, %s, vcc' % (v(R + 17), v(T), v(R + 17)))

    def w2dest(srow):
        A.I('s_lshr_b32 s94, %s, 5' % srow)
        A.I('s_mul_i32 s95, s94, 5120')
        A.I('s_and_b32 s94, %s, 7' % srow)
        A.I('s_and_b32 s101, %s, 8' % srow)
        A.I('s_lshl_b32 s101, s101, 1')
        A.I('s_or_b32 s94, s94, s101')
        A.I('s_and_b32 s101, %s, 16' % srow)
        A.I('s_lshr_b32 s101, s101, 1')
        A.I('s_or_b32 s94, s94, s101')
        A.I('s_mul_i32 s94, s94, 160')
        A.I('s_add_u32 s95, s95, s94')
    A.I('s_sub_u32 s93, s92, 640')
    w2dest('s93')
    A.I('s_mov_b32 s100, s95')
    A.I('s_mul_i32 s93, s92, 3277')
    A.I('s_lshr_b32 s93, s93, 16')
    A.I('s_mul_i32 s94, s93, 20')
    A.I('s_sub_u32 s94, s92, s94')
    A.I('s_lshr_b32 s95, s93, 3')
    A.I('s_mul_i32 s95, s95, %d' % (5 * 5120))
    A.I('s_add_u32 s95, s95, %d' % (54 * 5120))
    A.I('s_and_b32 s93, s93, 7')
    A.I('s_lshr_b32 s96, s93, 1')
    A.I('s_mul_i32 s96, s96, 5120')
    A.I('s_and_b32 s97, s93, 1')
    A.I('s_lshl_b32 s97, s97, 4')
    A.I('s_add_u32 s97, s97, s94')
    A.I('s_mul_i32 s97, s97, 160')
    A.I('s_add_u32 s96, s96, s97')
    A.I('s_lshr_b32 s97, s93, 2')
    A.I('s_lshl_b32 s97, s97, 4')
    A.I('s_and_b32 s98, s93, 3')
    A.I('s_add_u32 s97, s97, s98')
    A.I('s_sub_u32 s98, s94, 16')
    A.I('s_lshl_b32 s98, s98, 2')
    A.I('s_add_u32 s97, s97, s98')
    A.I('s_mul_i32 s97, s97, 160')
    A.I('s_add_u32 s97, s97, %d' % (4 * 5120))
    A.group_begin()
    A.I('s_cmp_lt_u32 s94, 16')
    A.I('s_cselect_b32 s96, s96, s97')
    A.group_end()
    A.I('s_add_u32 s95, s95, s96')
    A.group_begin()
    A.I('s_cmp_lt_u32 s92, 640')
    A.I('s_cselect_b32 s95, s95, s100')
    A.group_end()
    A.I('s_add_u32 s100, s95, %d' % WR_OFF)
    A.wait(vm='rl')
    A.I('buffer_store_dwordx4 %s, %s, %s, s100 offen sc1' % (v(R, 4), v(R + 16), s(SRD_WS, 4)), vm='rs')
    A.I('buffer_store_dwordx4 %s, %s, %s, s100 offen sc1' % (v(R + 4, 4), v(R + 17), s(SRD_WS, 4)), vm='rs')
    A.I('s_add_u32 s93, s92, 1408')
    w2dest('s93')
    A.I('s_add_u32 s95, s95, %d' % WR_OFF)
    A.group_begin()
    A.I('s_cmp_lt_u32 s92, 320')
    A.I('s_cselect_b32 s95, s95, 0x%x' % BIG)
    A.group_end()
    A.I('buffer_store_dwordx4 %s, %s, %s, s95 offen sc1' % (v(R + 8, 4), v(R + 16), s(SRD_WS, 4)), vm='rs')
    A.I('buffer_store_dwordx4 %s, %s, %s, s95 offen sc1' % (v(R + 12, 4), v(R + 17), s(SRD_WS, 4)), vm='rs')
    A.I('s_add_u32 s93, s92, 384')
    w2dest('s93')
    A.I('s_add_u32 s95, s95, %d' % WR_OFF)
    A.I('buffer_store_dwordx4 %s, %s, %s, s95 offen sc1' % (v(R + 24, 4), v(R + 16), s(SRD_WS, 4)), vm='rs')
    A.I('buffer_store_dwordx4 %s, %s, %s, s95 offen sc1' % (v(R + 28, 4), v(R + 17), s(SRD_WS, 4)), vm='rs')


def read_cs_list(A, cs_lds, dsts, t0):
    A.I('v_lshlrev_b32 %s, 4, %s' % (v(t0), v(V_G)))
    A.I('v_add_u32 %s, %d, %s' % (v(t0), cs_lds, v(t0)))
    for ft, d in enumerate(dsts):
        A.I('ds_read_b128 %s, %s offset:%d' % (v(d, 4), v(t0), ft * 64), lg='cs')


def setup_x(A, xbase, t):
    A.I('s_lshl_b32 %s, %s, 7' % (s(S_TMP), s(S_W)))
    for j, dst in enumerate((V_DX0, V_DX1)):
        A.I('v_add_u32 %s, %s, %s' % (v(t[0]), s(S_TMP), v(V_LANE)))
        if j:
            A.I('v_add_u32 %s, 64, %s' % (v(t[0]), v(t[0])))
        A.I('v_lshrrev_b32 %s, 3, %s' % (v(t[1]), v(t[0])))
        A.I('v_bfe_u32 %s, %s, 4, 3' % (v(t[2]), v(t[0])))
        A.I('v_and_b32 %s, 7, %s' % (v(t[0]), v(t[0])))
        A.I('v_xor_b32 %s, %s, %s' % (v(t[0]), v(t[0]), v(t[2])))
        A.I('v_mul_u32_u24 %s, 1280, %s' % (v(t[1]), v(t[1])))
        A.I('v_lshl_add_u32 %s, %s, 4, %s' % (v(dst), v(t[0]), v(t[1])))
    A.I('s_mul_i32 %s, %s, %d' % (s(S_XOFF), s(S_TB), 128 * 1280))
    A.I('s_lshl_b32 %s, %s, 11' % (s(S_M0X), s(S_W)))
    A.I('v_bfe_u32 %s, %s, 1, 3' % (v(t[0]), v(V_N)))
    A.I('v_xor_b32 %s, %s, %s' % (v(t[0]), v(t[0]), v(V_HI)))
    A.I('v_lshlrev_b32 %s, 4, %s' % (v(t[0]), v(t[0])))
    A.I('v_lshl_add_u32 %s, %s, 7, %s' % (v(t[0]), v(V_N), v(t[0])))
    A.I('s_lshl_b32 %s, %s, 12' % (s(S_TMP), s(S_TG)))
    A.I('s_add_u32 %s, %s, %d' % (s(S_TMP), s(S_TMP), xbase))
    for s4 in range(4):
        A.I('v_xor_b32 %s, %d, %s' % (v(t[1]), 32 * s4, v(t[0])))
        A.I('v_add_u32 %s, %s, %s' % (v(V_XR0 + s4), s(S_TMP), v(t[1])))


def gen_k1(A, mapping=0):
    A.label('k1_kernel')
    A.I('s_cmp_ge_u32 s2, 256')
    A.I('s_cbranch_scc1 L_k1_end')
    A.I('s_load_dwordx4 s[4:7], s[0:1], 0')
    A.I('s_load_dwordx2 s[8:9], s[0:1], 16')
    A.I('s_load_dwordx4 s[12:15], s[0:1], 40')
    A.I('s_load_dwordx4 s[16:19], s[0:1], 72')
    A.I('s_load_dwordx2 s[88:89], s[0:1], 24')
    A.I('s_load_dwordx2 s[90:91], s[0:1], 56')
    if mapping == 0:
        A.I('s_lshr_b32 %s, s2, 4' % s(S_TB))
        A.I('s_and_b32 %s, s2, 15' % s(S_FB))
    elif mapping == 1:
        A.I('s_bfe_u32 %s, s2, 0x10002' % s(S_TB))
        A.I('s_lshl_b32 %s, %s, 3' % (s(S_TB), s(S_TB)))
        A.I('s_bfe_u32 %s, s2, 0x30003' % s(S_TMP))
        A.I('s_add_u32 %s, %s, %s' % (s(S_TB), s(S_TB), s(S_TMP)))
        A.I('s_lshr_b32 %s, s2, 6' % s(S_FB))
        A.I('s_lshl_b32 %s, %s, 2' % (s(S_FB), s(S_FB)))
        A.I('s_and_b32 %s, s2, 3' % s(S_TMP))
        A.I('s_add_u32 %s, %s, %s' % (s(S_FB), s(S_FB), s(S_TMP)))
    elif mapping == 2:
        A.I('s_and_b32 %s, s2, 7' % s(S_TB))
        A.I('s_lshl_b32 %s, %s, 1' % (s(S_TB), s(S_TB)))
        A.I('s_bfe_u32 %s, s2, 0x10003' % s(S_TMP))
        A.I('s_add_u32 %s, %s, %s' % (s(S_TB), s(S_TB), s(S_TMP)))
        A.I('s_lshr_b32 %s, s2, 4' % s(S_FB))
    A.I('v_and_b32 %s, 63, v0' % v(V_LANE))
    A.I('v_and_b32 %s, 15, v0' % v(V_T))
    A.I('v_bfe_u32 %s, v0, 4, 2' % v(V_G))
    A.I('v_and_b32 %s, 31, v0' % v(V_N))
    A.I('v_bfe_u32 %s, v0, 5, 1' % v(V_HI))
    A.I('v_lshrrev_b32 %s, 6, v0' % v(V_TMP0))
    A.I('v_readfirstlane_b32 %s, %s' % (s(S_W), v(V_TMP0)))
    A.I('s_and_b32 %s, %s, 3' % (s(S_TG), s(S_W)))
    A.I('s_lshr_b32 %s, %s, 2' % (s(S_GRP), s(S_W)))
    A.I('s_mov_b32 %s, 0x%x' % (s(S_LOG2E), LOG2E))
    A.I('v_mov_b32 %s, 0x3f803f80' % v(V_ONES))
    A.I('s_waitcnt lgkmcnt(0)')
    if A.stamps_on:
        for i in range(16):
            A.I('s_mov_b32 s%d, 0' % (64 + i))
    A.stamp(0)
    srd(A, SRD_X, 4, 2048 * 640 * 2)
    srd(A, SRD_WS, 18, WS_END)
    srd(A, SRD_DBG, 16, 256)
    A.I('s_cmp_ge_u32 %s, 8' % s(S_FB))
    A.I('s_cbranch_scc1 L_k1_ffn')
    sn = A.snap()
    gen_k1_attn(A)
    A.restore(sn)
    A.label('L_k1_ffn')
    gen_k1_ffn(A)
    A.label('L_k1_end')
    A.I('s_waitcnt vmcnt(0)')
    A.I('s_endpgm')


F_SLOT = 15360
F_X = D_RING * F_SLOT
F_CSW = F_X + 3 * XP + 2048
F_CS = F_X + 3 * XP
F_BIAS = F_CS + 1024
F_LDS = F_CSW + 8192


def mish_batch(A, vals, T):
    n = len(vals)
    E, U = T, T + n
    ac0, cs0, b0 = vals[0][0], vals[0][1], vals[0][2]
    for i in range(0, n, 2):
        A.I('v_pk_fma_f32 %s, %s, %s, %s op_sel_hi:[1,0,1]' % (v(ac0 + i, 2), v(cs0 + i, 2), v(V_NM, 2), v(ac0 + i, 2)))
    for i in range(0, n, 2):
        A.I('v_pk_fma_f32 %s, %s, %s, %s op_sel:[0,1,0] op_sel_hi:[1,1,1]' % (v(ac0 + i, 2), v(ac0 + i, 2), v(V_NM, 2), v(b0 + i, 2)))
    for i in range(0, n, 2):
        A.I('v_pk_mul_f32 %s, %s, %s op_sel:[0,1] op_sel_hi:[1,1]' % (v(E + i, 2), v(ac0 + i, 2), v(V_K2, 2)))
    for i in range(n):
        A.I('v_exp_f32 %s, %s' % (v(E + i), v(E + i)))
    for i in range(0, n, 2):
        A.I('v_pk_add_f32 %s, %s, %s op_sel_hi:[1,0]' % (v(U + i, 2), v(E + i, 2), v(V_K2, 2)))
    for i in range(0, n, 2):
        A.I('v_pk_fma_f32 %s, %s, %s, %s op_sel_hi:[1,1,0]' % (v(U + i, 2), v(E + i, 2), v(U + i, 2), v(V_K2, 2)))
    for i in range(n):
        A.I('v_rcp_f32 %s, %s' % (v(U + i), v(U + i)))
    for i in range(0, n, 2):
        A.I('v_pk_fma_f32 %s, %s, %s, %s op_sel:[0,0,1] op_sel_hi:[1,0,1]' % (v(U + i, 2), v(U + i, 2), v(V_K1, 2), v(V_K1, 2)))
    for i in range(0, n, 2):
        A.I('v_pk_mul_f32 %s, %s, %s' % (v(ac0 + i, 2), v(ac0 + i, 2), v(U + i, 2)))


def w_voffsets(A, t, kind):
    per = 112 if kind == 'ffn' else 120
    A.I('s_mul_i32 %s, %s, %d' % (s(S_TMP), s(S_W), per))
    if kind == 'ffn':
        A.I('s_lshl_b32 %s, %s, 6' % (s(S_T3), s(S_P0)))
    else:
        A.I('s_mul_i32 %s, %s, 160' % (s(S_T3), s(S_FB)))
    for j, dst in enumerate((V_DM0, V_DM1)):
        A.I('v_add_u32 %s, %s, %s' % (v(t[0]), s(S_TMP), v(V_LANE)))
        if j:
            A.I('v_add_u32 %s, 64, %s' % (v(t[0]), v(t[0])))
        if kind == 'ffn':
            divmod_const(A, t[1], t[2], t[0], 28, 2341)
            A.I('v_mul_u32_u24 %s, 3456, %s' % (v(t[3]), v(t[1])))
            A.I('v_lshl_add_u32 %s, %s, 4, %s' % (v(t[3]), v(t[2]), v(t[3])))
            A.I('v_add_u32 %s, %s, %s' % (v(dst), s(S_T3), v(t[3])))
        else:
            divmod_const(A, t[1], t[2], t[0], 30, 2185)
            divmod_const(A, t[5], t[7], t[2], 10, 6554)
            A.I('v_and_b32 %s, 24, %s' % (v(t[3]), v(t[1])))
            A.I('v_and_b32 %s, 1, %s' % (v(t[4]), v(t[1])))
            A.I('v_lshl_or_b32 %s, %s, 2, %s' % (v(t[3]), v(t[4]), v(t[3])))
            A.I('v_bfe_u32 %s, %s, 1, 2' % (v(t[4]), v(t[1])))
            A.I('v_or_b32 %s, %s, %s' % (v(t[3]), v(t[3]), v(t[4])))
            A.I('v_mul_u32_u24 %s, 3840, %s' % (v(t[3]), v(t[3])))
            A.I('v_lshl_add_u32 %s, %s, 4, %s' % (v(t[3]), v(t[7]), v(t[3])))
            A.I('v_add_u32 %s, 1, %s' % (v(t[6]), v(t[5])))
            A.I('v_cmp_gt_u32 vcc, 2, %s' % v(t[5]))
            A.I('v_cndmask_b32 %s, 0, %s, vcc' % (v(t[6]), v(t[6])))
            A.I('v_mul_u32_u24 %s, 1280, %s' % (v(t[6]), v(t[6])))
            A.I('v_add3_u32 %s, %s, %s, %s' % (v(dst), s(S_T3), v(t[3]), v(t[6])))
    A.I('s_mul_i32 %s, %s, %d' % (s(S_M0B), s(S_W), per * 16))


def mk_dma(A, rowbytes, himask):
    def dma(stage):
        slot = stage % D_RING
        A.I('s_mov_b32 %s, %d' % (s(S_DT), stage * 32 * rowbytes))
        A.I('s_add_u32 m0, %s, %d' % (s(S_M0B), slot * F_SLOT))
        A.I('buffer_load_dwordx4 %s, %s, %s offen lds' % (v(V_DM0), s(SRD_W, 4), s(S_DT)), vm=('dma', stage))
        A.I('s_add_u32 m0, %s, %d' % (s(S_M0B), slot * F_SLOT + 1024))
        A.I('s_mov_b32 exec_hi, 0x%x' % himask)
        A.I('buffer_load_dwordx4 %s, %s, %s offen lds' % (v(V_DM1), s(SRD_W, 4), s(S_DT)), vm=('dma', stage))
        A.I('s_mov_b64 exec, -1')
    return dma


def trbase32(A, dst, rowbytes, rmul, t0, t1):
    A.I('v_bfe_u32 %s, %s, 2, 2' % (v(t0), v(V_LANE)))
    if rmul == 2:
        A.I('v_lshlrev_b32 %s, 1, %s' % (v(t0), v(t0)))
    A.I('v_lshl_add_u32 %s, %s, 3, %s' % (v(t0), v(V_HI), v(t0)))
    A.I('v_mul_u32_u24 %s, %d, %s' % (v(t0), rowbytes, v(t0)))
    A.I('v_and_b32 %s, 1, %s' % (v(t1), v(V_G)))
    A.I('v_lshl_add_u32 %s, %s, 5, %s' % (v(t0), v(t1), v(t0)))
    A.I('v_and_b32 %s, 3, %s' % (v(t1), v(V_LANE)))
    A.I('v_lshl_add_u32 %s, %s, 3, %s' % (v(dst), v(t1), v(t0)))


def rd_vec32(A, areg, lds_off, dst, tag):
    for j in range(4):
        A.I('ds_read_b128 %s, %s offset:%d' % (v(dst + 4 * j, 4), v(areg), lds_off + j * 32), lg=tag)


RLY = 160


def gen_k1_ffn(A):
    srd(A, SRD_W, 12, 640 * 1728 * 2)
    A.I('s_sub_u32 %s, %s, 8' % (s(S_P0), s(S_FB)))
    A.I('s_mul_i32 %s, %s, 7' % (s(S_P0), s(S_P0)))
    A.I('s_min_u32 %s, %s, 47' % (s(S_P0), s(S_P0)))
    t = [200 + i for i in range(8)]
    def colmap(dst, t0):
        A.I('s_lshl_b32 %s, %s, 6' % (s(S_T3), s(S_P0)))
        A.I('v_lshlrev_b32 %s, 3, %s' % (v(dst), v(V_LANE)))
        A.I('v_add_u32 %s, %s, %s' % (v(dst), s(S_T3), v(dst)))
        A.I('v_mov_b32 %s, 0x%x' % (v(t0), BIG))
        A.I('v_cmp_gt_u32 vcc, 56, %s' % v(V_LANE))
        A.I('v_cndmask_b32 %s, %s, %s, vcc' % (v(dst), v(t0), v(dst)))
    C = Coop(A, 3456, F_CSW, F_CS, colmap)
    C.issue_loads()
    setup_x(A, F_X, t)
    dma_x(A, 0, F_X)
    w_voffsets(A, t, 'ffn')
    dma = mk_dma(A, 3456, 0xffff)
    dma(0)
    dma(1)
    dma_x(A, 1, F_X)
    srd(A, SRD_AUX, 14, 1728 * 2)

    dma(2)
    A.stamp(8)
    trbase32(A, V_RB0, 448, 1, t[0], t[1])
    A.I('s_lshl_b32 %s, %s, 8' % (s(S_TMP), s(S_GRP)))
    A.I('v_add_u32 %s, %s, %s' % (v(V_RB0), s(S_TMP), v(V_RB0)))
    A.I('v_add_u32 %s, %d, %s' % (v(V_RB1), 3 * F_SLOT, v(V_RB0)))
    A.stamp(14)

    def mk_fill(grp):
        A.defer_begin()
        x_prefetch(A, 152)
        C.compute()
        relayout_issue(A, RLY)
        if grp == 0:
            A.I('s_lshl_b32 s85, %s, 6' % s(S_P0))
            A.I('v_lshlrev_b32 %s, 1, v0' % v(194))
            A.I('buffer_load_ushort %s, %s, %s, s85 offen' % (v(195), v(194), s(SRD_AUX, 4)), vm='bias')
        relayout_store(A, RLY)
        if grp == 0:
            A.wait(vm='bias')
            A.I('v_lshlrev_b32 %s, 16, %s' % (v(195), v(195)))
            A.I('v_lshlrev_b32 %s, 2, v0' % v(194))
            A.I('v_add_u32 %s, %d, %s' % (v(194), F_BIAS, v(194)))
            A.I('ds_write_b32 %s, %s' % (v(194), v(195)), lg='z')
        return A.defer_end()
    A.I('s_cmp_eq_u32 %s, 1' % s(S_GRP))
    A.I('s_cbranch_scc1 L_ffn_B')
    sn = A.snap()
    for grp in range(2):
        if grp:
            A.restore(sn)
            A.label('L_ffn_B')
        nt = 4 - grp
        tiles = [(ti * 64, ACC + 16 * ti) for ti in range(nt)]
        L = Loop(A, 'ffn%d' % grp, tiles, 16 * 448, 4 * 448, dma, F_X, C.hooks(grp, 'ffn%d' % grp), fillers=mk_fill(grp))
        L.run()
        CSR = [152, 184]
        BFR = [168, 200]
        TT = 216
        OUT = 232
        AD = 252
        C.finish(grp)
        A.stamp(6)
        A.I('s_barrier')
        A.stamp(7)
        A.I('v_lshlrev_b32 %s, 4, %s' % (v(AD + 1), v(V_HI)))
        A.I('v_add_u32 %s, %d, %s' % (v(AD + 1), F_CS + grp * 512, v(AD + 1)))
        A.I('v_mov_b32 %s, 2.0' % v(V_K2))
        A.I('v_mov_b32 %s, %s' % (v(V_K2 + 1), s(S_LOG2E)))
        A.I('v_mov_b32 %s, -2.0' % v(V_K1))
        A.I('v_mov_b32 %s, 1.0' % v(V_K1 + 1))

        def rdv(ti):
            rd_vec32(A, AD + 1, ti * 128, CSR[ti % 2], ('cs', ti))
            rd_vec32(A, AD + 1, 1024 + ti * 128, BFR[ti % 2], ('cs', ti))
        rdv(0)
        A.I('s_lshl_b32 %s, %s, 3' % (s(S_TMP), s(S_TB)))
        A.I('s_lshl_b32 %s, %s, 1' % (s(S_T3), s(S_TG)))
        A.I('s_add_u32 %s, %s, %s' % (s(S_TMP), s(S_TMP), s(S_T3)))
        A.I('s_mul_i32 %s, %s, 54' % (s(S_TMP), s(S_TMP)))
        A.I('s_add_u32 %s, %s, %s' % (s(S_TMP), s(S_TMP), s(S_P0)))
        A.I('s_lshl_b32 %s, %s, 10' % (s(S_TMP), s(S_TMP)))
        A.I('s_add_u32 %s, %s, %d' % (s(S_TMP), s(S_TMP), ACT_OFF + grp * 4 * 1024))
        A.I('v_and_b32 %s, 1, %s' % (v(AD), v(V_G)))
        A.I('v_mul_u32_u24 %s, %d, %s' % (v(AD), 54 * 1024, v(AD)))
        A.I('v_lshl_add_u32 %s, %s, 4, %s' % (v(AD), v(V_T), v(AD)))
        A.I('v_lshl_add_u32 %s, %s, 8, %s' % (v(AD), v(V_HI), v(AD)))
        for ti in range(nt):
            A.stamp(10 + ti)
            if ti + 1 < nt:
                rdv(ti + 1)
            A.wait(lg=('cs', ti))
            for hb in range(2):
                vals = []
                for r_ in range(8):
                    i_ = hb * 8 + r_
                    vals.append((ACC + 16 * ti + i_, CSR[ti % 2] + i_, BFR[ti % 2] + i_, V_NM, V_NM + 1))
                mish_batch(A, vals, TT)
                o = OUT + ((ti * 2 + hb) % 4) * 4
                for q in range(4):
                    ac = ACC + 16 * ti + hb * 8 + 2 * q
                    A.I('v_cvt_pk_bf16_f32 %s, %s, %s' % (v(o + q), v(ac), v(ac + 1)))
                A.I('buffer_store_dwordx4 %s, %s, %s, %s offen offset:%d' % (v(o, 4), v(AD), s(SRD_WS, 4), s(S_TMP), ti * 1024 + hb * 512) + ' sc1', vm='st')
        A.stamp(15)
        A.stamp_flush(18, S_W, 8)
        A.I('s_waitcnt vmcnt(0)')
        A.I('s_endpgm')


A_X = D_RING * F_SLOT
PHIK_ROW = 352
A_PHIK = 0
A_VS = A_PHIK + 128 * PHIK_ROW
A_M = A_X + 3 * XP
A_CSW = A_M
A_CS = A_M + 80 * 192
A_FLAG = A_CS + 1024
A_LDS = A_FLAG + 64


def softmax2(A, P, EP, EM, X, scl, sync):
    MX, MN = X, X + 1
    A.I('v_max3_f32 %s, %s, %s, %s' % (v(MX), v(P), v(P + 1), v(P + 2)))
    A.I('v_min3_f32 %s, %s, %s, %s' % (v(MN), v(P), v(P + 1), v(P + 2)))
    for i in range(3, 19, 2):
        A.I('v_max3_f32 %s, %s, %s, %s' % (v(MX), v(MX), v(P + i), v(P + i + 1)))
        A.I('v_min3_f32 %s, %s, %s, %s' % (v(MN), v(MN), v(P + i), v(P + i + 1)))
    A.I('v_max_f32 %s, %s, %s' % (v(MX), v(MX), v(P + 19)))
    A.I('v_min_f32 %s, %s, %s' % (v(MN), v(MN), v(P + 19)))
    A.I('v_pk_mul_f32 %s, %s, %s op_sel_hi:[1,0]' % (v(X, 2), v(X, 2), v(scl, 2)))
    for i in range(0, 20, 2):
        A.I('v_pk_fma_f32 %s, %s, %s, %s op_sel_hi:[1,0,0] neg_lo:[0,0,1] neg_hi:[0,0,1]' % (v(EP + i, 2), v(P + i, 2), v(scl, 2), v(X, 2)))
        A.I('v_pk_fma_f32 %s, %s, %s, %s op_sel:[0,0,1] op_sel_hi:[1,0,1] neg_lo:[1,0,0] neg_hi:[1,0,0]' % (v(EM + i, 2), v(P + i, 2), v(scl, 2), v(X, 2)))
    sync()
    for i in range(20):
        A.I('v_exp_f32 %s, %s' % (v(EP + i), v(EP + i)))
        A.I('v_exp_f32 %s, %s' % (v(EM + i), v(EM + i)))
    sync()
    SP, SM, RS = X + 2, X + 4, X + 6
    A.I('v_pk_add_f32 %s, %s, %s' % (v(SP, 2), v(EP, 2), v(EP + 2, 2)))
    A.I('v_pk_add_f32 %s, %s, %s' % (v(SM, 2), v(EM, 2), v(EM + 2, 2)))
    for i in range(4, 20, 2):
        A.I('v_pk_add_f32 %s, %s, %s' % (v(SP, 2), v(SP, 2), v(EP + i, 2)))
        A.I('v_pk_add_f32 %s, %s, %s' % (v(SM, 2), v(SM, 2), v(EM + i, 2)))
    A.I('v_add_f32 %s, %s, %s' % (v(RS), v(SP), v(SP + 1)))
    A.I('v_add_f32 %s, %s, %s' % (v(RS + 1), v(SM), v(SM + 1)))
    A.I('v_rcp_f32 %s, %s' % (v(RS), v(RS)))
    A.I('v_rcp_f32 %s, %s' % (v(RS + 1), v(RS + 1)))
    for i in range(0, 20, 2):
        A.I('v_pk_mul_f32 %s, %s, %s op_sel_hi:[1,0]' % (v(EP + i, 2), v(EP + i, 2), v(RS, 2)))
        A.I('v_pk_mul_f32 %s, %s, %s op_sel:[0,1] op_sel_hi:[1,1]' % (v(EM + i, 2), v(EM + i, 2), v(RS, 2)))
    for i in range(10):
        A.I('v_cvt_pk_bf16_f32 %s, %s, %s' % (v(P + i), v(EP + 2 * i), v(EP + 2 * i + 1)))
        A.I('v_cvt_pk_bf16_f32 %s, %s, %s' % (v(P + 10 + i), v(EM + 2 * i), v(EM + 2 * i + 1)))
    sync()


def gen_k1_attn(A):
    srd(A, SRD_W, 6, 640 * 1920 * 2)
    t = [200 + i for i in range(16)]
    def colmap(dst, t0):
        divmod_const(A, t[0], t[1], V_LANE, 20, 3277)
        A.I('v_add_u32 %s, 1, %s' % (v(t[2]), v(t[0])))
        A.I('v_cmp_eq_u32 vcc, 2, %s' % v(t[0]))
        A.I('v_cndmask_b32 %s, %s, 0, vcc' % (v(t[2]), v(t[2])))
        A.I('v_mul_u32_u24 %s, 1280, %s' % (v(t[2]), v(t[2])))
        A.I('v_lshl_add_u32 %s, %s, 3, %s' % (v(dst), v(t[1]), v(t[2])))
        A.I('s_mul_i32 %s, %s, 160' % (s(S_T3), s(S_FB)))
        A.I('v_add_u32 %s, %s, %s' % (v(dst), s(S_T3), v(dst)))
        A.I('v_mov_b32 %s, 0x%x' % (v(t0), BIG))
        A.I('v_cmp_gt_u32 vcc, 60, %s' % v(V_LANE))
        A.I('v_cndmask_b32 %s, %s, %s, vcc' % (v(dst), v(t0), v(dst)))
    C = Coop(A, 3840, A_CSW, A_CS, colmap)
    C.issue_loads()
    setup_x(A, A_X, t)
    dma_x(A, 0, A_X)
    w_voffsets(A, t, 'attn')
    dma = mk_dma(A, 3840, 0x00ffffff)
    dma(0)
    dma(1)
    dma_x(A, 1, A_X)
    srd(A, SRD_AUX, 8, 32 * 400 * 2)

    dma(2)
    trbase32(A, V_RB0, 480, 2, t[0], t[1])
    A.I('s_lshl_b32 %s, %s, 8' % (s(S_TMP), s(S_GRP)))
    A.I('v_add_u32 %s, %s, %s' % (v(V_RB0), s(S_TMP), v(V_RB0)))
    A.I('v_add_u32 %s, %d, %s' % (v(V_RB1), 3 * F_SLOT, v(V_RB0)))
    A.I('v_mov_b32 %s, %d' % (v(t[0]), A_FLAG))
    A.I('v_mov_b32 %s, 0' % v(t[1]))
    A.I('ds_write_b32 %s, %s' % (v(t[0]), v(t[1])), lg='z')
    A.wait(lg='z')

    def mk_fill():
        A.defer_begin()
        x_prefetch(A, 152)
        C.compute()
        MD, MA = 184, 192
        for i in range(4):
            A.I('v_add_u32 %s, %d, v0' % (v(t[0]), 512 * i))
            divmod_const(A, t[1], t[2], t[0], 24, 2731)
            divmod_const(A, t[3], t[4], t[1], 20, 3277)
            A.I('v_lshrrev_b32 %s, 1, %s' % (v(t[5]), v(t[2])))
            A.I('v_lshlrev_b32 %s, 2, %s' % (v(t[5]), v(t[5])))
            A.I('v_and_b32 %s, 1, %s' % (v(t[6]), v(t[2])))
            A.I('v_lshlrev_b32 %s, 1, %s' % (v(t[6]), v(t[6])))
            A.I('v_cmp_lt_u32 vcc, 19, %s' % v(t[5]))
            A.I('v_addc_co_u32 %s, vcc, 0, %s, vcc' % (v(t[6]), v(t[6])))
            A.I('v_cmp_lt_u32 vcc, 19, %s' % v(t[5]))
            A.I('v_subrev_u32 %s, 20, %s' % (v(t[8]), v(t[5])))
            A.I('v_cndmask_b32 %s, %s, %s, vcc' % (v(t[8]), v(t[5]), v(t[8])))
            A.I('v_mul_u32_u24 %s, 800, %s' % (v(t[7]), v(t[3])))
            A.I('v_mul_u32_u24 %s, 40, %s' % (v(t[4]), v(t[4])))
            A.I('v_add_u32 %s, %s, %s' % (v(t[7]), v(t[7]), v(t[4])))
            A.I('v_lshl_add_u32 %s, %s, 1, %s' % (v(t[7]), v(t[8]), v(t[7])))
            A.I('v_mov_b32 %s, 0x%x' % (v(t[4]), BIG))
            A.I('v_cmp_eq_u32 vcc, %s, %s' % (v(t[6]), v(t[3])))
            A.I('v_cndmask_b32 %s, %s, %s, vcc' % (v(t[7]), v(t[4]), v(t[7])))
            A.I('v_cmp_gt_u32 vcc, 40, %s' % v(t[5]))
            A.I('v_cndmask_b32 %s, %s, %s, vcc' % (v(t[7]), v(t[4]), v(t[7])))
            A.I('s_mul_i32 s85, %s, 3200' % s(S_FB))
            A.I('buffer_load_dwordx2 %s, %s, %s, %s offen' % (v(MD + 2 * i, 2), v(t[7]), s(SRD_AUX, 4), 's85'), vm='m')
            A.I('v_lshlrev_b32 %s, 3, %s' % (v(MA + i), v(t[0])))
            A.I('v_add_u32 %s, %d, %s' % (v(MA + i), A_M, v(MA + i)))

        A.gate(7)
        A.wait(vm='m')
        for i in range(4):
            if i == 3:
                A.group_begin()
                A.I('v_cmp_gt_u32 vcc, 384, v0')
                A.I('s_and_saveexec_b64 %s, vcc' % s(S_MASK, 2))
            A.I('ds_write_b64 %s, %s' % (v(MA + i), v(MD + 2 * i, 2)), lg='z')
            if i == 3:
                A.I('s_mov_b64 exec, -1')
                A.group_end()
        return A.defer_end()

    NM = V_NM
    CSR = 104
    MF = 168
    AD = 228
    X = 238
    SCL = 246
    VMB = 247
    BO = 24
    A.I('s_cmp_eq_u32 %s, 1' % s(S_GRP))
    A.I('s_cbranch_scc1 L_att_B')
    sn = A.snap()
    for grp in range(2):
        if grp:
            A.restore(sn)
            A.label('L_att_B')
        tiles = [(ti * 64, ACC + 16 * ti) for ti in range(4)]
        L = Loop(A, 'att%d' % grp, tiles, 16 * 480, 480, dma, A_X, C.hooks(grp, 'att%d' % grp), fillers=mk_fill())
        L.run()
        C.finish(grp)
        A.I('v_bfe_u32 %s, %s, 2, 2' % (v(VMB), v(V_LANE)))
        A.I('v_lshl_add_u32 %s, %s, 2, %s' % (v(VMB), v(V_HI), v(VMB)))
        A.I('v_mul_u32_u24 %s, 192, %s' % (v(VMB), v(VMB)))
        A.I('v_and_b32 %s, 1, %s' % (v(AD), v(V_G)))
        A.I('v_lshl_add_u32 %s, %s, 5, %s' % (v(VMB), v(AD), v(VMB)))
        A.I('v_and_b32 %s, 3, %s' % (v(AD), v(V_LANE)))
        A.I('v_lshl_add_u32 %s, %s, 3, %s' % (v(VMB), v(AD), v(VMB)))
        A.I('v_add_u32 %s, %d, %s' % (v(VMB), A_M, v(VMB)))
        for u in range(3):
            for s2 in range(5):
                b = MF + (u * 5 + s2) * 4
                for h in range(2):
                    A.I('ds_read_b64_tr_b16 %s, %s offset:%d' % (v(b + 2 * h, 2), v(VMB), (16 * s2 + 8 * h) * 192 + u * 64), lg='mf')
        A.I('v_mul_f32 %s, %s, %s' % (v(SCL), s(S_LOG2E), v(NM + 1)))
        A.I('s_barrier')
        if grp == 0:
            A.I('s_setprio 2')
        A.stamp(6)
        A.I('v_lshlrev_b32 %s, 4, %s' % (v(AD + 1), v(V_HI)))
        A.I('v_add_u32 %s, %d, %s' % (v(AD + 1), A_CS + grp * 512, v(AD + 1)))
        for ti in range(4):
            rd_vec32(A, AD + 1, ti * 128, CSR + 16 * ti, ('cs', ti))
        A.I('s_mul_i32 %s, %s, %d' % (s(S_TMP), s(S_TG), 32 * 160))
        A.I('s_add_u32 %s, %s, %d' % (s(S_TMP), s(S_TMP), A_VS))
        A.I('v_mul_u32_u24 %s, 160, %s' % (v(AD), v(V_N)))
        A.I('v_lshl_add_u32 %s, %s, 3, %s' % (v(AD), v(V_HI), v(AD)))
        A.I('v_add_u32 %s, %s, %s' % (v(AD), s(S_TMP), v(AD)))
        if grp == 0:
            vq = [(2, 2, 0), (2, 3, 8)] + [(3, j, 16 + 8 * j) for j in range(4)]
            st2 = [(0, 0), (0, 8), (1, 0), (1, 8), (2, 0)]
        else:
            vq = [(0, j, 48 + 8 * j) for j in range(4)]
            st2 = [(1, 0), (1, 8), (2, 0), (2, 8), (3, 0)]
        BOS = [24, 28, 32, 36, 248]
        for (ti, j, f0) in vq:
            A.wait(lg=('cs', ti))
            ac = ACC + 16 * ti + 4 * j
            for r_ in range(0, 4, 2):
                A.I('v_pk_fma_f32 %s, %s, %s, %s op_sel_hi:[1,0,1]' % (v(ac + r_, 2), v(CSR + 16 * ti + 4 * j + r_, 2), v(NM, 2), v(ac + r_, 2)))
            for r_ in range(0, 4, 2):
                A.I('v_pk_mul_f32 %s, %s, %s op_sel:[0,1] op_sel_hi:[1,1]' % (v(ac + r_, 2), v(ac + r_, 2), v(NM, 2)))
            A.I('v_cvt_pk_bf16_f32 %s, %s, %s' % (v(ac), v(ac), v(ac + 1)))
            A.I('v_cvt_pk_bf16_f32 %s, %s, %s' % (v(ac + 1), v(ac + 2), v(ac + 3)))
            A.I('ds_write_b64 %s, %s offset:%d' % (v(AD), v(ac, 2), f0 * 2), lg='vs')
        for s2, (ti, r0) in enumerate(st2):
            A.wait(lg=('cs', ti))
            ac = ACC + 16 * ti + r0
            for r_ in range(0, 8, 2):
                A.I('v_pk_fma_f32 %s, %s, %s, %s op_sel_hi:[1,0,1]' % (v(ac + r_, 2), v(CSR + 16 * ti + r0 + r_, 2), v(NM, 2), v(ac + r_, 2)))
            for q in range(4):
                A.I('v_cvt_pk_bf16_f32 %s, %s, %s' % (v(BOS[s2] + q), v(ac + 2 * q), v(ac + 2 * q + 1)))
        A.wait(lg='mf')
        P = 104
        for s2 in range(5):
            for u in range(3):
                d = v(P + 16 * u, 16)
                A.I('v_mfma_f32_32x32x16_bf16 %s, %s, %s, %s' % (d, v(MF + (u * 5 + s2) * 4, 4), v(BOS[s2], 4), d if s2 else '0'))
        EP, EM = 40, 60
        calls = [0]
        if grp == 0:
            A.I('s_mul_i32 %s, %s, %d' % (s(S_TMP), s(S_TG), 32 * PHIK_ROW))
            A.I('s_add_u32 %s, %s, %d' % (s(S_TMP), s(S_TMP), A_PHIK))
            A.I('v_mul_u32_u24 %s, %d, %s' % (v(AD + 2), PHIK_ROW, v(V_N)))
            A.I('v_mul_u32_u24 %s, 160, %s' % (v(AD + 3), v(V_HI)))
            A.I('v_add3_u32 %s, %s, %s, %s' % (v(AD + 2), s(S_TMP), v(AD + 2), v(AD + 3)))
            for a_ in range(2):
                softmax2(A, P + 20 * a_, EP, EM, X, SCL, lambda: None)
                for j in range(5):
                    A.I('ds_write_b128 %s, %s offset:%d' % (v(AD + 2), v(P + 20 * a_ + 4 * j, 4), a_ * 80 + j * 16), lg='pk')
            A.stamp(8)
            KA, KB = AD + 4, AD + 5
            trbase(A, KA, PHIK_ROW, AD + 6, AD + 7)
            A.I('s_mul_i32 %s, %s, 80' % (s(S_TMP), s(S_TG)))
            A.I('s_add_u32 %s, %s, %d' % (s(S_TMP), s(S_TMP), A_PHIK))
            A.I('v_add_u32 %s, %s, %s' % (v(KA), s(S_TMP), v(KA)))
            trbase(A, KB, 160, AD + 6, AD + 7)
            A.I('s_mul_i32 %s, %s, 40' % (s(S_TMP), s(S_TG)))
            A.I('s_add_u32 %s, %s, %d' % (s(S_TMP), s(S_TMP), A_VS))
            A.I('v_add_u32 %s, %s, %s' % (v(KB), s(S_TMP), v(KB)))
            A.I('v_cmp_eq_u32 %s, 4, %s' % (s(S_MASK, 2), v(V_T)))
            A.wait(lg=['pk', 'vs'])
            A.I('v_mov_b32 %s, %d' % (v(AD + 6), A_FLAG))
            A.I('v_mov_b32 %s, 1' % v(AD + 7))
            A.I('s_mov_b64 exec, 1')
            A.I('ds_add_u32 %s, %s' % (v(AD + 6), v(AD + 7)), lg='fl')
            A.I('s_mov_b64 exec, -1')
            A.label('L_kvflag')
            A.I('ds_read_b32 %s, %s' % (v(AD + 7), v(AD + 6)), lg='fl')
            A.wait_all(lg=True)
            A.I('v_readfirstlane_b32 %s, %s' % (s(S_TMP), v(AD + 7)))
            A.I('s_cmp_ge_u32 %s, 8' % s(S_TMP))
            A.I('s_cbranch_scc0 L_kvflag')
            FR = 104
            for ks in range(4):
                for i in range(5):
                    r0 = FR + (ks * 5 + i) * 4
                    for h in range(2):
                        if i < 3:
                            A.I('ds_read_b64_tr_b16 %s, %s offset:%d' % (v(r0 + 2 * h, 2), v(KA), (ks * 32 + 8 * h) * PHIK_ROW + i * 32), lg=('kv', ks))
                        else:
                            A.I('ds_read_b64_tr_b16 %s, %s offset:%d' % (v(r0 + 2 * h, 2), v(KB), (ks * 32 + 8 * h) * 160 + (i - 3) * 32), lg=('kv', ks))
            KD = 40
            for ks in range(4):
                A.wait(lg=('kv', ks))
                rb = FR + (ks * 5 + 4) * 4
                for j in range(4):
                    A.I('v_cndmask_b32 %s, %s, %s, %s' % (v(rb + j), v(rb + j), v(V_ONES), s(S_MASK, 2)))
                for dt in range(2):
                    for i in range(3):
                        d = v(KD + (dt * 3 + i) * 4, 4)
                        A.I('v_mfma_f32_16x16x32_bf16 %s, %s, %s, %s' % (d, v(FR + (ks * 5 + 3 + dt) * 4, 4), v(FR + (ks * 5 + i) * 4, 4), d if ks else '0'))
            A.I('s_lshl_b32 %s, %s, 2' % (s(S_TMP), s(S_FB)))
            A.I('s_add_u32 %s, %s, %s' % (s(S_TMP), s(S_TMP), s(S_TG)))
            A.I('s_mul_i32 %s, %s, 3360' % (s(S_TMP), s(S_TMP)))
            A.I('s_add_u32 %s, %s, %d' % (s(S_TMP), s(S_TMP), KVA_OFF))
            A.I('s_mul_i32 %s, %s, 43' % (s(S_T3), s(S_TB)))
            A.I('s_lshr_b32 %s, %s, 7' % (s(S_T3), s(S_T3)))
            A.I('s_mul_i32 %s, %s, 3' % (s(S_T3), s(S_T3)))
            A.I('s_sub_u32 %s, %s, %s' % (s(S_T3), s(S_TB), s(S_T3)))
            A.I('s_mul_i32 %s, %s, %d' % (s(S_T3), s(S_T3), KVA_REP))
            A.I('s_add_u32 %s, %s, %s' % (s(S_TMP), s(S_TMP), s(S_T3)))
            A.I('s_lshl_b32 %s, %s, 12' % (s(S_T3), s(S_TG)))
            A.I('s_add_u32 %s, %s, %d' % (s(S_T3), s(S_T3), A_VS + 128 * 160))
            A.I('v_mul_u32_u24 %s, 640, %s' % (v(AD), v(V_G)))
            A.I('v_lshl_add_u32 %s, %s, 2, %s' % (v(AD), v(V_T), v(AD)))
            A.I('v_add_u32 %s, %s, %s' % (v(AD), s(S_T3), v(AD)))
            for dt in range(2):
                for i in range(3):
                    for r_ in range(4):
                        lo, hi_ = 0xffffffff, 0xffffffff
                        if dt == 1:
                            hi_ = 0
                            lo = 0xffffffff if r_ == 0 else 0xffff
                        if i == 2:
                            lo &= 0x00ff00ff
                            hi_ &= 0x00ff00ff
                        A.I('s_mov_b32 exec_lo, 0x%x' % lo)
                        A.I('s_mov_b32 exec_hi, 0x%x' % hi_)
                        A.I('ds_write_b32 %s, %s offset:%d' % (v(AD), v(KD + (dt * 3 + i) * 4 + r_), (16 * dt + r_) * 160 + i * 64), lg='rp')
            A.I('s_mov_b64 exec, -1')
            A.I('v_lshlrev_b32 %s, 2, %s' % (v(AD + 1), v(V_LANE)))
            A.I('v_add_u32 %s, %s, %s' % (v(AD), s(S_T3), v(AD + 1)))
            for q in range(14):
                A.I('ds_read_b32 %s, %s offset:%d' % (v(104 + q), v(AD), q * 256), lg=('rq', q))
            for q in range(14):
                A.wait(lg=('rq', q))
                if q == 13:
                    A.I('s_mov_b64 exec, 0xff')
                A.I('buffer_atomic_add_f32 %s, %s, %s, %s offen offset:%d' % (v(104 + q), v(AD + 1), s(SRD_WS, 4), s(S_TMP), q * 256), vm='kvp')
            A.I('s_mov_b64 exec, -1')
            A.stamp(9)
        else:
            A.wait(lg='vs')
            A.I('v_mov_b32 %s, %d' % (v(AD + 6), A_FLAG))
            A.I('v_mov_b32 %s, 1' % v(AD + 7))
            A.I('s_mov_b64 exec, 1')
            A.I('ds_add_u32 %s, %s' % (v(AD + 6), v(AD + 7)), lg='fl')
            A.I('s_mov_b64 exec, -1')
            A.I('s_lshl_b32 %s, %s, 3' % (s(S_TMP), s(S_TB)))
            A.I('s_lshl_b32 %s, %s, 1' % (s(S_T3), s(S_TG)))
            A.I('s_add_u32 %s, %s, %s' % (s(S_TMP), s(S_TMP), s(S_T3)))
            A.I('s_lshl_b32 %s, %s, 3' % (s(S_TMP), s(S_TMP)))
            A.I('s_add_u32 %s, %s, %s' % (s(S_TMP), s(S_TMP), s(S_FB)))
            A.I('s_mul_i32 %s, %s, 5120' % (s(S_TMP), s(S_TMP)))
            A.I('s_add_u32 %s, %s, %d' % (s(S_TMP), s(S_TMP), PHIQ_OFF))
            A.I('s_add_u32 %s, %s, 4096' % (s(S_T3), s(S_TMP)))
            A.I('v_and_b32 %s, 1, %s' % (v(AD + 2), v(V_G)))
            A.I('v_mul_u32_u24 %s, %d, %s' % (v(AD + 2), 8 * 5120, v(AD + 2)))
            A.I('v_lshl_add_u32 %s, %s, 4, %s' % (v(AD + 2), v(V_T), v(AD + 2)))
            A.I('v_lshl_add_u32 %s, %s, 9, %s' % (v(AD + 3), v(V_HI), v(AD + 2)))
            A.I('v_lshl_add_u32 %s, %s, 11, %s' % (v(AD + 2), v(V_HI), v(AD + 2)))
            def syncB():
                calls[0] += 1
                pass
            for a_ in range(2):
                softmax2(A, P + 20 * a_, EP, EM, X, SCL, syncB)
                for j in range(4):
                    A.I('buffer_store_dwordx4 %s, %s, %s, %s offen offset:%d' % (v(P + 20 * a_ + 4 * j, 4), v(AD + 2), s(SRD_WS, 4), s(S_TMP), a_ * 1024 + j * 256) + ' sc1', vm='st')
                A.I('buffer_store_dwordx4 %s, %s, %s, %s offen offset:%d' % (v(P + 20 * a_ + 16, 4), v(AD + 3), s(SRD_WS, 4), s(S_T3), a_ * 256) + ' sc1', vm='st')
        A.stamp(15)
        A.stamp_flush(18, S_W, 8)
        A.I('s_waitcnt vmcnt(0)')
        A.I('s_endpgm')
```

```python
from asmlib import *

ACT_OFF = 0
PHIQ_OFF = 128 * 54 * 1024
KVA_OFF = PHIQ_OFF + 128 * 32 * 1280
KVA_REP = 32 * 3360
NREP = 3
STAT_OFF = KVA_OFF + NREP * KVA_REP + 1024
CSP_OFF = STAT_OFF + 256 * 128
WR_OFF = CSP_OFF + 16 * 16 * 1024
WR_CB = 74 * 5120
O_OFF = WR_OFF + 8 * WR_CB
CNT_OFF = O_OFF + 128 * 20 * 1024
WS_END = CNT_OFF + 32 * 256

LOG2E = 0x3fb8aa3b
BIG = 0x7ffffff0

SRD_X, SRD_W, SRD_WS, SRD_AUX, SRD_DBG = 20, 24, 28, 32, 36
S_TB, S_FB, S_W, S_TG, S_GRP, S_M0B, S_TMP, S_M0X, S_LOG2E = 40, 41, 42, 43, 44, 45, 46, 47, 48
S_XOFF = 49
S_DT = 50
S_WO, S_XO = 51, 59
S_MASK = 52
S_T3, S_T4 = 54, 55
S_P0, S_M0Q, S_HF, S_T5 = 56, 56, 57, 58
V_LANE, V_T, V_G = 1, 2, 3
V_DM0, V_DM1, V_RB0, V_RB1, V_DX0, V_DX1, V_ONES = 4, 5, 6, 7, 8, 9, 20
V_XR0 = 10
V_NM = 14
V_N, V_HI = 16, 17
V_POLL, V_PA = 18, 19
V_TMP0, V_TMP1 = 22, 23
WIN, ACC, XF, HK = 24, 40, 104, 136
V_K2, V_K1 = 248, 250
D_RING = 6
XP = 16384
DBG_STAT, DBG_CS = 16, 32


def srd(A, d, lo, size):
    A.I('s_mov_b32 %s, %s' % (s(d), s(lo)))
    A.I('s_and_b32 %s, %s, 0xffff' % (s(d + 1), s(lo + 1)))
    A.I('s_mov_b32 %s, 0x%x' % (s(d + 2), size))
    A.I('s_mov_b32 %s, 0x20000' % s(d + 3))


def swap23(A, dst, src, t0):
    A.I('v_and_b32 %s, 0x13, %s' % (v(dst), v(src)))
    A.I('v_and_b32 %s, 4, %s' % (v(t0), v(src)))
    A.I('v_lshl_or_b32 %s, %s, 1, %s' % (v(dst), v(t0), v(dst)))
    A.I('v_and_b32 %s, 8, %s' % (v(t0), v(src)))
    A.I('v_lshrrev_b32 %s, 1, %s' % (v(t0), v(t0)))
    A.I('v_or_b32 %s, %s, %s' % (v(dst), v(dst), v(t0)))


def divmod_const(A, q, r, x, c, magic):
    A.I('v_mul_u32_u24 %s, %d, %s' % (v(q), magic, v(x)))
    A.I('v_lshrrev_b32 %s, 16, %s' % (v(q), v(q)))
    A.I('v_mul_u32_u24 %s, %d, %s' % (v(r), c, v(q)))
    A.I('v_sub_u32 %s, %s, %s' % (v(r), v(x), v(r)))


def trbase(A, dst, rowbytes, t0, t1):
    A.I('v_lshrrev_b32 %s, 1, %s' % (v(t0), v(V_G)))
    A.I('v_lshlrev_b32 %s, 4, %s' % (v(t0), v(t0)))
    A.I('v_and_b32 %s, 1, %s' % (v(t1), v(V_G)))
    A.I('v_lshl_add_u32 %s, %s, 2, %s' % (v(t0), v(t1), v(t0)))
    A.I('v_bfe_u32 %s, %s, 2, 2' % (v(t1), v(V_LANE)))
    A.I('v_add_u32 %s, %s, %s' % (v(t0), v(t0), v(t1)))
    A.I('v_mul_u32_u24 %s, %d, %s' % (v(t0), rowbytes, v(t0)))
    A.I('v_and_b32 %s, 3, %s' % (v(t1), v(V_LANE)))
    A.I('v_lshl_add_u32 %s, %s, 3, %s' % (v(dst), v(t1), v(t0)))


def xf(sk, ks):
    return XF + ((sk % 4) * 2 + ks) * 4


def dma_x(A, p, xbase):
    A.I('s_add_u32 %s, %s, %d' % (s(S_DT), s(S_XOFF), p * 128))
    for j, d in enumerate((V_DX0, V_DX1)):
        A.I('s_add_u32 m0, %s, %d' % (s(S_M0X), xbase + (p % 3) * XP + j * 1024))
        A.I('buffer_load_dwordx4 %s, %s, %s offen lds' % (v(d), s(SRD_X, 4), s(S_DT)), vm=('xp', p))


class Loop:
    def __init__(self, A, name, tiles, ks_off, half_off, dma_issue, xbase, hooks=None, nwin=4, fillers=None):
        self.__dict__.update(locals())
        self.hooks = hooks or {}
        self.nf = 2 * len(tiles)

    def rd(self, F):
        A = self.A
        sk, fi = divmod(F, self.nf)
        ks, ti = divmod(fi, len(self.tiles))
        slot = sk % D_RING
        base = V_RB0 if slot < 3 else V_RB1
        off = (slot % 3) * F_SLOT + ks * self.ks_off + self.tiles[ti][0]
        w = WIN + (F % self.nwin) * 4
        A.I('ds_read_b64_tr_b16 %s, %s offset:%d' % (v(w, 2), v(base), off), lg=('f', F))
        A.I('ds_read_b64_tr_b16 %s, %s offset:%d' % (v(w + 2, 2), v(base), off + self.half_off), lg=('f', F))

    def sync_stage(self, sk):
        A = self.A
        if sk % 2:
            return
        A.wait(vm=[('dma', sk), ('dma', sk + 1), ('xp', sk // 2)], lg='z')
        A.I('s_barrier')
        p = sk // 2
        for s4 in range(4):
            A.I('ds_read_b128 %s, %s offset:%d' % (v(xf(sk + s4 // 2, s4 % 2), 4), v(V_XR0 + s4), (p % 3) * XP), lg=('x', sk + s4 // 2))
        if sk + 3 <= 19:
            self.dma_issue(sk + 3)
        self.pending = sk

    def issue_after(self, sk):
        A = self.A
        if sk + 4 <= 19:
            self.dma_issue(sk + 4)
        if sk // 2 + 2 < 10:
            dma_x(A, sk // 2 + 2, self.xbase)

    def run(self):
        A = self.A
        tot = 20 * self.nf
        la = self.nwin - 1
        self.pending = None
        self.sync_stage(0)
        A.stamp(1)
        for F in range(la):
            self.rd(F)
        for sk in range(20):
            if sk in (1, 5, 10):
                A.stamp({1: 2, 5: 3, 10: 4}[sk])
            if sk in self.hooks:
                self.hooks[sk]()
            for fi in range(self.nf):
                F = sk * self.nf + fi
                Fn = F + la
                if Fn < tot:
                    if Fn % self.nf == 0:
                        self.sync_stage(Fn // self.nf)
                    self.rd(Fn)
                A.wait(lg=[('f', F), ('x', sk)])
                w = WIN + (F % self.nwin) * 4
                ks, ti = divmod(fi, len(self.tiles))
                d = v(self.tiles[ti][1], 16)
                A.I('v_mfma_f32_32x32x16_bf16 %s, %s, %s, %s' % (d, v(w, 4), v(xf(sk, ks), 4), d if (sk or ks) else '0'))
                if self.pending is not None and fi == (1 if self.name.endswith('0') else 3):
                    self.issue_after(self.pending)
                    self.pending = None
                if self.fillers:
                    A.drain(self.fillers, 10 if sk < 3 else 4, sk)
        assert not self.fillers
        A.stamp(5)


def stats_to_mr(A, vsum, vsq, nm, r, t0):
    A.I('v_mul_f32 %s, 0x3acccccd, %s' % (v(vsum), v(vsum)))
    A.I('v_mul_f32 %s, 0x3acccccd, %s' % (v(vsq), v(vsq)))
    A.I('v_fma_f32 %s, -%s, %s, %s' % (v(vsq), v(vsum), v(vsum), v(vsq)))
    A.I('v_max_f32 %s, 0, %s' % (v(vsq), v(vsq)))
    A.I('v_cvt_pk_bf16_f32 %s, %s, %s' % (v(t0), v(vsum), v(vsq)))
    A.I('v_lshlrev_b32 %s, 16, %s' % (v(nm), v(t0)))
    A.I('v_xor_b32 %s, 0x80000000, %s' % (v(nm), v(nm)))
    A.I('v_and_b32 %s, 0xffff0000, %s' % (v(t0), v(t0)))
    A.I('v_add_f32 %s, 0x3727c5ac, %s' % (v(t0), v(t0)))
    A.I('v_cvt_pk_bf16_f32 %s, %s, %s' % (v(t0), v(t0), v(t0)))
    A.I('v_and_b32 %s, 0xffff0000, %s' % (v(t0), v(t0)))
    A.I('v_sqrt_f32 %s, %s' % (v(t0), v(t0)))
    A.I('v_cvt_pk_bf16_f32 %s, %s, %s' % (v(t0), v(t0), v(t0)))
    A.I('v_and_b32 %s, 0xffff0000, %s' % (v(t0), v(t0)))
    A.I('v_rcp_f32 %s, %s' % (v(r), v(t0)))


def wave_sum(A, regs, t):
    for ctl in ('quad_perm:[1,0,3,2]', 'quad_perm:[2,3,0,1]', 'row_half_mirror', 'row_mirror'):
        A.nop(2)
        for r_ in regs:
            A.I('v_add_f32_dpp %s, %s, %s %s row_mask:0xf bank_mask:0xf' % (v(r_), v(r_), v(r_), ctl))
    for op in ('v_permlane16_swap_b32', 'v_permlane32_swap_b32'):
        for r_, t_ in zip(regs, t):
            A.I('v_mov_b32 %s, %s' % (v(t_), v(r_)))
        for r_, t_ in zip(regs, t):
            A.I('%s %s, %s' % (op, v(r_), v(t_)))
        for r_, t_ in zip(regs, t):
            A.I('v_add_f32 %s, %s, %s' % (v(r_), v(r_), v(t_)))


class Coop:
    def __init__(self, A, rowbytes, csw_lds, cs_lds, colmap):
        self.__dict__.update(locals())
        self.SR = 216
        self.CR = 224
        self.T = 234

    def issue_loads(self):
        A, T = self.A, self.T
        A.I('s_lshl_b32 %s, %s, 7' % (s(S_TMP), s(S_TB)))
        A.I('s_lshl_b32 %s, %s, 3' % (s(S_T3), s(S_FB)))
        A.I('s_add_u32 %s, %s, %s' % (s(S_TMP), s(S_TMP), s(S_T3)))
        A.I('s_add_u32 %s, %s, %s' % (s(S_T5), s(S_TMP), s(S_W)))
        A.I('s_mul_i32 %s, %s, 1280' % (s(S_TMP), s(S_T5)))
        A.I('v_lshlrev_b32 %s, 4, %s' % (v(T), v(V_LANE)))
        A.I('buffer_load_dwordx4 %s, %s, %s, %s offen' % (v(self.SR, 4), v(T), s(SRD_X, 4), s(S_TMP)), vm='sl')
        A.I('v_mov_b32 %s, 0x%x' % (v(T + 1), BIG))
        A.I('v_cmp_gt_u32 vcc, 16, %s' % v(V_LANE))
        A.I('v_cndmask_b32 %s, %s, %s, vcc' % (v(T + 1), v(T + 1), v(T)))
        A.I('buffer_load_dwordx4 %s, %s, %s, %s offen offset:1024' % (v(self.SR + 4, 4), v(T + 1), s(SRD_X, 4), s(S_TMP)), vm='sl')
        self.colmap(T + 2, T + 3)
        A.I('s_mul_i32 %s, %s, 40' % (s(S_TMP), s(S_TB)))
        A.I('s_mul_i32 %s, %s, 5' % (s(S_T3), s(S_W)))
        A.I('s_add_u32 %s, %s, %s' % (s(S_TMP), s(S_TMP), s(S_T3)))
        A.I('s_mul_i32 %s, %s, %d' % (s(S_TMP), s(S_TMP), self.rowbytes))
        for i in range(5):
            A.I('buffer_load_dwordx2 %s, %s, %s, %s offen' % (v(self.CR + 2 * i, 2), v(T + 2), s(SRD_W, 4), s(S_TMP)), vm='cl')
            if i < 4:
                A.I('s_add_u32 %s, %s, %d' % (s(S_TMP), s(S_TMP), self.rowbytes))

    def compute(self):
        A, T = self.A, self.T
        SU, SQ = T + 4, T + 5
        A.I('v_mov_b32 %s, 0' % v(SU))
        A.I('v_mov_b32 %s, 0' % v(SQ))
        A.wait(vm='sl')
        for i in range(8):
            A.I('v_lshlrev_b32 %s, 16, %s' % (v(T + 6), v(self.SR + i)))
            A.I('v_and_b32 %s, 0xffff0000, %s' % (v(T + 7), v(self.SR + i)))
            A.I('v_add_f32 %s, %s, %s' % (v(SU), v(SU), v(T + 6)))
            A.I('v_fmac_f32 %s, %s, %s' % (v(SQ), v(T + 6), v(T + 6)))
            A.I('v_add_f32 %s, %s, %s' % (v(SU), v(SU), v(T + 7)))
            A.I('v_fmac_f32 %s, %s, %s' % (v(SQ), v(T + 7), v(T + 7)))
        wave_sum(A, [SU, SQ], [T + 6, T + 7])
        stats_to_mr(A, SU, SQ, T + 8, T + 9, T + 6)
        A.I('v_mov_b32 %s, 0' % v(T + 6))
        A.I('v_lshlrev_b32 %s, 2, v0' % v(T + 7))
        A.I('v_mov_b32 %s, 0x%x' % (v(T + 14), BIG))
        A.I('v_cmp_gt_u32 vcc, 320, v0')
        A.I('v_cndmask_b32 %s, %s, %s, vcc' % (v(T + 7), v(T + 14), v(T + 7)))
        A.I('s_mul_i32 %s, s2, 1280' % s(62))
        A.I('s_add_u32 %s, %s, %d' % (s(62), s(62), KVA_OFF))
        A.group_begin()
        A.I('s_cmp_lt_u32 s2, 252')
        A.I('s_cselect_b32 %s, %s, 0x%x' % (s(62), s(62), BIG))
        A.group_end()
        A.I('buffer_store_dword %s, %s, %s, %s offen sc1' % (v(T + 6), v(T + 7), s(SRD_WS, 4), s(62)), vm='sst')
        A.I('v_cmp_eq_u32 vcc, 0, v0')
        A.I('v_cndmask_b32 %s, %s, 0, vcc' % (v(T + 7), v(T + 14)))
        A.I('s_lshl_b32 %s, s2, 8' % s(62))
        A.I('s_add_u32 %s, %s, %d' % (s(62), s(62), CNT_OFF))
        A.I('buffer_store_dword %s, %s, %s, %s offen' % (v(T + 6), v(T + 7), s(SRD_WS, 4), s(62)), vm='z2')
        A.wait(vm='cl')
        C = T + 10
        for i in range(5):
            for h in range(2):
                r_ = self.CR + 2 * i + h
                if i == 0:
                    A.I('v_lshlrev_b32 %s, 16, %s' % (v(C + 2 * h), v(r_)))
                    A.I('v_and_b32 %s, 0xffff0000, %s' % (v(C + 2 * h + 1), v(r_)))
                else:
                    A.I('v_lshlrev_b32 %s, 16, %s' % (v(T + 6), v(r_)))
                    A.I('v_and_b32 %s, 0xffff0000, %s' % (v(T + 7), v(r_)))
                    A.I('v_add_f32 %s, %s, %s' % (v(C + 2 * h), v(C + 2 * h), v(T + 6)))
                    A.I('v_add_f32 %s, %s, %s' % (v(C + 2 * h + 1), v(C + 2 * h + 1), v(T + 7)))
        A.I('s_lshl_b32 %s, %s, 10' % (s(62), s(S_W)))
        A.I('s_add_u32 %s, %s, %d' % (s(62), s(62), self.csw_lds))
        A.I('v_lshlrev_b32 %s, 4, %s' % (v(T + 6), v(V_LANE)))
        A.I('v_add_u32 %s, %s, %s' % (v(T + 6), s(62), v(T + 6)))
        A.I('ds_write_b128 %s, %s' % (v(T + 6), v(C, 4)), lg='z')
        A.I('v_mov_b32 %s, %s' % (v(T + 6), s(62)))
        A.I('ds_write_b64 %s, %s offset:1016' % (v(T + 6), v(T + 8, 2)), lg='z')

    def hook_reduce(self):
        A = self.A
        R = HK
        A.I('s_lshl_b32 %s, %s, 8' % (s(S_TMP), s(S_TG)))
        A.I('s_add_u32 %s, %s, %d' % (s(S_TMP), s(S_TMP), self.csw_lds))
        A.I('v_lshlrev_b32 %s, 2, %s' % (v(R + 8), v(V_LANE)))
        A.I('v_add_u32 %s, %s, %s' % (v(R + 9), s(S_TMP), v(R + 8)))
        for i in range(8):
            A.I('ds_read_b32 %s, %s offset:%d' % (v(R + i), v(R + 9), i * 1024), lg='cr')
        A.I('v_and_b32 %s, 7, %s' % (v(R + 9), v(V_LANE)))
        A.I('v_lshlrev_b32 %s, 10, %s' % (v(R + 9), v(R + 9)))
        A.I('v_add_u32 %s, %d, %s' % (v(R + 9), self.csw_lds + 1016, v(R + 9)))
        A.I('ds_read_b64 %s, %s' % (v(R + 10, 2), v(R + 9)), lg='cr')

    def hook_reduce2(self):
        A = self.A
        R = HK
        A.wait(lg='cr')
        for i in range(1, 8):
            A.I('v_add_f32 %s, %s, %s' % (v(R), v(R), v(R + i)))
        A.I('s_lshl_b32 %s, %s, 4' % (s(S_TMP), s(S_FB)))
        A.I('s_add_u32 %s, %s, %s' % (s(S_TMP), s(S_TMP), s(S_TB)))
        A.I('s_lshl_b32 %s, %s, 10' % (s(S_TMP), s(S_TMP)))
        A.I('s_lshl_b32 %s, %s, 8' % (s(S_T3), s(S_TG)))
        A.I('s_add_u32 %s, %s, %s' % (s(S_TMP), s(S_TMP), s(S_T3)))
        A.I('s_add_u32 %s, %s, %d' % (s(S_TMP), s(S_TMP), CSP_OFF))
        A.I('buffer_store_dword %s, %s, %s, %s offen sc1' % (v(R), v(R + 8), s(SRD_WS, 4), s(S_TMP)), vm='cst')
        A.I('s_lshl_b32 %s, %s, 4' % (s(S_TMP), s(S_TB)))
        A.I('s_add_u32 %s, %s, %s' % (s(S_TMP), s(S_TMP), s(S_FB)))
        A.I('s_lshl_b32 %s, %s, 7' % (s(S_TMP), s(S_TMP)))
        A.I('s_add_u32 %s, %s, %d' % (s(S_TMP), s(S_TMP), STAT_OFF))
        A.I('s_cmp_eq_u32 %s, 0' % s(S_TG))
        A.I('s_cselect_b32 %s, %s, 0x%x' % (s(S_TMP), s(S_TMP), BIG))
        A.I('v_lshlrev_b32 %s, 3, %s' % (v(R + 9), v(V_LANE)))
        A.I('s_mov_b64 exec, 0xffff')
        A.I('buffer_store_dwordx2 %s, %s, %s, %s offen sc1' % (v(R + 10, 2), v(R + 9), s(SRD_WS, 4), s(S_TMP)), vm='cst')
        A.I('s_mov_b64 exec, -1')

    def hook_waitst(self):
        self.A.wait(vm=['sst', 'cst'])

    def hook_signal(self, grp, name):
        A = self.A
        if grp != 0:
            return
        R = HK + 10
        A.I('v_mov_b32 %s, 1' % v(R))
        A.I('s_and_b32 %s, s2, 1' % s(S_TMP))
        A.I('s_lshl_b32 %s, %s, 7' % (s(S_TMP), s(S_TMP)))
        A.I('v_mov_b32 %s, %s' % (v(R + 1), s(S_TMP)))
        A.I('v_lshlrev_b32 %s, 7, %s' % (v(V_PA), v(V_LANE)))
        A.I('v_and_b32 %s, 128, %s' % (v(V_PA), v(V_PA)))
        A.I('s_cmp_lg_u32 %s, 0' % s(S_TG))
        A.I('s_cbranch_scc1 L_%s_nosig' % name)
        A.I('s_mov_b64 exec, 1')
        A.I('buffer_atomic_add %s, %s, %s, 0 offen sc1' % (v(R), v(R + 1), s(SRD_DBG, 4)), vm='at')
        A.vmq.pop()
        A.I('s_mov_b64 exec, -1')
        A.label('L_%s_nosig' % name)

    def hook_poll(self, grp, name):
        A = self.A
        if grp != 0:
            return
        lp, ld = 'L_%s_poll' % name, 'L_%s_pdone' % name
        A.wait(vm='poll')
        A.I('s_cmp_lg_u32 %s, 0' % s(S_TG))
        A.I('s_cbranch_scc1 %s' % ld)
        A.label(lp)
        A.I('v_readlane_b32 %s, %s, 0' % (s(S_TMP), v(V_POLL)))
        A.I('v_readlane_b32 %s, %s, 1' % (s(S_T3), v(V_POLL)))
        A.I('s_min_u32 %s, %s, %s' % (s(S_TMP), s(S_TMP), s(S_T3)))
        A.I('s_cmp_ge_u32 %s, 128' % s(S_TMP))
        A.I('s_cbranch_scc1 %s' % ld)
        A.I('s_sleep 2')
        A.I('buffer_load_dword %s, %s, %s, 0 offen sc1' % (v(V_POLL), v(V_PA), s(SRD_DBG, 4)))
        A.vmq.pop()
        A.I('s_waitcnt vmcnt(0)')
        A.I('s_branch %s' % lp)
        A.label(ld)
        A.nop(4)

    def hook_poll_issue(self, grp):
        A = self.A
        if grp != 0:
            return
        A.I('s_mul_i32 %s, %s, 0x1000' % (s(S_TMP), s(S_TG)))
        A.I('buffer_load_dword %s, %s, %s, %s offen sc1' % (v(V_POLL), v(V_PA), s(SRD_DBG, 4), s(S_TMP)), vm='poll')

    def hook_consume(self, grp):
        A = self.A
        A.I('s_lshl_b32 %s, %s, 11' % (s(S_TMP), s(S_TB)))
        A.I('s_lshl_b32 %s, %s, 9' % (s(S_T3), s(S_TG)))
        A.I('s_add_u32 %s, %s, %s' % (s(S_TMP), s(S_TMP), s(S_T3)))
        A.I('s_add_u32 %s, %s, %d' % (s(S_TMP), s(S_TMP), STAT_OFF))
        A.I('v_lshrrev_b32 %s, 3, %s' % (v(V_TMP0), v(V_N)))
        A.I('v_lshlrev_b32 %s, 7, %s' % (v(V_TMP0), v(V_TMP0)))
        A.I('v_and_b32 %s, 7, %s' % (v(V_POLL), v(V_N)))
        A.I('v_lshl_add_u32 %s, %s, 3, %s' % (v(V_TMP0), v(V_POLL), v(V_TMP0)))
        A.I('buffer_load_dwordx2 %s, %s, %s, %s offen sc1' % (v(V_NM, 2), v(V_TMP0), s(SRD_WS, 4), s(S_TMP)), vm='nm')
        if grp == 0:
            A.I('s_lshl_b32 %s, %s, 14' % (s(S_TMP), s(S_FB)))
            A.I('s_lshl_b32 %s, %s, 8' % (s(S_T3), s(S_TG)))
            A.I('s_add_u32 %s, %s, %s' % (s(S_TMP), s(S_TMP), s(S_T3)))
            A.I('s_add_u32 %s, %s, %d' % (s(S_TMP), s(S_TMP), CSP_OFF))
            A.I('v_lshlrev_b32 %s, 2, %s' % (v(V_TMP1), v(V_LANE)))
            for p in range(16):
                A.I('buffer_load_dword %s, %s, %s, %s offen offset:%d sc1' % (v(HK + p), v(V_TMP1), s(SRD_WS, 4), s(S_TMP), (p % 4) * 1024), vm='csp')
                if p % 4 == 3 and p < 15:
                    A.I('s_add_u32 %s, %s, 4096' % (s(S_TMP), s(S_TMP)))

    def finish(self, grp):
        A = self.A
        if grp == 0:
            A.wait(vm='csp')
            for st in (8, 4, 2, 1):
                for i in range(st):
                    A.I('v_add_f32 %s, %s, %s' % (v(HK + i), v(HK + i), v(HK + i + st)))
            A.I('s_lshl_b32 %s, %s, 8' % (s(S_TMP), s(S_TG)))
            A.I('s_add_u32 %s, %s, %d' % (s(S_TMP), s(S_TMP), self.cs_lds))
            A.I('v_add_u32 %s, %s, %s' % (v(V_TMP1), s(S_TMP), v(V_TMP1)))
            A.I('ds_write_b32 %s, %s' % (v(V_TMP1), v(HK)), lg='pub')
            A.wait(lg='pub')
        A.wait(vm='nm')

    def hooks(self, grp, name):
        h = {}
        if grp == 0:
            h[4] = self.hook_reduce
            h[5] = self.hook_reduce2
        h[7] = self.hook_waitst
        h[8] = lambda: self.hook_signal(grp, name)
        h[16] = lambda: self.hook_poll_issue(grp)
        h[17] = lambda: self.hook_poll(grp, name)
        h[18] = lambda: self.hook_consume(grp)
        return h


SRD_R = 60


def x_prefetch(A, R):
    import os
    if os.environ.get('XPF', '0') == '0':
        return
    A.I('s_lshr_b32 s63, %s, 3' % s(S_FB))
    A.I('s_lshl_b32 s63, s63, 7')
    A.I('s_add_u32 s63, s63, %s' % s(S_XOFF))
    for p in range(3, 10, 2):
        for j, d in enumerate((V_DX0, V_DX1)):
            A.I('buffer_load_dwordx4 %s, %s, %s, s63 offen offset:%d' % (v(R, 4), v(d), s(SRD_X, 4), p * 128), vm='xpf')


def relayout_issue(A, R):
    A.I('s_lshl_b32 s92, %s, 3' % s(S_TB))
    A.I('s_add_u32 s92, s92, %s' % s(S_FB))
    A.I('s_sub_u32 s92, s92, 8')
    A.I('s_lshl_b32 s92, s92, 3')
    A.I('s_add_u32 s92, s92, %s' % s(S_W))
    A.group_begin()
    A.I('s_cmp_lt_u32 s92, 640')
    A.I('s_cselect_b32 s96, s88, s90')
    A.I('s_cselect_b32 s97, s89, s91')
    A.I('s_cselect_b32 s93, 0, 640')
    A.group_end()
    A.I('s_and_b32 s97, s97, 0xffff')
    A.I('s_mov_b32 s98, %d' % (1728 * 1280))
    A.I('s_mov_b32 s99, 0x20000')
    A.I('s_sub_u32 s93, s92, s93')
    A.I('s_mul_i32 s93, s93, 1280')
    A.I('v_lshlrev_b32 %s, 4, %s' % (v(R + 16), v(V_LANE)))
    A.I('v_mov_b32 %s, 0x%x' % (v(R + 17), BIG))
    A.I('v_cmp_gt_u32 vcc, 16, %s' % v(V_LANE))
    A.I('v_cndmask_b32 %s, %s, %s, vcc' % (v(R + 17), v(R + 17), v(R + 16)))
    A.I('buffer_load_dwordx4 %s, %s, s[96:99], s93 offen' % (v(R, 4), v(R + 16)), vm='rl')
    A.I('buffer_load_dwordx4 %s, %s, s[96:99], s93 offen offset:1024' % (v(R + 4, 4), v(R + 17)), vm='rl')
    A.I('s_mov_b32 s96, s90')
    A.I('s_and_b32 s97, s91, 0xffff')
    A.I('s_add_u32 s93, s92, 1408')
    A.I('s_mul_i32 s93, s93, 1280')
    A.I('buffer_load_dwordx4 %s, %s, s[96:99], s93 offen' % (v(R + 8, 4), v(R + 16)), vm='rl')
    A.I('buffer_load_dwordx4 %s, %s, s[96:99], s93 offen offset:1024' % (v(R + 12, 4), v(R + 17)), vm='rl')
    A.I('s_add_u32 s93, s92, 384')
    A.I('s_mul_i32 s93, s93, 1280')
    A.I('buffer_load_dwordx4 %s, %s, s[96:99], s93 offen' % (v(R + 24, 4), v(R + 16)), vm='rl')
    A.I('buffer_load_dwordx4 %s, %s, s[96:99], s93 offen offset:1024' % (v(R + 28, 4), v(R + 17)), vm='rl')


def relayout_store(A, R):
    T = R + 18
    for j in range(2):
        A.I('v_add_u32 %s, %d, %s' % (v(T), 64 * j, v(V_LANE)))
        divmod_const(A, T + 1, T + 2, T, 10, 6554)
        A.I('s_mov_b32 s94, %d' % WR_CB)
        A.I('v_mul_lo_u32 %s, %s, s94' % (v(T + 1), v(T + 1)))
        A.I('v_lshl_add_u32 %s, %s, 4, %s' % (v(R + 16 + j), v(T + 2), v(T + 1)))
    A.I('v_mov_b32 %s, 0x%x' % (v(T), BIG))
    A.I('v_cmp_gt_u32 vcc, 16, %s' % v(V_LANE))
    A.I('v_cndmask_b32 %s, %s, %s, vcc' % (v(R + 17), v(T), v(R + 17)))

    def w2dest(srow):
        A.I('s_lshr_b32 s94, %s, 5' % srow)
        A.I('s_mul_i32 s95, s94, 5120')
        A.I('s_and_b32 s94, %s, 7' % srow)
        A.I('s_and_b32 s101, %s, 8' % srow)
        A.I('s_lshl_b32 s101, s101, 1')
        A.I('s_or_b32 s94, s94, s101')
        A.I('s_and_b32 s101, %s, 16' % srow)
        A.I('s_lshr_b32 s101, s101, 1')
        A.I('s_or_b32 s94, s94, s101')
        A.I('s_mul_i32 s94, s94, 160')
        A.I('s_add_u32 s95, s95, s94')
    A.I('s_sub_u32 s93, s92, 640')
    w2dest('s93')
    A.I('s_mov_b32 s100, s95')
    A.I('s_mul_i32 s93, s92, 3277')
    A.I('s_lshr_b32 s93, s93, 16')
    A.I('s_mul_i32 s94, s93, 20')
    A.I('s_sub_u32 s94, s92, s94')
    A.I('s_lshr_b32 s95, s93, 3')
    A.I('s_mul_i32 s95, s95, %d' % (5 * 5120))
    A.I('s_add_u32 s95, s95, %d' % (54 * 5120))
    A.I('s_and_b32 s93, s93, 7')
    A.I('s_lshr_b32 s96, s93, 1')
    A.I('s_mul_i32 s96, s96, 5120')
    A.I('s_and_b32 s97, s93, 1')
    A.I('s_lshl_b32 s97, s97, 4')
    A.I('s_add_u32 s97, s97, s94')
    A.I('s_mul_i32 s97, s97, 160')
    A.I('s_add_u32 s96, s96, s97')
    A.I('s_lshr_b32 s97, s93, 2')
    A.I('s_lshl_b32 s97, s97, 4')
    A.I('s_and_b32 s98, s93, 3')
    A.I('s_add_u32 s97, s97, s98')
    A.I('s_sub_u32 s98, s94, 16')
    A.I('s_lshl_b32 s98, s98, 2')
    A.I('s_add_u32 s97, s97, s98')
    A.I('s_mul_i32 s97, s97, 160')
    A.I('s_add_u32 s97, s97, %d' % (4 * 5120))
    A.group_begin()
    A.I('s_cmp_lt_u32 s94, 16')
    A.I('s_cselect_b32 s96, s96, s97')
    A.group_end()
    A.I('s_add_u32 s95, s95, s96')
    A.group_begin()
    A.I('s_cmp_lt_u32 s92, 640')
    A.I('s_cselect_b32 s95, s95, s100')
    A.group_end()
    A.I('s_add_u32 s100, s95, %d' % WR_OFF)
    A.wait(vm='rl')
    A.I('buffer_store_dwordx4 %s, %s, %s, s100 offen sc1' % (v(R, 4), v(R + 16), s(SRD_WS, 4)), vm='rs')
    A.I('buffer_store_dwordx4 %s, %s, %s, s100 offen sc1' % (v(R + 4, 4), v(R + 17), s(SRD_WS, 4)), vm='rs')
    A.I('s_add_u32 s93, s92, 1408')
    w2dest('s93')
    A.I('s_add_u32 s95, s95, %d' % WR_OFF)
    A.group_begin()
    A.I('s_cmp_lt_u32 s92, 320')
    A.I('s_cselect_b32 s95, s95, 0x%x' % BIG)
    A.group_end()
    A.I('buffer_store_dwordx4 %s, %s, %s, s95 offen sc1' % (v(R + 8, 4), v(R + 16), s(SRD_WS, 4)), vm='rs')
    A.I('buffer_store_dwordx4 %s, %s, %s, s95 offen sc1' % (v(R + 12, 4), v(R + 17), s(SRD_WS, 4)), vm='rs')
    A.I('s_add_u32 s93, s92, 384')
    w2dest('s93')
    A.I('s_add_u32 s95, s95, %d' % WR_OFF)
    A.I('buffer_store_dwordx4 %s, %s, %s, s95 offen sc1' % (v(R + 24, 4), v(R + 16), s(SRD_WS, 4)), vm='rs')
    A.I('buffer_store_dwordx4 %s, %s, %s, s95 offen sc1' % (v(R + 28, 4), v(R + 17), s(SRD_WS, 4)), vm='rs')


def read_cs_list(A, cs_lds, dsts, t0):
    A.I('v_lshlrev_b32 %s, 4, %s' % (v(t0), v(V_G)))
    A.I('v_add_u32 %s, %d, %s' % (v(t0), cs_lds, v(t0)))
    for ft, d in enumerate(dsts):
        A.I('ds_read_b128 %s, %s offset:%d' % (v(d, 4), v(t0), ft * 64), lg='cs')


def setup_x(A, xbase, t):
    A.I('s_lshl_b32 %s, %s, 7' % (s(S_TMP), s(S_W)))
    for j, dst in enumerate((V_DX0, V_DX1)):
        A.I('v_add_u32 %s, %s, %s' % (v(t[0]), s(S_TMP), v(V_LANE)))
        if j:
            A.I('v_add_u32 %s, 64, %s' % (v(t[0]), v(t[0])))
        A.I('v_lshrrev_b32 %s, 3, %s' % (v(t[1]), v(t[0])))
        A.I('v_bfe_u32 %s, %s, 4, 3' % (v(t[2]), v(t[0])))
        A.I('v_and_b32 %s, 7, %s' % (v(t[0]), v(t[0])))
        A.I('v_xor_b32 %s, %s, %s' % (v(t[0]), v(t[0]), v(t[2])))
        A.I('v_mul_u32_u24 %s, 1280, %s' % (v(t[1]), v(t[1])))
        A.I('v_lshl_add_u32 %s, %s, 4, %s' % (v(dst), v(t[0]), v(t[1])))
    A.I('s_mul_i32 %s, %s, %d' % (s(S_XOFF), s(S_TB), 128 * 1280))
    A.I('s_lshl_b32 %s, %s, 11' % (s(S_M0X), s(S_W)))
    A.I('v_bfe_u32 %s, %s, 1, 3' % (v(t[0]), v(V_N)))
    A.I('v_xor_b32 %s, %s, %s' % (v(t[0]), v(t[0]), v(V_HI)))
    A.I('v_lshlrev_b32 %s, 4, %s' % (v(t[0]), v(t[0])))
    A.I('v_lshl_add_u32 %s, %s, 7, %s' % (v(t[0]), v(V_N), v(t[0])))
    A.I('s_lshl_b32 %s, %s, 12' % (s(S_TMP), s(S_TG)))
    A.I('s_add_u32 %s, %s, %d' % (s(S_TMP), s(S_TMP), xbase))
    for s4 in range(4):
        A.I('v_xor_b32 %s, %d, %s' % (v(t[1]), 32 * s4, v(t[0])))
        A.I('v_add_u32 %s, %s, %s' % (v(V_XR0 + s4), s(S_TMP), v(t[1])))


def gen_k1(A, mapping=0):
    A.label('k1_kernel')
    A.I('s_cmp_ge_u32 s2, 256')
    A.I('s_cbranch_scc1 L_k1_end')
    A.I('s_load_dwordx4 s[4:7], s[0:1], 0')
    A.I('s_load_dwordx2 s[8:9], s[0:1], 16')
    A.I('s_load_dwordx4 s[12:15], s[0:1], 40')
    A.I('s_load_dwordx4 s[16:19], s[0:1], 72')
    A.I('s_load_dwordx2 s[88:89], s[0:1], 24')
    A.I('s_load_dwordx2 s[90:91], s[0:1], 56')
    if mapping == 0:
        A.I('s_lshr_b32 %s, s2, 4' % s(S_TB))
        A.I('s_and_b32 %s, s2, 15' % s(S_FB))
    elif mapping == 1:
        A.I('s_bfe_u32 %s, s2, 0x10002' % s(S_TB))
        A.I('s_lshl_b32 %s, %s, 3' % (s(S_TB), s(S_TB)))
        A.I('s_bfe_u32 %s, s2, 0x30003' % s(S_TMP))
        A.I('s_add_u32 %s, %s, %s' % (s(S_TB), s(S_TB), s(S_TMP)))
        A.I('s_lshr_b32 %s, s2, 6' % s(S_FB))
        A.I('s_lshl_b32 %s, %s, 2' % (s(S_FB), s(S_FB)))
        A.I('s_and_b32 %s, s2, 3' % s(S_TMP))
        A.I('s_add_u32 %s, %s, %s' % (s(S_FB), s(S_FB), s(S_TMP)))
    elif mapping == 2:
        A.I('s_and_b32 %s, s2, 7' % s(S_TB))
        A.I('s_lshl_b32 %s, %s, 1' % (s(S_TB), s(S_TB)))
        A.I('s_bfe_u32 %s, s2, 0x10003' % s(S_TMP))
        A.I('s_add_u32 %s, %s, %s' % (s(S_TB), s(S_TB), s(S_TMP)))
        A.I('s_lshr_b32 %s, s2, 4' % s(S_FB))
    A.I('v_and_b32 %s, 63, v0' % v(V_LANE))
    A.I('v_and_b32 %s, 15, v0' % v(V_T))
    A.I('v_bfe_u32 %s, v0, 4, 2' % v(V_G))
    A.I('v_and_b32 %s, 31, v0' % v(V_N))
    A.I('v_bfe_u32 %s, v0, 5, 1' % v(V_HI))
    A.I('v_lshrrev_b32 %s, 6, v0' % v(V_TMP0))
    A.I('v_readfirstlane_b32 %s, %s' % (s(S_W), v(V_TMP0)))
    A.I('s_and_b32 %s, %s, 3' % (s(S_TG), s(S_W)))
    A.I('s_lshr_b32 %s, %s, 2' % (s(S_GRP), s(S_W)))
    A.I('s_mov_b32 %s, 0x%x' % (s(S_LOG2E), LOG2E))
    A.I('v_mov_b32 %s, 0x3f803f80' % v(V_ONES))
    A.I('s_waitcnt lgkmcnt(0)')
    if A.stamps_on:
        for i in range(16):
            A.I('s_mov_b32 s%d, 0' % (64 + i))
    A.stamp(0)
    srd(A, SRD_X, 4, 2048 * 640 * 2)
    srd(A, SRD_WS, 18, WS_END)
    srd(A, SRD_DBG, 16, 256)
    A.I('s_cmp_ge_u32 %s, 8' % s(S_FB))
    A.I('s_cbranch_scc1 L_k1_ffn')
    sn = A.snap()
    gen_k1_attn(A)
    A.restore(sn)
    A.label('L_k1_ffn')
    gen_k1_ffn(A)
    A.label('L_k1_end')
    A.I('s_waitcnt vmcnt(0)')
    A.I('s_endpgm')


F_SLOT = 15360
F_X = D_RING * F_SLOT
F_CSW = F_X + 3 * XP + 2048
F_CS = F_X + 3 * XP
F_BIAS = F_CS + 1024
F_LDS = F_CSW + 8192


def mish_batch(A, vals, T):
    n = len(vals)
    E, U = T, T + n
    ac0, cs0, b0 = vals[0][0], vals[0][1], vals[0][2]
    for i in range(0, n, 2):
        A.I('v_pk_fma_f32 %s, %s, %s, %s op_sel_hi:[1,0,1]' % (v(ac0 + i, 2), v(cs0 + i, 2), v(V_NM, 2), v(ac0 + i, 2)))
    for i in range(0, n, 2):
        A.I('v_pk_fma_f32 %s, %s, %s, %s op_sel:[0,1,0] op_sel_hi:[1,1,1]' % (v(ac0 + i, 2), v(ac0 + i, 2), v(V_NM, 2), v(b0 + i, 2)))
    for i in range(0, n, 2):
        A.I('v_pk_mul_f32 %s, %s, %s op_sel:[0,1] op_sel_hi:[1,1]' % (v(E + i, 2), v(ac0 + i, 2), v(V_K2, 2)))
    for i in range(n):
        A.I('v_exp_f32 %s, %s' % (v(E + i), v(E + i)))
    for i in range(0, n, 2):
        A.I('v_pk_add_f32 %s, %s, %s op_sel_hi:[1,0]' % (v(U + i, 2), v(E + i, 2), v(V_K2, 2)))
    for i in range(0, n, 2):
        A.I('v_pk_fma_f32 %s, %s, %s, %s op_sel_hi:[1,1,0]' % (v(U + i, 2), v(E + i, 2), v(U + i, 2), v(V_K2, 2)))
    for i in range(n):
        A.I('v_rcp_f32 %s, %s' % (v(U + i), v(U + i)))
    for i in range(0, n, 2):
        A.I('v_pk_fma_f32 %s, %s, %s, %s op_sel:[0,0,1] op_sel_hi:[1,0,1]' % (v(U + i, 2), v(U + i, 2), v(V_K1, 2), v(V_K1, 2)))
    for i in range(0, n, 2):
        A.I('v_pk_mul_f32 %s, %s, %s' % (v(ac0 + i, 2), v(ac0 + i, 2), v(U + i, 2)))


def w_voffsets(A, t, kind):
    per = 112 if kind == 'ffn' else 120
    A.I('s_mul_i32 %s, %s, %d' % (s(S_TMP), s(S_W), per))
    if kind == 'ffn':
        A.I('s_lshl_b32 %s, %s, 6' % (s(S_T3), s(S_P0)))
    else:
        A.I('s_mul_i32 %s, %s, 160' % (s(S_T3), s(S_FB)))
    for j, dst in enumerate((V_DM0, V_DM1)):
        A.I('v_add_u32 %s, %s, %s' % (v(t[0]), s(S_TMP), v(V_LANE)))
        if j:
            A.I('v_add_u32 %s, 64, %s' % (v(t[0]), v(t[0])))
        if kind == 'ffn':
            divmod_const(A, t[1], t[2], t[0], 28, 2341)
            A.I('v_mul_u32_u24 %s, 3456, %s' % (v(t[3]), v(t[1])))
            A.I('v_lshl_add_u32 %s, %s, 4, %s' % (v(t[3]), v(t[2]), v(t[3])))
            A.I('v_add_u32 %s, %s, %s' % (v(dst), s(S_T3), v(t[3])))
        else:
            divmod_const(A, t[1], t[2], t[0], 30, 2185)
            divmod_const(A, t[5], t[7], t[2], 10, 6554)
            A.I('v_and_b32 %s, 24, %s' % (v(t[3]), v(t[1])))
            A.I('v_and_b32 %s, 1, %s' % (v(t[4]), v(t[1])))
            A.I('v_lshl_or_b32 %s, %s, 2, %s' % (v(t[3]), v(t[4]), v(t[3])))
            A.I('v_bfe_u32 %s, %s, 1, 2' % (v(t[4]), v(t[1])))
            A.I('v_or_b32 %s, %s, %s' % (v(t[3]), v(t[3]), v(t[4])))
            A.I('v_mul_u32_u24 %s, 3840, %s' % (v(t[3]), v(t[3])))
            A.I('v_lshl_add_u32 %s, %s, 4, %s' % (v(t[3]), v(t[7]), v(t[3])))
            A.I('v_add_u32 %s, 1, %s' % (v(t[6]), v(t[5])))
            A.I('v_cmp_gt_u32 vcc, 2, %s' % v(t[5]))
            A.I('v_cndmask_b32 %s, 0, %s, vcc' % (v(t[6]), v(t[6])))
            A.I('v_mul_u32_u24 %s, 1280, %s' % (v(t[6]), v(t[6])))
            A.I('v_add3_u32 %s, %s, %s, %s' % (v(dst), s(S_T3), v(t[3]), v(t[6])))
    A.I('s_mul_i32 %s, %s, %d' % (s(S_M0B), s(S_W), per * 16))


def mk_dma(A, rowbytes, himask):
    def dma(stage):
        slot = stage % D_RING
        A.I('s_mov_b32 %s, %d' % (s(S_DT), stage * 32 * rowbytes))
        A.I('s_add_u32 m0, %s, %d' % (s(S_M0B), slot * F_SLOT))
        A.I('buffer_load_dwordx4 %s, %s, %s offen lds' % (v(V_DM0), s(SRD_W, 4), s(S_DT)), vm=('dma', stage))
        A.I('s_add_u32 m0, %s, %d' % (s(S_M0B), slot * F_SLOT + 1024))
        A.I('s_mov_b32 exec_hi, 0x%x' % himask)
        A.I('buffer_load_dwordx4 %s, %s, %s offen lds' % (v(V_DM1), s(SRD_W, 4), s(S_DT)), vm=('dma', stage))
        A.I('s_mov_b64 exec, -1')
    return dma


def trbase32(A, dst, rowbytes, rmul, t0, t1):
    A.I('v_bfe_u32 %s, %s, 2, 2' % (v(t0), v(V_LANE)))
    if rmul == 2:
        A.I('v_lshlrev_b32 %s, 1, %s' % (v(t0), v(t0)))
    A.I('v_lshl_add_u32 %s, %s, 3, %s' % (v(t0), v(V_HI), v(t0)))
    A.I('v_mul_u32_u24 %s, %d, %s' % (v(t0), rowbytes, v(t0)))
    A.I('v_and_b32 %s, 1, %s' % (v(t1), v(V_G)))
    A.I('v_lshl_add_u32 %s, %s, 5, %s' % (v(t0), v(t1), v(t0)))
    A.I('v_and_b32 %s, 3, %s' % (v(t1), v(V_LANE)))
    A.I('v_lshl_add_u32 %s, %s, 3, %s' % (v(dst), v(t1), v(t0)))


def rd_vec32(A, areg, lds_off, dst, tag):
    for j in range(4):
        A.I('ds_read_b128 %s, %s offset:%d' % (v(dst + 4 * j, 4), v(areg), lds_off + j * 32), lg=tag)


RLY = 160


def gen_k1_ffn(A):
    srd(A, SRD_W, 12, 640 * 1728 * 2)
    A.I('s_sub_u32 %s, %s, 8' % (s(S_P0), s(S_FB)))
    A.I('s_mul_i32 %s, %s, 7' % (s(S_P0), s(S_P0)))
    A.I('s_min_u32 %s, %s, 47' % (s(S_P0), s(S_P0)))
    t = [200 + i for i in range(8)]
    def colmap(dst, t0):
        A.I('s_lshl_b32 %s, %s, 6' % (s(S_T3), s(S_P0)))
        A.I('v_lshlrev_b32 %s, 3, %s' % (v(dst), v(V_LANE)))
        A.I('v_add_u32 %s, %s, %s' % (v(dst), s(S_T3), v(dst)))
        A.I('v_mov_b32 %s, 0x%x' % (v(t0), BIG))
        A.I('v_cmp_gt_u32 vcc, 56, %s' % v(V_LANE))
        A.I('v_cndmask_b32 %s, %s, %s, vcc' % (v(dst), v(t0), v(dst)))
    C = Coop(A, 3456, F_CSW, F_CS, colmap)
    setup_x(A, F_X, t)
    dma_x(A, 0, F_X)
    w_voffsets(A, t, 'ffn')
    dma = mk_dma(A, 3456, 0xffff)
    dma(0)
    dma(1)
    dma_x(A, 1, F_X)
    srd(A, SRD_AUX, 14, 1728 * 2)

    C.issue_loads()
    dma(2)
    A.stamp(8)
    trbase32(A, V_RB0, 448, 1, t[0], t[1])
    A.I('s_lshl_b32 %s, %s, 8' % (s(S_TMP), s(S_GRP)))
    A.I('v_add_u32 %s, %s, %s' % (v(V_RB0), s(S_TMP), v(V_RB0)))
    A.I('v_add_u32 %s, %d, %s' % (v(V_RB1), 3 * F_SLOT, v(V_RB0)))
    A.stamp(14)

    def mk_fill(grp):
        A.defer_begin()
        x_prefetch(A, 152)
        C.compute()
        relayout_issue(A, RLY)
        if grp == 0:
            A.I('s_lshl_b32 s85, %s, 6' % s(S_P0))
            A.I('v_lshlrev_b32 %s, 1, v0' % v(194))
            A.I('buffer_load_ushort %s, %s, %s, s85 offen' % (v(195), v(194), s(SRD_AUX, 4)), vm='bias')
        relayout_store(A, RLY)
        if grp == 0:
            A.wait(vm='bias')
            A.I('v_lshlrev_b32 %s, 16, %s' % (v(195), v(195)))
            A.I('v_lshlrev_b32 %s, 2, v0' % v(194))
            A.I('v_add_u32 %s, %d, %s' % (v(194), F_BIAS, v(194)))
            A.I('ds_write_b32 %s, %s' % (v(194), v(195)), lg='z')
        return A.defer_end()
    A.I('s_cmp_eq_u32 %s, 1' % s(S_GRP))
    A.I('s_cbranch_scc1 L_ffn_B')
    sn = A.snap()
    for grp in range(2):
        if grp:
            A.restore(sn)
            A.label('L_ffn_B')
        nt = 4 - grp
        tiles = [(ti * 64, ACC + 16 * ti) for ti in range(nt)]
        hk = C.hooks(grp, 'ffn%d' % grp)
        import os
        WPF = os.environ.get('WPF', '0') == '1'

        def rl_wait():
            A.wait(vm='rs')

        def rl_signal():
            if grp:
                return
            A.I('v_mov_b32 %s, 1' % v(HK + 12))
            A.I('v_mov_b32 %s, 64' % v(HK + 13))
            A.I('s_cmp_lg_u32 %s, 0' % s(S_TG))
            A.I('s_cbranch_scc1 L_rl_nosig')
            A.I('s_mov_b64 exec, 1')
            A.I('buffer_atomic_add %s, %s, %s, 0 offen sc1' % (v(HK + 12), v(HK + 13), s(SRD_DBG, 4)), vm='at')
            A.vmq.pop()
            A.I('s_mov_b64 exec, -1')
            A.label('L_rl_nosig')
        if WPF:
            hk[13] = rl_wait
            hk[14] = rl_signal
        L = Loop(A, 'ffn%d' % grp, tiles, 16 * 448, 4 * 448, dma, F_X, hk, fillers=mk_fill(grp))
        L.run()
        CSR = [152, 184]
        BFR = [168, 200]
        TT = 216
        OUT = 232
        AD = 252
        C.finish(grp)
        A.stamp(6)
        A.I('s_barrier')
        A.stamp(7)
        A.I('v_lshlrev_b32 %s, 4, %s' % (v(AD + 1), v(V_HI)))
        A.I('v_add_u32 %s, %d, %s' % (v(AD + 1), F_CS + grp * 512, v(AD + 1)))
        A.I('v_mov_b32 %s, 2.0' % v(V_K2))
        A.I('v_mov_b32 %s, %s' % (v(V_K2 + 1), s(S_LOG2E)))
        A.I('v_mov_b32 %s, -2.0' % v(V_K1))
        A.I('v_mov_b32 %s, 1.0' % v(V_K1 + 1))

        def rdv(ti):
            rd_vec32(A, AD + 1, ti * 128, CSR[ti % 2], ('cs', ti))
            rd_vec32(A, AD + 1, 1024 + ti * 128, BFR[ti % 2], ('cs', ti))
        rdv(0)
        A.I('s_lshl_b32 %s, %s, 3' % (s(S_TMP), s(S_TB)))
        A.I('s_lshl_b32 %s, %s, 1' % (s(S_T3), s(S_TG)))
        A.I('s_add_u32 %s, %s, %s' % (s(S_TMP), s(S_TMP), s(S_T3)))
        A.I('s_mul_i32 %s, %s, 54' % (s(S_TMP), s(S_TMP)))
        A.I('s_add_u32 %s, %s, %s' % (s(S_TMP), s(S_TMP), s(S_P0)))
        A.I('s_lshl_b32 %s, %s, 10' % (s(S_TMP), s(S_TMP)))
        A.I('s_add_u32 %s, %s, %d' % (s(S_TMP), s(S_TMP), ACT_OFF + grp * 4 * 1024))
        A.I('v_and_b32 %s, 1, %s' % (v(AD), v(V_G)))
        A.I('v_mul_u32_u24 %s, %d, %s' % (v(AD), 54 * 1024, v(AD)))
        A.I('v_lshl_add_u32 %s, %s, 4, %s' % (v(AD), v(V_T), v(AD)))
        A.I('v_lshl_add_u32 %s, %s, 8, %s' % (v(AD), v(V_HI), v(AD)))
        for ti in range(nt):
            A.stamp(10 + ti)
            if ti + 1 < nt:
                rdv(ti + 1)
            A.wait(lg=('cs', ti))
            for hb in range(2):
                vals = []
                for r_ in range(8):
                    i_ = hb * 8 + r_
                    vals.append((ACC + 16 * ti + i_, CSR[ti % 2] + i_, BFR[ti % 2] + i_, V_NM, V_NM + 1))
                mish_batch(A, vals, TT)
                o = OUT + ((ti * 2 + hb) % 4) * 4
                for q in range(4):
                    ac = ACC + 16 * ti + hb * 8 + 2 * q
                    A.I('v_cvt_pk_bf16_f32 %s, %s, %s' % (v(o + q), v(ac), v(ac + 1)))
                A.I('buffer_store_dwordx4 %s, %s, %s, %s offen offset:%d' % (v(o, 4), v(AD), s(SRD_WS, 4), s(S_TMP), ti * 1024 + hb * 512) + ' sc1', vm='st')
        A.stamp(15)
        A.stamp_flush(18, S_W, 8)
        if WPF:
            if grp == 0:
                A.I('v_mov_b32 %s, 64' % v(104))
                A.I('s_cmp_lg_u32 %s, 0' % s(S_TG))
                A.I('s_cbranch_scc1 L_rl_go')
                A.label('L_rl_poll')
                A.I('buffer_load_dword %s, %s, %s, 0 offen sc1' % (v(105), v(104), s(SRD_DBG, 4)), vm='poll')
                A.wait_all(vm=True)
                A.I('v_readfirstlane_b32 %s, %s' % (s(S_TMP), v(105)))
                A.I('s_cmp_ge_u32 %s, 128' % s(S_TMP))
                A.I('s_cbranch_scc1 L_rl_go')
                A.I('s_sleep 8')
                A.I('s_branch L_rl_poll')
                A.label('L_rl_go')
            A.I('s_barrier')
            A.I('s_and_b32 %s, s2, 1' % s(S_TMP))
            A.I('s_mul_i32 %s, %s, %d' % (s(S_TMP), s(S_TMP), 4 * WR_CB))
            A.I('s_lshl_b32 %s, %s, 3' % (s(S_T3), s(S_TB)))
            A.I('s_add_u32 %s, %s, %s' % (s(S_T3), s(S_T3), s(S_W)))
            A.I('s_mul_i32 %s, %s, %d' % (s(S_T3), s(S_T3), 11840))
            A.I('s_add_u32 %s, %s, %s' % (s(S_TMP), s(S_TMP), s(S_T3)))
            A.I('s_add_u32 %s, %s, %d' % (s(S_TMP), s(S_TMP), WR_OFF))
            A.I('v_lshlrev_b32 %s, 4, %s' % (v(104), v(V_LANE)))
            for q in range(12):
                A.I('buffer_load_dwordx4 %s, %s, %s, %s offen offset:%d' % (v(108 + 4 * q, 4), v(104), s(SRD_WS, 4), s(S_TMP), (q % 4) * 1024), vm='pf')
                if q % 4 == 3:
                    A.I('s_add_u32 %s, %s, 4096' % (s(S_TMP), s(S_TMP)))
        A.I('s_waitcnt vmcnt(0)')
        A.I('s_endpgm')


A_X = D_RING * F_SLOT
PHIK_ROW = 352
A_PHIK = 0
A_VS = A_PHIK + 128 * PHIK_ROW
A_M = A_X + 3 * XP
A_CSW = A_M
A_CS = A_M + 80 * 192
A_FLAG = A_CS + 1024
A_LDS = A_FLAG + 64


def softmax2(A, P, EP, EM, X, scl, sync):
    MX, MN = X, X + 1
    A.I('v_max3_f32 %s, %s, %s, %s' % (v(MX), v(P), v(P + 1), v(P + 2)))
    A.I('v_min3_f32 %s, %s, %s, %s' % (v(MN), v(P), v(P + 1), v(P + 2)))
    for i in range(3, 19, 2):
        A.I('v_max3_f32 %s, %s, %s, %s' % (v(MX), v(MX), v(P + i), v(P + i + 1)))
        A.I('v_min3_f32 %s, %s, %s, %s' % (v(MN), v(MN), v(P + i), v(P + i + 1)))
    A.I('v_max_f32 %s, %s, %s' % (v(MX), v(MX), v(P + 19)))
    A.I('v_min_f32 %s, %s, %s' % (v(MN), v(MN), v(P + 19)))
    A.I('v_pk_mul_f32 %s, %s, %s op_sel_hi:[1,0]' % (v(X, 2), v(X, 2), v(scl, 2)))
    for i in range(0, 20, 2):
        A.I('v_pk_fma_f32 %s, %s, %s, %s op_sel_hi:[1,0,0] neg_lo:[0,0,1] neg_hi:[0,0,1]' % (v(EP + i, 2), v(P + i, 2), v(scl, 2), v(X, 2)))
        A.I('v_pk_fma_f32 %s, %s, %s, %s op_sel:[0,0,1] op_sel_hi:[1,0,1] neg_lo:[1,0,0] neg_hi:[1,0,0]' % (v(EM + i, 2), v(P + i, 2), v(scl, 2), v(X, 2)))
    sync()
    for i in range(20):
        A.I('v_exp_f32 %s, %s' % (v(EP + i), v(EP + i)))
        A.I('v_exp_f32 %s, %s' % (v(EM + i), v(EM + i)))
    sync()
    SP, SM, RS = X + 2, X + 4, X + 6
    A.I('v_pk_add_f32 %s, %s, %s' % (v(SP, 2), v(EP, 2), v(EP + 2, 2)))
    A.I('v_pk_add_f32 %s, %s, %s' % (v(SM, 2), v(EM, 2), v(EM + 2, 2)))
    for i in range(4, 20, 2):
        A.I('v_pk_add_f32 %s, %s, %s' % (v(SP, 2), v(SP, 2), v(EP + i, 2)))
        A.I('v_pk_add_f32 %s, %s, %s' % (v(SM, 2), v(SM, 2), v(EM + i, 2)))
    A.I('v_add_f32 %s, %s, %s' % (v(RS), v(SP), v(SP + 1)))
    A.I('v_add_f32 %s, %s, %s' % (v(RS + 1), v(SM), v(SM + 1)))
    A.I('v_rcp_f32 %s, %s' % (v(RS), v(RS)))
    A.I('v_rcp_f32 %s, %s' % (v(RS + 1), v(RS + 1)))
    for i in range(0, 20, 2):
        A.I('v_pk_mul_f32 %s, %s, %s op_sel_hi:[1,0]' % (v(EP + i, 2), v(EP + i, 2), v(RS, 2)))
        A.I('v_pk_mul_f32 %s, %s, %s op_sel:[0,1] op_sel_hi:[1,1]' % (v(EM + i, 2), v(EM + i, 2), v(RS, 2)))
    for i in range(10):
        A.I('v_cvt_pk_bf16_f32 %s, %s, %s' % (v(P + i), v(EP + 2 * i), v(EP + 2 * i + 1)))
        A.I('v_cvt_pk_bf16_f32 %s, %s, %s' % (v(P + 10 + i), v(EM + 2 * i), v(EM + 2 * i + 1)))
    sync()


def gen_k1_attn(A):
    srd(A, SRD_W, 6, 640 * 1920 * 2)
    t = [200 + i for i in range(16)]
    def colmap(dst, t0):
        divmod_const(A, t[0], t[1], V_LANE, 20, 3277)
        A.I('v_add_u32 %s, 1, %s' % (v(t[2]), v(t[0])))
        A.I('v_cmp_eq_u32 vcc, 2, %s' % v(t[0]))
        A.I('v_cndmask_b32 %s, %s, 0, vcc' % (v(t[2]), v(t[2])))
        A.I('v_mul_u32_u24 %s, 1280, %s' % (v(t[2]), v(t[2])))
        A.I('v_lshl_add_u32 %s, %s, 3, %s' % (v(dst), v(t[1]), v(t[2])))
        A.I('s_mul_i32 %s, %s, 160' % (s(S_T3), s(S_FB)))
        A.I('v_add_u32 %s, %s, %s' % (v(dst), s(S_T3), v(dst)))
        A.I('v_mov_b32 %s, 0x%x' % (v(t0), BIG))
        A.I('v_cmp_gt_u32 vcc, 60, %s' % v(V_LANE))
        A.I('v_cndmask_b32 %s, %s, %s, vcc' % (v(dst), v(t0), v(dst)))
    C = Coop(A, 3840, A_CSW, A_CS, colmap)
    setup_x(A, A_X, t)
    dma_x(A, 0, A_X)
    w_voffsets(A, t, 'attn')
    dma = mk_dma(A, 3840, 0x00ffffff)
    dma(0)
    dma(1)
    dma_x(A, 1, A_X)
    srd(A, SRD_AUX, 8, 32 * 400 * 2)

    C.issue_loads()
    dma(2)
    trbase32(A, V_RB0, 480, 2, t[0], t[1])
    A.I('s_lshl_b32 %s, %s, 8' % (s(S_TMP), s(S_GRP)))
    A.I('v_add_u32 %s, %s, %s' % (v(V_RB0), s(S_TMP), v(V_RB0)))
    A.I('v_add_u32 %s, %d, %s' % (v(V_RB1), 3 * F_SLOT, v(V_RB0)))
    A.I('v_mov_b32 %s, %d' % (v(t[0]), A_FLAG))
    A.I('v_mov_b32 %s, 0' % v(t[1]))
    A.I('ds_write_b32 %s, %s' % (v(t[0]), v(t[1])), lg='z')
    A.wait(lg='z')

    def mk_fill():
        A.defer_begin()
        x_prefetch(A, 152)
        C.compute()
        MD, MA = 184, 192
        for i in range(4):
            A.I('v_add_u32 %s, %d, v0' % (v(t[0]), 512 * i))
            divmod_const(A, t[1], t[2], t[0], 24, 2731)
            divmod_const(A, t[3], t[4], t[1], 20, 3277)
            A.I('v_lshrrev_b32 %s, 1, %s' % (v(t[5]), v(t[2])))
            A.I('v_lshlrev_b32 %s, 2, %s' % (v(t[5]), v(t[5])))
            A.I('v_and_b32 %s, 1, %s' % (v(t[6]), v(t[2])))
            A.I('v_lshlrev_b32 %s, 1, %s' % (v(t[6]), v(t[6])))
            A.I('v_cmp_lt_u32 vcc, 19, %s' % v(t[5]))
            A.I('v_addc_co_u32 %s, vcc, 0, %s, vcc' % (v(t[6]), v(t[6])))
            A.I('v_cmp_lt_u32 vcc, 19, %s' % v(t[5]))
            A.I('v_subrev_u32 %s, 20, %s' % (v(t[8]), v(t[5])))
            A.I('v_cndmask_b32 %s, %s, %s, vcc' % (v(t[8]), v(t[5]), v(t[8])))
            A.I('v_mul_u32_u24 %s, 800, %s' % (v(t[7]), v(t[3])))
            A.I('v_mul_u32_u24 %s, 40, %s' % (v(t[4]), v(t[4])))
            A.I('v_add_u32 %s, %s, %s' % (v(t[7]), v(t[7]), v(t[4])))
            A.I('v_lshl_add_u32 %s, %s, 1, %s' % (v(t[7]), v(t[8]), v(t[7])))
            A.I('v_mov_b32 %s, 0x%x' % (v(t[4]), BIG))
            A.I('v_cmp_eq_u32 vcc, %s, %s' % (v(t[6]), v(t[3])))
            A.I('v_cndmask_b32 %s, %s, %s, vcc' % (v(t[7]), v(t[4]), v(t[7])))
            A.I('v_cmp_gt_u32 vcc, 40, %s' % v(t[5]))
            A.I('v_cndmask_b32 %s, %s, %s, vcc' % (v(t[7]), v(t[4]), v(t[7])))
            A.I('s_mul_i32 s85, %s, 3200' % s(S_FB))
            A.I('buffer_load_dwordx2 %s, %s, %s, %s offen' % (v(MD + 2 * i, 2), v(t[7]), s(SRD_AUX, 4), 's85'), vm='m')
            A.I('v_lshlrev_b32 %s, 3, %s' % (v(MA + i), v(t[0])))
            A.I('v_add_u32 %s, %d, %s' % (v(MA + i), A_M, v(MA + i)))

        A.gate(7)
        A.wait(vm='m')
        for i in range(4):
            if i == 3:
                A.group_begin()
                A.I('v_cmp_gt_u32 vcc, 384, v0')
                A.I('s_and_saveexec_b64 %s, vcc' % s(S_MASK, 2))
            A.I('ds_write_b64 %s, %s' % (v(MA + i), v(MD + 2 * i, 2)), lg='z')
            if i == 3:
                A.I('s_mov_b64 exec, -1')
                A.group_end()
        return A.defer_end()

    NM = V_NM
    CSR = 104
    MF = 168
    AD = 228
    X = 238
    SCL = 246
    VMB = 247
    BO = 24
    A.I('s_cmp_eq_u32 %s, 1' % s(S_GRP))
    A.I('s_cbranch_scc1 L_att_B')
    sn = A.snap()
    for grp in range(2):
        if grp:
            A.restore(sn)
            A.label('L_att_B')
        tiles = [(ti * 64, ACC + 16 * ti) for ti in range(4)]
        L = Loop(A, 'att%d' % grp, tiles, 16 * 480, 480, dma, A_X, C.hooks(grp, 'att%d' % grp), fillers=mk_fill())
        L.run()
        C.finish(grp)
        A.I('v_bfe_u32 %s, %s, 2, 2' % (v(VMB), v(V_LANE)))
        A.I('v_lshl_add_u32 %s, %s, 2, %s' % (v(VMB), v(V_HI), v(VMB)))
        A.I('v_mul_u32_u24 %s, 192, %s' % (v(VMB), v(VMB)))
        A.I('v_and_b32 %s, 1, %s' % (v(AD), v(V_G)))
        A.I('v_lshl_add_u32 %s, %s, 5, %s' % (v(VMB), v(AD), v(VMB)))
        A.I('v_and_b32 %s, 3, %s' % (v(AD), v(V_LANE)))
        A.I('v_lshl_add_u32 %s, %s, 3, %s' % (v(VMB), v(AD), v(VMB)))
        A.I('v_add_u32 %s, %d, %s' % (v(VMB), A_M, v(VMB)))
        for u in range(3):
            for s2 in range(5):
                b = MF + (u * 5 + s2) * 4
                for h in range(2):
                    A.I('ds_read_b64_tr_b16 %s, %s offset:%d' % (v(b + 2 * h, 2), v(VMB), (16 * s2 + 8 * h) * 192 + u * 64), lg='mf')
        A.I('v_mul_f32 %s, %s, %s' % (v(SCL), s(S_LOG2E), v(NM + 1)))
        A.I('s_barrier')
        if grp == 0:
            A.I('s_setprio 2')
        A.stamp(6)
        A.I('v_lshlrev_b32 %s, 4, %s' % (v(AD + 1), v(V_HI)))
        A.I('v_add_u32 %s, %d, %s' % (v(AD + 1), A_CS + grp * 512, v(AD + 1)))
        for ti in range(4):
            rd_vec32(A, AD + 1, ti * 128, CSR + 16 * ti, ('cs', ti))
        A.I('s_mul_i32 %s, %s, %d' % (s(S_TMP), s(S_TG), 32 * 160))
        A.I('s_add_u32 %s, %s, %d' % (s(S_TMP), s(S_TMP), A_VS))
        A.I('v_mul_u32_u24 %s, 160, %s' % (v(AD), v(V_N)))
        A.I('v_lshl_add_u32 %s, %s, 3, %s' % (v(AD), v(V_HI), v(AD)))
        A.I('v_add_u32 %s, %s, %s' % (v(AD), s(S_TMP), v(AD)))
        if grp == 0:
            vq = [(2, 2, 0), (2, 3, 8)] + [(3, j, 16 + 8 * j) for j in range(4)]
            st2 = [(0, 0), (0, 8), (1, 0), (1, 8), (2, 0)]
        else:
            vq = [(0, j, 48 + 8 * j) for j in range(4)]
            st2 = [(1, 0), (1, 8), (2, 0), (2, 8), (3, 0)]
        BOS = [24, 28, 32, 36, 248]
        for (ti, j, f0) in vq:
            A.wait(lg=('cs', ti))
            ac = ACC + 16 * ti + 4 * j
            for r_ in range(0, 4, 2):
                A.I('v_pk_fma_f32 %s, %s, %s, %s op_sel_hi:[1,0,1]' % (v(ac + r_, 2), v(CSR + 16 * ti + 4 * j + r_, 2), v(NM, 2), v(ac + r_, 2)))
            for r_ in range(0, 4, 2):
                A.I('v_pk_mul_f32 %s, %s, %s op_sel:[0,1] op_sel_hi:[1,1]' % (v(ac + r_, 2), v(ac + r_, 2), v(NM, 2)))
            A.I('v_cvt_pk_bf16_f32 %s, %s, %s' % (v(ac), v(ac), v(ac + 1)))
            A.I('v_cvt_pk_bf16_f32 %s, %s, %s' % (v(ac + 1), v(ac + 2), v(ac + 3)))
            A.I('ds_write_b64 %s, %s offset:%d' % (v(AD), v(ac, 2), f0 * 2), lg='vs')
        for s2, (ti, r0) in enumerate(st2):
            A.wait(lg=('cs', ti))
            ac = ACC + 16 * ti + r0
            for r_ in range(0, 8, 2):
                A.I('v_pk_fma_f32 %s, %s, %s, %s op_sel_hi:[1,0,1]' % (v(ac + r_, 2), v(CSR + 16 * ti + r0 + r_, 2), v(NM, 2), v(ac + r_, 2)))
            for q in range(4):
                A.I('v_cvt_pk_bf16_f32 %s, %s, %s' % (v(BOS[s2] + q), v(ac + 2 * q), v(ac + 2 * q + 1)))
        A.wait(lg='mf')
        P = 104
        for s2 in range(5):
            for u in range(3):
                d = v(P + 16 * u, 16)
                A.I('v_mfma_f32_32x32x16_bf16 %s, %s, %s, %s' % (d, v(MF + (u * 5 + s2) * 4, 4), v(BOS[s2], 4), d if s2 else '0'))
        EP, EM = 40, 60
        calls = [0]
        if grp == 0:
            A.I('s_mul_i32 %s, %s, %d' % (s(S_TMP), s(S_TG), 32 * PHIK_ROW))
            A.I('s_add_u32 %s, %s, %d' % (s(S_TMP), s(S_TMP), A_PHIK))
            A.I('v_mul_u32_u24 %s, %d, %s' % (v(AD + 2), PHIK_ROW, v(V_N)))
            A.I('v_mul_u32_u24 %s, 160, %s' % (v(AD + 3), v(V_HI)))
            A.I('v_add3_u32 %s, %s, %s, %s' % (v(AD + 2), s(S_TMP), v(AD + 2), v(AD + 3)))
            for a_ in range(2):
                softmax2(A, P + 20 * a_, EP, EM, X, SCL, lambda: None)
                for j in range(5):
                    A.I('ds_write_b128 %s, %s offset:%d' % (v(AD + 2), v(P + 20 * a_ + 4 * j, 4), a_ * 80 + j * 16), lg='pk')
            A.stamp(8)
            KA, KB = AD + 4, AD + 5
            trbase(A, KA, PHIK_ROW, AD + 6, AD + 7)
            A.I('s_mul_i32 %s, %s, 80' % (s(S_TMP), s(S_TG)))
            A.I('s_add_u32 %s, %s, %d' % (s(S_TMP), s(S_TMP), A_PHIK))
            A.I('v_add_u32 %s, %s, %s' % (v(KA), s(S_TMP), v(KA)))
            trbase(A, KB, 160, AD + 6, AD + 7)
            A.I('s_mul_i32 %s, %s, 40' % (s(S_TMP), s(S_TG)))
            A.I('s_add_u32 %s, %s, %d' % (s(S_TMP), s(S_TMP), A_VS))
            A.I('v_add_u32 %s, %s, %s' % (v(KB), s(S_TMP), v(KB)))
            A.I('v_cmp_eq_u32 %s, 4, %s' % (s(S_MASK, 2), v(V_T)))
            A.wait(lg=['pk', 'vs'])
            A.I('v_mov_b32 %s, %d' % (v(AD + 6), A_FLAG))
            A.I('v_mov_b32 %s, 1' % v(AD + 7))
            A.I('s_mov_b64 exec, 1')
            A.I('ds_add_u32 %s, %s' % (v(AD + 6), v(AD + 7)), lg='fl')
            A.I('s_mov_b64 exec, -1')
            A.label('L_kvflag')
            A.I('ds_read_b32 %s, %s' % (v(AD + 7), v(AD + 6)), lg='fl')
            A.wait_all(lg=True)
            A.I('v_readfirstlane_b32 %s, %s' % (s(S_TMP), v(AD + 7)))
            A.I('s_cmp_ge_u32 %s, 8' % s(S_TMP))
            A.I('s_cbranch_scc0 L_kvflag')
            FR = 104
            for ks in range(4):
                for i in range(5):
                    r0 = FR + (ks * 5 + i) * 4
                    for h in range(2):
                        if i < 3:
                            A.I('ds_read_b64_tr_b16 %s, %s offset:%d' % (v(r0 + 2 * h, 2), v(KA), (ks * 32 + 8 * h) * PHIK_ROW + i * 32), lg=('kv', ks))
                        else:
                            A.I('ds_read_b64_tr_b16 %s, %s offset:%d' % (v(r0 + 2 * h, 2), v(KB), (ks * 32 + 8 * h) * 160 + (i - 3) * 32), lg=('kv', ks))
            KD = 40
            for ks in range(4):
                A.wait(lg=('kv', ks))
                rb = FR + (ks * 5 + 4) * 4
                for j in range(4):
                    A.I('v_cndmask_b32 %s, %s, %s, %s' % (v(rb + j), v(rb + j), v(V_ONES), s(S_MASK, 2)))
                for dt in range(2):
                    for i in range(3):
                        d = v(KD + (dt * 3 + i) * 4, 4)
                        A.I('v_mfma_f32_16x16x32_bf16 %s, %s, %s, %s' % (d, v(FR + (ks * 5 + 3 + dt) * 4, 4), v(FR + (ks * 5 + i) * 4, 4), d if ks else '0'))
            A.I('s_lshl_b32 %s, %s, 2' % (s(S_TMP), s(S_FB)))
            A.I('s_add_u32 %s, %s, %s' % (s(S_TMP), s(S_TMP), s(S_TG)))
            A.I('s_mul_i32 %s, %s, 3360' % (s(S_TMP), s(S_TMP)))
            A.I('s_add_u32 %s, %s, %d' % (s(S_TMP), s(S_TMP), KVA_OFF))
            A.I('s_mul_i32 %s, %s, 43' % (s(S_T3), s(S_TB)))
            A.I('s_lshr_b32 %s, %s, 7' % (s(S_T3), s(S_T3)))
            A.I('s_mul_i32 %s, %s, 3' % (s(S_T3), s(S_T3)))
            A.I('s_sub_u32 %s, %s, %s' % (s(S_T3), s(S_TB), s(S_T3)))
            A.I('s_mul_i32 %s, %s, %d' % (s(S_T3), s(S_T3), KVA_REP))
            A.I('s_add_u32 %s, %s, %s' % (s(S_TMP), s(S_TMP), s(S_T3)))
            A.I('s_lshl_b32 %s, %s, 12' % (s(S_T3), s(S_TG)))
            A.I('s_add_u32 %s, %s, %d' % (s(S_T3), s(S_T3), A_VS + 128 * 160))
            A.I('v_mul_u32_u24 %s, 640, %s' % (v(AD), v(V_G)))
            A.I('v_lshl_add_u32 %s, %s, 2, %s' % (v(AD), v(V_T), v(AD)))
            A.I('v_add_u32 %s, %s, %s' % (v(AD), s(S_T3), v(AD)))
            for dt in range(2):
                for i in range(3):
                    for r_ in range(4):
                        lo, hi_ = 0xffffffff, 0xffffffff
                        if dt == 1:
                            hi_ = 0
                            lo = 0xffffffff if r_ == 0 else 0xffff
                        if i == 2:
                            lo &= 0x00ff00ff
                            hi_ &= 0x00ff00ff
                        A.I('s_mov_b32 exec_lo, 0x%x' % lo)
                        A.I('s_mov_b32 exec_hi, 0x%x' % hi_)
                        A.I('ds_write_b32 %s, %s offset:%d' % (v(AD), v(KD + (dt * 3 + i) * 4 + r_), (16 * dt + r_) * 160 + i * 64), lg='rp')
            A.I('s_mov_b64 exec, -1')
            A.I('v_lshlrev_b32 %s, 2, %s' % (v(AD + 1), v(V_LANE)))
            A.I('v_add_u32 %s, %s, %s' % (v(AD), s(S_T3), v(AD + 1)))
            for q in range(14):
                A.I('ds_read_b32 %s, %s offset:%d' % (v(104 + q), v(AD), q * 256), lg=('rq', q))
            for q in range(14):
                A.wait(lg=('rq', q))
                if q == 13:
                    A.I('s_mov_b64 exec, 0xff')
                A.I('buffer_atomic_add_f32 %s, %s, %s, %s offen offset:%d' % (v(104 + q), v(AD + 1), s(SRD_WS, 4), s(S_TMP), q * 256), vm='kvp')
            A.I('s_mov_b64 exec, -1')
            A.stamp(9)
        else:
            A.wait(lg='vs')
            A.I('v_mov_b32 %s, %d' % (v(AD + 6), A_FLAG))
            A.I('v_mov_b32 %s, 1' % v(AD + 7))
            A.I('s_mov_b64 exec, 1')
            A.I('ds_add_u32 %s, %s' % (v(AD + 6), v(AD + 7)), lg='fl')
            A.I('s_mov_b64 exec, -1')
            A.I('s_lshl_b32 %s, %s, 3' % (s(S_TMP), s(S_TB)))
            A.I('s_lshl_b32 %s, %s, 1' % (s(S_T3), s(S_TG)))
            A.I('s_add_u32 %s, %s, %s' % (s(S_TMP), s(S_TMP), s(S_T3)))
            A.I('s_lshl_b32 %s, %s, 3' % (s(S_TMP), s(S_TMP)))
            A.I('s_add_u32 %s, %s, %s' % (s(S_TMP), s(S_TMP), s(S_FB)))
            A.I('s_mul_i32 %s, %s, 5120' % (s(S_TMP), s(S_TMP)))
            A.I('s_add_u32 %s, %s, %d' % (s(S_TMP), s(S_TMP), PHIQ_OFF))
            A.I('s_add_u32 %s, %s, 4096' % (s(S_T3), s(S_TMP)))
            A.I('v_and_b32 %s, 1, %s' % (v(AD + 2), v(V_G)))
            A.I('v_mul_u32_u24 %s, %d, %s' % (v(AD + 2), 8 * 5120, v(AD + 2)))
            A.I('v_lshl_add_u32 %s, %s, 4, %s' % (v(AD + 2), v(V_T), v(AD + 2)))
            A.I('v_lshl_add_u32 %s, %s, 9, %s' % (v(AD + 3), v(V_HI), v(AD + 2)))
            A.I('v_lshl_add_u32 %s, %s, 11, %s' % (v(AD + 2), v(V_HI), v(AD + 2)))
            def syncB():
                calls[0] += 1
                pass
            for a_ in range(2):
                softmax2(A, P + 20 * a_, EP, EM, X, SCL, syncB)
                for j in range(4):
                    A.I('buffer_store_dwordx4 %s, %s, %s, %s offen offset:%d' % (v(P + 20 * a_ + 4 * j, 4), v(AD + 2), s(SRD_WS, 4), s(S_TMP), a_ * 1024 + j * 256) + ' sc1', vm='st')
                A.I('buffer_store_dwordx4 %s, %s, %s, %s offen offset:%d' % (v(P + 20 * a_ + 16, 4), v(AD + 3), s(SRD_WS, 4), s(S_T3), a_ * 256) + ' sc1', vm='st')
        A.stamp(15)
        A.stamp_flush(18, S_W, 8)
        A.I('s_waitcnt vmcnt(0)')
        A.I('s_endpgm')
```

```python
from asmlib import *
from k1 import ACT_OFF, PHIQ_OFF, KVA_OFF, KVA_REP, NREP, WR_OFF, WR_CB, O_OFF, CNT_OFF, WS_END, LOG2E, BIG, srd, divmod_const

SRD_X, SRD_DBG, SRD_OUT, SRD_WS = 20, 24, 32, 36
S_RB, S_CB, S_W, S_TMP, S_T2, S_T3, S_LOG2E, S_M0B = 40, 41, 42, 43, 44, 45, 46, 47
S_B = 48
S_WR = 57
S_H = 58
S_WO, S_BO, S_N0 = 59, 60, 61
V_LANE, V_T, V_G = 1, 2, 3
V_L16 = 4
V_RB = 10
V_L4 = 5
V_TMP = 11
SLOT = 5120
REG = 20480
K2_LDS = 8 * REG
NSLOT = 4
ACC, WIN, BB = 24, 104, 144
NB = 7


def gen_k2(A):
    A.label('k2_kernel')
    A.I('s_cmp_ge_u32 s2, 256')
    A.I('s_cbranch_scc1 L_k2_end')
    A.I('s_load_dwordx2 s[4:5], s[0:1], 0')
    A.I('s_load_dwordx4 s[8:11], s[0:1], 64')
    A.I('s_load_dwordx2 s[12:13], s[0:1], 80')
    import os
    m2 = int(os.environ.get('MAP2', '1'))
    if m2 == 0:
        A.I('s_and_b32 %s, s2, 7' % s(S_RB))
        A.I('s_lshl_b32 %s, %s, 2' % (s(S_RB), s(S_RB)))
        A.I('s_bfe_u32 %s, s2, 0x20003' % s(S_TMP))
        A.I('s_add_u32 %s, %s, %s' % (s(S_RB), s(S_RB), s(S_TMP)))
        A.I('s_lshr_b32 %s, s2, 5' % s(S_CB))
    elif m2 == 1:
        A.I('s_bfe_u32 %s, s2, 0x20001' % s(S_RB))
        A.I('s_lshl_b32 %s, %s, 3' % (s(S_RB), s(S_RB)))
        A.I('s_bfe_u32 %s, s2, 0x30003' % s(S_TMP))
        A.I('s_add_u32 %s, %s, %s' % (s(S_RB), s(S_RB), s(S_TMP)))
        A.I('s_and_b32 %s, s2, 1' % s(S_CB))
        A.I('s_lshl_b32 %s, %s, 2' % (s(S_CB), s(S_CB)))
        A.I('s_lshr_b32 %s, s2, 6' % s(S_TMP))
        A.I('s_add_u32 %s, %s, %s' % (s(S_CB), s(S_CB), s(S_TMP)))
    elif m2 == 2:
        A.I('s_lshr_b32 %s, s2, 3' % s(S_RB))
        A.I('s_and_b32 %s, s2, 7' % s(S_CB))
    A.I('v_and_b32 %s, 63, v0' % v(V_LANE))
    A.I('v_and_b32 %s, 15, v0' % v(V_T))
    A.I('v_bfe_u32 %s, v0, 4, 2' % v(V_G))
    A.I('v_lshrrev_b32 %s, 6, v0' % v(V_TMP))
    A.I('v_readfirstlane_b32 %s, %s' % (s(S_W), v(V_TMP)))
    A.I('s_mov_b32 %s, 0x%x' % (s(S_LOG2E), LOG2E))
    A.I('v_lshlrev_b32 %s, 4, %s' % (v(V_L16), v(V_LANE)))
    A.I('s_mul_i32 %s, %s, %d' % (s(S_M0B), s(S_W), REG))
    A.I('s_mov_b32 %s, %s' % (s(S_T2), s(S_W)))
    A.I('s_cmp_eq_u32 %s, 6' % s(S_W))
    A.I('s_cselect_b32 %s, 54, %s' % (s(S_T2), s(S_T2)))
    A.I('s_cmp_eq_u32 %s, 7' % s(S_W))
    A.I('s_cselect_b32 %s, 64, %s' % (s(S_T2), s(S_T2)))
    A.I('s_mul_i32 %s, %s, %d' % (s(S_WR), s(S_CB), WR_CB))
    A.I('s_mul_i32 %s, %s, %d' % (s(S_TMP), s(S_T2), SLOT))
    A.I('s_add_u32 %s, %s, %s' % (s(S_WR), s(S_WR), s(S_TMP)))
    A.I('s_add_u32 %s, %s, %d' % (s(S_WR), s(S_WR), WR_OFF))
    t = [V_TMP + i for i in range(10)]
    A.I('v_lshrrev_b32 %s, 2, %s' % (v(t[0]), v(V_LANE)))
    A.I('v_mul_u32_u24 %s, 160, %s' % (v(t[0]), v(t[0])))
    A.I('v_and_b32 %s, 3, %s' % (v(t[1]), v(V_LANE)))
    A.I('v_lshl_add_u32 %s, %s, 3, %s' % (v(t[0]), v(t[1]), v(t[0])))
    A.I('v_add_u32 %s, %s, %s' % (v(V_RB), s(S_M0B), v(t[0])))
    A.I('s_waitcnt lgkmcnt(0)')
    if A.stamps_on:
        for i in range(16):
            A.I('s_mov_b32 s%d, 0' % (64 + i))
    A.stamp(0)
    srd(A, SRD_WS, 12, WS_END)

    stride = [6]

    nstage = [9]

    def rot_init():
        if os.environ.get('ROT2', '0') == '0':
            A.I('s_mov_b32 %s, 0' % s(S_WO))
            A.I('s_mov_b32 %s, 0' % s(S_BO))
            return
        A.I('s_and_b32 %s, %s, 7' % (s(S_N0), s(S_RB)))
        A.I('s_and_b32 %s, %s, 3' % (s(S_TMP), s(S_CB)))
        A.I('s_lshl_b32 %s, %s, 1' % (s(S_TMP), s(S_TMP)))
        A.I('s_add_u32 %s, %s, %s' % (s(S_N0), s(S_N0), s(S_TMP)))
        A.I('s_cmp_ge_u32 %s, %d' % (s(S_N0), nstage[0]))
        A.I('s_cselect_b32 %s, %d, 0' % (s(S_TMP), nstage[0]))
        A.I('s_sub_u32 %s, %s, %s' % (s(S_N0), s(S_N0), s(S_TMP)))
        A.I('s_mul_i32 %s, %s, %d' % (s(S_WO), s(S_N0), SLOT * stride[0]))
        A.I('s_mul_i32 %s, %s, %d' % (s(S_BO), s(S_N0), 1024 * stride[0]))

    def rot_step(reg, unit):
        A.I('s_add_u32 %s, %s, %d' % (s(reg), s(reg), unit * stride[0]))
        A.I('s_cmp_ge_u32 %s, %d' % (s(reg), unit * stride[0] * nstage[0]))
        A.I('s_cselect_b32 %s, 0, %s' % (s(reg), s(reg)))

    def stage_off(p, unit, dst, base):
        if stride[0] == 1:
            A.I('s_add_u32 %s, %s, %d' % (s(dst), s(base), p * unit))
        elif p < 7:
            if os.environ.get('ROT2', '0') == '1':
                A.I('s_add_u32 %s, %s, %d' % (s(dst), s(S_WO), p))
                A.I('s_cmp_ge_u32 %s, 7' % s(dst))
                A.I('s_cselect_b32 %s, 7, 0' % s(S_BO))
                A.I('s_sub_u32 %s, %s, %s' % (s(dst), s(dst), s(S_BO)))
                A.I('s_mul_i32 %s, %s, %d' % (s(dst), s(dst), 6 * unit))
                A.I('s_add_u32 %s, %s, %s' % (s(dst), s(dst), s(base)))
            else:
                A.I('s_add_u32 %s, %s, %d' % (s(dst), s(base), p * 6 * unit))
        else:
            A.I('s_mul_i32 %s, %s, %d' % (s(dst), s(S_N0), unit))
            A.I('s_add_u32 %s, %s, %s' % (s(dst), s(dst), s(base)))
            A.I('s_add_u32 %s, %s, %d' % (s(dst), s(dst), (42 + 4 * (p - 7)) * unit))

    def dma_w(p):
        slot = p % NSLOT
        stage_off(p, SLOT, S_TMP, S_WR)
        A.I('s_add_u32 m0, %s, %d' % (s(S_M0B), slot * SLOT))
        for q in range(4):
            A.I('buffer_load_dwordx4 %s, %s, %s offen offset:%d lds' % (v(V_L16), s(SRD_WS, 4), s(S_TMP), q * 1024), vm=('w', p))
        A.I('s_add_u32 %s, %s, 4096' % (s(S_TMP), s(S_TMP)))
        A.I('s_add_u32 m0, %s, %d' % (s(S_M0B), slot * SLOT + 4096))
        A.I('buffer_load_dwordx4 %s, %s, %s offen lds' % (v(V_L16), s(SRD_WS, 4), s(S_TMP)), vm=('w', p))

    def rd_frags(p):
        A.wait(vm=('w', p))
        off = (p % NSLOT) * SLOT
        for ft in range(5):
            w = WIN + ((p % 2) * 5 + ft) * 4
            A.I('ds_read_b64_tr_b16 %s, %s offset:%d' % (v(w, 2), v(V_RB), off + ft * 32), lg=('w', p, ft))
            A.I('ds_read_b64_tr_b16 %s, %s offset:%d' % (v(w + 2, 2), v(V_RB), off + 16 * 160 + ft * 32), lg=('w', p, ft))

    def ld_b(n, sc=''):
        b = BB + (n % NB) * 16
        for i in range(4):
            stage_off(n, 1024, S_TMP, S_B + i)
            if sc and n % 5 == 4:
                for j in range(4):
                    A.I('buffer_load_dword %s, %s, %s, %s offen offset:%d%s' % (v(b + 4 * i + j), v(V_L4), s(SRD_WS, 4), s(S_TMP), j * 256, sc), vm=('b', n))
            else:
                A.I('buffer_load_dwordx4 %s, %s, %s, %s offen%s' % (v(b + 4 * i, 4), v(V_L16), s(SRD_WS, 4), s(S_TMP), sc), vm=('b', n))

    def gemm(n, nb0, nw0, sc='', prios=None):
        nb, nw = nb0, nw0
        rd_frags(0)
        for p in range(n):
            if prios and p in prios:
                A.I('s_setprio %d' % prios[p])
            if p in (3, 6):
                A.stamp({3: 2, 6: 3}[p])
            if p + 1 < n:
                rd_frags(p + 1)
            la = int(os.environ.get('LA', '3')) if not sc else 3
            while nw < n and nw <= p + la and (nw < NSLOT or nw - NSLOT < p):
                dma_w(nw)
                nw += 1
            while nb < n and nb <= p + la and nb <= p + NB - 1:
                ld_b(nb, sc)
                nb += 1
            A.wait(vm=('b', p))
            b = BB + (p % NB) * 16
            for ft in range(5):
                A.wait(lg=('w', p, ft))
                w = WIN + ((p % 2) * 5 + ft) * 4
                for i in range(4):
                    d = v(ACC + (ft * 4 + i) * 4, 4)
                    A.I('v_mfma_f32_16x16x32_bf16 %s, %s, %s, %s' % (d, v(w, 4), v(b + 4 * i, 4), d if p else '0'))

    A.I('s_cmp_ge_u32 %s, 6' % s(S_W))
    A.I('s_cbranch_scc1 L_k2_att')
    sn = A.snap()
    A.I('s_setprio 2')
    A.I('s_cmp_ge_u32 %s, 4' % s(S_W))
    A.I('s_cselect_b32 %s, -2, 0' % s(S_N0))
    A.I('s_and_b32 %s, %s, 7' % (s(S_WO), s(S_RB)))
    A.I('s_and_b32 %s, %s, 3' % (s(S_TMP), s(S_CB)))
    A.I('s_lshl_b32 %s, %s, 1' % (s(S_TMP), s(S_TMP)))
    A.I('s_add_u32 %s, %s, %s' % (s(S_WO), s(S_WO), s(S_TMP)))
    for _ in range(2):
        A.I('s_cmp_ge_u32 %s, 7' % s(S_WO))
        A.I('s_cselect_b32 %s, 7, 0' % s(S_TMP))
        A.I('s_sub_u32 %s, %s, %s' % (s(S_WO), s(S_WO), s(S_TMP)))
    dma_w(0)
    for i in range(4):
        A.I('s_lshl_b32 %s, %s, 2' % (s(S_TMP), s(S_RB)))
        A.I('s_add_u32 %s, %s, %d' % (s(S_TMP), s(S_TMP), i))
        A.I('s_mul_i32 %s, %s, 54' % (s(S_TMP), s(S_TMP)))
        A.I('s_add_u32 %s, %s, %s' % (s(S_TMP), s(S_TMP), s(S_T2)))
        A.I('s_lshl_b32 %s, %s, 10' % (s(S_B + i), s(S_TMP)))
    ld_b(0)
    dma_w(1)
    ld_b(1)
    A.stamp(1)
    A.I('s_and_b32 %s, %s, 6' % (s(S_TMP), s(S_W)))
    A.I('s_cmp_eq_u32 %s, 2' % s(S_TMP))
    A.I('s_cbranch_scc1 L_k2_f7')
    sn7 = A.snap()
    gemm(10, 2, 2, prios={2: 1, 5: 0})
    A.I('s_branch L_k2_fin')
    A.restore(sn7)
    A.label('L_k2_f7')
    gemm(7, 2, 2, prios={3: 1})
    A.I('s_branch L_k2_fin')
    endF = A.snap()

    A.restore(sn)
    stride[0] = 1
    nstage[0] = 10
    A.label('L_k2_att')
    A.I('s_setprio 3')
    A.I('s_sub_u32 %s, %s, 6' % (s(S_H), s(S_W)))
    A.I('s_lshl_b32 %s, %s, 1' % (s(S_H), s(S_H)))
    PA, PB, KR, KVF, DT = 24, 56, 72, 136, 168
    for i in range(4):
        A.I('s_lshl_b32 %s, %s, 2' % (s(S_TMP), s(S_RB)))
        A.I('s_add_u32 %s, %s, %d' % (s(S_TMP), s(S_TMP), i))
        A.I('s_lshl_b32 %s, %s, 3' % (s(S_TMP), s(S_TMP)))
        A.I('s_add_u32 %s, %s, %s' % (s(S_TMP), s(S_TMP), s(S_CB)))
        A.I('s_mul_i32 %s, %s, 5120' % (s(S_TMP), s(S_TMP)))
        A.I('s_add_u32 %s, %s, %d' % (s(S_TMP), s(S_TMP), PHIQ_OFF))
        A.I('s_add_u32 %s, %s, 4096' % (s(S_T3), s(S_TMP)))
        A.I('buffer_load_dwordx4 %s, %s, %s, %s offen' % (v(PB + 4 * i, 4), v(V_L16), s(SRD_WS, 4), s(S_T3)), vm='ph')
        A.I('s_lshl_b32 %s, %s, 10' % (s(S_T3), s(S_H)))
        A.I('s_add_u32 %s, %s, %s' % (s(S_TMP), s(S_TMP), s(S_T3)))
        for e in range(2):
            A.I('buffer_load_dwordx4 %s, %s, %s, %s offen offset:%d' % (v(PA + 16 * e + 4 * i, 4), v(V_L16), s(SRD_WS, 4), s(S_TMP), e * 1024), vm='ph')
    KL = 0
    A.I('s_lshl_b32 %s, %s, 2' % (s(S_T3), s(S_CB)))
    A.I('s_add_u32 %s, %s, %s' % (s(S_T3), s(S_T3), s(S_H)))
    A.I('s_mul_i32 %s, %s, 3360' % (s(S_T3), s(S_T3)))
    for rp in range(NREP):
        A.I('s_add_u32 %s, %s, %d' % (s(S_TMP), s(S_T3), KVA_OFF + rp * KVA_REP))
        for q in range(7):
            if q % 4 == 0:
                A.I('s_add_u32 m0, %s, %d' % (s(S_M0B), rp * 6720 + q * 1024))
                if q:
                    A.I('s_add_u32 %s, %s, 4096' % (s(S_TMP), s(S_TMP)))
            if q == 6:
                A.I('s_mov_b32 exec_hi, 0xf')
            A.I('buffer_load_dwordx4 %s, %s, %s offen offset:%d lds' % (v(V_L16), s(SRD_WS, 4), s(S_TMP), (q % 4) * 1024), vm='kv')
        A.I('s_mov_b64 exec, -1')
    A.I('v_mul_u32_u24 %s, 160, %s' % (v(t[0]), v(V_T)))
    A.I('v_lshrrev_b32 %s, 2, %s' % (v(t[1]), v(V_T)))
    A.I('v_add_u32 %s, 16, %s' % (v(t[1]), v(t[1])))
    A.I('v_and_b32 %s, 3, %s' % (v(t[2]), v(V_T)))
    A.I('v_cmp_eq_u32 vcc, 0, %s' % v(t[2]))
    A.I('v_mov_b32 %s, 20' % v(t[2]))
    A.I('v_cndmask_b32 %s, %s, %s, vcc' % (v(t[1]), v(t[2]), v(t[1])))
    A.I('v_mul_u32_u24 %s, 160, %s' % (v(t[1]), v(t[1])))
    A.I('v_add_u32 %s, %s, %s' % (v(t[0]), s(S_M0B), v(t[0])))
    A.I('v_add_u32 %s, %s, %s' % (v(t[1]), s(S_M0B), v(t[1])))
    A.I('v_lshl_add_u32 %s, %s, 5, %s' % (v(t[2]), v(V_G), v(t[0])))
    A.I('v_lshl_add_u32 %s, %s, 5, %s' % (v(t[3]), v(V_G), v(t[1])))
    A.stamp(1)
    A.wait(vm='kv')
    for rp in range(NREP):
        dst = KR if rp == 0 else DT
        for e in range(2):
            for k, (areg, off) in enumerate(((t[2], 0), (t[0], 128), (t[3], 0), (t[1], 128))):
                for q in range(2):
                    A.I('ds_read_b128 %s, %s offset:%d' % (v(dst + 32 * e + 8 * k + 4 * q, 4), v(areg), rp * 6720 + e * 3360 + off + 16 * q), lg='kv')
        A.wait(lg='kv')
        if rp:
            for i in range(0, 64, 2):
                A.I('v_pk_add_f32 %s, %s, %s' % (v(KR + i, 2), v(KR + i, 2), v(DT + i, 2)))
    for e in range(2):
        for k in range(4):
            for q in range(4):
                A.I('v_cvt_pk_bf16_f32 %s, %s, %s' % (v(KVF + 16 * e + 4 * k + q), v(KR + 32 * e + 8 * k + 2 * q), v(KR + 32 * e + 8 * k + 2 * q + 1)))
    for e in range(2):
        A.I('s_add_u32 %s, %s, %d' % (s(S_T3), s(S_H), e))
        A.I('v_cmp_eq_u32 vcc, %s, %s' % (s(S_T3), v(V_G)))
        for k in (1, 3):
            for q in range(4):
                A.I('v_cndmask_b32 %s, 0, %s, vcc' % (v(KVF + 16 * e + 4 * k + q), v(KVF + 16 * e + 4 * k + q)))
    A.wait(vm='ph')
    for e in range(2):
        for i in range(4):
            for tl in range(2):
                d = v(DT + 32 * e + i * 8 + tl * 4, 4)
                A.I('v_mfma_f32_16x16x32_bf16 %s, %s, %s, 0' % (d, v(KVF + 16 * e + 8 * tl, 4), v(PA + 16 * e + 4 * i, 4)))
        for i in range(4):
            for tl in range(2):
                d = v(DT + 32 * e + i * 8 + tl * 4, 4)
                A.I('v_mfma_f32_16x16x32_bf16 %s, %s, %s, %s' % (d, v(KVF + 16 * e + 8 * tl + 4, 4), v(PB + 4 * i, 4), d))
    A.I('s_lshl_b32 %s, %s, 2' % (s(S_TMP), s(S_CB)))
    A.I('s_add_u32 %s, %s, %s' % (s(S_TMP), s(S_TMP), s(S_H)))
    A.I('s_lshr_b32 %s, %s, 3' % (s(S_T2), s(S_TMP)))
    A.I('s_mul_i32 %s, %s, 5' % (s(S_T2), s(S_T2)))
    A.I('s_bfe_u32 %s, %s, 0x20001' % (s(S_TMP), s(S_TMP)))
    A.I('s_add_u32 %s, %s, %s' % (s(S_T3), s(S_T2), s(S_TMP)))
    A.I('s_lshl_b32 %s, %s, 10' % (s(S_T3), s(S_T3)))
    A.I('s_add_u32 %s, %s, 4' % (s(S_T2), s(S_T2)))
    A.I('s_lshl_b32 %s, %s, 10' % (s(S_T2), s(S_T2)))
    A.I('s_lshl_b32 %s, %s, 8' % (s(S_TMP), s(S_TMP)))
    A.I('s_add_u32 %s, %s, %s' % (s(S_T2), s(S_T2), s(S_TMP)))
    A.I('v_lshlrev_b32 %s, 2, %s' % (v(V_L4), v(V_LANE)))
    A.I('s_mul_i32 %s, %s, %d' % (s(S_TMP), s(S_RB), 4 * 20 * 1024))
    A.I('s_add_u32 %s, %s, %d' % (s(S_TMP), s(S_TMP), O_OFF))
    A.I('s_add_u32 %s, %s, %s' % (s(S_T3), s(S_T3), s(S_TMP)))
    A.I('s_add_u32 %s, %s, %s' % (s(S_T2), s(S_T2), s(S_TMP)))
    for e in range(2):
        for i in range(4):
            d = DT + 32 * e + i * 8
            A.I('v_add_f32 %s, 0x358637bd, %s' % (v(d + 5), v(d + 5)))
        for i in range(4):
            d = DT + 32 * e + i * 8
            A.I('v_rcp_f32 %s, %s' % (v(d + 5), v(d + 5)))
        for i in range(4):
            d = DT + 32 * e + i * 8
            for r_ in range(5):
                A.I('v_mul_f32 %s, %s, %s' % (v(d + r_), v(d + r_), v(d + 5)))
    OQ = 72
    for i in range(4):
        for e in range(2):
            d = DT + 32 * e + i * 8
            A.I('v_cvt_pk_bf16_f32 %s, %s, %s' % (v(OQ + 8 * i + 2 * e), v(d), v(d + 1)))
            A.I('v_cvt_pk_bf16_f32 %s, %s, %s' % (v(OQ + 8 * i + 2 * e + 1), v(d + 2), v(d + 3)))
        A.I('v_cvt_pk_bf16_f32 %s, %s, %s' % (v(OQ + 8 * i + 4), v(DT + i * 8 + 4), v(DT + 32 + i * 8 + 4)))
        A.I('buffer_store_dwordx4 %s, %s, %s, %s offen sc1' % (v(OQ + 8 * i, 4), v(V_L16), s(SRD_WS, 4), s(S_T3)), vm='ost')
        A.I('buffer_store_dword %s, %s, %s, %s offen sc1' % (v(OQ + 8 * i + 4), v(V_L4), s(SRD_WS, 4), s(S_T2)), vm='ost')
        A.I('s_add_u32 %s, %s, %d' % (s(S_T3), s(S_T3), 20 * 1024))
        A.I('s_add_u32 %s, %s, %d' % (s(S_T2), s(S_T2), 20 * 1024))
    for i in range(4):
        A.I('s_lshl_b32 %s, %s, 2' % (s(S_TMP), s(S_RB)))
        A.I('s_add_u32 %s, %s, %d' % (s(S_TMP), s(S_TMP), i))
        A.I('s_mul_i32 %s, %s, 20' % (s(S_TMP), s(S_TMP)))
        A.I('s_mul_i32 %s, %s, 5' % (s(S_T3), s(S_H)))
        A.I('s_add_u32 %s, %s, %s' % (s(S_TMP), s(S_TMP), s(S_T3)))
        A.I('s_lshl_b32 %s, %s, 10' % (s(S_TMP), s(S_TMP)))
        A.I('s_add_u32 %s, %s, %d' % (s(S_B + i), s(S_TMP), O_OFF))
    A.I('v_mov_b32 %s, 1' % v(t[0]))
    A.I('s_lshl_b32 %s, %s, 8' % (s(S_TMP), s(S_RB)))
    A.I('s_add_u32 %s, %s, %d' % (s(S_TMP), s(S_TMP), CNT_OFF))
    A.I('v_mov_b32 %s, %s' % (v(t[1]), s(S_TMP)))
    A.wait(vm='ost')
    A.I('s_mov_b64 exec, 1')
    A.I('buffer_atomic_add %s, %s, %s, 0 offen sc1' % (v(t[0]), v(t[1]), s(SRD_WS, 4)), vm='at')
    A.I('s_mov_b64 exec, -1')
    A.stamp(4)
    for p_ in range(4):
        dma_w(p_)
    A.I('s_setprio 0')
    A.label('L_k2_poll')
    A.I('s_sleep 4')
    A.I('buffer_load_dword %s, %s, %s, 0 offen sc1' % (v(t[0]), v(t[1]), s(SRD_WS, 4)), vm='poll')
    A.wait_all(vm=True)
    A.I('v_readfirstlane_b32 %s, %s' % (s(S_TMP), v(t[0])))
    A.I('s_cmp_ge_u32 %s, 16' % s(S_TMP))
    A.I('s_cbranch_scc0 L_k2_poll')
    A.I('s_setprio 3')
    A.stamp(5)
    A.label('L_k2_g')
    for n in range(4):
        ld_b(n, ' sc1')
    gemm(10, 4, 4, ' sc1', prios={4: 2, 7: 1})

    A.label('L_k2_fin')
    A.flush_hazards()
    A.wait_all(vm=True, lg=True)
    A.stamp(8)
    A.I('v_add_u32 %s, %s, %s' % (v(V_TMP + 1), s(S_M0B), v(V_L16)))
    for i in range(4):
        for k in range(5):
            A.I('ds_write_b128 %s, %s offset:%d' % (v(V_TMP + 1), v(ACC + (k * 4 + i) * 4, 4), i * 5120 + k * 1024), lg='ex')
    srd(A, SRD_X, 4, 2048 * 640 * 2)
    srd(A, SRD_OUT, 8, 2048 * 640 * 2)
    A.I('s_and_b32 %s, %s, 3' % (s(S_T2), s(S_W)))
    A.I('s_lshr_b32 %s, %s, 2' % (s(S_H), s(S_W)))
    A.I('s_mul_i32 %s, %s, 3' % (s(S_H), s(S_H)))
    A.I('s_lshl_b32 %s, %s, 6' % (s(S_TMP), s(S_RB)))
    A.I('s_lshl_b32 %s, %s, 4' % (s(S_T3), s(S_T2)))
    A.I('s_add_u32 %s, %s, %s' % (s(S_TMP), s(S_TMP), s(S_T3)))
    A.I('s_mul_i32 %s, %s, 1280' % (s(S_TMP), s(S_TMP)))
    A.I('s_mul_i32 %s, %s, 160' % (s(S_T3), s(S_CB)))
    A.I('s_add_u32 %s, %s, %s' % (s(S_T3), s(S_TMP), s(S_T3)))
    A.I('s_lshl_b32 %s, %s, 5' % (s(S_TMP), s(S_H)))
    A.I('s_add_u32 %s, %s, %s' % (s(S_T3), s(S_T3), s(S_TMP)))
    VO = V_TMP
    A.I('v_mul_u32_u24 %s, 1280, %s' % (v(VO), v(V_T)))
    A.I('v_lshl_add_u32 %s, %s, 3, %s' % (v(VO), v(V_G), v(VO)))
    A.I('v_mov_b32 %s, 0x%x' % (v(V_TMP + 3), BIG))
    A.I('s_cmp_lt_u32 %s, 4' % s(S_W))
    A.I('s_cselect_b64 vcc, -1, 0')
    A.I('v_cndmask_b32 %s, %s, %s, vcc' % (v(V_TMP + 3), v(V_TMP + 3), v(VO)))
    XR = 104
    for u in range(3):
        A.I('buffer_load_dwordx2 %s, %s, %s, %s offen offset:%d' % (v(XR + 2 * u, 2), v(VO if u < 2 else V_TMP + 3), s(SRD_X, 4), s(S_T3), u * 32), vm='x')
    A.I('s_mul_i32 %s, %s, 5120' % (s(S_TMP), s(S_T2)))
    A.I('s_lshl_b32 %s, %s, 10' % (s(S_H), s(S_H)))
    A.I('s_add_u32 %s, %s, %s' % (s(S_TMP), s(S_TMP), s(S_H)))
    A.I('v_add_u32 %s, %s, %s' % (v(V_TMP + 2), s(S_TMP), v(V_L16)))
    A.I('v_add_u32 %s, %d, %s' % (v(V_TMP + 4), 3 * REG, v(V_TMP + 2)))
    A.I('v_add_u32 %s, %d, %s' % (v(V_TMP + 5), 6 * REG, v(V_TMP + 2)))
    A.wait(lg='ex')
    A.stamp(9)
    A.I('s_barrier')
    R = 112
    for u in range(3):
        for w_ in range(8):
            A.I('ds_read_b128 %s, %s offset:%d' % (v(R + (u * 8 + w_) * 4, 4), v((V_TMP + 2, V_TMP + 4, V_TMP + 5)[w_ // 3]), (w_ % 3) * REG + u * 1024), lg=('r', u))
    A.wait(vm='x')
    for u in range(3):
        A.wait(lg=('r', u))
        g_ = R + u * 32
        for r_ in range(4):
            A.I('v_add_f32 %s, %s, %s' % (v(g_ + r_), v(g_ + r_), v(g_ + 4 + r_)))
            A.I('v_add_f32 %s, %s, %s' % (v(g_ + 8 + r_), v(g_ + 8 + r_), v(g_ + 12 + r_)))
            A.I('v_add_f32 %s, %s, %s' % (v(g_ + 16 + r_), v(g_ + 16 + r_), v(g_ + 20 + r_)))
            A.I('v_add_f32 %s, %s, %s' % (v(g_ + 24 + r_), v(g_ + 24 + r_), v(g_ + 28 + r_)))
        for r_ in range(4):
            A.I('v_add3_f32 %s, %s, %s, %s' % (v(g_ + r_), v(g_ + r_), v(g_ + 8 + r_), v(g_ + 16 + r_)) if False else 'v_add_f32 %s, %s, %s' % (v(g_ + r_), v(g_ + r_), v(g_ + 8 + r_)))
        for r_ in range(4):
            A.I('v_add_f32 %s, %s, %s' % (v(g_ + r_), v(g_ + r_), v(g_ + 16 + r_)))
        e = g_ + 4
        for r_ in range(4):
            A.I('v_mul_f32 %s, %s, %s' % (v(e + r_), s(S_LOG2E), v(g_ + r_)))
        for r_ in range(4):
            A.I('v_exp_f32 %s, -%s' % (v(e + r_), v(e + r_)))
        for r_ in range(4):
            A.I('v_add_f32 %s, 1.0, %s' % (v(e + r_), v(e + r_)))
        for r_ in range(4):
            A.I('v_rcp_f32 %s, %s' % (v(e + r_), v(e + r_)))
        for r_ in range(4):
            A.I('v_mul_f32 %s, %s, %s' % (v(e + r_), v(e + r_), v(g_ + r_)))
        for h in range(2):
            A.I('v_lshlrev_b32 %s, 16, %s' % (v(e + 4 + 2 * h), v(XR + 2 * u + h)))
            A.I('v_and_b32 %s, 0xffff0000, %s' % (v(e + 5 + 2 * h), v(XR + 2 * u + h)))
        for r_ in range(4):
            A.I('v_fma_f32 %s, %s, %s, %s' % (v(e + r_), v(e + r_), v(g_ + 24 + r_), v(e + 4 + r_)))
        A.I('v_cvt_pk_bf16_f32 %s, %s, %s' % (v(e), v(e), v(e + 1)))
        A.I('v_cvt_pk_bf16_f32 %s, %s, %s' % (v(e + 1), v(e + 2), v(e + 3)))
        A.I('buffer_store_dwordx2 %s, %s, %s, %s offen offset:%d' % (v(e, 2), v(VO if u < 2 else V_TMP + 3), s(SRD_OUT, 4), s(S_T3), u * 32), vm='st')
    A.stamp(15)
    A.STAMP_OFF = (32 << 20) + (1 << 19)
    A.stamp_flush(12, S_W, 8)
    A.label('L_k2_end')
    A.I('s_waitcnt vmcnt(0)')
    A.I('s_endpgm')
```

```python
from asmlib import *

ACT_OFF = 0
PHIQ_OFF = 128 * 54 * 1024
KVA_OFF = PHIQ_OFF + 128 * 32 * 1280
KVA_REP = 32 * 3360
NREP = 3
STAT_OFF = KVA_OFF + NREP * KVA_REP + 1024
CSP_OFF = STAT_OFF + 256 * 128
WR_OFF = CSP_OFF + 16 * 16 * 1024
WR_CB = 74 * 5120
O_OFF = WR_OFF + 8 * WR_CB
CNT_OFF = O_OFF + 128 * 20 * 1024
WS_END = CNT_OFF + 32 * 256

LOG2E = 0x3fb8aa3b
BIG = 0x7ffffff0

SRD_X, SRD_W, SRD_WS, SRD_AUX, SRD_DBG = 20, 24, 28, 32, 36
S_TB, S_FB, S_W, S_TG, S_GRP, S_M0B, S_TMP, S_M0X, S_LOG2E = 40, 41, 42, 43, 44, 45, 46, 47, 48
S_XOFF = 49
S_DT = 50
S_WO, S_XO = 51, 59
S_MASK = 52
S_T3, S_T4 = 54, 55
S_P0, S_M0Q, S_HF, S_T5 = 56, 56, 57, 58
V_LANE, V_T, V_G = 1, 2, 3
V_DM0, V_DM1, V_RB0, V_RB1, V_DX0, V_DX1, V_ONES = 4, 5, 6, 7, 8, 9, 20
V_XR0 = 10
V_NM = 14
V_N, V_HI = 16, 17
V_POLL, V_PA = 18, 19
V_TMP0, V_TMP1 = 22, 23
WIN, ACC, XF, HK = 24, 40, 104, 136
V_K2, V_K1 = 248, 250
D_RING = 6
XP = 16384
DBG_STAT, DBG_CS = 16, 32


def srd(A, d, lo, size):
    A.I('s_mov_b32 %s, %s' % (s(d), s(lo)))
    A.I('s_and_b32 %s, %s, 0xffff' % (s(d + 1), s(lo + 1)))
    A.I('s_mov_b32 %s, 0x%x' % (s(d + 2), size))
    A.I('s_mov_b32 %s, 0x20000' % s(d + 3))


def swap23(A, dst, src, t0):
    A.I('v_and_b32 %s, 0x13, %s' % (v(dst), v(src)))
    A.I('v_and_b32 %s, 4, %s' % (v(t0), v(src)))
    A.I('v_lshl_or_b32 %s, %s, 1, %s' % (v(dst), v(t0), v(dst)))
    A.I('v_and_b32 %s, 8, %s' % (v(t0), v(src)))
    A.I('v_lshrrev_b32 %s, 1, %s' % (v(t0), v(t0)))
    A.I('v_or_b32 %s, %s, %s' % (v(dst), v(dst), v(t0)))


def divmod_const(A, q, r, x, c, magic):
    A.I('v_mul_u32_u24 %s, %d, %s' % (v(q), magic, v(x)))
    A.I('v_lshrrev_b32 %s, 16, %s' % (v(q), v(q)))
    A.I('v_mul_u32_u24 %s, %d, %s' % (v(r), c, v(q)))
    A.I('v_sub_u32 %s, %s, %s' % (v(r), v(x), v(r)))


def trbase(A, dst, rowbytes, t0, t1):
    A.I('v_lshrrev_b32 %s, 1, %s' % (v(t0), v(V_G)))
    A.I('v_lshlrev_b32 %s, 4, %s' % (v(t0), v(t0)))
    A.I('v_and_b32 %s, 1, %s' % (v(t1), v(V_G)))
    A.I('v_lshl_add_u32 %s, %s, 2, %s' % (v(t0), v(t1), v(t0)))
    A.I('v_bfe_u32 %s, %s, 2, 2' % (v(t1), v(V_LANE)))
    A.I('v_add_u32 %s, %s, %s' % (v(t0), v(t0), v(t1)))
    A.I('v_mul_u32_u24 %s, %d, %s' % (v(t0), rowbytes, v(t0)))
    A.I('v_and_b32 %s, 3, %s' % (v(t1), v(V_LANE)))
    A.I('v_lshl_add_u32 %s, %s, 3, %s' % (v(dst), v(t1), v(t0)))


def xf(sk, ks):
    return XF + ((sk % 4) * 2 + ks) * 4


def dma_x(A, p, xbase):
    A.I('s_add_u32 %s, %s, %d' % (s(S_DT), s(S_XOFF), p * 128))
    for j, d in enumerate((V_DX0, V_DX1)):
        A.I('s_add_u32 m0, %s, %d' % (s(S_M0X), xbase + (p % 3) * XP + j * 1024))
        A.I('buffer_load_dwordx4 %s, %s, %s offen lds' % (v(d), s(SRD_X, 4), s(S_DT)), vm=('xp', p))


class Loop:
    def __init__(self, A, name, tiles, ks_off, half_off, dma_issue, xbase, hooks=None, nwin=4, fillers=None):
        self.__dict__.update(locals())
        self.hooks = hooks or {}
        self.nf = 2 * len(tiles)

    def rd(self, F):
        A = self.A
        sk, fi = divmod(F, self.nf)
        ks, ti = divmod(fi, len(self.tiles))
        slot = sk % D_RING
        base = V_RB0 if slot < 3 else V_RB1
        off = (slot % 3) * F_SLOT + ks * self.ks_off + self.tiles[ti][0]
        w = WIN + (F % self.nwin) * 4
        A.I('ds_read_b64_tr_b16 %s, %s offset:%d' % (v(w, 2), v(base), off), lg=('f', F))
        A.I('ds_read_b64_tr_b16 %s, %s offset:%d' % (v(w + 2, 2), v(base), off + self.half_off), lg=('f', F))

    def sync_stage(self, sk):
        A = self.A
        if sk % 2:
            return
        A.wait(vm=[('dma', sk), ('dma', sk + 1), ('xp', sk // 2)], lg='z')
        A.I('s_barrier')
        p = sk // 2
        for s4 in range(4):
            A.I('ds_read_b128 %s, %s offset:%d' % (v(xf(sk + s4 // 2, s4 % 2), 4), v(V_XR0 + s4), (p % 3) * XP), lg=('x', sk + s4 // 2))
        if sk + 3 <= 19:
            self.dma_issue(sk + 3)
        self.pending = sk

    def issue_after(self, sk):
        A = self.A
        if sk + 4 <= 19:
            self.dma_issue(sk + 4)
        if sk // 2 + 2 < 10:
            dma_x(A, sk // 2 + 2, self.xbase)

    def run(self):
        A = self.A
        tot = 20 * self.nf
        la = self.nwin - 1
        self.pending = None
        import os
        pr = os.environ.get('PRIO', '')
        if pr and self.name.endswith(pr):
            A.I('s_setprio 1')
        self.sync_stage(0)
        A.stamp(1)
        for F in range(la):
            self.rd(F)
        for sk in range(20):
            if sk in (1, 5, 10):
                A.stamp({1: 2, 5: 3, 10: 4}[sk])
            if sk in self.hooks:
                self.hooks[sk]()
            for fi in range(self.nf):
                F = sk * self.nf + fi
                Fn = F + la
                if Fn < tot:
                    if Fn % self.nf == 0:
                        self.sync_stage(Fn // self.nf)
                    self.rd(Fn)
                A.wait(lg=[('f', F), ('x', sk)])
                w = WIN + (F % self.nwin) * 4
                ks, ti = divmod(fi, len(self.tiles))
                d = v(self.tiles[ti][1], 16)
                A.I('v_mfma_f32_32x32x16_bf16 %s, %s, %s, %s' % (d, v(w, 4), v(xf(sk, ks), 4), d if (sk or ks) else '0'))
                if self.pending is not None and fi == (1 if self.name.endswith('0') else 3):
                    self.issue_after(self.pending)
                    self.pending = None
                if self.fillers:
                    A.drain(self.fillers, (14 if self.name.startswith('ffn') else 4) if sk < 3 else 4, sk)
        assert not self.fillers
        if pr:
            A.I('s_setprio 0')
        A.stamp(5)


def stats_to_mr(A, vsum, vsq, nm, r, t0):
    A.I('v_mul_f32 %s, 0x3acccccd, %s' % (v(vsum), v(vsum)))
    A.I('v_mul_f32 %s, 0x3acccccd, %s' % (v(vsq), v(vsq)))
    A.I('v_fma_f32 %s, -%s, %s, %s' % (v(vsq), v(vsum), v(vsum), v(vsq)))
    A.I('v_max_f32 %s, 0, %s' % (v(vsq), v(vsq)))
    A.I('v_cvt_pk_bf16_f32 %s, %s, %s' % (v(t0), v(vsum), v(vsq)))
    A.I('v_lshlrev_b32 %s, 16, %s' % (v(nm), v(t0)))
    A.I('v_xor_b32 %s, 0x80000000, %s' % (v(nm), v(nm)))
    A.I('v_and_b32 %s, 0xffff0000, %s' % (v(t0), v(t0)))
    A.I('v_add_f32 %s, 0x3727c5ac, %s' % (v(t0), v(t0)))
    A.I('v_cvt_pk_bf16_f32 %s, %s, %s' % (v(t0), v(t0), v(t0)))
    A.I('v_and_b32 %s, 0xffff0000, %s' % (v(t0), v(t0)))
    A.I('v_sqrt_f32 %s, %s' % (v(t0), v(t0)))
    A.I('v_cvt_pk_bf16_f32 %s, %s, %s' % (v(t0), v(t0), v(t0)))
    A.I('v_and_b32 %s, 0xffff0000, %s' % (v(t0), v(t0)))
    A.I('v_rcp_f32 %s, %s' % (v(r), v(t0)))


def wave_sum(A, regs, t):
    for ctl in ('quad_perm:[1,0,3,2]', 'quad_perm:[2,3,0,1]', 'row_half_mirror', 'row_mirror'):
        A.nop(2)
        for r_ in regs:
            A.I('v_add_f32_dpp %s, %s, %s %s row_mask:0xf bank_mask:0xf' % (v(r_), v(r_), v(r_), ctl))
    for op in ('v_permlane16_swap_b32', 'v_permlane32_swap_b32'):
        for r_, t_ in zip(regs, t):
            A.I('v_mov_b32 %s, %s' % (v(t_), v(r_)))
        for r_, t_ in zip(regs, t):
            A.I('%s %s, %s' % (op, v(r_), v(t_)))
        for r_, t_ in zip(regs, t):
            A.I('v_add_f32 %s, %s, %s' % (v(r_), v(r_), v(t_)))


class Coop:
    def __init__(self, A, rowbytes, csw_lds, cs_lds, colmap, ffn):
        self.__dict__.update(locals())
        self.SR = 196
        self.CR = 224
        self.T = 234

    def issue_loads(self):
        A, T = self.A, self.T
        if self.ffn:
            A.I('s_lshl_b32 %s, %s, 7' % (s(S_TMP), s(S_TB)))
            A.I('s_lshl_b32 %s, %s, 4' % (s(S_T3), s(S_FB)))
            A.I('s_add_u32 %s, %s, %s' % (s(S_TMP), s(S_TMP), s(S_T3)))
            A.I('s_add_u32 %s, %s, %s' % (s(S_TMP), s(S_TMP), s(S_W)))
            A.I('s_sub_u32 %s, %s, 128' % (s(S_TMP), s(S_TMP)))
            A.I('s_mul_i32 %s, %s, 1280' % (s(S_TMP), s(S_TMP)))
            A.I('v_lshlrev_b32 %s, 4, %s' % (v(T), v(V_LANE)))
            A.I('v_mov_b32 %s, 0x%x' % (v(T + 1), BIG))
            A.I('v_cmp_gt_u32 vcc, 16, %s' % v(V_LANE))
            A.I('v_cndmask_b32 %s, %s, %s, vcc' % (v(T + 1), v(T + 1), v(T)))
            for e in range(2):
                A.I('buffer_load_dwordx4 %s, %s, %s, %s offen' % (v(self.SR + 8 * e, 4), v(T), s(SRD_X, 4), s(S_TMP)), vm='sl')
                A.I('buffer_load_dwordx4 %s, %s, %s, %s offen offset:1024' % (v(self.SR + 8 * e + 4, 4), v(T + 1), s(SRD_X, 4), s(S_TMP)), vm='sl')
                if e == 0:
                    A.I('s_add_u32 %s, %s, %d' % (s(S_TMP), s(S_TMP), 8 * 1280))
        self.colmap(T + 2, T + 3)
        A.I('s_mul_i32 %s, %s, 40' % (s(S_TMP), s(S_TB)))
        A.I('s_mul_i32 %s, %s, 5' % (s(S_T3), s(S_W)))
        A.I('s_add_u32 %s, %s, %s' % (s(S_TMP), s(S_TMP), s(S_T3)))
        A.I('s_mul_i32 %s, %s, %d' % (s(S_TMP), s(S_TMP), self.rowbytes))
        for i in range(5):
            A.I('buffer_load_dwordx2 %s, %s, %s, %s offen' % (v(self.CR + 2 * i, 2), v(T + 2), s(SRD_W, 4), s(S_TMP)), vm='cl')
            if i < 4:
                A.I('s_add_u32 %s, %s, %d' % (s(S_TMP), s(S_TMP), self.rowbytes))

    def compute(self):
        A, T = self.A, self.T
        ST = 212
        if self.ffn:
            for k in range(4):
                A.I('v_mov_b32 %s, 0' % v(216 + k))
            A.wait(vm='sl')
            for e in range(2):
                SU, SQ = 216 + 2 * e, 217 + 2 * e
                for i in range(8):
                    r_ = self.SR + 8 * e + i
                    A.I('v_lshlrev_b32 %s, 16, %s' % (v(T + 6), v(r_)))
                    A.I('v_and_b32 %s, 0xffff0000, %s' % (v(T + 7), v(r_)))
                    A.I('v_add_f32 %s, %s, %s' % (v(SU), v(SU), v(T + 6)))
                    A.I('v_fmac_f32 %s, %s, %s' % (v(SQ), v(T + 6), v(T + 6)))
                    A.I('v_add_f32 %s, %s, %s' % (v(SU), v(SU), v(T + 7)))
                    A.I('v_fmac_f32 %s, %s, %s' % (v(SQ), v(T + 7), v(T + 7)))
            wave_sum(A, [216, 217, 218, 219], [220, 221, 222, 223])
            for e in range(2):
                stats_to_mr(A, 216 + 2 * e, 217 + 2 * e, ST + 2 * e, ST + 2 * e + 1, T + 6)
            A.I('v_mov_b32 %s, 0' % v(T + 6))
            A.I('v_mov_b32 %s, 0' % v(T + 7))
            A.I('v_lshlrev_b32 %s, 3, v0' % v(T + 8))
            A.I('v_mov_b32 %s, 0x%x' % (v(T + 14), BIG))
            A.I('v_cmp_gt_u32 vcc, 320, v0')
            A.I('v_cndmask_b32 %s, %s, %s, vcc' % (v(T + 8), v(T + 14), v(T + 8)))
            A.I('s_lshl_b32 s63, %s, 3' % s(S_TB))
            A.I('s_add_u32 s63, s63, %s' % s(S_FB))
            A.I('s_sub_u32 s63, s63, 8')
            A.I('s_mul_i32 %s, s63, 2560' % s(62))
            A.I('s_add_u32 %s, %s, %d' % (s(62), s(62), KVA_OFF))
            A.group_begin()
            A.I('s_cmp_lt_u32 s63, 126')
            A.I('s_cselect_b32 %s, %s, 0x%x' % (s(62), s(62), BIG))
            A.group_end()
            A.I('buffer_store_dwordx2 %s, %s, %s, %s offen sc1' % (v(T + 6, 2), v(T + 8), s(SRD_WS, 4), s(62)), vm='sst')
            A.I('v_cmp_eq_u32 vcc, 0, v0')
            A.I('v_cndmask_b32 %s, %s, 0, vcc' % (v(T + 8), v(T + 14)))
            A.I('s_lshl_b32 %s, s63, 8' % s(62))
            A.I('s_add_u32 %s, %s, %d' % (s(62), s(62), CNT_OFF))
            A.I('buffer_store_dword %s, %s, %s, %s offen' % (v(T + 6), v(T + 8), s(SRD_WS, 4), s(62)), vm='z2')
        A.wait(vm='cl')
        C = T + 10
        for i in range(5):
            for h in range(2):
                r_ = self.CR + 2 * i + h
                if i == 0:
                    A.I('v_lshlrev_b32 %s, 16, %s' % (v(C + 2 * h), v(r_)))
                    A.I('v_and_b32 %s, 0xffff0000, %s' % (v(C + 2 * h + 1), v(r_)))
                else:
                    A.I('v_lshlrev_b32 %s, 16, %s' % (v(T + 4), v(r_)))
                    A.I('v_and_b32 %s, 0xffff0000, %s' % (v(T + 5), v(r_)))
                    A.I('v_add_f32 %s, %s, %s' % (v(C + 2 * h), v(C + 2 * h), v(T + 4)))
                    A.I('v_add_f32 %s, %s, %s' % (v(C + 2 * h + 1), v(C + 2 * h + 1), v(T + 5)))
        A.I('s_lshl_b32 %s, %s, 10' % (s(62), s(S_W)))
        A.I('s_add_u32 %s, %s, %d' % (s(62), s(62), self.csw_lds))
        A.I('v_lshlrev_b32 %s, 4, %s' % (v(T + 4), v(V_LANE)))
        A.I('v_add_u32 %s, %s, %s' % (v(T + 4), s(62), v(T + 4)))
        A.I('ds_write_b128 %s, %s' % (v(T + 4), v(C, 4)), lg='z')
        if self.ffn:
            A.I('v_mov_b32 %s, %s' % (v(T + 4), s(62)))
            A.I('ds_write_b128 %s, %s offset:1008' % (v(T + 4), v(ST, 4)), lg='z')

    def hook_reduce(self):
        A = self.A
        R = HK
        A.I('s_lshl_b32 %s, %s, 8' % (s(S_TMP), s(S_TG)))
        A.I('s_add_u32 %s, %s, %d' % (s(S_TMP), s(S_TMP), self.csw_lds))
        A.I('v_lshlrev_b32 %s, 2, %s' % (v(R + 8), v(V_LANE)))
        A.I('v_add_u32 %s, %s, %s' % (v(R + 9), s(S_TMP), v(R + 8)))
        for i in range(8):
            A.I('ds_read_b32 %s, %s offset:%d' % (v(R + i), v(R + 9), i * 1024), lg='cr')
        if self.ffn:
            A.I('v_and_b32 %s, 7, %s' % (v(R + 9), v(V_LANE)))
            A.I('v_lshlrev_b32 %s, 10, %s' % (v(R + 9), v(R + 9)))
            A.I('v_and_b32 %s, 8, %s' % (v(R + 10), v(V_LANE)))
            A.I('v_add3_u32 %s, %s, %s, 0' % (v(R + 9), v(R + 9), v(R + 10)))
            A.I('v_add_u32 %s, %d, %s' % (v(R + 9), self.csw_lds + 1008, v(R + 9)))
            A.I('ds_read_b64 %s, %s' % (v(R + 10, 2), v(R + 9)), lg='cr')

    def hook_reduce2(self):
        A = self.A
        R = HK
        A.wait(lg='cr')
        for i in range(1, 8):
            A.I('v_add_f32 %s, %s, %s' % (v(R), v(R), v(R + i)))
        A.I('s_lshl_b32 %s, %s, 4' % (s(S_TMP), s(S_FB)))
        A.I('s_add_u32 %s, %s, %s' % (s(S_TMP), s(S_TMP), s(S_TB)))
        A.I('s_lshl_b32 %s, %s, 10' % (s(S_TMP), s(S_TMP)))
        A.I('s_lshl_b32 %s, %s, 8' % (s(S_T3), s(S_TG)))
        A.I('s_add_u32 %s, %s, %s' % (s(S_TMP), s(S_TMP), s(S_T3)))
        A.I('s_add_u32 %s, %s, %d' % (s(S_TMP), s(S_TMP), CSP_OFF))
        A.I('buffer_store_dword %s, %s, %s, %s offen sc1' % (v(R), v(R + 8), s(SRD_WS, 4), s(S_TMP)), vm='cst')
        if self.ffn:
            A.I('s_lshl_b32 %s, %s, 3' % (s(S_TMP), s(S_TB)))
            A.I('s_add_u32 %s, %s, %s' % (s(S_TMP), s(S_TMP), s(S_FB)))
            A.I('s_lshl_b32 %s, %s, 7' % (s(S_TMP), s(S_TMP)))
            A.I('s_add_u32 %s, %s, %d' % (s(S_TMP), s(S_TMP), STAT_OFF - 1024))
            A.I('s_cmp_eq_u32 %s, 0' % s(S_TG))
            A.I('s_cselect_b32 %s, %s, 0x%x' % (s(S_TMP), s(S_TMP), BIG))
            A.I('v_lshlrev_b32 %s, 3, %s' % (v(R + 9), v(V_LANE)))
            A.I('s_mov_b64 exec, 0xffff')
            A.I('buffer_store_dwordx2 %s, %s, %s, %s offen sc1' % (v(R + 10, 2), v(R + 9), s(SRD_WS, 4), s(S_TMP)), vm='cst')
            A.I('s_mov_b64 exec, -1')

    def hook_waitst(self):
        self.A.wait(vm=['sst', 'cst'])

    def hook_signal(self, grp, name):
        A = self.A
        if grp != 0:
            return
        R = HK + 10
        A.I('v_mov_b32 %s, 1' % v(R))
        A.I('s_and_b32 %s, s2, 1' % s(S_TMP))
        A.I('s_lshl_b32 %s, %s, 7' % (s(S_TMP), s(S_TMP)))
        A.I('v_mov_b32 %s, %s' % (v(R + 1), s(S_TMP)))
        A.I('v_lshlrev_b32 %s, 7, %s' % (v(V_PA), v(V_LANE)))
        A.I('v_and_b32 %s, 128, %s' % (v(V_PA), v(V_PA)))
        A.I('s_cmp_lg_u32 %s, 0' % s(S_TG))
        A.I('s_cbranch_scc1 L_%s_nosig' % name)
        A.I('s_mov_b64 exec, 1')
        A.I('buffer_atomic_add %s, %s, %s, 0 offen sc1' % (v(R), v(R + 1), s(SRD_DBG, 4)), vm='at')
        A.vmq.pop()
        A.I('s_mov_b64 exec, -1')
        A.label('L_%s_nosig' % name)

    def hook_poll(self, grp, name):
        A = self.A
        if grp != 0:
            return
        lp, ld = 'L_%s_poll' % name, 'L_%s_pdone' % name
        A.wait(vm='poll')
        A.I('s_cmp_lg_u32 %s, 0' % s(S_TG))
        A.I('s_cbranch_scc1 %s' % ld)
        A.label(lp)
        A.I('v_readlane_b32 %s, %s, 0' % (s(S_TMP), v(V_POLL)))
        A.I('v_readlane_b32 %s, %s, 1' % (s(S_T3), v(V_POLL)))
        A.I('s_min_u32 %s, %s, %s' % (s(S_TMP), s(S_TMP), s(S_T3)))
        A.I('s_cmp_ge_u32 %s, 128' % s(S_TMP))
        A.I('s_cbranch_scc1 %s' % ld)
        A.I('s_sleep 2')
        A.I('buffer_load_dword %s, %s, %s, 0 offen sc1' % (v(V_POLL), v(V_PA), s(SRD_DBG, 4)))
        A.vmq.pop()
        A.I('s_waitcnt vmcnt(0)')
        A.I('s_branch %s' % lp)
        A.label(ld)
        A.nop(4)

    def hook_poll_issue(self, grp):
        A = self.A
        if grp != 0:
            return
        A.I('s_mul_i32 %s, %s, 0x1000' % (s(S_TMP), s(S_TG)))
        A.I('buffer_load_dword %s, %s, %s, %s offen sc1' % (v(V_POLL), v(V_PA), s(SRD_DBG, 4), s(S_TMP)), vm='poll')

    def hook_consume(self, grp):
        A = self.A
        A.I('s_lshl_b32 %s, %s, 10' % (s(S_TMP), s(S_TB)))
        A.I('s_lshl_b32 %s, %s, 8' % (s(S_T3), s(S_TG)))
        A.I('s_add_u32 %s, %s, %s' % (s(S_TMP), s(S_TMP), s(S_T3)))
        A.I('s_add_u32 %s, %s, %d' % (s(S_TMP), s(S_TMP), STAT_OFF))
        A.I('v_lshlrev_b32 %s, 3, %s' % (v(V_TMP0), v(V_N)))
        A.I('buffer_load_dwordx2 %s, %s, %s, %s offen sc1' % (v(V_NM, 2), v(V_TMP0), s(SRD_WS, 4), s(S_TMP)), vm='nm')
        if grp == 0:
            A.I('s_lshl_b32 %s, %s, 14' % (s(S_TMP), s(S_FB)))
            A.I('s_lshl_b32 %s, %s, 8' % (s(S_T3), s(S_TG)))
            A.I('s_add_u32 %s, %s, %s' % (s(S_TMP), s(S_TMP), s(S_T3)))
            A.I('s_add_u32 %s, %s, %d' % (s(S_TMP), s(S_TMP), CSP_OFF))
            A.I('v_lshlrev_b32 %s, 2, %s' % (v(V_TMP1), v(V_LANE)))
            for p in range(16):
                A.I('buffer_load_dword %s, %s, %s, %s offen offset:%d sc1' % (v(HK + p), v(V_TMP1), s(SRD_WS, 4), s(S_TMP), (p % 4) * 1024), vm='csp')
                if p % 4 == 3 and p < 15:
                    A.I('s_add_u32 %s, %s, 4096' % (s(S_TMP), s(S_TMP)))

    def finish(self, grp):
        A = self.A
        if grp == 0:
            A.wait(vm='csp')
            for st in (8, 4, 2, 1):
                for i in range(st):
                    A.I('v_add_f32 %s, %s, %s' % (v(HK + i), v(HK + i), v(HK + i + st)))
            A.I('s_lshl_b32 %s, %s, 8' % (s(S_TMP), s(S_TG)))
            A.I('s_add_u32 %s, %s, %d' % (s(S_TMP), s(S_TMP), self.cs_lds))
            A.I('v_add_u32 %s, %s, %s' % (v(V_TMP1), s(S_TMP), v(V_TMP1)))
            A.I('ds_write_b32 %s, %s' % (v(V_TMP1), v(HK)), lg='pub')
            A.wait(lg='pub')
        A.wait(vm='nm')

    def hooks(self, grp, name):
        h = {}
        if grp == 0:
            h[4] = self.hook_reduce
            h[5] = self.hook_reduce2
        h[7] = self.hook_waitst
        h[8] = lambda: self.hook_signal(grp, name)
        h[16] = lambda: self.hook_poll_issue(grp)
        h[17] = lambda: self.hook_poll(grp, name)
        h[18] = lambda: self.hook_consume(grp)
        return h


SRD_R = 60


def x_prefetch(A, R):
    import os
    if os.environ.get('XPF', '0') == '0':
        return
    A.I('s_lshr_b32 s63, %s, 3' % s(S_FB))
    A.I('s_lshl_b32 s63, s63, 7')
    A.I('s_add_u32 s63, s63, %s' % s(S_XOFF))
    for p in range(3, 10, 2):
        for j, d in enumerate((V_DX0, V_DX1)):
            A.I('buffer_load_dwordx4 %s, %s, %s, s63 offen offset:%d' % (v(R, 4), v(d), s(SRD_X, 4), p * 128), vm='xpf')


def relayout_issue(A, R):
    A.I('s_lshl_b32 s92, %s, 3' % s(S_TB))
    A.I('s_add_u32 s92, s92, %s' % s(S_FB))
    A.I('s_sub_u32 s92, s92, 8')
    A.I('s_lshl_b32 s92, s92, 3')
    A.I('s_add_u32 s92, s92, %s' % s(S_W))
    A.group_begin()
    A.I('s_cmp_lt_u32 s92, 640')
    A.I('s_cselect_b32 s96, s88, s90')
    A.I('s_cselect_b32 s97, s89, s91')
    A.I('s_cselect_b32 s93, 0, 640')
    A.group_end()
    A.I('s_and_b32 s97, s97, 0xffff')
    A.I('s_mov_b32 s98, %d' % (1728 * 1280))
    A.I('s_mov_b32 s99, 0x20000')
    A.I('s_sub_u32 s93, s92, s93')
    A.I('s_mul_i32 s93, s93, 1280')
    A.I('v_lshlrev_b32 %s, 4, %s' % (v(R + 16), v(V_LANE)))
    A.I('v_mov_b32 %s, 0x%x' % (v(R + 17), BIG))
    A.I('v_cmp_gt_u32 vcc, 16, %s' % v(V_LANE))
    A.I('v_cndmask_b32 %s, %s, %s, vcc' % (v(R + 17), v(R + 17), v(R + 16)))
    A.I('buffer_load_dwordx4 %s, %s, s[96:99], s93 offen' % (v(R, 4), v(R + 16)), vm='rl')
    A.I('buffer_load_dwordx4 %s, %s, s[96:99], s93 offen offset:1024' % (v(R + 4, 4), v(R + 17)), vm='rl')
    A.I('s_mov_b32 s96, s90')
    A.I('s_and_b32 s97, s91, 0xffff')
    A.I('s_add_u32 s93, s92, 1408')
    A.I('s_mul_i32 s93, s93, 1280')
    A.I('buffer_load_dwordx4 %s, %s, s[96:99], s93 offen' % (v(R + 8, 4), v(R + 16)), vm='rl')
    A.I('buffer_load_dwordx4 %s, %s, s[96:99], s93 offen offset:1024' % (v(R + 12, 4), v(R + 17)), vm='rl')
    A.I('s_add_u32 s93, s92, 384')
    A.I('s_mul_i32 s93, s93, 1280')
    A.I('buffer_load_dwordx4 %s, %s, s[96:99], s93 offen' % (v(R + 24, 4), v(R + 16)), vm='rl')
    A.I('buffer_load_dwordx4 %s, %s, s[96:99], s93 offen offset:1024' % (v(R + 28, 4), v(R + 17)), vm='rl')


def relayout_store(A, R):
    T = R + 18
    for j in range(2):
        A.I('v_add_u32 %s, %d, %s' % (v(T), 64 * j, v(V_LANE)))
        divmod_const(A, T + 1, T + 2, T, 10, 6554)
        A.I('s_mov_b32 s94, %d' % WR_CB)
        A.I('v_mul_lo_u32 %s, %s, s94' % (v(T + 1), v(T + 1)))
        A.I('v_lshl_add_u32 %s, %s, 4, %s' % (v(R + 16 + j), v(T + 2), v(T + 1)))
    A.I('v_mov_b32 %s, 0x%x' % (v(T), BIG))
    A.I('v_cmp_gt_u32 vcc, 16, %s' % v(V_LANE))
    A.I('v_cndmask_b32 %s, %s, %s, vcc' % (v(R + 17), v(T), v(R + 17)))

    def w2dest(srow):
        A.I('s_lshr_b32 s94, %s, 5' % srow)
        A.I('s_mul_i32 s95, s94, 5120')
        A.I('s_and_b32 s94, %s, 7' % srow)
        A.I('s_and_b32 s101, %s, 8' % srow)
        A.I('s_lshl_b32 s101, s101, 1')
        A.I('s_or_b32 s94, s94, s101')
        A.I('s_and_b32 s101, %s, 16' % srow)
        A.I('s_lshr_b32 s101, s101, 1')
        A.I('s_or_b32 s94, s94, s101')
        A.I('s_mul_i32 s94, s94, 160')
        A.I('s_add_u32 s95, s95, s94')
    A.I('s_sub_u32 s93, s92, 640')
    w2dest('s93')
    A.I('s_mov_b32 s100, s95')
    A.I('s_mul_i32 s93, s92, 3277')
    A.I('s_lshr_b32 s93, s93, 16')
    A.I('s_mul_i32 s94, s93, 20')
    A.I('s_sub_u32 s94, s92, s94')
    A.I('s_lshr_b32 s95, s93, 3')
    A.I('s_mul_i32 s95, s95, %d' % (5 * 5120))
    A.I('s_add_u32 s95, s95, %d' % (54 * 5120))
    A.I('s_and_b32 s93, s93, 7')
    A.I('s_lshr_b32 s96, s93, 1')
    A.I('s_mul_i32 s96, s96, 5120')
    A.I('s_and_b32 s97, s93, 1')
    A.I('s_lshl_b32 s97, s97, 4')
    A.I('s_add_u32 s97, s97, s94')
    A.I('s_mul_i32 s97, s97, 160')
    A.I('s_add_u32 s96, s96, s97')
    A.I('s_lshr_b32 s97, s93, 2')
    A.I('s_lshl_b32 s97, s97, 4')
    A.I('s_and_b32 s98, s93, 3')
    A.I('s_add_u32 s97, s97, s98')
    A.I('s_sub_u32 s98, s94, 16')
    A.I('s_lshl_b32 s98, s98, 2')
    A.I('s_add_u32 s97, s97, s98')
    A.I('s_mul_i32 s97, s97, 160')
    A.I('s_add_u32 s97, s97, %d' % (4 * 5120))
    A.group_begin()
    A.I('s_cmp_lt_u32 s94, 16')
    A.I('s_cselect_b32 s96, s96, s97')
    A.group_end()
    A.I('s_add_u32 s95, s95, s96')
    A.group_begin()
    A.I('s_cmp_lt_u32 s92, 640')
    A.I('s_cselect_b32 s95, s95, s100')
    A.group_end()
    A.I('s_add_u32 s100, s95, %d' % WR_OFF)
    A.wait(vm='rl')
    A.I('buffer_store_dwordx4 %s, %s, %s, s100 offen sc1' % (v(R, 4), v(R + 16), s(SRD_WS, 4)), vm='rs')
    A.I('buffer_store_dwordx4 %s, %s, %s, s100 offen sc1' % (v(R + 4, 4), v(R + 17), s(SRD_WS, 4)), vm='rs')
    A.I('s_add_u32 s93, s92, 1408')
    w2dest('s93')
    A.I('s_add_u32 s95, s95, %d' % WR_OFF)
    A.group_begin()
    A.I('s_cmp_lt_u32 s92, 320')
    A.I('s_cselect_b32 s95, s95, 0x%x' % BIG)
    A.group_end()
    A.I('buffer_store_dwordx4 %s, %s, %s, s95 offen sc1' % (v(R + 8, 4), v(R + 16), s(SRD_WS, 4)), vm='rs')
    A.I('buffer_store_dwordx4 %s, %s, %s, s95 offen sc1' % (v(R + 12, 4), v(R + 17), s(SRD_WS, 4)), vm='rs')
    A.I('s_add_u32 s93, s92, 384')
    w2dest('s93')
    A.I('s_add_u32 s95, s95, %d' % WR_OFF)
    A.I('buffer_store_dwordx4 %s, %s, %s, s95 offen sc1' % (v(R + 24, 4), v(R + 16), s(SRD_WS, 4)), vm='rs')
    A.I('buffer_store_dwordx4 %s, %s, %s, s95 offen sc1' % (v(R + 28, 4), v(R + 17), s(SRD_WS, 4)), vm='rs')


def read_cs_list(A, cs_lds, dsts, t0):
    A.I('v_lshlrev_b32 %s, 4, %s' % (v(t0), v(V_G)))
    A.I('v_add_u32 %s, %d, %s' % (v(t0), cs_lds, v(t0)))
    for ft, d in enumerate(dsts):
        A.I('ds_read_b128 %s, %s offset:%d' % (v(d, 4), v(t0), ft * 64), lg='cs')


def setup_x(A, xbase, t):
    A.I('s_lshl_b32 %s, %s, 7' % (s(S_TMP), s(S_W)))
    for j, dst in enumerate((V_DX0, V_DX1)):
        A.I('v_add_u32 %s, %s, %s' % (v(t[0]), s(S_TMP), v(V_LANE)))
        if j:
            A.I('v_add_u32 %s, 64, %s' % (v(t[0]), v(t[0])))
        A.I('v_lshrrev_b32 %s, 3, %s' % (v(t[1]), v(t[0])))
        A.I('v_bfe_u32 %s, %s, 4, 3' % (v(t[2]), v(t[0])))
        A.I('v_and_b32 %s, 7, %s' % (v(t[0]), v(t[0])))
        A.I('v_xor_b32 %s, %s, %s' % (v(t[0]), v(t[0]), v(t[2])))
        A.I('v_mul_u32_u24 %s, 1280, %s' % (v(t[1]), v(t[1])))
        A.I('v_lshl_add_u32 %s, %s, 4, %s' % (v(dst), v(t[0]), v(t[1])))
    A.I('s_mul_i32 %s, %s, %d' % (s(S_XOFF), s(S_TB), 128 * 1280))
    A.I('s_lshl_b32 %s, %s, 11' % (s(S_M0X), s(S_W)))
    A.I('v_bfe_u32 %s, %s, 1, 3' % (v(t[0]), v(V_N)))
    A.I('v_xor_b32 %s, %s, %s' % (v(t[0]), v(t[0]), v(V_HI)))
    A.I('v_lshlrev_b32 %s, 4, %s' % (v(t[0]), v(t[0])))
    A.I('v_lshl_add_u32 %s, %s, 7, %s' % (v(t[0]), v(V_N), v(t[0])))
    A.I('s_lshl_b32 %s, %s, 12' % (s(S_TMP), s(S_TG)))
    A.I('s_add_u32 %s, %s, %d' % (s(S_TMP), s(S_TMP), xbase))
    for s4 in range(4):
        A.I('v_xor_b32 %s, %d, %s' % (v(t[1]), 32 * s4, v(t[0])))
        A.I('v_add_u32 %s, %s, %s' % (v(V_XR0 + s4), s(S_TMP), v(t[1])))


def gen_k1(A, mapping=0):
    A.label('k1_kernel')
    A.I('s_cmp_ge_u32 s2, 256')
    A.I('s_cbranch_scc1 L_k1_end')
    A.I('s_load_dwordx4 s[4:7], s[0:1], 0')
    A.I('s_load_dwordx2 s[8:9], s[0:1], 16')
    A.I('s_load_dwordx4 s[12:15], s[0:1], 40')
    A.I('s_load_dwordx4 s[16:19], s[0:1], 72')
    A.I('s_load_dwordx2 s[88:89], s[0:1], 24')
    A.I('s_load_dwordx2 s[90:91], s[0:1], 56')
    if mapping == 0:
        A.I('s_lshr_b32 %s, s2, 4' % s(S_TB))
        A.I('s_and_b32 %s, s2, 15' % s(S_FB))
    elif mapping == 1:
        A.I('s_bfe_u32 %s, s2, 0x10002' % s(S_TB))
        A.I('s_lshl_b32 %s, %s, 3' % (s(S_TB), s(S_TB)))
        A.I('s_bfe_u32 %s, s2, 0x30003' % s(S_TMP))
        A.I('s_add_u32 %s, %s, %s' % (s(S_TB), s(S_TB), s(S_TMP)))
        A.I('s_lshr_b32 %s, s2, 6' % s(S_FB))
        A.I('s_lshl_b32 %s, %s, 2' % (s(S_FB), s(S_FB)))
        A.I('s_and_b32 %s, s2, 3' % s(S_TMP))
        A.I('s_add_u32 %s, %s, %s' % (s(S_FB), s(S_FB), s(S_TMP)))
    elif mapping == 2:
        A.I('s_and_b32 %s, s2, 7' % s(S_TB))
        A.I('s_lshl_b32 %s, %s, 1' % (s(S_TB), s(S_TB)))
        A.I('s_bfe_u32 %s, s2, 0x10003' % s(S_TMP))
        A.I('s_add_u32 %s, %s, %s' % (s(S_TB), s(S_TB), s(S_TMP)))
        A.I('s_lshr_b32 %s, s2, 4' % s(S_FB))
    A.I('v_and_b32 %s, 63, v0' % v(V_LANE))
    A.I('v_and_b32 %s, 15, v0' % v(V_T))
    A.I('v_bfe_u32 %s, v0, 4, 2' % v(V_G))
    A.I('v_and_b32 %s, 31, v0' % v(V_N))
    A.I('v_bfe_u32 %s, v0, 5, 1' % v(V_HI))
    A.I('v_lshrrev_b32 %s, 6, v0' % v(V_TMP0))
    A.I('v_readfirstlane_b32 %s, %s' % (s(S_W), v(V_TMP0)))
    A.I('s_and_b32 %s, %s, 3' % (s(S_TG), s(S_W)))
    A.I('s_lshr_b32 %s, %s, 2' % (s(S_GRP), s(S_W)))
    A.I('s_mov_b32 %s, 0x%x' % (s(S_LOG2E), LOG2E))
    A.I('v_mov_b32 %s, 0x3f803f80' % v(V_ONES))
    A.I('s_waitcnt lgkmcnt(0)')
    if A.stamps_on:
        for i in range(16):
            A.I('s_mov_b32 s%d, 0' % (64 + i))
    A.stamp(0)
    srd(A, SRD_X, 4, 2048 * 640 * 2)
    srd(A, SRD_WS, 18, WS_END)
    srd(A, SRD_DBG, 16, 256)
    A.I('s_cmp_ge_u32 %s, 8' % s(S_FB))
    A.I('s_cbranch_scc1 L_k1_ffn')
    sn = A.snap()
    gen_k1_attn(A)
    A.restore(sn)
    A.label('L_k1_ffn')
    gen_k1_ffn(A)
    A.label('L_k1_end')
    A.I('s_waitcnt vmcnt(0)')
    A.I('s_endpgm')


F_SLOT = 15360
F_X = D_RING * F_SLOT
F_CSW = F_X + 3 * XP + 2048
F_CS = F_X + 3 * XP
F_BIAS = F_CS + 1024
F_LDS = F_CSW + 8192


def mish_batch(A, vals, T):
    n = len(vals)
    E, U = T, T + n
    ac0, cs0, b0 = vals[0][0], vals[0][1], vals[0][2]
    for i in range(0, n, 2):
        A.I('v_pk_fma_f32 %s, %s, %s, %s op_sel_hi:[1,0,1]' % (v(ac0 + i, 2), v(cs0 + i, 2), v(V_NM, 2), v(ac0 + i, 2)))
    for i in range(0, n, 2):
        A.I('v_pk_fma_f32 %s, %s, %s, %s op_sel:[0,1,0] op_sel_hi:[1,1,1]' % (v(ac0 + i, 2), v(ac0 + i, 2), v(V_NM, 2), v(b0 + i, 2)))
    for i in range(0, n, 2):
        A.I('v_pk_mul_f32 %s, %s, %s op_sel:[0,1] op_sel_hi:[1,1]' % (v(E + i, 2), v(ac0 + i, 2), v(V_K2, 2)))
    for i in range(n):
        A.I('v_exp_f32 %s, %s' % (v(E + i), v(E + i)))
    for i in range(0, n, 2):
        A.I('v_pk_add_f32 %s, %s, %s op_sel_hi:[1,0]' % (v(U + i, 2), v(E + i, 2), v(V_K2, 2)))
    for i in range(0, n, 2):
        A.I('v_pk_fma_f32 %s, %s, %s, %s op_sel_hi:[1,1,0]' % (v(U + i, 2), v(E + i, 2), v(U + i, 2), v(V_K2, 2)))
    for i in range(n):
        A.I('v_rcp_f32 %s, %s' % (v(U + i), v(U + i)))
    for i in range(0, n, 2):
        A.I('v_pk_fma_f32 %s, %s, %s, %s op_sel:[0,0,1] op_sel_hi:[1,0,1]' % (v(U + i, 2), v(U + i, 2), v(V_K1, 2), v(V_K1, 2)))
    for i in range(0, n, 2):
        A.I('v_pk_mul_f32 %s, %s, %s' % (v(ac0 + i, 2), v(ac0 + i, 2), v(U + i, 2)))


def w_voffsets(A, t, kind):
    per = 112 if kind == 'ffn' else 120
    A.I('s_mul_i32 %s, %s, %d' % (s(S_TMP), s(S_W), per))
    if kind == 'ffn':
        A.I('s_lshl_b32 %s, %s, 6' % (s(S_T3), s(S_P0)))
    else:
        A.I('s_mul_i32 %s, %s, 160' % (s(S_T3), s(S_FB)))
    for j, dst in enumerate((V_DM0, V_DM1)):
        A.I('v_add_u32 %s, %s, %s' % (v(t[0]), s(S_TMP), v(V_LANE)))
        if j:
            A.I('v_add_u32 %s, 64, %s' % (v(t[0]), v(t[0])))
        if kind == 'ffn':
            divmod_const(A, t[1], t[2], t[0], 28, 2341)
            A.I('v_mul_u32_u24 %s, 3456, %s' % (v(t[3]), v(t[1])))
            A.I('v_lshl_add_u32 %s, %s, 4, %s' % (v(t[3]), v(t[2]), v(t[3])))
            A.I('v_add_u32 %s, %s, %s' % (v(dst), s(S_T3), v(t[3])))
        else:
            divmod_const(A, t[1], t[2], t[0], 30, 2185)
            divmod_const(A, t[5], t[7], t[2], 10, 6554)
            A.I('v_and_b32 %s, 24, %s' % (v(t[3]), v(t[1])))
            A.I('v_and_b32 %s, 1, %s' % (v(t[4]), v(t[1])))
            A.I('v_lshl_or_b32 %s, %s, 2, %s' % (v(t[3]), v(t[4]), v(t[3])))
            A.I('v_bfe_u32 %s, %s, 1, 2' % (v(t[4]), v(t[1])))
            A.I('v_or_b32 %s, %s, %s' % (v(t[3]), v(t[3]), v(t[4])))
            A.I('v_mul_u32_u24 %s, 3840, %s' % (v(t[3]), v(t[3])))
            A.I('v_lshl_add_u32 %s, %s, 4, %s' % (v(t[3]), v(t[7]), v(t[3])))
            A.I('v_add_u32 %s, 1, %s' % (v(t[6]), v(t[5])))
            A.I('v_cmp_gt_u32 vcc, 2, %s' % v(t[5]))
            A.I('v_cndmask_b32 %s, 0, %s, vcc' % (v(t[6]), v(t[6])))
            A.I('v_mul_u32_u24 %s, 1280, %s' % (v(t[6]), v(t[6])))
            A.I('v_add3_u32 %s, %s, %s, %s' % (v(dst), s(S_T3), v(t[3]), v(t[6])))
    A.I('s_mul_i32 %s, %s, %d' % (s(S_M0B), s(S_W), per * 16))


def mk_dma(A, rowbytes, himask):
    def dma(stage):
        slot = stage % D_RING
        A.I('s_mov_b32 %s, %d' % (s(S_DT), stage * 32 * rowbytes))
        A.I('s_add_u32 m0, %s, %d' % (s(S_M0B), slot * F_SLOT))
        A.I('buffer_load_dwordx4 %s, %s, %s offen lds' % (v(V_DM0), s(SRD_W, 4), s(S_DT)), vm=('dma', stage))
        A.I('s_add_u32 m0, %s, %d' % (s(S_M0B), slot * F_SLOT + 1024))
        A.I('s_mov_b32 exec_hi, 0x%x' % himask)
        A.I('buffer_load_dwordx4 %s, %s, %s offen lds' % (v(V_DM1), s(SRD_W, 4), s(S_DT)), vm=('dma', stage))
        A.I('s_mov_b64 exec, -1')
    return dma


def trbase32(A, dst, rowbytes, rmul, t0, t1):
    A.I('v_bfe_u32 %s, %s, 2, 2' % (v(t0), v(V_LANE)))
    if rmul == 2:
        A.I('v_lshlrev_b32 %s, 1, %s' % (v(t0), v(t0)))
    A.I('v_lshl_add_u32 %s, %s, 3, %s' % (v(t0), v(V_HI), v(t0)))
    A.I('v_mul_u32_u24 %s, %d, %s' % (v(t0), rowbytes, v(t0)))
    A.I('v_and_b32 %s, 1, %s' % (v(t1), v(V_G)))
    A.I('v_lshl_add_u32 %s, %s, 5, %s' % (v(t0), v(t1), v(t0)))
    A.I('v_and_b32 %s, 3, %s' % (v(t1), v(V_LANE)))
    A.I('v_lshl_add_u32 %s, %s, 3, %s' % (v(dst), v(t1), v(t0)))


def rd_vec32(A, areg, lds_off, dst, tag):
    for j in range(4):
        A.I('ds_read_b128 %s, %s offset:%d' % (v(dst + 4 * j, 4), v(areg), lds_off + j * 32), lg=tag)


RLY = 160


def gen_k1_ffn(A):
    srd(A, SRD_W, 12, 640 * 1728 * 2)
    A.I('s_sub_u32 %s, %s, 8' % (s(S_P0), s(S_FB)))
    A.I('s_mul_i32 %s, %s, 7' % (s(S_P0), s(S_P0)))
    A.I('s_min_u32 %s, %s, 47' % (s(S_P0), s(S_P0)))
    t = [152 + i for i in range(8)]
    def colmap(dst, t0):
        A.I('s_lshl_b32 %s, %s, 6' % (s(S_T3), s(S_P0)))
        A.I('v_lshlrev_b32 %s, 3, %s' % (v(dst), v(V_LANE)))
        A.I('v_add_u32 %s, %s, %s' % (v(dst), s(S_T3), v(dst)))
        A.I('v_mov_b32 %s, 0x%x' % (v(t0), BIG))
        A.I('v_cmp_gt_u32 vcc, 56, %s' % v(V_LANE))
        A.I('v_cndmask_b32 %s, %s, %s, vcc' % (v(dst), v(t0), v(dst)))
    C = Coop(A, 3456, F_CSW, F_CS, colmap, True)
    C.issue_loads()
    setup_x(A, F_X, t)
    dma_x(A, 0, F_X)
    w_voffsets(A, t, 'ffn')
    dma = mk_dma(A, 3456, 0xffff)
    dma(0)
    dma(1)
    dma_x(A, 1, F_X)
    srd(A, SRD_AUX, 14, 1728 * 2)

    dma(2)
    A.stamp(8)
    trbase32(A, V_RB0, 448, 1, t[0], t[1])
    A.I('s_lshl_b32 %s, %s, 8' % (s(S_TMP), s(S_GRP)))
    A.I('v_add_u32 %s, %s, %s' % (v(V_RB0), s(S_TMP), v(V_RB0)))
    A.I('v_add_u32 %s, %d, %s' % (v(V_RB1), 3 * F_SLOT, v(V_RB0)))
    A.stamp(14)

    def mk_fill(grp):
        A.defer_begin()
        x_prefetch(A, 152)
        C.compute()
        relayout_issue(A, RLY)
        if grp == 0:
            A.I('s_lshl_b32 s85, %s, 6' % s(S_P0))
            A.I('v_lshlrev_b32 %s, 1, v0' % v(194))
            A.I('buffer_load_ushort %s, %s, %s, s85 offen' % (v(195), v(194), s(SRD_AUX, 4)), vm='bias')
        relayout_store(A, RLY)
        if grp == 0:
            A.wait(vm='bias')
            A.I('v_lshlrev_b32 %s, 16, %s' % (v(195), v(195)))
            A.I('v_lshlrev_b32 %s, 2, v0' % v(194))
            A.I('v_add_u32 %s, %d, %s' % (v(194), F_BIAS, v(194)))
            A.I('ds_write_b32 %s, %s' % (v(194), v(195)), lg='z')
        return A.defer_end()
    A.I('s_cmp_eq_u32 %s, 1' % s(S_GRP))
    A.I('s_cbranch_scc1 L_ffn_B')
    sn = A.snap()
    for grp in range(2):
        if grp:
            A.restore(sn)
            A.label('L_ffn_B')
        nt = 4 - grp
        tiles = [(ti * 64, ACC + 16 * ti) for ti in range(nt)]
        hk = C.hooks(grp, 'ffn%d' % grp)
        import os
        WPF = os.environ.get('WPF', '0') == '1'

        def rl_wait():
            A.wait(vm='rs')

        def rl_signal():
            if grp:
                return
            A.I('v_mov_b32 %s, 1' % v(HK + 12))
            A.I('v_mov_b32 %s, 64' % v(HK + 13))
            A.I('s_cmp_lg_u32 %s, 0' % s(S_TG))
            A.I('s_cbranch_scc1 L_rl_nosig')
            A.I('s_mov_b64 exec, 1')
            A.I('buffer_atomic_add %s, %s, %s, 0 offen sc1' % (v(HK + 12), v(HK + 13), s(SRD_DBG, 4)), vm='at')
            A.vmq.pop()
            A.I('s_mov_b64 exec, -1')
            A.label('L_rl_nosig')
        if WPF:
            hk[13] = rl_wait
            hk[14] = rl_signal
        L = Loop(A, 'ffn%d' % grp, tiles, 16 * 448, 4 * 448, dma, F_X, hk, fillers=mk_fill(grp))
        L.run()
        CSR = [152, 184]
        BFR = [168, 200]
        TT = 216
        OUT = 232
        AD = 252
        C.finish(grp)
        A.stamp(6)
        A.I('s_barrier')
        A.stamp(7)
        A.I('v_lshlrev_b32 %s, 4, %s' % (v(AD + 1), v(V_HI)))
        A.I('v_add_u32 %s, %d, %s' % (v(AD + 1), F_CS + grp * 512, v(AD + 1)))
        A.I('v_mov_b32 %s, 2.0' % v(V_K2))
        A.I('v_mov_b32 %s, %s' % (v(V_K2 + 1), s(S_LOG2E)))
        A.I('v_mov_b32 %s, -2.0' % v(V_K1))
        A.I('v_mov_b32 %s, 1.0' % v(V_K1 + 1))

        def rdv(ti):
            rd_vec32(A, AD + 1, ti * 128, CSR[ti % 2], ('cs', ti))
            rd_vec32(A, AD + 1, 1024 + ti * 128, BFR[ti % 2], ('cs', ti))
        rdv(0)
        A.I('s_lshl_b32 %s, %s, 3' % (s(S_TMP), s(S_TB)))
        A.I('s_lshl_b32 %s, %s, 1' % (s(S_T3), s(S_TG)))
        A.I('s_add_u32 %s, %s, %s' % (s(S_TMP), s(S_TMP), s(S_T3)))
        A.I('s_mul_i32 %s, %s, 54' % (s(S_TMP), s(S_TMP)))
        A.I('s_add_u32 %s, %s, %s' % (s(S_TMP), s(S_TMP), s(S_P0)))
        A.I('s_lshl_b32 %s, %s, 10' % (s(S_TMP), s(S_TMP)))
        A.I('s_add_u32 %s, %s, %d' % (s(S_TMP), s(S_TMP), ACT_OFF + grp * 4 * 1024))
        A.I('v_and_b32 %s, 1, %s' % (v(AD), v(V_G)))
        A.I('v_mul_u32_u24 %s, %d, %s' % (v(AD), 54 * 1024, v(AD)))
        A.I('v_lshl_add_u32 %s, %s, 4, %s' % (v(AD), v(V_T), v(AD)))
        A.I('v_lshl_add_u32 %s, %s, 8, %s' % (v(AD), v(V_HI), v(AD)))
        for ti in range(nt):
            A.stamp(10 + ti)
            if ti + 1 < nt:
                rdv(ti + 1)
            A.wait(lg=('cs', ti))
            for hb in range(2):
                vals = []
                for r_ in range(8):
                    i_ = hb * 8 + r_
                    vals.append((ACC + 16 * ti + i_, CSR[ti % 2] + i_, BFR[ti % 2] + i_, V_NM, V_NM + 1))
                mish_batch(A, vals, TT)
                o = OUT + ((ti * 2 + hb) % 4) * 4
                for q in range(4):
                    ac = ACC + 16 * ti + hb * 8 + 2 * q
                    A.I('v_cvt_pk_bf16_f32 %s, %s, %s' % (v(o + q), v(ac), v(ac + 1)))
                A.I('buffer_store_dwordx4 %s, %s, %s, %s offen offset:%d' % (v(o, 4), v(AD), s(SRD_WS, 4), s(S_TMP), ti * 1024 + hb * 512) + ' sc1', vm='st')
        A.stamp(15)
        A.stamp_flush(18, S_W, 8)
        if WPF:
            if grp == 0:
                A.I('v_mov_b32 %s, 64' % v(104))
                A.I('s_cmp_lg_u32 %s, 0' % s(S_TG))
                A.I('s_cbranch_scc1 L_rl_go')
                A.label('L_rl_poll')
                A.I('buffer_load_dword %s, %s, %s, 0 offen sc1' % (v(105), v(104), s(SRD_DBG, 4)), vm='poll')
                A.wait_all(vm=True)
                A.I('v_readfirstlane_b32 %s, %s' % (s(S_TMP), v(105)))
                A.I('s_cmp_ge_u32 %s, 128' % s(S_TMP))
                A.I('s_cbranch_scc1 L_rl_go')
                A.I('s_sleep 8')
                A.I('s_branch L_rl_poll')
                A.label('L_rl_go')
            A.I('s_barrier')
            A.I('s_and_b32 %s, s2, 1' % s(S_TMP))
            A.I('s_mul_i32 %s, %s, %d' % (s(S_TMP), s(S_TMP), 4 * WR_CB))
            A.I('s_lshl_b32 %s, %s, 3' % (s(S_T3), s(S_TB)))
            A.I('s_add_u32 %s, %s, %s' % (s(S_T3), s(S_T3), s(S_W)))
            A.I('s_mul_i32 %s, %s, %d' % (s(S_T3), s(S_T3), 11840))
            A.I('s_add_u32 %s, %s, %s' % (s(S_TMP), s(S_TMP), s(S_T3)))
            A.I('s_add_u32 %s, %s, %d' % (s(S_TMP), s(S_TMP), WR_OFF))
            A.I('v_lshlrev_b32 %s, 4, %s' % (v(104), v(V_LANE)))
            for q in range(12):
                A.I('buffer_load_dwordx4 %s, %s, %s, %s offen offset:%d' % (v(108 + 4 * q, 4), v(104), s(SRD_WS, 4), s(S_TMP), (q % 4) * 1024), vm='pf')
                if q % 4 == 3:
                    A.I('s_add_u32 %s, %s, 4096' % (s(S_TMP), s(S_TMP)))
        A.I('s_waitcnt vmcnt(0)')
        A.I('s_endpgm')


A_X = D_RING * F_SLOT
PHIK_ROW = 352
A_PHIK = 0
A_VS = A_PHIK + 128 * PHIK_ROW
A_M = A_X + 3 * XP
A_CSW = A_M
A_CS = A_M + 80 * 192
A_FLAG = A_CS + 1024
A_LDS = A_FLAG + 64


def softmax2(A, P, EP, EM, X, scl, sync):
    MX, MN = X, X + 1
    A.I('v_max3_f32 %s, %s, %s, %s' % (v(MX), v(P), v(P + 1), v(P + 2)))
    A.I('v_min3_f32 %s, %s, %s, %s' % (v(MN), v(P), v(P + 1), v(P + 2)))
    for i in range(3, 19, 2):
        A.I('v_max3_f32 %s, %s, %s, %s' % (v(MX), v(MX), v(P + i), v(P + i + 1)))
        A.I('v_min3_f32 %s, %s, %s, %s' % (v(MN), v(MN), v(P + i), v(P + i + 1)))
    A.I('v_max_f32 %s, %s, %s' % (v(MX), v(MX), v(P + 19)))
    A.I('v_min_f32 %s, %s, %s' % (v(MN), v(MN), v(P + 19)))
    A.I('v_pk_mul_f32 %s, %s, %s op_sel_hi:[1,0]' % (v(X, 2), v(X, 2), v(scl, 2)))
    for i in range(0, 20, 2):
        A.I('v_pk_fma_f32 %s, %s, %s, %s op_sel_hi:[1,0,0] neg_lo:[0,0,1] neg_hi:[0,0,1]' % (v(EP + i, 2), v(P + i, 2), v(scl, 2), v(X, 2)))
        A.I('v_pk_fma_f32 %s, %s, %s, %s op_sel:[0,0,1] op_sel_hi:[1,0,1] neg_lo:[1,0,0] neg_hi:[1,0,0]' % (v(EM + i, 2), v(P + i, 2), v(scl, 2), v(X, 2)))
    sync()
    for i in range(20):
        A.I('v_exp_f32 %s, %s' % (v(EP + i), v(EP + i)))
        A.I('v_exp_f32 %s, %s' % (v(EM + i), v(EM + i)))
    sync()
    SP, SM, RS = X + 2, X + 4, X + 6
    A.I('v_pk_add_f32 %s, %s, %s' % (v(SP, 2), v(EP, 2), v(EP + 2, 2)))
    A.I('v_pk_add_f32 %s, %s, %s' % (v(SM, 2), v(EM, 2), v(EM + 2, 2)))
    for i in range(4, 20, 2):
        A.I('v_pk_add_f32 %s, %s, %s' % (v(SP, 2), v(SP, 2), v(EP + i, 2)))
        A.I('v_pk_add_f32 %s, %s, %s' % (v(SM, 2), v(SM, 2), v(EM + i, 2)))
    A.I('v_add_f32 %s, %s, %s' % (v(RS), v(SP), v(SP + 1)))
    A.I('v_add_f32 %s, %s, %s' % (v(RS + 1), v(SM), v(SM + 1)))
    A.I('v_rcp_f32 %s, %s' % (v(RS), v(RS)))
    A.I('v_rcp_f32 %s, %s' % (v(RS + 1), v(RS + 1)))
    for i in range(0, 20, 2):
        A.I('v_pk_mul_f32 %s, %s, %s op_sel_hi:[1,0]' % (v(EP + i, 2), v(EP + i, 2), v(RS, 2)))
        A.I('v_pk_mul_f32 %s, %s, %s op_sel:[0,1] op_sel_hi:[1,1]' % (v(EM + i, 2), v(EM + i, 2), v(RS, 2)))
    for i in range(10):
        A.I('v_cvt_pk_bf16_f32 %s, %s, %s' % (v(P + i), v(EP + 2 * i), v(EP + 2 * i + 1)))
        A.I('v_cvt_pk_bf16_f32 %s, %s, %s' % (v(P + 10 + i), v(EM + 2 * i), v(EM + 2 * i + 1)))
    sync()


def gen_k1_attn(A):
    srd(A, SRD_W, 6, 640 * 1920 * 2)
    t = [200 + i for i in range(16)]
    def colmap(dst, t0):
        divmod_const(A, t[0], t[1], V_LANE, 20, 3277)
        A.I('v_add_u32 %s, 1, %s' % (v(t[2]), v(t[0])))
        A.I('v_cmp_eq_u32 vcc, 2, %s' % v(t[0]))
        A.I('v_cndmask_b32 %s, %s, 0, vcc' % (v(t[2]), v(t[2])))
        A.I('v_mul_u32_u24 %s, 1280, %s' % (v(t[2]), v(t[2])))
        A.I('v_lshl_add_u32 %s, %s, 3, %s' % (v(dst), v(t[1]), v(t[2])))
        A.I('s_mul_i32 %s, %s, 160' % (s(S_T3), s(S_FB)))
        A.I('v_add_u32 %s, %s, %s' % (v(dst), s(S_T3), v(dst)))
        A.I('v_mov_b32 %s, 0x%x' % (v(t0), BIG))
        A.I('v_cmp_gt_u32 vcc, 60, %s' % v(V_LANE))
        A.I('v_cndmask_b32 %s, %s, %s, vcc' % (v(dst), v(t0), v(dst)))
    C = Coop(A, 3840, A_CSW, A_CS, colmap, False)
    C.issue_loads()
    setup_x(A, A_X, t)
    dma_x(A, 0, A_X)
    w_voffsets(A, t, 'attn')
    dma = mk_dma(A, 3840, 0x00ffffff)
    dma(0)
    dma(1)
    dma_x(A, 1, A_X)
    srd(A, SRD_AUX, 8, 32 * 400 * 2)

    dma(2)
    trbase32(A, V_RB0, 480, 2, t[0], t[1])
    A.I('s_lshl_b32 %s, %s, 8' % (s(S_TMP), s(S_GRP)))
    A.I('v_add_u32 %s, %s, %s' % (v(V_RB0), s(S_TMP), v(V_RB0)))
    A.I('v_add_u32 %s, %d, %s' % (v(V_RB1), 3 * F_SLOT, v(V_RB0)))
    A.I('v_mov_b32 %s, %d' % (v(t[0]), A_FLAG))
    A.I('v_mov_b32 %s, 0' % v(t[1]))
    A.I('ds_write_b32 %s, %s' % (v(t[0]), v(t[1])), lg='z')
    A.wait(lg='z')

    def mk_fill():
        A.defer_begin()
        x_prefetch(A, 152)
        C.compute()
        MD, MA = 184, 192
        for i in range(4):
            A.I('v_add_u32 %s, %d, v0' % (v(t[0]), 512 * i))
            divmod_const(A, t[1], t[2], t[0], 24, 2731)
            divmod_const(A, t[3], t[4], t[1], 20, 3277)
            A.I('v_lshrrev_b32 %s, 1, %s' % (v(t[5]), v(t[2])))
            A.I('v_lshlrev_b32 %s, 2, %s' % (v(t[5]), v(t[5])))
            A.I('v_and_b32 %s, 1, %s' % (v(t[6]), v(t[2])))
            A.I('v_lshlrev_b32 %s, 1, %s' % (v(t[6]), v(t[6])))
            A.I('v_cmp_lt_u32 vcc, 19, %s' % v(t[5]))
            A.I('v_addc_co_u32 %s, vcc, 0, %s, vcc' % (v(t[6]), v(t[6])))
            A.I('v_cmp_lt_u32 vcc, 19, %s' % v(t[5]))
            A.I('v_subrev_u32 %s, 20, %s' % (v(t[8]), v(t[5])))
            A.I('v_cndmask_b32 %s, %s, %s, vcc' % (v(t[8]), v(t[5]), v(t[8])))
            A.I('v_mul_u32_u24 %s, 800, %s' % (v(t[7]), v(t[3])))
            A.I('v_mul_u32_u24 %s, 40, %s' % (v(t[4]), v(t[4])))
            A.I('v_add_u32 %s, %s, %s' % (v(t[7]), v(t[7]), v(t[4])))
            A.I('v_lshl_add_u32 %s, %s, 1, %s' % (v(t[7]), v(t[8]), v(t[7])))
            A.I('v_mov_b32 %s, 0x%x' % (v(t[4]), BIG))
            A.I('v_cmp_eq_u32 vcc, %s, %s' % (v(t[6]), v(t[3])))
            A.I('v_cndmask_b32 %s, %s, %s, vcc' % (v(t[7]), v(t[4]), v(t[7])))
            A.I('v_cmp_gt_u32 vcc, 40, %s' % v(t[5]))
            A.I('v_cndmask_b32 %s, %s, %s, vcc' % (v(t[7]), v(t[4]), v(t[7])))
            A.I('s_mul_i32 s85, %s, 3200' % s(S_FB))
            A.I('buffer_load_dwordx2 %s, %s, %s, %s offen' % (v(MD + 2 * i, 2), v(t[7]), s(SRD_AUX, 4), 's85'), vm='m')
            A.I('v_lshlrev_b32 %s, 3, %s' % (v(MA + i), v(t[0])))
            A.I('v_add_u32 %s, %d, %s' % (v(MA + i), A_M, v(MA + i)))

        A.gate(7)
        A.wait(vm='m')
        for i in range(4):
            if i == 3:
                A.group_begin()
                A.I('v_cmp_gt_u32 vcc, 384, v0')
                A.I('s_and_saveexec_b64 %s, vcc' % s(S_MASK, 2))
            A.I('ds_write_b64 %s, %s' % (v(MA + i), v(MD + 2 * i, 2)), lg='z')
            if i == 3:
                A.I('s_mov_b64 exec, -1')
                A.group_end()
        return A.defer_end()

    NM = V_NM
    CSR = 104
    MF = 168
    AD = 228
    X = 238
    SCL = 246
    VMB = 247
    BO = 24
    A.I('s_cmp_eq_u32 %s, 1' % s(S_GRP))
    A.I('s_cbranch_scc1 L_att_B')
    sn = A.snap()
    for grp in range(2):
        if grp:
            A.restore(sn)
            A.label('L_att_B')
        tiles = [(ti * 64, ACC + 16 * ti) for ti in range(4)]
        L = Loop(A, 'att%d' % grp, tiles, 16 * 480, 480, dma, A_X, C.hooks(grp, 'att%d' % grp), fillers=mk_fill())
        L.run()
        C.finish(grp)
        A.I('v_bfe_u32 %s, %s, 2, 2' % (v(VMB), v(V_LANE)))
        A.I('v_lshl_add_u32 %s, %s, 2, %s' % (v(VMB), v(V_HI), v(VMB)))
        A.I('v_mul_u32_u24 %s, 192, %s' % (v(VMB), v(VMB)))
        A.I('v_and_b32 %s, 1, %s' % (v(AD), v(V_G)))
        A.I('v_lshl_add_u32 %s, %s, 5, %s' % (v(VMB), v(AD), v(VMB)))
        A.I('v_and_b32 %s, 3, %s' % (v(AD), v(V_LANE)))
        A.I('v_lshl_add_u32 %s, %s, 3, %s' % (v(VMB), v(AD), v(VMB)))
        A.I('v_add_u32 %s, %d, %s' % (v(VMB), A_M, v(VMB)))
        for u in range(3):
            for s2 in range(5):
                b = MF + (u * 5 + s2) * 4
                for h in range(2):
                    A.I('ds_read_b64_tr_b16 %s, %s offset:%d' % (v(b + 2 * h, 2), v(VMB), (16 * s2 + 8 * h) * 192 + u * 64), lg='mf')
        A.I('v_mul_f32 %s, %s, %s' % (v(SCL), s(S_LOG2E), v(NM + 1)))
        A.I('s_barrier')
        if grp == 0:
            A.I('s_setprio 2')
        A.stamp(6)
        A.I('v_lshlrev_b32 %s, 4, %s' % (v(AD + 1), v(V_HI)))
        A.I('v_add_u32 %s, %d, %s' % (v(AD + 1), A_CS + grp * 512, v(AD + 1)))
        for ti in range(4):
            rd_vec32(A, AD + 1, ti * 128, CSR + 16 * ti, ('cs', ti))
        A.I('s_mul_i32 %s, %s, %d' % (s(S_TMP), s(S_TG), 32 * 160))
        A.I('s_add_u32 %s, %s, %d' % (s(S_TMP), s(S_TMP), A_VS))
        A.I('v_mul_u32_u24 %s, 160, %s' % (v(AD), v(V_N)))
        A.I('v_lshl_add_u32 %s, %s, 3, %s' % (v(AD), v(V_HI), v(AD)))
        A.I('v_add_u32 %s, %s, %s' % (v(AD), s(S_TMP), v(AD)))
        if grp == 0:
            vq = [(2, 2, 0), (2, 3, 8)] + [(3, j, 16 + 8 * j) for j in range(4)]
            st2 = [(0, 0), (0, 8), (1, 0), (1, 8), (2, 0)]
        else:
            vq = [(0, j, 48 + 8 * j) for j in range(4)]
            st2 = [(1, 0), (1, 8), (2, 0), (2, 8), (3, 0)]
        BOS = [24, 28, 32, 36, 248]
        for (ti, j, f0) in vq:
            A.wait(lg=('cs', ti))
            ac = ACC + 16 * ti + 4 * j
            for r_ in range(0, 4, 2):
                A.I('v_pk_fma_f32 %s, %s, %s, %s op_sel_hi:[1,0,1]' % (v(ac + r_, 2), v(CSR + 16 * ti + 4 * j + r_, 2), v(NM, 2), v(ac + r_, 2)))
            for r_ in range(0, 4, 2):
                A.I('v_pk_mul_f32 %s, %s, %s op_sel:[0,1] op_sel_hi:[1,1]' % (v(ac + r_, 2), v(ac + r_, 2), v(NM, 2)))
            A.I('v_cvt_pk_bf16_f32 %s, %s, %s' % (v(ac), v(ac), v(ac + 1)))
            A.I('v_cvt_pk_bf16_f32 %s, %s, %s' % (v(ac + 1), v(ac + 2), v(ac + 3)))
            A.I('ds_write_b64 %s, %s offset:%d' % (v(AD), v(ac, 2), f0 * 2), lg='vs')
        for s2, (ti, r0) in enumerate(st2):
            A.wait(lg=('cs', ti))
            ac = ACC + 16 * ti + r0
            for r_ in range(0, 8, 2):
                A.I('v_pk_fma_f32 %s, %s, %s, %s op_sel_hi:[1,0,1]' % (v(ac + r_, 2), v(CSR + 16 * ti + r0 + r_, 2), v(NM, 2), v(ac + r_, 2)))
            for q in range(4):
                A.I('v_cvt_pk_bf16_f32 %s, %s, %s' % (v(BOS[s2] + q), v(ac + 2 * q), v(ac + 2 * q + 1)))
        A.wait(lg='mf')
        P = 104
        for s2 in range(5):
            for u in range(3):
                d = v(P + 16 * u, 16)
                A.I('v_mfma_f32_32x32x16_bf16 %s, %s, %s, %s' % (d, v(MF + (u * 5 + s2) * 4, 4), v(BOS[s2], 4), d if s2 else '0'))
        EP, EM = 40, 60
        calls = [0]
        if grp == 0:
            A.I('s_mul_i32 %s, %s, %d' % (s(S_TMP), s(S_TG), 32 * PHIK_ROW))
            A.I('s_add_u32 %s, %s, %d' % (s(S_TMP), s(S_TMP), A_PHIK))
            A.I('v_mul_u32_u24 %s, %d, %s' % (v(AD + 2), PHIK_ROW, v(V_N)))
            A.I('v_mul_u32_u24 %s, 160, %s' % (v(AD + 3), v(V_HI)))
            A.I('v_add3_u32 %s, %s, %s, %s' % (v(AD + 2), s(S_TMP), v(AD + 2), v(AD + 3)))
            for a_ in range(2):
                softmax2(A, P + 20 * a_, EP, EM, X, SCL, lambda: None)
                for j in range(5):
                    A.I('ds_write_b128 %s, %s offset:%d' % (v(AD + 2), v(P + 20 * a_ + 4 * j, 4), a_ * 80 + j * 16), lg='pk')
            A.stamp(8)
            KA, KB = AD + 4, AD + 5
            trbase(A, KA, PHIK_ROW, AD + 6, AD + 7)
            A.I('s_mul_i32 %s, %s, 80' % (s(S_TMP), s(S_TG)))
            A.I('s_add_u32 %s, %s, %d' % (s(S_TMP), s(S_TMP), A_PHIK))
            A.I('v_add_u32 %s, %s, %s' % (v(KA), s(S_TMP), v(KA)))
            trbase(A, KB, 160, AD + 6, AD + 7)
            A.I('s_mul_i32 %s, %s, 40' % (s(S_TMP), s(S_TG)))
            A.I('s_add_u32 %s, %s, %d' % (s(S_TMP), s(S_TMP), A_VS))
            A.I('v_add_u32 %s, %s, %s' % (v(KB), s(S_TMP), v(KB)))
            A.I('v_cmp_eq_u32 %s, 4, %s' % (s(S_MASK, 2), v(V_T)))
            A.wait(lg=['pk', 'vs'])
            A.I('v_mov_b32 %s, %d' % (v(AD + 6), A_FLAG))
            A.I('v_mov_b32 %s, 1' % v(AD + 7))
            A.I('s_mov_b64 exec, 1')
            A.I('ds_add_u32 %s, %s' % (v(AD + 6), v(AD + 7)), lg='fl')
            A.I('s_mov_b64 exec, -1')
            A.label('L_kvflag')
            A.I('ds_read_b32 %s, %s' % (v(AD + 7), v(AD + 6)), lg='fl')
            A.wait_all(lg=True)
            A.I('v_readfirstlane_b32 %s, %s' % (s(S_TMP), v(AD + 7)))
            A.I('s_cmp_ge_u32 %s, 8' % s(S_TMP))
            A.I('s_cbranch_scc0 L_kvflag')
            FR = 104
            for ks in range(4):
                for i in range(5):
                    r0 = FR + (ks * 5 + i) * 4
                    for h in range(2):
                        if i < 3:
                            A.I('ds_read_b64_tr_b16 %s, %s offset:%d' % (v(r0 + 2 * h, 2), v(KA), (ks * 32 + 8 * h) * PHIK_ROW + i * 32), lg=('kv', ks))
                        else:
                            A.I('ds_read_b64_tr_b16 %s, %s offset:%d' % (v(r0 + 2 * h, 2), v(KB), (ks * 32 + 8 * h) * 160 + (i - 3) * 32), lg=('kv', ks))
            KD = 40
            for ks in range(4):
                A.wait(lg=('kv', ks))
                rb = FR + (ks * 5 + 4) * 4
                for j in range(4):
                    A.I('v_cndmask_b32 %s, %s, %s, %s' % (v(rb + j), v(rb + j), v(V_ONES), s(S_MASK, 2)))
                for dt in range(2):
                    for i in range(3):
                        d = v(KD + (dt * 3 + i) * 4, 4)
                        A.I('v_mfma_f32_16x16x32_bf16 %s, %s, %s, %s' % (d, v(FR + (ks * 5 + 3 + dt) * 4, 4), v(FR + (ks * 5 + i) * 4, 4), d if ks else '0'))
            A.I('s_lshl_b32 %s, %s, 2' % (s(S_TMP), s(S_FB)))
            A.I('s_add_u32 %s, %s, %s' % (s(S_TMP), s(S_TMP), s(S_TG)))
            A.I('s_mul_i32 %s, %s, 3360' % (s(S_TMP), s(S_TMP)))
            A.I('s_add_u32 %s, %s, %d' % (s(S_TMP), s(S_TMP), KVA_OFF))
            A.I('s_mul_i32 %s, %s, 43' % (s(S_T3), s(S_TB)))
            A.I('s_lshr_b32 %s, %s, 7' % (s(S_T3), s(S_T3)))
            A.I('s_mul_i32 %s, %s, 3' % (s(S_T3), s(S_T3)))
            A.I('s_sub_u32 %s, %s, %s' % (s(S_T3), s(S_TB), s(S_T3)))
            A.I('s_mul_i32 %s, %s, %d' % (s(S_T3), s(S_T3), KVA_REP))
            A.I('s_add_u32 %s, %s, %s' % (s(S_TMP), s(S_TMP), s(S_T3)))
            A.I('s_lshl_b32 %s, %s, 12' % (s(S_T3), s(S_TG)))
            A.I('s_add_u32 %s, %s, %d' % (s(S_T3), s(S_T3), A_VS + 128 * 160))
            A.I('v_mul_u32_u24 %s, 640, %s' % (v(AD), v(V_G)))
            A.I('v_lshl_add_u32 %s, %s, 2, %s' % (v(AD), v(V_T), v(AD)))
            A.I('v_add_u32 %s, %s, %s' % (v(AD), s(S_T3), v(AD)))
            for dt in range(2):
                for i in range(3):
                    for r_ in range(4):
                        lo, hi_ = 0xffffffff, 0xffffffff
                        if dt == 1:
                            hi_ = 0
                            lo = 0xffffffff if r_ == 0 else 0xffff
                        if i == 2:
                            lo &= 0x00ff00ff
                            hi_ &= 0x00ff00ff
                        A.I('s_mov_b32 exec_lo, 0x%x' % lo)
                        A.I('s_mov_b32 exec_hi, 0x%x' % hi_)
                        A.I('ds_write_b32 %s, %s offset:%d' % (v(AD), v(KD + (dt * 3 + i) * 4 + r_), (16 * dt + r_) * 160 + i * 64), lg='rp')
            A.I('s_mov_b64 exec, -1')
            A.I('v_lshlrev_b32 %s, 2, %s' % (v(AD + 1), v(V_LANE)))
            A.I('v_add_u32 %s, %s, %s' % (v(AD), s(S_T3), v(AD + 1)))
            for q in range(14):
                A.I('ds_read_b32 %s, %s offset:%d' % (v(104 + q), v(AD), q * 256), lg=('rq', q))
            for q in range(14):
                A.wait(lg=('rq', q))
                if q == 13:
                    A.I('s_mov_b64 exec, 0xff')
                A.I('buffer_atomic_add_f32 %s, %s, %s, %s offen offset:%d' % (v(104 + q), v(AD + 1), s(SRD_WS, 4), s(S_TMP), q * 256), vm='kvp')
            A.I('s_mov_b64 exec, -1')
            A.stamp(9)
        else:
            A.wait(lg='vs')
            A.I('v_mov_b32 %s, %d' % (v(AD + 6), A_FLAG))
            A.I('v_mov_b32 %s, 1' % v(AD + 7))
            A.I('s_mov_b64 exec, 1')
            A.I('ds_add_u32 %s, %s' % (v(AD + 6), v(AD + 7)), lg='fl')
            A.I('s_mov_b64 exec, -1')
            A.I('s_lshl_b32 %s, %s, 3' % (s(S_TMP), s(S_TB)))
            A.I('s_lshl_b32 %s, %s, 1' % (s(S_T3), s(S_TG)))
            A.I('s_add_u32 %s, %s, %s' % (s(S_TMP), s(S_TMP), s(S_T3)))
            A.I('s_lshl_b32 %s, %s, 3' % (s(S_TMP), s(S_TMP)))
            A.I('s_add_u32 %s, %s, %s' % (s(S_TMP), s(S_TMP), s(S_FB)))
            A.I('s_mul_i32 %s, %s, 5120' % (s(S_TMP), s(S_TMP)))
            A.I('s_add_u32 %s, %s, %d' % (s(S_TMP), s(S_TMP), PHIQ_OFF))
            A.I('s_add_u32 %s, %s, 4096' % (s(S_T3), s(S_TMP)))
            A.I('v_and_b32 %s, 1, %s' % (v(AD + 2), v(V_G)))
            A.I('v_mul_u32_u24 %s, %d, %s' % (v(AD + 2), 8 * 5120, v(AD + 2)))
            A.I('v_lshl_add_u32 %s, %s, 4, %s' % (v(AD + 2), v(V_T), v(AD + 2)))
            A.I('v_lshl_add_u32 %s, %s, 9, %s' % (v(AD + 3), v(V_HI), v(AD + 2)))
            A.I('v_lshl_add_u32 %s, %s, 11, %s' % (v(AD + 2), v(V_HI), v(AD + 2)))
            def syncB():
                calls[0] += 1
                pass
            for a_ in range(2):
                softmax2(A, P + 20 * a_, EP, EM, X, SCL, syncB)
                for j in range(4):
                    A.I('buffer_store_dwordx4 %s, %s, %s, %s offen offset:%d' % (v(P + 20 * a_ + 4 * j, 4), v(AD + 2), s(SRD_WS, 4), s(S_TMP), a_ * 1024 + j * 256) + ' sc1', vm='st')
                A.I('buffer_store_dwordx4 %s, %s, %s, %s offen offset:%d' % (v(P + 20 * a_ + 16, 4), v(AD + 3), s(SRD_WS, 4), s(S_T3), a_ * 256) + ' sc1', vm='st')
        A.stamp(15)
        A.stamp_flush(18, S_W, 8)
        A.I('s_waitcnt vmcnt(0)')
        A.I('s_endpgm')
```

```python
from asmlib import *

ACT_OFF = 0
PHIQ_OFF = 128 * 54 * 1024
KVA_OFF = PHIQ_OFF + 128 * 32 * 1280
KVA_REP = 32 * 3360
NREP = 3
STAT_OFF = KVA_OFF + NREP * KVA_REP + 1024
CSP_OFF = STAT_OFF + 256 * 128
WR_OFF = CSP_OFF + 16 * 16 * 1024
WR_CB = 74 * 5120
O_OFF = WR_OFF + 8 * WR_CB
CNT_OFF = O_OFF + 128 * 20 * 1024
WS_END = CNT_OFF + 32 * 256

LOG2E = 0x3fb8aa3b
BIG = 0x7ffffff0

SRD_X, SRD_W, SRD_WS, SRD_AUX, SRD_DBG = 20, 24, 28, 32, 36
S_TB, S_FB, S_W, S_TG, S_GRP, S_M0B, S_TMP, S_M0X, S_LOG2E = 40, 41, 42, 43, 44, 45, 46, 47, 48
S_XOFF = 49
S_DT = 50
S_WO, S_XO = 51, 59
S_MASK = 52
S_T3, S_T4 = 54, 55
S_P0, S_M0Q, S_HF, S_T5 = 56, 56, 57, 58
V_LANE, V_T, V_G = 1, 2, 3
V_DM0, V_DM1, V_RB0, V_RB1, V_DX0, V_DX1, V_ONES = 4, 5, 6, 7, 8, 9, 20
V_XR0 = 10
V_NM = 14
V_N, V_HI = 16, 17
V_POLL, V_PA = 18, 19
V_TMP0, V_TMP1 = 22, 23
WIN, ACC, XF, HK = 24, 40, 104, 136
V_K2, V_K1 = 248, 250
D_RING = 6
XP = 16384
DBG_STAT, DBG_CS = 16, 32


def srd(A, d, lo, size):
    A.I('s_mov_b32 %s, %s' % (s(d), s(lo)))
    A.I('s_and_b32 %s, %s, 0xffff' % (s(d + 1), s(lo + 1)))
    A.I('s_mov_b32 %s, 0x%x' % (s(d + 2), size))
    A.I('s_mov_b32 %s, 0x20000' % s(d + 3))


def swap23(A, dst, src, t0):
    A.I('v_and_b32 %s, 0x13, %s' % (v(dst), v(src)))
    A.I('v_and_b32 %s, 4, %s' % (v(t0), v(src)))
    A.I('v_lshl_or_b32 %s, %s, 1, %s' % (v(dst), v(t0), v(dst)))
    A.I('v_and_b32 %s, 8, %s' % (v(t0), v(src)))
    A.I('v_lshrrev_b32 %s, 1, %s' % (v(t0), v(t0)))
    A.I('v_or_b32 %s, %s, %s' % (v(dst), v(dst), v(t0)))


def divmod_const(A, q, r, x, c, magic):
    A.I('v_mul_u32_u24 %s, %d, %s' % (v(q), magic, v(x)))
    A.I('v_lshrrev_b32 %s, 16, %s' % (v(q), v(q)))
    A.I('v_mul_u32_u24 %s, %d, %s' % (v(r), c, v(q)))
    A.I('v_sub_u32 %s, %s, %s' % (v(r), v(x), v(r)))


def trbase(A, dst, rowbytes, t0, t1):
    A.I('v_lshrrev_b32 %s, 1, %s' % (v(t0), v(V_G)))
    A.I('v_lshlrev_b32 %s, 4, %s' % (v(t0), v(t0)))
    A.I('v_and_b32 %s, 1, %s' % (v(t1), v(V_G)))
    A.I('v_lshl_add_u32 %s, %s, 2, %s' % (v(t0), v(t1), v(t0)))
    A.I('v_bfe_u32 %s, %s, 2, 2' % (v(t1), v(V_LANE)))
    A.I('v_add_u32 %s, %s, %s' % (v(t0), v(t0), v(t1)))
    A.I('v_mul_u32_u24 %s, %d, %s' % (v(t0), rowbytes, v(t0)))
    A.I('v_and_b32 %s, 3, %s' % (v(t1), v(V_LANE)))
    A.I('v_lshl_add_u32 %s, %s, 3, %s' % (v(dst), v(t1), v(t0)))


def xf(sk, ks):
    return XF + ((sk % 4) * 2 + ks) * 4


def dma_x(A, p, xbase):
    A.I('s_add_u32 %s, %s, %d' % (s(S_DT), s(S_XOFF), p * 128))
    for j, d in enumerate((V_DX0, V_DX1)):
        A.I('s_add_u32 m0, %s, %d' % (s(S_M0X), xbase + (p % 3) * XP + j * 1024))
        A.I('buffer_load_dwordx4 %s, %s, %s offen lds' % (v(d), s(SRD_X, 4), s(S_DT)), vm=('xp', p))


class Loop:
    def __init__(self, A, name, tiles, ks_off, half_off, dma_issue, xbase, hooks=None, nwin=4, fillers=None):
        self.__dict__.update(locals())
        self.hooks = hooks or {}
        self.nf = 2 * len(tiles)

    def rd(self, F):
        A = self.A
        sk, fi = divmod(F, self.nf)
        ks, ti = divmod(fi, len(self.tiles))
        slot = sk % D_RING
        base = V_RB0 if slot < 3 else V_RB1
        off = (slot % 3) * F_SLOT + ks * self.ks_off + self.tiles[ti][0]
        w = WIN + (F % self.nwin) * 4
        A.I('ds_read_b64_tr_b16 %s, %s offset:%d' % (v(w, 2), v(base), off), lg=('f', F))
        A.I('ds_read_b64_tr_b16 %s, %s offset:%d' % (v(w + 2, 2), v(base), off + self.half_off), lg=('f', F))

    def sync_stage(self, sk):
        A = self.A
        if sk % 2:
            return
        A.wait(vm=[('dma', sk), ('dma', sk + 1), ('xp', sk // 2)], lg='z')
        A.I('s_barrier')
        p = sk // 2
        for s4 in range(4):
            A.I('ds_read_b128 %s, %s offset:%d' % (v(xf(sk + s4 // 2, s4 % 2), 4), v(V_XR0 + s4), (p % 3) * XP), lg=('x', sk + s4 // 2))
        if sk + 3 <= 19:
            self.dma_issue(sk + 3)
        self.pending = sk

    def issue_after(self, sk):
        A = self.A
        if sk + 4 <= 19:
            self.dma_issue(sk + 4)
        if sk // 2 + 2 < 10:
            dma_x(A, sk // 2 + 2, self.xbase)

    def run(self):
        A = self.A
        tot = 20 * self.nf
        la = self.nwin - 1
        self.pending = None
        import os
        pr = os.environ.get('PRIO', '')
        if pr and self.name.endswith(pr):
            A.I('s_setprio 1')
        self.sync_stage(0)
        A.stamp(1)
        for F in range(la):
            self.rd(F)
        for sk in range(20):
            if sk in (1, 5, 10):
                A.stamp({1: 2, 5: 3, 10: 4}[sk])
            if sk in self.hooks:
                self.hooks[sk]()
            for fi in range(self.nf):
                F = sk * self.nf + fi
                Fn = F + la
                if Fn < tot:
                    if Fn % self.nf == 0:
                        self.sync_stage(Fn // self.nf)
                    self.rd(Fn)
                A.wait(lg=[('f', F), ('x', sk)])
                w = WIN + (F % self.nwin) * 4
                ks, ti = divmod(fi, len(self.tiles))
                d = v(self.tiles[ti][1], 16)
                A.I('v_mfma_f32_32x32x16_bf16 %s, %s, %s, %s' % (d, v(w, 4), v(xf(sk, ks), 4), d if (sk or ks) else '0'))
                if self.pending is not None and fi == (1 if self.name.endswith('0') else 3):
                    self.issue_after(self.pending)
                    self.pending = None
                if self.fillers:
                    A.drain(self.fillers, (14 if self.name.startswith('ffn') else 4) if sk < 3 else 4, sk)
        assert not self.fillers
        if pr:
            A.I('s_setprio 0')
        A.stamp(5)


def stats_to_mr(A, vsum, vsq, nm, r, t0):
    A.I('v_mul_f32 %s, 0x3acccccd, %s' % (v(vsum), v(vsum)))
    A.I('v_mul_f32 %s, 0x3acccccd, %s' % (v(vsq), v(vsq)))
    A.I('v_fma_f32 %s, -%s, %s, %s' % (v(vsq), v(vsum), v(vsum), v(vsq)))
    A.I('v_max_f32 %s, 0, %s' % (v(vsq), v(vsq)))
    A.I('v_cvt_pk_bf16_f32 %s, %s, %s' % (v(t0), v(vsum), v(vsq)))
    A.I('v_lshlrev_b32 %s, 16, %s' % (v(nm), v(t0)))
    A.I('v_xor_b32 %s, 0x80000000, %s' % (v(nm), v(nm)))
    A.I('v_and_b32 %s, 0xffff0000, %s' % (v(t0), v(t0)))
    A.I('v_add_f32 %s, 0x3727c5ac, %s' % (v(t0), v(t0)))
    A.I('v_cvt_pk_bf16_f32 %s, %s, %s' % (v(t0), v(t0), v(t0)))
    A.I('v_and_b32 %s, 0xffff0000, %s' % (v(t0), v(t0)))
    A.I('v_sqrt_f32 %s, %s' % (v(t0), v(t0)))
    A.I('v_cvt_pk_bf16_f32 %s, %s, %s' % (v(t0), v(t0), v(t0)))
    A.I('v_and_b32 %s, 0xffff0000, %s' % (v(t0), v(t0)))
    A.I('v_rcp_f32 %s, %s' % (v(r), v(t0)))


def wave_sum(A, regs, t):
    for ctl in ('quad_perm:[1,0,3,2]', 'quad_perm:[2,3,0,1]', 'row_half_mirror', 'row_mirror'):
        A.nop(2)
        for r_ in regs:
            A.I('v_add_f32_dpp %s, %s, %s %s row_mask:0xf bank_mask:0xf' % (v(r_), v(r_), v(r_), ctl))
    for op in ('v_permlane16_swap_b32', 'v_permlane32_swap_b32'):
        for r_, t_ in zip(regs, t):
            A.I('v_mov_b32 %s, %s' % (v(t_), v(r_)))
        for r_, t_ in zip(regs, t):
            A.I('%s %s, %s' % (op, v(r_), v(t_)))
        for r_, t_ in zip(regs, t):
            A.I('v_add_f32 %s, %s, %s' % (v(r_), v(r_), v(t_)))


class Coop:
    def __init__(self, A, rowbytes, csw_lds, cs_lds, colmap, ffn):
        self.__dict__.update(locals())
        self.SR = 196
        self.CR = 224
        self.T = 234

    def issue_loads(self):
        A, T = self.A, self.T
        if self.ffn:
            A.I('s_lshl_b32 %s, %s, 7' % (s(S_TMP), s(S_TB)))
            A.I('s_lshl_b32 %s, %s, 4' % (s(S_T3), s(S_FB)))
            A.I('s_add_u32 %s, %s, %s' % (s(S_TMP), s(S_TMP), s(S_T3)))
            A.I('s_add_u32 %s, %s, %s' % (s(S_TMP), s(S_TMP), s(S_W)))
            A.I('s_sub_u32 %s, %s, 128' % (s(S_TMP), s(S_TMP)))
            A.I('s_mul_i32 %s, %s, 1280' % (s(S_TMP), s(S_TMP)))
            A.I('v_lshlrev_b32 %s, 4, %s' % (v(T), v(V_LANE)))
            A.I('v_mov_b32 %s, 0x%x' % (v(T + 1), BIG))
            A.I('v_cmp_gt_u32 vcc, 16, %s' % v(V_LANE))
            A.I('v_cndmask_b32 %s, %s, %s, vcc' % (v(T + 1), v(T + 1), v(T)))
            for e in range(2):
                A.I('buffer_load_dwordx4 %s, %s, %s, %s offen' % (v(self.SR + 8 * e, 4), v(T), s(SRD_X, 4), s(S_TMP)), vm='sl')
                A.I('buffer_load_dwordx4 %s, %s, %s, %s offen offset:1024' % (v(self.SR + 8 * e + 4, 4), v(T + 1), s(SRD_X, 4), s(S_TMP)), vm='sl')
                if e == 0:
                    A.I('s_add_u32 %s, %s, %d' % (s(S_TMP), s(S_TMP), 8 * 1280))
        self.colmap(T + 2, T + 3)
        A.I('s_mul_i32 %s, %s, 40' % (s(S_TMP), s(S_TB)))
        A.I('s_mul_i32 %s, %s, 5' % (s(S_T3), s(S_W)))
        A.I('s_add_u32 %s, %s, %s' % (s(S_TMP), s(S_TMP), s(S_T3)))
        A.I('s_mul_i32 %s, %s, %d' % (s(S_TMP), s(S_TMP), self.rowbytes))
        for i in range(5):
            A.I('buffer_load_dwordx2 %s, %s, %s, %s offen' % (v(self.CR + 2 * i, 2), v(T + 2), s(SRD_W, 4), s(S_TMP)), vm='cl')
            if i < 4:
                A.I('s_add_u32 %s, %s, %d' % (s(S_TMP), s(S_TMP), self.rowbytes))

    def compute(self):
        A, T = self.A, self.T
        ST = 212
        if self.ffn:
            for k in range(4):
                A.I('v_mov_b32 %s, 0' % v(216 + k))
            A.wait(vm='sl')
            for e in range(2):
                SU, SQ = 216 + 2 * e, 217 + 2 * e
                for i in range(8):
                    r_ = self.SR + 8 * e + i
                    A.I('v_lshlrev_b32 %s, 16, %s' % (v(T + 6), v(r_)))
                    A.I('v_and_b32 %s, 0xffff0000, %s' % (v(T + 7), v(r_)))
                    A.I('v_add_f32 %s, %s, %s' % (v(SU), v(SU), v(T + 6)))
                    A.I('v_fmac_f32 %s, %s, %s' % (v(SQ), v(T + 6), v(T + 6)))
                    A.I('v_add_f32 %s, %s, %s' % (v(SU), v(SU), v(T + 7)))
                    A.I('v_fmac_f32 %s, %s, %s' % (v(SQ), v(T + 7), v(T + 7)))
            wave_sum(A, [216, 217, 218, 219], [220, 221, 222, 223])
            for e in range(2):
                stats_to_mr(A, 216 + 2 * e, 217 + 2 * e, ST + 2 * e, ST + 2 * e + 1, T + 6)
            A.I('v_mov_b32 %s, 0' % v(T + 6))
            A.I('v_mov_b32 %s, 0' % v(T + 7))
            A.I('v_lshlrev_b32 %s, 3, v0' % v(T + 8))
            A.I('v_mov_b32 %s, 0x%x' % (v(T + 14), BIG))
            A.I('v_cmp_gt_u32 vcc, 320, v0')
            A.I('v_cndmask_b32 %s, %s, %s, vcc' % (v(T + 8), v(T + 14), v(T + 8)))
            A.I('s_lshl_b32 s63, %s, 3' % s(S_TB))
            A.I('s_add_u32 s63, s63, %s' % s(S_FB))
            A.I('s_sub_u32 s63, s63, 8')
            A.I('s_mul_i32 %s, s63, 2560' % s(62))
            A.I('s_add_u32 %s, %s, %d' % (s(62), s(62), KVA_OFF))
            A.group_begin()
            A.I('s_cmp_lt_u32 s63, 126')
            A.I('s_cselect_b32 %s, %s, 0x%x' % (s(62), s(62), BIG))
            A.group_end()
            A.I('buffer_store_dwordx2 %s, %s, %s, %s offen sc1' % (v(T + 6, 2), v(T + 8), s(SRD_WS, 4), s(62)), vm='sst')
            A.I('v_cmp_eq_u32 vcc, 0, v0')
            A.I('v_cndmask_b32 %s, %s, 0, vcc' % (v(T + 8), v(T + 14)))
            A.I('s_lshl_b32 %s, s63, 8' % s(62))
            A.I('s_add_u32 %s, %s, %d' % (s(62), s(62), CNT_OFF))
            A.I('buffer_store_dword %s, %s, %s, %s offen' % (v(T + 6), v(T + 8), s(SRD_WS, 4), s(62)), vm='z2')
        A.wait(vm='cl')
        C = T + 10
        for i in range(5):
            for h in range(2):
                r_ = self.CR + 2 * i + h
                if i == 0:
                    A.I('v_lshlrev_b32 %s, 16, %s' % (v(C + 2 * h), v(r_)))
                    A.I('v_and_b32 %s, 0xffff0000, %s' % (v(C + 2 * h + 1), v(r_)))
                else:
                    A.I('v_lshlrev_b32 %s, 16, %s' % (v(T + 4), v(r_)))
                    A.I('v_and_b32 %s, 0xffff0000, %s' % (v(T + 5), v(r_)))
                    A.I('v_add_f32 %s, %s, %s' % (v(C + 2 * h), v(C + 2 * h), v(T + 4)))
                    A.I('v_add_f32 %s, %s, %s' % (v(C + 2 * h + 1), v(C + 2 * h + 1), v(T + 5)))
        A.I('s_lshl_b32 %s, %s, 10' % (s(62), s(S_W)))
        A.I('s_add_u32 %s, %s, %d' % (s(62), s(62), self.csw_lds))
        A.I('v_lshlrev_b32 %s, 4, %s' % (v(T + 4), v(V_LANE)))
        A.I('v_add_u32 %s, %s, %s' % (v(T + 4), s(62), v(T + 4)))
        A.I('ds_write_b128 %s, %s' % (v(T + 4), v(C, 4)), lg='z')
        if self.ffn:
            A.I('v_mov_b32 %s, %s' % (v(T + 4), s(62)))
            A.I('ds_write_b128 %s, %s offset:1008' % (v(T + 4), v(ST, 4)), lg='z')

    def hook_reduce(self):
        A = self.A
        R = HK
        A.I('s_lshl_b32 %s, %s, 8' % (s(S_TMP), s(S_TG)))
        A.I('s_add_u32 %s, %s, %d' % (s(S_TMP), s(S_TMP), self.csw_lds))
        A.I('v_lshlrev_b32 %s, 2, %s' % (v(R + 8), v(V_LANE)))
        A.I('v_add_u32 %s, %s, %s' % (v(R + 9), s(S_TMP), v(R + 8)))
        for i in range(8):
            A.I('ds_read_b32 %s, %s offset:%d' % (v(R + i), v(R + 9), i * 1024), lg='cr')
        if self.ffn:
            A.I('v_and_b32 %s, 7, %s' % (v(R + 9), v(V_LANE)))
            A.I('v_lshlrev_b32 %s, 10, %s' % (v(R + 9), v(R + 9)))
            A.I('v_and_b32 %s, 8, %s' % (v(R + 10), v(V_LANE)))
            A.I('v_add3_u32 %s, %s, %s, 0' % (v(R + 9), v(R + 9), v(R + 10)))
            A.I('v_add_u32 %s, %d, %s' % (v(R + 9), self.csw_lds + 1008, v(R + 9)))
            A.I('ds_read_b64 %s, %s' % (v(R + 10, 2), v(R + 9)), lg='cr')

    def hook_reduce2(self):
        A = self.A
        R = HK
        A.wait(lg='cr')
        for i in range(1, 8):
            A.I('v_add_f32 %s, %s, %s' % (v(R), v(R), v(R + i)))
        A.I('s_lshl_b32 %s, %s, 4' % (s(S_TMP), s(S_FB)))
        A.I('s_add_u32 %s, %s, %s' % (s(S_TMP), s(S_TMP), s(S_TB)))
        A.I('s_lshl_b32 %s, %s, 10' % (s(S_TMP), s(S_TMP)))
        A.I('s_lshl_b32 %s, %s, 8' % (s(S_T3), s(S_TG)))
        A.I('s_add_u32 %s, %s, %s' % (s(S_TMP), s(S_TMP), s(S_T3)))
        A.I('s_add_u32 %s, %s, %d' % (s(S_TMP), s(S_TMP), CSP_OFF))
        A.I('buffer_store_dword %s, %s, %s, %s offen sc1' % (v(R), v(R + 8), s(SRD_WS, 4), s(S_TMP)), vm='cst')
        if self.ffn:
            A.I('s_lshl_b32 %s, %s, 3' % (s(S_TMP), s(S_TB)))
            A.I('s_add_u32 %s, %s, %s' % (s(S_TMP), s(S_TMP), s(S_FB)))
            A.I('s_lshl_b32 %s, %s, 7' % (s(S_TMP), s(S_TMP)))
            A.I('s_add_u32 %s, %s, %d' % (s(S_TMP), s(S_TMP), STAT_OFF - 1024))
            A.I('s_cmp_eq_u32 %s, 0' % s(S_TG))
            A.I('s_cselect_b32 %s, %s, 0x%x' % (s(S_TMP), s(S_TMP), BIG))
            A.I('v_lshlrev_b32 %s, 3, %s' % (v(R + 9), v(V_LANE)))
            A.I('s_mov_b64 exec, 0xffff')
            A.I('buffer_store_dwordx2 %s, %s, %s, %s offen sc1' % (v(R + 10, 2), v(R + 9), s(SRD_WS, 4), s(S_TMP)), vm='cst')
            A.I('s_mov_b64 exec, -1')

    def hook_waitst(self):
        self.A.wait(vm=['sst', 'cst'])

    def hook_signal(self, grp, name):
        A = self.A
        if grp != 0:
            return
        R = HK + 10
        A.I('v_mov_b32 %s, 1' % v(R))
        A.I('s_and_b32 %s, s2, 1' % s(S_TMP))
        A.I('s_lshl_b32 %s, %s, 7' % (s(S_TMP), s(S_TMP)))
        A.I('v_mov_b32 %s, %s' % (v(R + 1), s(S_TMP)))
        A.I('v_lshlrev_b32 %s, 7, %s' % (v(V_PA), v(V_LANE)))
        A.I('v_and_b32 %s, 128, %s' % (v(V_PA), v(V_PA)))
        A.I('s_cmp_lg_u32 %s, 0' % s(S_TG))
        A.I('s_cbranch_scc1 L_%s_nosig' % name)
        A.I('s_mov_b64 exec, 1')
        A.I('buffer_atomic_add %s, %s, %s, 0 offen sc1' % (v(R), v(R + 1), s(SRD_DBG, 4)), vm='at')
        A.vmq.pop()
        A.I('s_mov_b64 exec, -1')
        A.label('L_%s_nosig' % name)

    def hook_poll(self, grp, name):
        A = self.A
        if grp != 0:
            return
        lp, ld = 'L_%s_poll' % name, 'L_%s_pdone' % name
        A.wait(vm='poll')
        A.I('s_cmp_lg_u32 %s, 0' % s(S_TG))
        A.I('s_cbranch_scc1 %s' % ld)
        A.label(lp)
        A.I('v_readlane_b32 %s, %s, 0' % (s(S_TMP), v(V_POLL)))
        A.I('v_readlane_b32 %s, %s, 1' % (s(S_T3), v(V_POLL)))
        A.I('s_min_u32 %s, %s, %s' % (s(S_TMP), s(S_TMP), s(S_T3)))
        A.I('s_cmp_ge_u32 %s, 128' % s(S_TMP))
        A.I('s_cbranch_scc1 %s' % ld)
        A.I('s_sleep 2')
        A.I('buffer_load_dword %s, %s, %s, 0 offen sc1' % (v(V_POLL), v(V_PA), s(SRD_DBG, 4)))
        A.vmq.pop()
        A.I('s_waitcnt vmcnt(0)')
        A.I('s_branch %s' % lp)
        A.label(ld)
        A.nop(4)

    def hook_poll_issue(self, grp):
        A = self.A
        if grp != 0:
            return
        A.I('s_mul_i32 %s, %s, 0x1000' % (s(S_TMP), s(S_TG)))
        A.I('buffer_load_dword %s, %s, %s, %s offen sc1' % (v(V_POLL), v(V_PA), s(SRD_DBG, 4), s(S_TMP)), vm='poll')

    def hook_consume(self, grp):
        A = self.A
        A.I('s_lshl_b32 %s, %s, 10' % (s(S_TMP), s(S_TB)))
        A.I('s_lshl_b32 %s, %s, 8' % (s(S_T3), s(S_TG)))
        A.I('s_add_u32 %s, %s, %s' % (s(S_TMP), s(S_TMP), s(S_T3)))
        A.I('s_add_u32 %s, %s, %d' % (s(S_TMP), s(S_TMP), STAT_OFF))
        A.I('v_lshlrev_b32 %s, 3, %s' % (v(V_TMP0), v(V_N)))
        A.I('buffer_load_dwordx2 %s, %s, %s, %s offen sc1' % (v(V_NM, 2), v(V_TMP0), s(SRD_WS, 4), s(S_TMP)), vm='nm')
        if grp == 0:
            A.I('s_lshl_b32 %s, %s, 14' % (s(S_TMP), s(S_FB)))
            A.I('s_lshl_b32 %s, %s, 8' % (s(S_T3), s(S_TG)))
            A.I('s_add_u32 %s, %s, %s' % (s(S_TMP), s(S_TMP), s(S_T3)))
            A.I('s_add_u32 %s, %s, %d' % (s(S_TMP), s(S_TMP), CSP_OFF))
            A.I('v_lshlrev_b32 %s, 2, %s' % (v(V_TMP1), v(V_LANE)))
            for p in range(16):
                A.I('buffer_load_dword %s, %s, %s, %s offen offset:%d sc1' % (v(HK + p), v(V_TMP1), s(SRD_WS, 4), s(S_TMP), (p % 4) * 1024), vm='csp')
                if p % 4 == 3 and p < 15:
                    A.I('s_add_u32 %s, %s, 4096' % (s(S_TMP), s(S_TMP)))

    def finish(self, grp):
        A = self.A
        if grp == 0:
            A.wait(vm='csp')
            for st in (8, 4, 2, 1):
                for i in range(st):
                    A.I('v_add_f32 %s, %s, %s' % (v(HK + i), v(HK + i), v(HK + i + st)))
            A.I('s_lshl_b32 %s, %s, 8' % (s(S_TMP), s(S_TG)))
            A.I('s_add_u32 %s, %s, %d' % (s(S_TMP), s(S_TMP), self.cs_lds))
            A.I('v_add_u32 %s, %s, %s' % (v(V_TMP1), s(S_TMP), v(V_TMP1)))
            A.I('ds_write_b32 %s, %s' % (v(V_TMP1), v(HK)), lg='pub')
            A.wait(lg='pub')
        A.wait(vm='nm')

    def hooks(self, grp, name):
        h = {}
        if grp == 0:
            h[4] = self.hook_reduce
            h[5] = self.hook_reduce2
        h[7] = self.hook_waitst
        h[8] = lambda: self.hook_signal(grp, name)
        h[16] = lambda: self.hook_poll_issue(grp)
        h[17] = lambda: self.hook_poll(grp, name)
        h[18] = lambda: self.hook_consume(grp)
        return h


SRD_R = 60


def x_prefetch(A, R):
    import os
    if os.environ.get('XPF', '0') == '0':
        return
    A.I('s_lshr_b32 s63, %s, 3' % s(S_FB))
    A.I('s_lshl_b32 s63, s63, 7')
    A.I('s_add_u32 s63, s63, %s' % s(S_XOFF))
    for p in range(3, 10, 2):
        for j, d in enumerate((V_DX0, V_DX1)):
            A.I('buffer_load_dwordx4 %s, %s, %s, s63 offen offset:%d' % (v(R, 4), v(d), s(SRD_X, 4), p * 128), vm='xpf')


def relayout_issue(A, R):
    A.I('s_lshl_b32 s92, %s, 3' % s(S_TB))
    A.I('s_add_u32 s92, s92, %s' % s(S_FB))
    A.I('s_sub_u32 s92, s92, 8')
    A.I('s_lshl_b32 s92, s92, 3')
    A.I('s_add_u32 s92, s92, %s' % s(S_W))
    A.group_begin()
    A.I('s_cmp_lt_u32 s92, 640')
    A.I('s_cselect_b32 s96, s88, s90')
    A.I('s_cselect_b32 s97, s89, s91')
    A.I('s_cselect_b32 s93, 0, 640')
    A.group_end()
    A.I('s_and_b32 s97, s97, 0xffff')
    A.I('s_mov_b32 s98, %d' % (1728 * 1280))
    A.I('s_mov_b32 s99, 0x20000')
    A.I('s_sub_u32 s93, s92, s93')
    A.I('s_mul_i32 s93, s93, 1280')
    A.I('v_lshlrev_b32 %s, 4, %s' % (v(R + 16), v(V_LANE)))
    A.I('v_mov_b32 %s, 0x%x' % (v(R + 17), BIG))
    A.I('v_cmp_gt_u32 vcc, 16, %s' % v(V_LANE))
    A.I('v_cndmask_b32 %s, %s, %s, vcc' % (v(R + 17), v(R + 17), v(R + 16)))
    A.I('buffer_load_dwordx4 %s, %s, s[96:99], s93 offen' % (v(R, 4), v(R + 16)), vm='rl')
    A.I('buffer_load_dwordx4 %s, %s, s[96:99], s93 offen offset:1024' % (v(R + 4, 4), v(R + 17)), vm='rl')
    A.I('s_mov_b32 s96, s90')
    A.I('s_and_b32 s97, s91, 0xffff')
    A.I('s_add_u32 s93, s92, 1408')
    A.I('s_mul_i32 s93, s93, 1280')
    A.I('buffer_load_dwordx4 %s, %s, s[96:99], s93 offen' % (v(R + 8, 4), v(R + 16)), vm='rl')
    A.I('buffer_load_dwordx4 %s, %s, s[96:99], s93 offen offset:1024' % (v(R + 12, 4), v(R + 17)), vm='rl')
    A.I('s_add_u32 s93, s92, 384')
    A.I('s_mul_i32 s93, s93, 1280')
    A.I('buffer_load_dwordx4 %s, %s, s[96:99], s93 offen' % (v(R + 24, 4), v(R + 16)), vm='rl')
    A.I('buffer_load_dwordx4 %s, %s, s[96:99], s93 offen offset:1024' % (v(R + 28, 4), v(R + 17)), vm='rl')


def relayout_store(A, R):
    T = R + 18
    for j in range(2):
        A.I('v_add_u32 %s, %d, %s' % (v(T), 64 * j, v(V_LANE)))
        divmod_const(A, T + 1, T + 2, T, 10, 6554)
        A.I('s_mov_b32 s94, %d' % WR_CB)
        A.I('v_mul_lo_u32 %s, %s, s94' % (v(T + 1), v(T + 1)))
        A.I('v_lshl_add_u32 %s, %s, 4, %s' % (v(R + 16 + j), v(T + 2), v(T + 1)))
    A.I('v_mov_b32 %s, 0x%x' % (v(T), BIG))
    A.I('v_cmp_gt_u32 vcc, 16, %s' % v(V_LANE))
    A.I('v_cndmask_b32 %s, %s, %s, vcc' % (v(R + 17), v(T), v(R + 17)))

    def w2dest(srow):
        A.I('s_lshr_b32 s94, %s, 5' % srow)
        A.I('s_mul_i32 s95, s94, 5120')
        A.I('s_and_b32 s94, %s, 7' % srow)
        A.I('s_and_b32 s101, %s, 8' % srow)
        A.I('s_lshl_b32 s101, s101, 1')
        A.I('s_or_b32 s94, s94, s101')
        A.I('s_and_b32 s101, %s, 16' % srow)
        A.I('s_lshr_b32 s101, s101, 1')
        A.I('s_or_b32 s94, s94, s101')
        A.I('s_mul_i32 s94, s94, 160')
        A.I('s_add_u32 s95, s95, s94')
    A.I('s_sub_u32 s93, s92, 640')
    w2dest('s93')
    A.I('s_mov_b32 s100, s95')
    A.I('s_mul_i32 s93, s92, 3277')
    A.I('s_lshr_b32 s93, s93, 16')
    A.I('s_mul_i32 s94, s93, 20')
    A.I('s_sub_u32 s94, s92, s94')
    A.I('s_lshr_b32 s95, s93, 3')
    A.I('s_mul_i32 s95, s95, %d' % (5 * 5120))
    A.I('s_add_u32 s95, s95, %d' % (54 * 5120))
    A.I('s_and_b32 s93, s93, 7')
    A.I('s_lshr_b32 s96, s93, 1')
    A.I('s_mul_i32 s96, s96, 5120')
    A.I('s_and_b32 s97, s93, 1')
    A.I('s_lshl_b32 s97, s97, 4')
    A.I('s_add_u32 s97, s97, s94')
    A.I('s_mul_i32 s97, s97, 160')
    A.I('s_add_u32 s96, s96, s97')
    A.I('s_lshr_b32 s97, s93, 2')
    A.I('s_lshl_b32 s97, s97, 4')
    A.I('s_and_b32 s98, s93, 3')
    A.I('s_add_u32 s97, s97, s98')
    A.I('s_sub_u32 s98, s94, 16')
    A.I('s_lshl_b32 s98, s98, 2')
    A.I('s_add_u32 s97, s97, s98')
    A.I('s_mul_i32 s97, s97, 160')
    A.I('s_add_u32 s97, s97, %d' % (4 * 5120))
    A.group_begin()
    A.I('s_cmp_lt_u32 s94, 16')
    A.I('s_cselect_b32 s96, s96, s97')
    A.group_end()
    A.I('s_add_u32 s95, s95, s96')
    A.group_begin()
    A.I('s_cmp_lt_u32 s92, 640')
    A.I('s_cselect_b32 s95, s95, s100')
    A.group_end()
    A.I('s_add_u32 s100, s95, %d' % WR_OFF)
    A.wait(vm='rl')
    A.I('buffer_store_dwordx4 %s, %s, %s, s100 offen sc1' % (v(R, 4), v(R + 16), s(SRD_WS, 4)), vm='rs')
    A.I('buffer_store_dwordx4 %s, %s, %s, s100 offen sc1' % (v(R + 4, 4), v(R + 17), s(SRD_WS, 4)), vm='rs')
    A.I('s_add_u32 s93, s92, 1408')
    w2dest('s93')
    A.I('s_add_u32 s95, s95, %d' % WR_OFF)
    A.group_begin()
    A.I('s_cmp_lt_u32 s92, 320')
    A.I('s_cselect_b32 s95, s95, 0x%x' % BIG)
    A.group_end()
    A.I('buffer_store_dwordx4 %s, %s, %s, s95 offen sc1' % (v(R + 8, 4), v(R + 16), s(SRD_WS, 4)), vm='rs')
    A.I('buffer_store_dwordx4 %s, %s, %s, s95 offen sc1' % (v(R + 12, 4), v(R + 17), s(SRD_WS, 4)), vm='rs')
    A.I('s_add_u32 s93, s92, 384')
    w2dest('s93')
    A.I('s_add_u32 s95, s95, %d' % WR_OFF)
    A.I('buffer_store_dwordx4 %s, %s, %s, s95 offen sc1' % (v(R + 24, 4), v(R + 16), s(SRD_WS, 4)), vm='rs')
    A.I('buffer_store_dwordx4 %s, %s, %s, s95 offen sc1' % (v(R + 28, 4), v(R + 17), s(SRD_WS, 4)), vm='rs')


def read_cs_list(A, cs_lds, dsts, t0):
    A.I('v_lshlrev_b32 %s, 4, %s' % (v(t0), v(V_G)))
    A.I('v_add_u32 %s, %d, %s' % (v(t0), cs_lds, v(t0)))
    for ft, d in enumerate(dsts):
        A.I('ds_read_b128 %s, %s offset:%d' % (v(d, 4), v(t0), ft * 64), lg='cs')


def setup_x(A, xbase, t):
    A.I('s_lshl_b32 %s, %s, 7' % (s(S_TMP), s(S_W)))
    for j, dst in enumerate((V_DX0, V_DX1)):
        A.I('v_add_u32 %s, %s, %s' % (v(t[0]), s(S_TMP), v(V_LANE)))
        if j:
            A.I('v_add_u32 %s, 64, %s' % (v(t[0]), v(t[0])))
        A.I('v_lshrrev_b32 %s, 3, %s' % (v(t[1]), v(t[0])))
        A.I('v_bfe_u32 %s, %s, 4, 3' % (v(t[2]), v(t[0])))
        A.I('v_and_b32 %s, 7, %s' % (v(t[0]), v(t[0])))
        A.I('v_xor_b32 %s, %s, %s' % (v(t[0]), v(t[0]), v(t[2])))
        A.I('v_mul_u32_u24 %s, 1280, %s' % (v(t[1]), v(t[1])))
        A.I('v_lshl_add_u32 %s, %s, 4, %s' % (v(dst), v(t[0]), v(t[1])))
    A.I('s_mul_i32 %s, %s, %d' % (s(S_XOFF), s(S_TB), 128 * 1280))
    A.I('s_lshl_b32 %s, %s, 11' % (s(S_M0X), s(S_W)))
    A.I('v_bfe_u32 %s, %s, 1, 3' % (v(t[0]), v(V_N)))
    A.I('v_xor_b32 %s, %s, %s' % (v(t[0]), v(t[0]), v(V_HI)))
    A.I('v_lshlrev_b32 %s, 4, %s' % (v(t[0]), v(t[0])))
    A.I('v_lshl_add_u32 %s, %s, 7, %s' % (v(t[0]), v(V_N), v(t[0])))
    A.I('s_lshl_b32 %s, %s, 12' % (s(S_TMP), s(S_TG)))
    A.I('s_add_u32 %s, %s, %d' % (s(S_TMP), s(S_TMP), xbase))
    for s4 in range(4):
        A.I('v_xor_b32 %s, %d, %s' % (v(t[1]), 32 * s4, v(t[0])))
        A.I('v_add_u32 %s, %s, %s' % (v(V_XR0 + s4), s(S_TMP), v(t[1])))


def gen_k1(A, mapping=0):
    A.label('k1_kernel')
    A.I('s_cmp_ge_u32 s2, 256')
    A.I('s_cbranch_scc1 L_k1_end')
    A.I('s_load_dwordx4 s[4:7], s[0:1], 0')
    A.I('s_load_dwordx2 s[8:9], s[0:1], 16')
    A.I('s_load_dwordx4 s[12:15], s[0:1], 40')
    A.I('s_load_dwordx4 s[16:19], s[0:1], 72')
    A.I('s_load_dwordx2 s[88:89], s[0:1], 24')
    A.I('s_load_dwordx2 s[90:91], s[0:1], 56')
    if mapping == 0:
        A.I('s_lshr_b32 %s, s2, 4' % s(S_TB))
        A.I('s_and_b32 %s, s2, 15' % s(S_FB))
    elif mapping == 1:
        A.I('s_bfe_u32 %s, s2, 0x10002' % s(S_TB))
        A.I('s_lshl_b32 %s, %s, 3' % (s(S_TB), s(S_TB)))
        A.I('s_bfe_u32 %s, s2, 0x30003' % s(S_TMP))
        A.I('s_add_u32 %s, %s, %s' % (s(S_TB), s(S_TB), s(S_TMP)))
        A.I('s_lshr_b32 %s, s2, 6' % s(S_FB))
        A.I('s_lshl_b32 %s, %s, 2' % (s(S_FB), s(S_FB)))
        A.I('s_and_b32 %s, s2, 3' % s(S_TMP))
        A.I('s_add_u32 %s, %s, %s' % (s(S_FB), s(S_FB), s(S_TMP)))
    elif mapping == 2:
        A.I('s_and_b32 %s, s2, 7' % s(S_TB))
        A.I('s_lshl_b32 %s, %s, 1' % (s(S_TB), s(S_TB)))
        A.I('s_bfe_u32 %s, s2, 0x10003' % s(S_TMP))
        A.I('s_add_u32 %s, %s, %s' % (s(S_TB), s(S_TB), s(S_TMP)))
        A.I('s_lshr_b32 %s, s2, 4' % s(S_FB))
    A.I('v_and_b32 %s, 63, v0' % v(V_LANE))
    A.I('v_and_b32 %s, 15, v0' % v(V_T))
    A.I('v_bfe_u32 %s, v0, 4, 2' % v(V_G))
    A.I('v_and_b32 %s, 31, v0' % v(V_N))
    A.I('v_bfe_u32 %s, v0, 5, 1' % v(V_HI))
    A.I('v_lshrrev_b32 %s, 6, v0' % v(V_TMP0))
    A.I('v_readfirstlane_b32 %s, %s' % (s(S_W), v(V_TMP0)))
    A.I('s_and_b32 %s, %s, 3' % (s(S_TG), s(S_W)))
    A.I('s_lshr_b32 %s, %s, 2' % (s(S_GRP), s(S_W)))
    A.I('s_mov_b32 %s, 0x%x' % (s(S_LOG2E), LOG2E))
    A.I('v_mov_b32 %s, 0x3f803f80' % v(V_ONES))
    A.I('s_waitcnt lgkmcnt(0)')
    if A.stamps_on:
        for i in range(16):
            A.I('s_mov_b32 s%d, 0' % (64 + i))
    A.stamp(0)
    srd(A, SRD_X, 4, 2048 * 640 * 2)
    srd(A, SRD_WS, 18, WS_END)
    srd(A, SRD_DBG, 16, 256)
    import os
    if os.environ.get('TLB', '0') == '1':
        A.I('v_lshlrev_b32 v253, 16, v0')
        A.I('buffer_load_dword v254, v253, %s, 0 offen' % s(SRD_WS, 4), vm='tlb')
    A.I('s_cmp_ge_u32 %s, 8' % s(S_FB))
    A.I('s_cbranch_scc1 L_k1_ffn')
    sn = A.snap()
    gen_k1_attn(A)
    A.restore(sn)
    A.label('L_k1_ffn')
    gen_k1_ffn(A)
    A.label('L_k1_end')
    A.I('s_waitcnt vmcnt(0)')
    A.I('s_endpgm')


F_SLOT = 15360
F_X = D_RING * F_SLOT
F_CSW = F_X + 3 * XP + 2048
F_CS = F_X + 3 * XP
F_BIAS = F_CS + 1024
F_LDS = F_CSW + 8192


def mish_batch(A, vals, T):
    n = len(vals)
    E, U = T, T + n
    ac0, cs0, b0 = vals[0][0], vals[0][1], vals[0][2]
    for i in range(0, n, 2):
        A.I('v_pk_fma_f32 %s, %s, %s, %s op_sel_hi:[1,0,1]' % (v(ac0 + i, 2), v(cs0 + i, 2), v(V_NM, 2), v(ac0 + i, 2)))
    for i in range(0, n, 2):
        A.I('v_pk_fma_f32 %s, %s, %s, %s op_sel:[0,1,0] op_sel_hi:[1,1,1]' % (v(ac0 + i, 2), v(ac0 + i, 2), v(V_NM, 2), v(b0 + i, 2)))
    for i in range(0, n, 2):
        A.I('v_pk_mul_f32 %s, %s, %s op_sel:[0,1] op_sel_hi:[1,1]' % (v(E + i, 2), v(ac0 + i, 2), v(V_K2, 2)))
    for i in range(n):
        A.I('v_exp_f32 %s, %s' % (v(E + i), v(E + i)))
    for i in range(0, n, 2):
        A.I('v_pk_add_f32 %s, %s, %s op_sel_hi:[1,0]' % (v(U + i, 2), v(E + i, 2), v(V_K2, 2)))
    for i in range(0, n, 2):
        A.I('v_pk_fma_f32 %s, %s, %s, %s op_sel_hi:[1,1,0]' % (v(U + i, 2), v(E + i, 2), v(U + i, 2), v(V_K2, 2)))
    for i in range(n):
        A.I('v_rcp_f32 %s, %s' % (v(U + i), v(U + i)))
    for i in range(0, n, 2):
        A.I('v_pk_fma_f32 %s, %s, %s, %s op_sel:[0,0,1] op_sel_hi:[1,0,1]' % (v(U + i, 2), v(U + i, 2), v(V_K1, 2), v(V_K1, 2)))
    for i in range(0, n, 2):
        A.I('v_pk_mul_f32 %s, %s, %s' % (v(ac0 + i, 2), v(ac0 + i, 2), v(U + i, 2)))


def w_voffsets(A, t, kind):
    per = 112 if kind == 'ffn' else 120
    A.I('s_mul_i32 %s, %s, %d' % (s(S_TMP), s(S_W), per))
    if kind == 'ffn':
        A.I('s_lshl_b32 %s, %s, 6' % (s(S_T3), s(S_P0)))
    else:
        A.I('s_mul_i32 %s, %s, 160' % (s(S_T3), s(S_FB)))
    for j, dst in enumerate((V_DM0, V_DM1)):
        A.I('v_add_u32 %s, %s, %s' % (v(t[0]), s(S_TMP), v(V_LANE)))
        if j:
            A.I('v_add_u32 %s, 64, %s' % (v(t[0]), v(t[0])))
        if kind == 'ffn':
            divmod_const(A, t[1], t[2], t[0], 28, 2341)
            A.I('v_mul_u32_u24 %s, 3456, %s' % (v(t[3]), v(t[1])))
            A.I('v_lshl_add_u32 %s, %s, 4, %s' % (v(t[3]), v(t[2]), v(t[3])))
            A.I('v_add_u32 %s, %s, %s' % (v(dst), s(S_T3), v(t[3])))
        else:
            divmod_const(A, t[1], t[2], t[0], 30, 2185)
            divmod_const(A, t[5], t[7], t[2], 10, 6554)
            A.I('v_and_b32 %s, 24, %s' % (v(t[3]), v(t[1])))
            A.I('v_and_b32 %s, 1, %s' % (v(t[4]), v(t[1])))
            A.I('v_lshl_or_b32 %s, %s, 2, %s' % (v(t[3]), v(t[4]), v(t[3])))
            A.I('v_bfe_u32 %s, %s, 1, 2' % (v(t[4]), v(t[1])))
            A.I('v_or_b32 %s, %s, %s' % (v(t[3]), v(t[3]), v(t[4])))
            A.I('v_mul_u32_u24 %s, 3840, %s' % (v(t[3]), v(t[3])))
            A.I('v_lshl_add_u32 %s, %s, 4, %s' % (v(t[3]), v(t[7]), v(t[3])))
            A.I('v_add_u32 %s, 1, %s' % (v(t[6]), v(t[5])))
            A.I('v_cmp_gt_u32 vcc, 2, %s' % v(t[5]))
            A.I('v_cndmask_b32 %s, 0, %s, vcc' % (v(t[6]), v(t[6])))
            A.I('v_mul_u32_u24 %s, 1280, %s' % (v(t[6]), v(t[6])))
            A.I('v_add3_u32 %s, %s, %s, %s' % (v(dst), s(S_T3), v(t[3]), v(t[6])))
    A.I('s_mul_i32 %s, %s, %d' % (s(S_M0B), s(S_W), per * 16))


def mk_dma(A, rowbytes, himask):
    def dma(stage):
        slot = stage % D_RING
        A.I('s_mov_b32 %s, %d' % (s(S_DT), stage * 32 * rowbytes))
        A.I('s_add_u32 m0, %s, %d' % (s(S_M0B), slot * F_SLOT))
        A.I('buffer_load_dwordx4 %s, %s, %s offen lds' % (v(V_DM0), s(SRD_W, 4), s(S_DT)), vm=('dma', stage))
        A.I('s_add_u32 m0, %s, %d' % (s(S_M0B), slot * F_SLOT + 1024))
        A.I('s_mov_b32 exec_hi, 0x%x' % himask)
        A.I('buffer_load_dwordx4 %s, %s, %s offen lds' % (v(V_DM1), s(SRD_W, 4), s(S_DT)), vm=('dma', stage))
        A.I('s_mov_b64 exec, -1')
    return dma


def trbase32(A, dst, rowbytes, rmul, t0, t1):
    A.I('v_bfe_u32 %s, %s, 2, 2' % (v(t0), v(V_LANE)))
    if rmul == 2:
        A.I('v_lshlrev_b32 %s, 1, %s' % (v(t0), v(t0)))
    A.I('v_lshl_add_u32 %s, %s, 3, %s' % (v(t0), v(V_HI), v(t0)))
    A.I('v_mul_u32_u24 %s, %d, %s' % (v(t0), rowbytes, v(t0)))
    A.I('v_and_b32 %s, 1, %s' % (v(t1), v(V_G)))
    A.I('v_lshl_add_u32 %s, %s, 5, %s' % (v(t0), v(t1), v(t0)))
    A.I('v_and_b32 %s, 3, %s' % (v(t1), v(V_LANE)))
    A.I('v_lshl_add_u32 %s, %s, 3, %s' % (v(dst), v(t1), v(t0)))


def rd_vec32(A, areg, lds_off, dst, tag):
    for j in range(4):
        A.I('ds_read_b128 %s, %s offset:%d' % (v(dst + 4 * j, 4), v(areg), lds_off + j * 32), lg=tag)


RLY = 160


def gen_k1_ffn(A):
    srd(A, SRD_W, 12, 640 * 1728 * 2)
    A.I('s_sub_u32 %s, %s, 8' % (s(S_P0), s(S_FB)))
    A.I('s_mul_i32 %s, %s, 7' % (s(S_P0), s(S_P0)))
    A.I('s_min_u32 %s, %s, 47' % (s(S_P0), s(S_P0)))
    t = [152 + i for i in range(8)]
    def colmap(dst, t0):
        A.I('s_lshl_b32 %s, %s, 6' % (s(S_T3), s(S_P0)))
        A.I('v_lshlrev_b32 %s, 3, %s' % (v(dst), v(V_LANE)))
        A.I('v_add_u32 %s, %s, %s' % (v(dst), s(S_T3), v(dst)))
        A.I('v_mov_b32 %s, 0x%x' % (v(t0), BIG))
        A.I('v_cmp_gt_u32 vcc, 56, %s' % v(V_LANE))
        A.I('v_cndmask_b32 %s, %s, %s, vcc' % (v(dst), v(t0), v(dst)))
    C = Coop(A, 3456, F_CSW, F_CS, colmap, True)
    C.issue_loads()
    setup_x(A, F_X, t)
    dma_x(A, 0, F_X)
    w_voffsets(A, t, 'ffn')
    dma = mk_dma(A, 3456, 0xffff)
    dma(0)
    dma(1)
    dma_x(A, 1, F_X)
    srd(A, SRD_AUX, 14, 1728 * 2)

    dma(2)
    A.stamp(8)
    trbase32(A, V_RB0, 448, 1, t[0], t[1])
    A.I('s_lshl_b32 %s, %s, 8' % (s(S_TMP), s(S_GRP)))
    A.I('v_add_u32 %s, %s, %s' % (v(V_RB0), s(S_TMP), v(V_RB0)))
    A.I('v_add_u32 %s, %d, %s' % (v(V_RB1), 3 * F_SLOT, v(V_RB0)))
    A.stamp(14)

    def mk_fill(grp):
        A.defer_begin()
        x_prefetch(A, 152)
        C.compute()
        relayout_issue(A, RLY)
        if grp == 0:
            A.I('s_lshl_b32 s85, %s, 6' % s(S_P0))
            A.I('v_lshlrev_b32 %s, 1, v0' % v(194))
            A.I('buffer_load_ushort %s, %s, %s, s85 offen' % (v(195), v(194), s(SRD_AUX, 4)), vm='bias')
        relayout_store(A, RLY)
        if grp == 0:
            A.wait(vm='bias')
            A.I('v_lshlrev_b32 %s, 16, %s' % (v(195), v(195)))
            A.I('v_lshlrev_b32 %s, 2, v0' % v(194))
            A.I('v_add_u32 %s, %d, %s' % (v(194), F_BIAS, v(194)))
            A.I('ds_write_b32 %s, %s' % (v(194), v(195)), lg='z')
        return A.defer_end()
    A.I('s_cmp_eq_u32 %s, 1' % s(S_GRP))
    A.I('s_cbranch_scc1 L_ffn_B')
    sn = A.snap()
    for grp in range(2):
        if grp:
            A.restore(sn)
            A.label('L_ffn_B')
        nt = 4 - grp
        tiles = [(ti * 64, ACC + 16 * ti) for ti in range(nt)]
        hk = C.hooks(grp, 'ffn%d' % grp)
        import os
        WPF = os.environ.get('WPF', '0') == '1'

        def rl_wait():
            A.wait(vm='rs')

        def rl_signal():
            if grp:
                return
            A.I('v_mov_b32 %s, 1' % v(HK + 12))
            A.I('v_mov_b32 %s, 64' % v(HK + 13))
            A.I('s_cmp_lg_u32 %s, 0' % s(S_TG))
            A.I('s_cbranch_scc1 L_rl_nosig')
            A.I('s_mov_b64 exec, 1')
            A.I('buffer_atomic_add %s, %s, %s, 0 offen sc1' % (v(HK + 12), v(HK + 13), s(SRD_DBG, 4)), vm='at')
            A.vmq.pop()
            A.I('s_mov_b64 exec, -1')
            A.label('L_rl_nosig')
        if WPF:
            hk[13] = rl_wait
            hk[14] = rl_signal
        L = Loop(A, 'ffn%d' % grp, tiles, 16 * 448, 4 * 448, dma, F_X, hk, fillers=mk_fill(grp))
        L.run()
        CSR = [152, 184]
        BFR = [168, 200]
        TT = 216
        OUT = 232
        AD = 252
        C.finish(grp)
        A.stamp(6)
        A.I('s_barrier')
        A.stamp(7)
        A.I('v_lshlrev_b32 %s, 4, %s' % (v(AD + 1), v(V_HI)))
        A.I('v_add_u32 %s, %d, %s' % (v(AD + 1), F_CS + grp * 512, v(AD + 1)))
        A.I('v_mov_b32 %s, 2.0' % v(V_K2))
        A.I('v_mov_b32 %s, %s' % (v(V_K2 + 1), s(S_LOG2E)))
        A.I('v_mov_b32 %s, -2.0' % v(V_K1))
        A.I('v_mov_b32 %s, 1.0' % v(V_K1 + 1))

        def rdv(ti):
            rd_vec32(A, AD + 1, ti * 128, CSR[ti % 2], ('cs', ti))
            rd_vec32(A, AD + 1, 1024 + ti * 128, BFR[ti % 2], ('cs', ti))
        rdv(0)
        A.I('s_lshl_b32 %s, %s, 3' % (s(S_TMP), s(S_TB)))
        A.I('s_lshl_b32 %s, %s, 1' % (s(S_T3), s(S_TG)))
        A.I('s_add_u32 %s, %s, %s' % (s(S_TMP), s(S_TMP), s(S_T3)))
        A.I('s_mul_i32 %s, %s, 54' % (s(S_TMP), s(S_TMP)))
        A.I('s_add_u32 %s, %s, %s' % (s(S_TMP), s(S_TMP), s(S_P0)))
        A.I('s_lshl_b32 %s, %s, 10' % (s(S_TMP), s(S_TMP)))
        A.I('s_add_u32 %s, %s, %d' % (s(S_TMP), s(S_TMP), ACT_OFF + grp * 4 * 1024))
        A.I('v_and_b32 %s, 1, %s' % (v(AD), v(V_G)))
        A.I('v_mul_u32_u24 %s, %d, %s' % (v(AD), 54 * 1024, v(AD)))
        A.I('v_lshl_add_u32 %s, %s, 4, %s' % (v(AD), v(V_T), v(AD)))
        A.I('v_lshl_add_u32 %s, %s, 8, %s' % (v(AD), v(V_HI), v(AD)))
        for ti in range(nt):
            A.stamp(10 + ti)
            if ti + 1 < nt:
                rdv(ti + 1)
            A.wait(lg=('cs', ti))
            for hb in range(2):
                vals = []
                for r_ in range(8):
                    i_ = hb * 8 + r_
                    vals.append((ACC + 16 * ti + i_, CSR[ti % 2] + i_, BFR[ti % 2] + i_, V_NM, V_NM + 1))
                mish_batch(A, vals, TT)
                o = OUT + ((ti * 2 + hb) % 4) * 4
                for q in range(4):
                    ac = ACC + 16 * ti + hb * 8 + 2 * q
                    A.I('v_cvt_pk_bf16_f32 %s, %s, %s' % (v(o + q), v(ac), v(ac + 1)))
                A.I('buffer_store_dwordx4 %s, %s, %s, %s offen offset:%d' % (v(o, 4), v(AD), s(SRD_WS, 4), s(S_TMP), ti * 1024 + hb * 512) + ' sc1', vm='st')
        A.stamp(15)
        A.stamp_flush(18, S_W, 8)
        if WPF:
            if grp == 0:
                A.I('v_mov_b32 %s, 64' % v(104))
                A.I('s_cmp_lg_u32 %s, 0' % s(S_TG))
                A.I('s_cbranch_scc1 L_rl_go')
                A.label('L_rl_poll')
                A.I('buffer_load_dword %s, %s, %s, 0 offen sc1' % (v(105), v(104), s(SRD_DBG, 4)), vm='poll')
                A.wait_all(vm=True)
                A.I('v_readfirstlane_b32 %s, %s' % (s(S_TMP), v(105)))
                A.I('s_cmp_ge_u32 %s, 128' % s(S_TMP))
                A.I('s_cbranch_scc1 L_rl_go')
                A.I('s_sleep 8')
                A.I('s_branch L_rl_poll')
                A.label('L_rl_go')
            A.I('s_barrier')
            A.I('s_and_b32 %s, s2, 1' % s(S_TMP))
            A.I('s_mul_i32 %s, %s, %d' % (s(S_TMP), s(S_TMP), 4 * WR_CB))
            A.I('s_lshl_b32 %s, %s, 3' % (s(S_T3), s(S_TB)))
            A.I('s_add_u32 %s, %s, %s' % (s(S_T3), s(S_T3), s(S_W)))
            A.I('s_mul_i32 %s, %s, %d' % (s(S_T3), s(S_T3), 11840))
            A.I('s_add_u32 %s, %s, %s' % (s(S_TMP), s(S_TMP), s(S_T3)))
            A.I('s_add_u32 %s, %s, %d' % (s(S_TMP), s(S_TMP), WR_OFF))
            A.I('v_lshlrev_b32 %s, 4, %s' % (v(104), v(V_LANE)))
            for q in range(12):
                A.I('buffer_load_dwordx4 %s, %s, %s, %s offen offset:%d' % (v(108 + 4 * q, 4), v(104), s(SRD_WS, 4), s(S_TMP), (q % 4) * 1024), vm='pf')
                if q % 4 == 3:
                    A.I('s_add_u32 %s, %s, 4096' % (s(S_TMP), s(S_TMP)))
        A.I('s_waitcnt vmcnt(0)')
        A.I('s_endpgm')


A_X = D_RING * F_SLOT
PHIK_ROW = 352
A_PHIK = 0
A_VS = A_PHIK + 128 * PHIK_ROW
A_M = A_X + 3 * XP
A_CSW = A_M
A_CS = A_M + 80 * 192
A_FLAG = A_CS + 1024
A_LDS = A_FLAG + 64


def softmax2(A, P, EP, EM, X, scl, sync):
    MX, MN = X, X + 1
    A.I('v_max3_f32 %s, %s, %s, %s' % (v(MX), v(P), v(P + 1), v(P + 2)))
    A.I('v_min3_f32 %s, %s, %s, %s' % (v(MN), v(P), v(P + 1), v(P + 2)))
    for i in range(3, 19, 2):
        A.I('v_max3_f32 %s, %s, %s, %s' % (v(MX), v(MX), v(P + i), v(P + i + 1)))
        A.I('v_min3_f32 %s, %s, %s, %s' % (v(MN), v(MN), v(P + i), v(P + i + 1)))
    A.I('v_max_f32 %s, %s, %s' % (v(MX), v(MX), v(P + 19)))
    A.I('v_min_f32 %s, %s, %s' % (v(MN), v(MN), v(P + 19)))
    A.I('v_pk_mul_f32 %s, %s, %s op_sel_hi:[1,0]' % (v(X, 2), v(X, 2), v(scl, 2)))
    for i in range(0, 20, 2):
        A.I('v_pk_fma_f32 %s, %s, %s, %s op_sel_hi:[1,0,0] neg_lo:[0,0,1] neg_hi:[0,0,1]' % (v(EP + i, 2), v(P + i, 2), v(scl, 2), v(X, 2)))
        A.I('v_pk_fma_f32 %s, %s, %s, %s op_sel:[0,0,1] op_sel_hi:[1,0,1] neg_lo:[1,0,0] neg_hi:[1,0,0]' % (v(EM + i, 2), v(P + i, 2), v(scl, 2), v(X, 2)))
    sync()
    for i in range(20):
        A.I('v_exp_f32 %s, %s' % (v(EP + i), v(EP + i)))
        A.I('v_exp_f32 %s, %s' % (v(EM + i), v(EM + i)))
    sync()
    SP, SM, RS = X + 2, X + 4, X + 6
    A.I('v_pk_add_f32 %s, %s, %s' % (v(SP, 2), v(EP, 2), v(EP + 2, 2)))
    A.I('v_pk_add_f32 %s, %s, %s' % (v(SM, 2), v(EM, 2), v(EM + 2, 2)))
    for i in range(4, 20, 2):
        A.I('v_pk_add_f32 %s, %s, %s' % (v(SP, 2), v(SP, 2), v(EP + i, 2)))
        A.I('v_pk_add_f32 %s, %s, %s' % (v(SM, 2), v(SM, 2), v(EM + i, 2)))
    A.I('v_add_f32 %s, %s, %s' % (v(RS), v(SP), v(SP + 1)))
    A.I('v_add_f32 %s, %s, %s' % (v(RS + 1), v(SM), v(SM + 1)))
    A.I('v_rcp_f32 %s, %s' % (v(RS), v(RS)))
    A.I('v_rcp_f32 %s, %s' % (v(RS + 1), v(RS + 1)))
    for i in range(0, 20, 2):
        A.I('v_pk_mul_f32 %s, %s, %s op_sel_hi:[1,0]' % (v(EP + i, 2), v(EP + i, 2), v(RS, 2)))
        A.I('v_pk_mul_f32 %s, %s, %s op_sel:[0,1] op_sel_hi:[1,1]' % (v(EM + i, 2), v(EM + i, 2), v(RS, 2)))
    for i in range(10):
        A.I('v_cvt_pk_bf16_f32 %s, %s, %s' % (v(P + i), v(EP + 2 * i), v(EP + 2 * i + 1)))
        A.I('v_cvt_pk_bf16_f32 %s, %s, %s' % (v(P + 10 + i), v(EM + 2 * i), v(EM + 2 * i + 1)))
    sync()


def gen_k1_attn(A):
    srd(A, SRD_W, 6, 640 * 1920 * 2)
    t = [200 + i for i in range(16)]
    def colmap(dst, t0):
        divmod_const(A, t[0], t[1], V_LANE, 20, 3277)
        A.I('v_add_u32 %s, 1, %s' % (v(t[2]), v(t[0])))
        A.I('v_cmp_eq_u32 vcc, 2, %s' % v(t[0]))
        A.I('v_cndmask_b32 %s, %s, 0, vcc' % (v(t[2]), v(t[2])))
        A.I('v_mul_u32_u24 %s, 1280, %s' % (v(t[2]), v(t[2])))
        A.I('v_lshl_add_u32 %s, %s, 3, %s' % (v(dst), v(t[1]), v(t[2])))
        A.I('s_mul_i32 %s, %s, 160' % (s(S_T3), s(S_FB)))
        A.I('v_add_u32 %s, %s, %s' % (v(dst), s(S_T3), v(dst)))
        A.I('v_mov_b32 %s, 0x%x' % (v(t0), BIG))
        A.I('v_cmp_gt_u32 vcc, 60, %s' % v(V_LANE))
        A.I('v_cndmask_b32 %s, %s, %s, vcc' % (v(dst), v(t0), v(dst)))
    C = Coop(A, 3840, A_CSW, A_CS, colmap, False)
    C.issue_loads()
    setup_x(A, A_X, t)
    dma_x(A, 0, A_X)
    w_voffsets(A, t, 'attn')
    dma = mk_dma(A, 3840, 0x00ffffff)
    dma(0)
    dma(1)
    dma_x(A, 1, A_X)
    srd(A, SRD_AUX, 8, 32 * 400 * 2)

    dma(2)
    trbase32(A, V_RB0, 480, 2, t[0], t[1])
    A.I('s_lshl_b32 %s, %s, 8' % (s(S_TMP), s(S_GRP)))
    A.I('v_add_u32 %s, %s, %s' % (v(V_RB0), s(S_TMP), v(V_RB0)))
    A.I('v_add_u32 %s, %d, %s' % (v(V_RB1), 3 * F_SLOT, v(V_RB0)))
    A.I('v_mov_b32 %s, %d' % (v(t[0]), A_FLAG))
    A.I('v_mov_b32 %s, 0' % v(t[1]))
    A.I('ds_write_b32 %s, %s' % (v(t[0]), v(t[1])), lg='z')
    A.wait(lg='z')

    def mk_fill():
        A.defer_begin()
        x_prefetch(A, 152)
        C.compute()
        MD, MA = 184, 192
        for i in range(4):
            A.I('v_add_u32 %s, %d, v0' % (v(t[0]), 512 * i))
            divmod_const(A, t[1], t[2], t[0], 24, 2731)
            divmod_const(A, t[3], t[4], t[1], 20, 3277)
            A.I('v_lshrrev_b32 %s, 1, %s' % (v(t[5]), v(t[2])))
            A.I('v_lshlrev_b32 %s, 2, %s' % (v(t[5]), v(t[5])))
            A.I('v_and_b32 %s, 1, %s' % (v(t[6]), v(t[2])))
            A.I('v_lshlrev_b32 %s, 1, %s' % (v(t[6]), v(t[6])))
            A.I('v_cmp_lt_u32 vcc, 19, %s' % v(t[5]))
            A.I('v_addc_co_u32 %s, vcc, 0, %s, vcc' % (v(t[6]), v(t[6])))
            A.I('v_cmp_lt_u32 vcc, 19, %s' % v(t[5]))
            A.I('v_subrev_u32 %s, 20, %s' % (v(t[8]), v(t[5])))
            A.I('v_cndmask_b32 %s, %s, %s, vcc' % (v(t[8]), v(t[5]), v(t[8])))
            A.I('v_mul_u32_u24 %s, 800, %s' % (v(t[7]), v(t[3])))
            A.I('v_mul_u32_u24 %s, 40, %s' % (v(t[4]), v(t[4])))
            A.I('v_add_u32 %s, %s, %s' % (v(t[7]), v(t[7]), v(t[4])))
            A.I('v_lshl_add_u32 %s, %s, 1, %s' % (v(t[7]), v(t[8]), v(t[7])))
            A.I('v_mov_b32 %s, 0x%x' % (v(t[4]), BIG))
            A.I('v_cmp_eq_u32 vcc, %s, %s' % (v(t[6]), v(t[3])))
            A.I('v_cndmask_b32 %s, %s, %s, vcc' % (v(t[7]), v(t[4]), v(t[7])))
            A.I('v_cmp_gt_u32 vcc, 40, %s' % v(t[5]))
            A.I('v_cndmask_b32 %s, %s, %s, vcc' % (v(t[7]), v(t[4]), v(t[7])))
            A.I('s_mul_i32 s85, %s, 3200' % s(S_FB))
            A.I('buffer_load_dwordx2 %s, %s, %s, %s offen' % (v(MD + 2 * i, 2), v(t[7]), s(SRD_AUX, 4), 's85'), vm='m')
            A.I('v_lshlrev_b32 %s, 3, %s' % (v(MA + i), v(t[0])))
            A.I('v_add_u32 %s, %d, %s' % (v(MA + i), A_M, v(MA + i)))

        A.gate(7)
        A.wait(vm='m')
        for i in range(4):
            if i == 3:
                A.group_begin()
                A.I('v_cmp_gt_u32 vcc, 384, v0')
                A.I('s_and_saveexec_b64 %s, vcc' % s(S_MASK, 2))
            A.I('ds_write_b64 %s, %s' % (v(MA + i), v(MD + 2 * i, 2)), lg='z')
            if i == 3:
                A.I('s_mov_b64 exec, -1')
                A.group_end()
        return A.defer_end()

    NM = V_NM
    CSR = 104
    MF = 168
    AD = 228
    X = 238
    SCL = 246
    VMB = 247
    BO = 24
    A.I('s_cmp_eq_u32 %s, 1' % s(S_GRP))
    A.I('s_cbranch_scc1 L_att_B')
    sn = A.snap()
    for grp in range(2):
        if grp:
            A.restore(sn)
            A.label('L_att_B')
        tiles = [(ti * 64, ACC + 16 * ti) for ti in range(4)]
        L = Loop(A, 'att%d' % grp, tiles, 16 * 480, 480, dma, A_X, C.hooks(grp, 'att%d' % grp), fillers=mk_fill())
        L.run()
        C.finish(grp)
        A.I('v_bfe_u32 %s, %s, 2, 2' % (v(VMB), v(V_LANE)))
        A.I('v_lshl_add_u32 %s, %s, 2, %s' % (v(VMB), v(V_HI), v(VMB)))
        A.I('v_mul_u32_u24 %s, 192, %s' % (v(VMB), v(VMB)))
        A.I('v_and_b32 %s, 1, %s' % (v(AD), v(V_G)))
        A.I('v_lshl_add_u32 %s, %s, 5, %s' % (v(VMB), v(AD), v(VMB)))
        A.I('v_and_b32 %s, 3, %s' % (v(AD), v(V_LANE)))
        A.I('v_lshl_add_u32 %s, %s, 3, %s' % (v(VMB), v(AD), v(VMB)))
        A.I('v_add_u32 %s, %d, %s' % (v(VMB), A_M, v(VMB)))
        for u in range(3):
            for s2 in range(5):
                b = MF + (u * 5 + s2) * 4
                for h in range(2):
                    A.I('ds_read_b64_tr_b16 %s, %s offset:%d' % (v(b + 2 * h, 2), v(VMB), (16 * s2 + 8 * h) * 192 + u * 64), lg='mf')
        A.I('v_mul_f32 %s, %s, %s' % (v(SCL), s(S_LOG2E), v(NM + 1)))
        A.I('s_barrier')
        if grp == 0:
            A.I('s_setprio 2')
        A.stamp(6)
        A.I('v_lshlrev_b32 %s, 4, %s' % (v(AD + 1), v(V_HI)))
        A.I('v_add_u32 %s, %d, %s' % (v(AD + 1), A_CS + grp * 512, v(AD + 1)))
        for ti in range(4):
            rd_vec32(A, AD + 1, ti * 128, CSR + 16 * ti, ('cs', ti))
        A.I('s_mul_i32 %s, %s, %d' % (s(S_TMP), s(S_TG), 32 * 160))
        A.I('s_add_u32 %s, %s, %d' % (s(S_TMP), s(S_TMP), A_VS))
        A.I('v_mul_u32_u24 %s, 160, %s' % (v(AD), v(V_N)))
        A.I('v_lshl_add_u32 %s, %s, 3, %s' % (v(AD), v(V_HI), v(AD)))
        A.I('v_add_u32 %s, %s, %s' % (v(AD), s(S_TMP), v(AD)))
        if grp == 0:
            vq = [(2, 2, 0), (2, 3, 8)] + [(3, j, 16 + 8 * j) for j in range(4)]
            st2 = [(0, 0), (0, 8), (1, 0), (1, 8), (2, 0)]
        else:
            vq = [(0, j, 48 + 8 * j) for j in range(4)]
            st2 = [(1, 0), (1, 8), (2, 0), (2, 8), (3, 0)]
        BOS = [24, 28, 32, 36, 248]
        for (ti, j, f0) in vq:
            A.wait(lg=('cs', ti))
            ac = ACC + 16 * ti + 4 * j
            for r_ in range(0, 4, 2):
                A.I('v_pk_fma_f32 %s, %s, %s, %s op_sel_hi:[1,0,1]' % (v(ac + r_, 2), v(CSR + 16 * ti + 4 * j + r_, 2), v(NM, 2), v(ac + r_, 2)))
            for r_ in range(0, 4, 2):
                A.I('v_pk_mul_f32 %s, %s, %s op_sel:[0,1] op_sel_hi:[1,1]' % (v(ac + r_, 2), v(ac + r_, 2), v(NM, 2)))
            A.I('v_cvt_pk_bf16_f32 %s, %s, %s' % (v(ac), v(ac), v(ac + 1)))
            A.I('v_cvt_pk_bf16_f32 %s, %s, %s' % (v(ac + 1), v(ac + 2), v(ac + 3)))
            A.I('ds_write_b64 %s, %s offset:%d' % (v(AD), v(ac, 2), f0 * 2), lg='vs')
        for s2, (ti, r0) in enumerate(st2):
            A.wait(lg=('cs', ti))
            ac = ACC + 16 * ti + r0
            for r_ in range(0, 8, 2):
                A.I('v_pk_fma_f32 %s, %s, %s, %s op_sel_hi:[1,0,1]' % (v(ac + r_, 2), v(CSR + 16 * ti + r0 + r_, 2), v(NM, 2), v(ac + r_, 2)))
            for q in range(4):
                A.I('v_cvt_pk_bf16_f32 %s, %s, %s' % (v(BOS[s2] + q), v(ac + 2 * q), v(ac + 2 * q + 1)))
        A.wait(lg='mf')
        P = 104
        for s2 in range(5):
            for u in range(3):
                d = v(P + 16 * u, 16)
                A.I('v_mfma_f32_32x32x16_bf16 %s, %s, %s, %s' % (d, v(MF + (u * 5 + s2) * 4, 4), v(BOS[s2], 4), d if s2 else '0'))
        EP, EM = 40, 60
        calls = [0]
        if grp == 0:
            A.I('s_mul_i32 %s, %s, %d' % (s(S_TMP), s(S_TG), 32 * PHIK_ROW))
            A.I('s_add_u32 %s, %s, %d' % (s(S_TMP), s(S_TMP), A_PHIK))
            A.I('v_mul_u32_u24 %s, %d, %s' % (v(AD + 2), PHIK_ROW, v(V_N)))
            A.I('v_mul_u32_u24 %s, 160, %s' % (v(AD + 3), v(V_HI)))
            A.I('v_add3_u32 %s, %s, %s, %s' % (v(AD + 2), s(S_TMP), v(AD + 2), v(AD + 3)))
            for a_ in range(2):
                softmax2(A, P + 20 * a_, EP, EM, X, SCL, lambda: None)
                for j in range(5):
                    A.I('ds_write_b128 %s, %s offset:%d' % (v(AD + 2), v(P + 20 * a_ + 4 * j, 4), a_ * 80 + j * 16), lg='pk')
            A.stamp(8)
            KA, KB = AD + 4, AD + 5
            trbase(A, KA, PHIK_ROW, AD + 6, AD + 7)
            A.I('s_mul_i32 %s, %s, 80' % (s(S_TMP), s(S_TG)))
            A.I('s_add_u32 %s, %s, %d' % (s(S_TMP), s(S_TMP), A_PHIK))
            A.I('v_add_u32 %s, %s, %s' % (v(KA), s(S_TMP), v(KA)))
            trbase(A, KB, 160, AD + 6, AD + 7)
            A.I('s_mul_i32 %s, %s, 40' % (s(S_TMP), s(S_TG)))
            A.I('s_add_u32 %s, %s, %d' % (s(S_TMP), s(S_TMP), A_VS))
            A.I('v_add_u32 %s, %s, %s' % (v(KB), s(S_TMP), v(KB)))
            A.I('v_cmp_eq_u32 %s, 4, %s' % (s(S_MASK, 2), v(V_T)))
            A.wait(lg=['pk', 'vs'])
            A.I('v_mov_b32 %s, %d' % (v(AD + 6), A_FLAG))
            A.I('v_mov_b32 %s, 1' % v(AD + 7))
            A.I('s_mov_b64 exec, 1')
            A.I('ds_add_u32 %s, %s' % (v(AD + 6), v(AD + 7)), lg='fl')
            A.I('s_mov_b64 exec, -1')
            A.label('L_kvflag')
            A.I('ds_read_b32 %s, %s' % (v(AD + 7), v(AD + 6)), lg='fl')
            A.wait_all(lg=True)
            A.I('v_readfirstlane_b32 %s, %s' % (s(S_TMP), v(AD + 7)))
            A.I('s_cmp_ge_u32 %s, 8' % s(S_TMP))
            A.I('s_cbranch_scc0 L_kvflag')
            FR = 104
            for ks in range(4):
                for i in range(5):
                    r0 = FR + (ks * 5 + i) * 4
                    for h in range(2):
                        if i < 3:
                            A.I('ds_read_b64_tr_b16 %s, %s offset:%d' % (v(r0 + 2 * h, 2), v(KA), (ks * 32 + 8 * h) * PHIK_ROW + i * 32), lg=('kv', ks))
                        else:
                            A.I('ds_read_b64_tr_b16 %s, %s offset:%d' % (v(r0 + 2 * h, 2), v(KB), (ks * 32 + 8 * h) * 160 + (i - 3) * 32), lg=('kv', ks))
            KD = 40
            for ks in range(4):
                A.wait(lg=('kv', ks))
                rb = FR + (ks * 5 + 4) * 4
                for j in range(4):
                    A.I('v_cndmask_b32 %s, %s, %s, %s' % (v(rb + j), v(rb + j), v(V_ONES), s(S_MASK, 2)))
                for dt in range(2):
                    for i in range(3):
                        d = v(KD + (dt * 3 + i) * 4, 4)
                        A.I('v_mfma_f32_16x16x32_bf16 %s, %s, %s, %s' % (d, v(FR + (ks * 5 + 3 + dt) * 4, 4), v(FR + (ks * 5 + i) * 4, 4), d if ks else '0'))
            A.I('s_lshl_b32 %s, %s, 2' % (s(S_TMP), s(S_FB)))
            A.I('s_add_u32 %s, %s, %s' % (s(S_TMP), s(S_TMP), s(S_TG)))
            A.I('s_mul_i32 %s, %s, 3360' % (s(S_TMP), s(S_TMP)))
            A.I('s_add_u32 %s, %s, %d' % (s(S_TMP), s(S_TMP), KVA_OFF))
            A.I('s_mul_i32 %s, %s, 43' % (s(S_T3), s(S_TB)))
            A.I('s_lshr_b32 %s, %s, 7' % (s(S_T3), s(S_T3)))
            A.I('s_mul_i32 %s, %s, 3' % (s(S_T3), s(S_T3)))
            A.I('s_sub_u32 %s, %s, %s' % (s(S_T3), s(S_TB), s(S_T3)))
            A.I('s_mul_i32 %s, %s, %d' % (s(S_T3), s(S_T3), KVA_REP))
            A.I('s_add_u32 %s, %s, %s' % (s(S_TMP), s(S_TMP), s(S_T3)))
            A.I('s_lshl_b32 %s, %s, 12' % (s(S_T3), s(S_TG)))
            A.I('s_add_u32 %s, %s, %d' % (s(S_T3), s(S_T3), A_VS + 128 * 160))
            A.I('v_mul_u32_u24 %s, 640, %s' % (v(AD), v(V_G)))
            A.I('v_lshl_add_u32 %s, %s, 2, %s' % (v(AD), v(V_T), v(AD)))
            A.I('v_add_u32 %s, %s, %s' % (v(AD), s(S_T3), v(AD)))
            for dt in range(2):
                for i in range(3):
                    for r_ in range(4):
                        lo, hi_ = 0xffffffff, 0xffffffff
                        if dt == 1:
                            hi_ = 0
                            lo = 0xffffffff if r_ == 0 else 0xffff
                        if i == 2:
                            lo &= 0x00ff00ff
                            hi_ &= 0x00ff00ff
                        A.I('s_mov_b32 exec_lo, 0x%x' % lo)
                        A.I('s_mov_b32 exec_hi, 0x%x' % hi_)
                        A.I('ds_write_b32 %s, %s offset:%d' % (v(AD), v(KD + (dt * 3 + i) * 4 + r_), (16 * dt + r_) * 160 + i * 64), lg='rp')
            A.I('s_mov_b64 exec, -1')
            A.I('v_lshlrev_b32 %s, 2, %s' % (v(AD + 1), v(V_LANE)))
            A.I('v_add_u32 %s, %s, %s' % (v(AD), s(S_T3), v(AD + 1)))
            for q in range(14):
                A.I('ds_read_b32 %s, %s offset:%d' % (v(104 + q), v(AD), q * 256), lg=('rq', q))
            for q in range(14):
                A.wait(lg=('rq', q))
                if q == 13:
                    A.I('s_mov_b64 exec, 0xff')
                A.I('buffer_atomic_add_f32 %s, %s, %s, %s offen offset:%d' % (v(104 + q), v(AD + 1), s(SRD_WS, 4), s(S_TMP), q * 256), vm='kvp')
            A.I('s_mov_b64 exec, -1')
            A.stamp(9)
        else:
            A.wait(lg='vs')
            A.I('v_mov_b32 %s, %d' % (v(AD + 6), A_FLAG))
            A.I('v_mov_b32 %s, 1' % v(AD + 7))
            A.I('s_mov_b64 exec, 1')
            A.I('ds_add_u32 %s, %s' % (v(AD + 6), v(AD + 7)), lg='fl')
            A.I('s_mov_b64 exec, -1')
            A.I('s_lshl_b32 %s, %s, 3' % (s(S_TMP), s(S_TB)))
            A.I('s_lshl_b32 %s, %s, 1' % (s(S_T3), s(S_TG)))
            A.I('s_add_u32 %s, %s, %s' % (s(S_TMP), s(S_TMP), s(S_T3)))
            A.I('s_lshl_b32 %s, %s, 3' % (s(S_TMP), s(S_TMP)))
            A.I('s_add_u32 %s, %s, %s' % (s(S_TMP), s(S_TMP), s(S_FB)))
            A.I('s_mul_i32 %s, %s, 5120' % (s(S_TMP), s(S_TMP)))
            A.I('s_add_u32 %s, %s, %d' % (s(S_TMP), s(S_TMP), PHIQ_OFF))
            A.I('s_add_u32 %s, %s, 4096' % (s(S_T3), s(S_TMP)))
            A.I('v_and_b32 %s, 1, %s' % (v(AD + 2), v(V_G)))
            A.I('v_mul_u32_u24 %s, %d, %s' % (v(AD + 2), 8 * 5120, v(AD + 2)))
            A.I('v_lshl_add_u32 %s, %s, 4, %s' % (v(AD + 2), v(V_T), v(AD + 2)))
            A.I('v_lshl_add_u32 %s, %s, 9, %s' % (v(AD + 3), v(V_HI), v(AD + 2)))
            A.I('v_lshl_add_u32 %s, %s, 11, %s' % (v(AD + 2), v(V_HI), v(AD + 2)))
            def syncB():
                calls[0] += 1
                pass
            for a_ in range(2):
                softmax2(A, P + 20 * a_, EP, EM, X, SCL, syncB)
                for j in range(4):
                    A.I('buffer_store_dwordx4 %s, %s, %s, %s offen offset:%d' % (v(P + 20 * a_ + 4 * j, 4), v(AD + 2), s(SRD_WS, 4), s(S_TMP), a_ * 1024 + j * 256) + ' sc1', vm='st')
                A.I('buffer_store_dwordx4 %s, %s, %s, %s offen offset:%d' % (v(P + 20 * a_ + 16, 4), v(AD + 3), s(SRD_WS, 4), s(S_T3), a_ * 256) + ' sc1', vm='st')
        A.stamp(15)
        A.stamp_flush(18, S_W, 8)
        A.I('s_waitcnt vmcnt(0)')
        A.I('s_endpgm')
```

```python
from asmlib import *
from k1 import ACT_OFF, PHIQ_OFF, KVA_OFF, KVA_REP, NREP, WR_OFF, WR_CB, O_OFF, CNT_OFF, WS_END, LOG2E, BIG, srd, divmod_const

SRD_X, SRD_DBG, SRD_OUT, SRD_WS = 20, 24, 32, 36
S_RB, S_CB, S_W, S_TMP, S_T2, S_T3, S_LOG2E, S_M0B = 40, 41, 42, 43, 44, 45, 46, 47
S_B = 48
S_WR = 57
S_H = 58
S_WO, S_BO, S_N0 = 59, 60, 61
V_LANE, V_T, V_G = 1, 2, 3
V_L16 = 4
V_RB = 10
V_L4 = 5
V_TMP = 11
SLOT = 5120
REG = 20480
K2_LDS = 8 * REG
NSLOT = 4
ACC, WIN, BB = 24, 104, 144
NB = 7


def gen_k2(A):
    A.label('k2_kernel')
    A.I('s_cmp_ge_u32 s2, 256')
    A.I('s_cbranch_scc1 L_k2_end')
    A.I('s_load_dwordx2 s[4:5], s[0:1], 0')
    A.I('s_load_dwordx4 s[8:11], s[0:1], 64')
    A.I('s_load_dwordx2 s[12:13], s[0:1], 80')
    import os
    m2 = int(os.environ.get('MAP2', '1'))
    if m2 == 0:
        A.I('s_and_b32 %s, s2, 7' % s(S_RB))
        A.I('s_lshl_b32 %s, %s, 2' % (s(S_RB), s(S_RB)))
        A.I('s_bfe_u32 %s, s2, 0x20003' % s(S_TMP))
        A.I('s_add_u32 %s, %s, %s' % (s(S_RB), s(S_RB), s(S_TMP)))
        A.I('s_lshr_b32 %s, s2, 5' % s(S_CB))
    elif m2 == 1:
        A.I('s_bfe_u32 %s, s2, 0x20001' % s(S_RB))
        A.I('s_lshl_b32 %s, %s, 3' % (s(S_RB), s(S_RB)))
        A.I('s_bfe_u32 %s, s2, 0x30003' % s(S_TMP))
        A.I('s_add_u32 %s, %s, %s' % (s(S_RB), s(S_RB), s(S_TMP)))
        A.I('s_and_b32 %s, s2, 1' % s(S_CB))
        A.I('s_lshl_b32 %s, %s, 2' % (s(S_CB), s(S_CB)))
        A.I('s_lshr_b32 %s, s2, 6' % s(S_TMP))
        A.I('s_add_u32 %s, %s, %s' % (s(S_CB), s(S_CB), s(S_TMP)))
    elif m2 == 3:
        A.I('s_bfe_u32 %s, s2, 0x10002' % s(S_RB))
        A.I('s_lshl_b32 %s, %s, 4' % (s(S_RB), s(S_RB)))
        A.I('s_bfe_u32 %s, s2, 0x40003' % s(S_TMP))
        A.I('s_add_u32 %s, %s, %s' % (s(S_RB), s(S_RB), s(S_TMP)))
        A.I('s_and_b32 %s, s2, 3' % s(S_CB))
        A.I('s_lshl_b32 %s, %s, 1' % (s(S_CB), s(S_CB)))
        A.I('s_lshr_b32 %s, s2, 7' % s(S_TMP))
        A.I('s_add_u32 %s, %s, %s' % (s(S_CB), s(S_CB), s(S_TMP)))
    elif m2 == 2:
        A.I('s_lshr_b32 %s, s2, 3' % s(S_RB))
        A.I('s_and_b32 %s, s2, 7' % s(S_CB))
    A.I('v_and_b32 %s, 63, v0' % v(V_LANE))
    A.I('v_and_b32 %s, 15, v0' % v(V_T))
    A.I('v_bfe_u32 %s, v0, 4, 2' % v(V_G))
    A.I('v_lshrrev_b32 %s, 6, v0' % v(V_TMP))
    A.I('v_readfirstlane_b32 %s, %s' % (s(S_W), v(V_TMP)))
    A.I('s_mov_b32 %s, 0x%x' % (s(S_LOG2E), LOG2E))
    A.I('v_lshlrev_b32 %s, 4, %s' % (v(V_L16), v(V_LANE)))
    A.I('s_mul_i32 %s, %s, %d' % (s(S_M0B), s(S_W), REG))
    A.I('s_mov_b32 %s, %s' % (s(S_T2), s(S_W)))
    A.I('s_cmp_eq_u32 %s, 6' % s(S_W))
    A.I('s_cselect_b32 %s, 54, %s' % (s(S_T2), s(S_T2)))
    A.I('s_cmp_eq_u32 %s, 7' % s(S_W))
    A.I('s_cselect_b32 %s, 64, %s' % (s(S_T2), s(S_T2)))
    A.I('s_mul_i32 %s, %s, %d' % (s(S_WR), s(S_CB), WR_CB))
    A.I('s_mul_i32 %s, %s, %d' % (s(S_TMP), s(S_T2), SLOT))
    A.I('s_add_u32 %s, %s, %s' % (s(S_WR), s(S_WR), s(S_TMP)))
    A.I('s_add_u32 %s, %s, %d' % (s(S_WR), s(S_WR), WR_OFF))
    t = [V_TMP + i for i in range(10)]
    A.I('v_lshrrev_b32 %s, 2, %s' % (v(t[0]), v(V_LANE)))
    A.I('v_mul_u32_u24 %s, 160, %s' % (v(t[0]), v(t[0])))
    A.I('v_and_b32 %s, 3, %s' % (v(t[1]), v(V_LANE)))
    A.I('v_lshl_add_u32 %s, %s, 3, %s' % (v(t[0]), v(t[1]), v(t[0])))
    A.I('v_add_u32 %s, %s, %s' % (v(V_RB), s(S_M0B), v(t[0])))
    A.I('s_waitcnt lgkmcnt(0)')
    if A.stamps_on:
        for i in range(16):
            A.I('s_mov_b32 s%d, 0' % (64 + i))
    A.stamp(0)
    srd(A, SRD_WS, 12, WS_END)

    stride = [6]

    nstage = [9]

    def rot_init():
        if os.environ.get('ROT2', '0') == '0':
            A.I('s_mov_b32 %s, 0' % s(S_WO))
            A.I('s_mov_b32 %s, 0' % s(S_BO))
            return
        A.I('s_and_b32 %s, %s, 7' % (s(S_N0), s(S_RB)))
        A.I('s_and_b32 %s, %s, 3' % (s(S_TMP), s(S_CB)))
        A.I('s_lshl_b32 %s, %s, 1' % (s(S_TMP), s(S_TMP)))
        A.I('s_add_u32 %s, %s, %s' % (s(S_N0), s(S_N0), s(S_TMP)))
        A.I('s_cmp_ge_u32 %s, %d' % (s(S_N0), nstage[0]))
        A.I('s_cselect_b32 %s, %d, 0' % (s(S_TMP), nstage[0]))
        A.I('s_sub_u32 %s, %s, %s' % (s(S_N0), s(S_N0), s(S_TMP)))
        A.I('s_mul_i32 %s, %s, %d' % (s(S_WO), s(S_N0), SLOT * stride[0]))
        A.I('s_mul_i32 %s, %s, %d' % (s(S_BO), s(S_N0), 1024 * stride[0]))

    def rot_step(reg, unit):
        A.I('s_add_u32 %s, %s, %d' % (s(reg), s(reg), unit * stride[0]))
        A.I('s_cmp_ge_u32 %s, %d' % (s(reg), unit * stride[0] * nstage[0]))
        A.I('s_cselect_b32 %s, 0, %s' % (s(reg), s(reg)))

    def stage_off(p, unit, dst, base):
        if stride[0] == 1:
            A.I('s_add_u32 %s, %s, %d' % (s(dst), s(base), p * unit))
        elif p < 7:
            if os.environ.get('ROT2', '0') == '1':
                A.I('s_add_u32 %s, %s, %d' % (s(dst), s(S_WO), p))
                A.I('s_cmp_ge_u32 %s, 7' % s(dst))
                A.I('s_cselect_b32 %s, 7, 0' % s(S_BO))
                A.I('s_sub_u32 %s, %s, %s' % (s(dst), s(dst), s(S_BO)))
                A.I('s_mul_i32 %s, %s, %d' % (s(dst), s(dst), 6 * unit))
                A.I('s_add_u32 %s, %s, %s' % (s(dst), s(dst), s(base)))
            else:
                A.I('s_add_u32 %s, %s, %d' % (s(dst), s(base), p * 6 * unit))
        else:
            A.I('s_mul_i32 %s, %s, %d' % (s(dst), s(S_N0), unit))
            A.I('s_add_u32 %s, %s, %s' % (s(dst), s(dst), s(base)))
            A.I('s_add_u32 %s, %s, %d' % (s(dst), s(dst), (42 + 4 * (p - 7)) * unit))

    def dma_w(p):
        slot = p % NSLOT
        stage_off(p, SLOT, S_TMP, S_WR)
        A.I('s_add_u32 m0, %s, %d' % (s(S_M0B), slot * SLOT))
        for q in range(4):
            A.I('buffer_load_dwordx4 %s, %s, %s offen offset:%d lds' % (v(V_L16), s(SRD_WS, 4), s(S_TMP), q * 1024), vm=('w', p))
        A.I('s_add_u32 %s, %s, 4096' % (s(S_TMP), s(S_TMP)))
        A.I('s_add_u32 m0, %s, %d' % (s(S_M0B), slot * SLOT + 4096))
        A.I('buffer_load_dwordx4 %s, %s, %s offen lds' % (v(V_L16), s(SRD_WS, 4), s(S_TMP)), vm=('w', p))

    def rd_frags(p):
        A.wait(vm=('w', p))
        off = (p % NSLOT) * SLOT
        for ft in range(5):
            w = WIN + ((p % 2) * 5 + ft) * 4
            A.I('ds_read_b64_tr_b16 %s, %s offset:%d' % (v(w, 2), v(V_RB), off + ft * 32), lg=('w', p, ft))
            A.I('ds_read_b64_tr_b16 %s, %s offset:%d' % (v(w + 2, 2), v(V_RB), off + 16 * 160 + ft * 32), lg=('w', p, ft))

    def ld_b(n, sc=''):
        b = BB + (n % NB) * 16
        for i in range(4):
            stage_off(n, 1024, S_TMP, S_B + i)
            if sc and n % 5 == 4:
                for j in range(4):
                    A.I('buffer_load_dword %s, %s, %s, %s offen offset:%d%s' % (v(b + 4 * i + j), v(V_L4), s(SRD_WS, 4), s(S_TMP), j * 256, sc), vm=('b', n))
            else:
                A.I('buffer_load_dwordx4 %s, %s, %s, %s offen%s' % (v(b + 4 * i, 4), v(V_L16), s(SRD_WS, 4), s(S_TMP), sc), vm=('b', n))

    def gemm(n, nb0, nw0, sc='', prios=None):
        nb, nw = nb0, nw0
        rd_frags(0)
        for p in range(n):
            if prios and p in prios:
                A.I('s_setprio %d' % prios[p])
            if p in (3, 6):
                A.stamp({3: 2, 6: 3}[p])
            if p + 1 < n:
                rd_frags(p + 1)
            la = int(os.environ.get('LA', '3')) if not sc else 3
            while nw < n and nw <= p + la and (nw < NSLOT or nw - NSLOT < p):
                dma_w(nw)
                nw += 1
            while nb < n and nb <= p + la and nb <= p + NB - 1:
                ld_b(nb, sc)
                nb += 1
            A.wait(vm=('b', p))
            b = BB + (p % NB) * 16
            for ft in range(5):
                A.wait(lg=('w', p, ft))
                w = WIN + ((p % 2) * 5 + ft) * 4
                for i in range(4):
                    d = v(ACC + (ft * 4 + i) * 4, 4)
                    A.I('v_mfma_f32_16x16x32_bf16 %s, %s, %s, %s' % (d, v(w, 4), v(b + 4 * i, 4), d if p else '0'))

    A.I('s_cmp_ge_u32 %s, 6' % s(S_W))
    A.I('s_cbranch_scc1 L_k2_att')
    sn = A.snap()
    A.I('s_setprio 2')
    A.I('s_cmp_ge_u32 %s, 4' % s(S_W))
    A.I('s_cselect_b32 %s, -2, 0' % s(S_N0))
    A.I('s_and_b32 %s, %s, 7' % (s(S_WO), s(S_RB)))
    A.I('s_and_b32 %s, %s, 3' % (s(S_TMP), s(S_CB)))
    A.I('s_lshl_b32 %s, %s, 1' % (s(S_TMP), s(S_TMP)))
    A.I('s_add_u32 %s, %s, %s' % (s(S_WO), s(S_WO), s(S_TMP)))
    for _ in range(2):
        A.I('s_cmp_ge_u32 %s, 7' % s(S_WO))
        A.I('s_cselect_b32 %s, 7, 0' % s(S_TMP))
        A.I('s_sub_u32 %s, %s, %s' % (s(S_WO), s(S_WO), s(S_TMP)))
    dma_w(0)
    for i in range(4):
        A.I('s_lshl_b32 %s, %s, 2' % (s(S_TMP), s(S_RB)))
        A.I('s_add_u32 %s, %s, %d' % (s(S_TMP), s(S_TMP), i))
        A.I('s_mul_i32 %s, %s, 54' % (s(S_TMP), s(S_TMP)))
        A.I('s_add_u32 %s, %s, %s' % (s(S_TMP), s(S_TMP), s(S_T2)))
        A.I('s_lshl_b32 %s, %s, 10' % (s(S_B + i), s(S_TMP)))
    ld_b(0)
    dma_w(1)
    ld_b(1)
    A.stamp(1)
    A.I('s_and_b32 %s, %s, 6' % (s(S_TMP), s(S_W)))
    A.I('s_cmp_eq_u32 %s, 2' % s(S_TMP))
    A.I('s_cbranch_scc1 L_k2_f7')
    sn7 = A.snap()
    gemm(10, 2, 2, prios={2: 1, 5: 0})
    A.I('s_branch L_k2_fin')
    A.restore(sn7)
    A.label('L_k2_f7')
    gemm(7, 2, 2, prios={3: 1})
    A.I('s_branch L_k2_fin')
    endF = A.snap()

    A.restore(sn)
    stride[0] = 1
    nstage[0] = 10
    A.label('L_k2_att')
    A.I('s_setprio 3')
    A.I('s_sub_u32 %s, %s, 6' % (s(S_H), s(S_W)))
    A.I('s_lshl_b32 %s, %s, 1' % (s(S_H), s(S_H)))
    PA, PB, KR, KVF, DT = 24, 56, 72, 136, 168
    for i in range(4):
        A.I('s_lshl_b32 %s, %s, 2' % (s(S_TMP), s(S_RB)))
        A.I('s_add_u32 %s, %s, %d' % (s(S_TMP), s(S_TMP), i))
        A.I('s_lshl_b32 %s, %s, 3' % (s(S_TMP), s(S_TMP)))
        A.I('s_add_u32 %s, %s, %s' % (s(S_TMP), s(S_TMP), s(S_CB)))
        A.I('s_mul_i32 %s, %s, 5120' % (s(S_TMP), s(S_TMP)))
        A.I('s_add_u32 %s, %s, %d' % (s(S_TMP), s(S_TMP), PHIQ_OFF))
        A.I('s_add_u32 %s, %s, 4096' % (s(S_T3), s(S_TMP)))
        A.I('buffer_load_dwordx4 %s, %s, %s, %s offen' % (v(PB + 4 * i, 4), v(V_L16), s(SRD_WS, 4), s(S_T3)), vm='ph')
        A.I('s_lshl_b32 %s, %s, 10' % (s(S_T3), s(S_H)))
        A.I('s_add_u32 %s, %s, %s' % (s(S_TMP), s(S_TMP), s(S_T3)))
        for e in range(2):
            A.I('buffer_load_dwordx4 %s, %s, %s, %s offen offset:%d' % (v(PA + 16 * e + 4 * i, 4), v(V_L16), s(SRD_WS, 4), s(S_TMP), e * 1024), vm='ph')
    KL = 0
    A.I('s_lshl_b32 %s, %s, 2' % (s(S_T3), s(S_CB)))
    A.I('s_add_u32 %s, %s, %s' % (s(S_T3), s(S_T3), s(S_H)))
    A.I('s_mul_i32 %s, %s, 3360' % (s(S_T3), s(S_T3)))
    for rp in range(NREP):
        A.I('s_add_u32 %s, %s, %d' % (s(S_TMP), s(S_T3), KVA_OFF + rp * KVA_REP))
        for q in range(7):
            if q % 4 == 0:
                A.I('s_add_u32 m0, %s, %d' % (s(S_M0B), rp * 6720 + q * 1024))
                if q:
                    A.I('s_add_u32 %s, %s, 4096' % (s(S_TMP), s(S_TMP)))
            if q == 6:
                A.I('s_mov_b32 exec_hi, 0xf')
            A.I('buffer_load_dwordx4 %s, %s, %s offen offset:%d lds' % (v(V_L16), s(SRD_WS, 4), s(S_TMP), (q % 4) * 1024), vm='kv')
        A.I('s_mov_b64 exec, -1')
    A.I('v_mul_u32_u24 %s, 160, %s' % (v(t[0]), v(V_T)))
    A.I('v_lshrrev_b32 %s, 2, %s' % (v(t[1]), v(V_T)))
    A.I('v_add_u32 %s, 16, %s' % (v(t[1]), v(t[1])))
    A.I('v_and_b32 %s, 3, %s' % (v(t[2]), v(V_T)))
    A.I('v_cmp_eq_u32 vcc, 0, %s' % v(t[2]))
    A.I('v_mov_b32 %s, 20' % v(t[2]))
    A.I('v_cndmask_b32 %s, %s, %s, vcc' % (v(t[1]), v(t[2]), v(t[1])))
    A.I('v_mul_u32_u24 %s, 160, %s' % (v(t[1]), v(t[1])))
    A.I('v_add_u32 %s, %s, %s' % (v(t[0]), s(S_M0B), v(t[0])))
    A.I('v_add_u32 %s, %s, %s' % (v(t[1]), s(S_M0B), v(t[1])))
    A.I('v_lshl_add_u32 %s, %s, 5, %s' % (v(t[2]), v(V_G), v(t[0])))
    A.I('v_lshl_add_u32 %s, %s, 5, %s' % (v(t[3]), v(V_G), v(t[1])))
    A.stamp(1)
    A.wait(vm='kv')
    for rp in range(NREP):
        dst = KR if rp == 0 else DT
        for e in range(2):
            for k, (areg, off) in enumerate(((t[2], 0), (t[0], 128), (t[3], 0), (t[1], 128))):
                for q in range(2):
                    A.I('ds_read_b128 %s, %s offset:%d' % (v(dst + 32 * e + 8 * k + 4 * q, 4), v(areg), rp * 6720 + e * 3360 + off + 16 * q), lg='kv')
        A.wait(lg='kv')
        if rp:
            for i in range(0, 64, 2):
                A.I('v_pk_add_f32 %s, %s, %s' % (v(KR + i, 2), v(KR + i, 2), v(DT + i, 2)))
    for e in range(2):
        for k in range(4):
            for q in range(4):
                A.I('v_cvt_pk_bf16_f32 %s, %s, %s' % (v(KVF + 16 * e + 4 * k + q), v(KR + 32 * e + 8 * k + 2 * q), v(KR + 32 * e + 8 * k + 2 * q + 1)))
    for e in range(2):
        A.I('s_add_u32 %s, %s, %d' % (s(S_T3), s(S_H), e))
        A.I('v_cmp_eq_u32 vcc, %s, %s' % (s(S_T3), v(V_G)))
        for k in (1, 3):
            for q in range(4):
                A.I('v_cndmask_b32 %s, 0, %s, vcc' % (v(KVF + 16 * e + 4 * k + q), v(KVF + 16 * e + 4 * k + q)))
    A.wait(vm='ph')
    for e in range(2):
        for i in range(4):
            for tl in range(2):
                d = v(DT + 32 * e + i * 8 + tl * 4, 4)
                A.I('v_mfma_f32_16x16x32_bf16 %s, %s, %s, 0' % (d, v(KVF + 16 * e + 8 * tl, 4), v(PA + 16 * e + 4 * i, 4)))
        for i in range(4):
            for tl in range(2):
                d = v(DT + 32 * e + i * 8 + tl * 4, 4)
                A.I('v_mfma_f32_16x16x32_bf16 %s, %s, %s, %s' % (d, v(KVF + 16 * e + 8 * tl + 4, 4), v(PB + 4 * i, 4), d))
    A.I('s_lshl_b32 %s, %s, 2' % (s(S_TMP), s(S_CB)))
    A.I('s_add_u32 %s, %s, %s' % (s(S_TMP), s(S_TMP), s(S_H)))
    A.I('s_lshr_b32 %s, %s, 3' % (s(S_T2), s(S_TMP)))
    A.I('s_mul_i32 %s, %s, 5' % (s(S_T2), s(S_T2)))
    A.I('s_bfe_u32 %s, %s, 0x20001' % (s(S_TMP), s(S_TMP)))
    A.I('s_add_u32 %s, %s, %s' % (s(S_T3), s(S_T2), s(S_TMP)))
    A.I('s_lshl_b32 %s, %s, 10' % (s(S_T3), s(S_T3)))
    A.I('s_add_u32 %s, %s, 4' % (s(S_T2), s(S_T2)))
    A.I('s_lshl_b32 %s, %s, 10' % (s(S_T2), s(S_T2)))
    A.I('s_lshl_b32 %s, %s, 8' % (s(S_TMP), s(S_TMP)))
    A.I('s_add_u32 %s, %s, %s' % (s(S_T2), s(S_T2), s(S_TMP)))
    A.I('v_lshlrev_b32 %s, 2, %s' % (v(V_L4), v(V_LANE)))
    A.I('s_mul_i32 %s, %s, %d' % (s(S_TMP), s(S_RB), 4 * 20 * 1024))
    A.I('s_add_u32 %s, %s, %d' % (s(S_TMP), s(S_TMP), O_OFF))
    A.I('s_add_u32 %s, %s, %s' % (s(S_T3), s(S_T3), s(S_TMP)))
    A.I('s_add_u32 %s, %s, %s' % (s(S_T2), s(S_T2), s(S_TMP)))
    for e in range(2):
        for i in range(4):
            d = DT + 32 * e + i * 8
            A.I('v_add_f32 %s, 0x358637bd, %s' % (v(d + 5), v(d + 5)))
        for i in range(4):
            d = DT + 32 * e + i * 8
            A.I('v_rcp_f32 %s, %s' % (v(d + 5), v(d + 5)))
        for i in range(4):
            d = DT + 32 * e + i * 8
            for r_ in range(5):
                A.I('v_mul_f32 %s, %s, %s' % (v(d + r_), v(d + r_), v(d + 5)))
    OQ = 72
    for i in range(4):
        for e in range(2):
            d = DT + 32 * e + i * 8
            A.I('v_cvt_pk_bf16_f32 %s, %s, %s' % (v(OQ + 8 * i + 2 * e), v(d), v(d + 1)))
            A.I('v_cvt_pk_bf16_f32 %s, %s, %s' % (v(OQ + 8 * i + 2 * e + 1), v(d + 2), v(d + 3)))
        A.I('v_cvt_pk_bf16_f32 %s, %s, %s' % (v(OQ + 8 * i + 4), v(DT + i * 8 + 4), v(DT + 32 + i * 8 + 4)))
        A.I('buffer_store_dwordx4 %s, %s, %s, %s offen sc1' % (v(OQ + 8 * i, 4), v(V_L16), s(SRD_WS, 4), s(S_T3)), vm='ost')
        A.I('buffer_store_dword %s, %s, %s, %s offen sc1' % (v(OQ + 8 * i + 4), v(V_L4), s(SRD_WS, 4), s(S_T2)), vm='ost')
        A.I('s_add_u32 %s, %s, %d' % (s(S_T3), s(S_T3), 20 * 1024))
        A.I('s_add_u32 %s, %s, %d' % (s(S_T2), s(S_T2), 20 * 1024))
    for i in range(4):
        A.I('s_lshl_b32 %s, %s, 2' % (s(S_TMP), s(S_RB)))
        A.I('s_add_u32 %s, %s, %d' % (s(S_TMP), s(S_TMP), i))
        A.I('s_mul_i32 %s, %s, 20' % (s(S_TMP), s(S_TMP)))
        A.I('s_mul_i32 %s, %s, 5' % (s(S_T3), s(S_H)))
        A.I('s_add_u32 %s, %s, %s' % (s(S_TMP), s(S_TMP), s(S_T3)))
        A.I('s_lshl_b32 %s, %s, 10' % (s(S_TMP), s(S_TMP)))
        A.I('s_add_u32 %s, %s, %d' % (s(S_B + i), s(S_TMP), O_OFF))
    A.I('v_mov_b32 %s, 1' % v(t[0]))
    A.I('s_lshl_b32 %s, %s, 8' % (s(S_TMP), s(S_RB)))
    A.I('s_add_u32 %s, %s, %d' % (s(S_TMP), s(S_TMP), CNT_OFF))
    A.I('v_mov_b32 %s, %s' % (v(t[1]), s(S_TMP)))
    A.wait(vm='ost')
    A.I('s_mov_b64 exec, 1')
    A.I('buffer_atomic_add %s, %s, %s, 0 offen sc1' % (v(t[0]), v(t[1]), s(SRD_WS, 4)), vm='at')
    A.I('s_mov_b64 exec, -1')
    A.stamp(4)
    for p_ in range(4):
        dma_w(p_)
    A.I('s_setprio 0')
    A.label('L_k2_poll')
    A.I('s_sleep 4')
    A.I('buffer_load_dword %s, %s, %s, 0 offen sc1' % (v(t[0]), v(t[1]), s(SRD_WS, 4)), vm='poll')
    A.wait_all(vm=True)
    A.I('v_readfirstlane_b32 %s, %s' % (s(S_TMP), v(t[0])))
    A.I('s_cmp_ge_u32 %s, 16' % s(S_TMP))
    A.I('s_cbranch_scc0 L_k2_poll')
    A.I('s_setprio 3')
    A.stamp(5)
    A.label('L_k2_g')
    for n in range(4):
        ld_b(n, ' sc1')
    gemm(10, 4, 4, ' sc1', prios={4: 2, 7: 1})

    A.label('L_k2_fin')
    A.flush_hazards()
    A.wait_all(vm=True, lg=True)
    A.stamp(8)
    A.I('v_add_u32 %s, %s, %s' % (v(V_TMP + 1), s(S_M0B), v(V_L16)))
    for i in range(4):
        for k in range(5):
            A.I('ds_write_b128 %s, %s offset:%d' % (v(V_TMP + 1), v(ACC + (k * 4 + i) * 4, 4), i * 5120 + k * 1024), lg='ex')
    srd(A, SRD_X, 4, 2048 * 640 * 2)
    srd(A, SRD_OUT, 8, 2048 * 640 * 2)
    A.I('s_and_b32 %s, %s, 3' % (s(S_T2), s(S_W)))
    A.I('s_lshr_b32 %s, %s, 2' % (s(S_H), s(S_W)))
    A.I('s_mul_i32 %s, %s, 3' % (s(S_H), s(S_H)))
    A.I('s_lshl_b32 %s, %s, 6' % (s(S_TMP), s(S_RB)))
    A.I('s_lshl_b32 %s, %s, 4' % (s(S_T3), s(S_T2)))
    A.I('s_add_u32 %s, %s, %s' % (s(S_TMP), s(S_TMP), s(S_T3)))
    A.I('s_mul_i32 %s, %s, 1280' % (s(S_TMP), s(S_TMP)))
    A.I('s_mul_i32 %s, %s, 160' % (s(S_T3), s(S_CB)))
    A.I('s_add_u32 %s, %s, %s' % (s(S_T3), s(S_TMP), s(S_T3)))
    A.I('s_lshl_b32 %s, %s, 5' % (s(S_TMP), s(S_H)))
    A.I('s_add_u32 %s, %s, %s' % (s(S_T3), s(S_T3), s(S_TMP)))
    VO = V_TMP
    A.I('v_mul_u32_u24 %s, 1280, %s' % (v(VO), v(V_T)))
    A.I('v_lshl_add_u32 %s, %s, 3, %s' % (v(VO), v(V_G), v(VO)))
    A.I('v_mov_b32 %s, 0x%x' % (v(V_TMP + 3), BIG))
    A.I('s_cmp_lt_u32 %s, 4' % s(S_W))
    A.I('s_cselect_b64 vcc, -1, 0')
    A.I('v_cndmask_b32 %s, %s, %s, vcc' % (v(V_TMP + 3), v(V_TMP + 3), v(VO)))
    XR = 104
    for u in range(3):
        A.I('buffer_load_dwordx2 %s, %s, %s, %s offen offset:%d' % (v(XR + 2 * u, 2), v(VO if u < 2 else V_TMP + 3), s(SRD_X, 4), s(S_T3), u * 32), vm='x')
    A.I('s_mul_i32 %s, %s, 5120' % (s(S_TMP), s(S_T2)))
    A.I('s_lshl_b32 %s, %s, 10' % (s(S_H), s(S_H)))
    A.I('s_add_u32 %s, %s, %s' % (s(S_TMP), s(S_TMP), s(S_H)))
    A.I('v_add_u32 %s, %s, %s' % (v(V_TMP + 2), s(S_TMP), v(V_L16)))
    A.I('v_add_u32 %s, %d, %s' % (v(V_TMP + 4), 3 * REG, v(V_TMP + 2)))
    A.I('v_add_u32 %s, %d, %s' % (v(V_TMP + 5), 6 * REG, v(V_TMP + 2)))
    A.wait(lg='ex')
    A.stamp(9)
    A.I('s_barrier')
    R = 112
    for u in range(3):
        for w_ in range(8):
            A.I('ds_read_b128 %s, %s offset:%d' % (v(R + (u * 8 + w_) * 4, 4), v((V_TMP + 2, V_TMP + 4, V_TMP + 5)[w_ // 3]), (w_ % 3) * REG + u * 1024), lg=('r', u))
    A.wait(vm='x')
    for u in range(3):
        A.wait(lg=('r', u))
        g_ = R + u * 32
        for r_ in range(4):
            A.I('v_add_f32 %s, %s, %s' % (v(g_ + r_), v(g_ + r_), v(g_ + 4 + r_)))
            A.I('v_add_f32 %s, %s, %s' % (v(g_ + 8 + r_), v(g_ + 8 + r_), v(g_ + 12 + r_)))
            A.I('v_add_f32 %s, %s, %s' % (v(g_ + 16 + r_), v(g_ + 16 + r_), v(g_ + 20 + r_)))
            A.I('v_add_f32 %s, %s, %s' % (v(g_ + 24 + r_), v(g_ + 24 + r_), v(g_ + 28 + r_)))
        for r_ in range(4):
            A.I('v_add3_f32 %s, %s, %s, %s' % (v(g_ + r_), v(g_ + r_), v(g_ + 8 + r_), v(g_ + 16 + r_)) if False else 'v_add_f32 %s, %s, %s' % (v(g_ + r_), v(g_ + r_), v(g_ + 8 + r_)))
        for r_ in range(4):
            A.I('v_add_f32 %s, %s, %s' % (v(g_ + r_), v(g_ + r_), v(g_ + 16 + r_)))
        e = g_ + 4
        for r_ in range(4):
            A.I('v_mul_f32 %s, %s, %s' % (v(e + r_), s(S_LOG2E), v(g_ + r_)))
        for r_ in range(4):
            A.I('v_exp_f32 %s, -%s' % (v(e + r_), v(e + r_)))
        for r_ in range(4):
            A.I('v_add_f32 %s, 1.0, %s' % (v(e + r_), v(e + r_)))
        for r_ in range(4):
            A.I('v_rcp_f32 %s, %s' % (v(e + r_), v(e + r_)))
        for r_ in range(4):
            A.I('v_mul_f32 %s, %s, %s' % (v(e + r_), v(e + r_), v(g_ + r_)))
        for h in range(2):
            A.I('v_lshlrev_b32 %s, 16, %s' % (v(e + 4 + 2 * h), v(XR + 2 * u + h)))
            A.I('v_and_b32 %s, 0xffff0000, %s' % (v(e + 5 + 2 * h), v(XR + 2 * u + h)))
        for r_ in range(4):
            A.I('v_fma_f32 %s, %s, %s, %s' % (v(e + r_), v(e + r_), v(g_ + 24 + r_), v(e + 4 + r_)))
        A.I('v_cvt_pk_bf16_f32 %s, %s, %s' % (v(e), v(e), v(e + 1)))
        A.I('v_cvt_pk_bf16_f32 %s, %s, %s' % (v(e + 1), v(e + 2), v(e + 3)))
        A.I('buffer_store_dwordx2 %s, %s, %s, %s offen offset:%d' % (v(e, 2), v(VO if u < 2 else V_TMP + 3), s(SRD_OUT, 4), s(S_T3), u * 32), vm='st')
    A.stamp(15)
    A.STAMP_OFF = (32 << 20) + (1 << 19)
    A.stamp_flush(12, S_W, 8)
    A.label('L_k2_end')
    A.I('s_waitcnt vmcnt(0)')
    A.I('s_endpgm')
```

```python
import sys
sys.path.insert(0, 'gen')
from asmlib import *
import k1, k2

NAME = 'recurrent_scan__linear_kernel_hedgehog__dense_activation_mish__prompt'

def kd(name, nv, acc_off, ns):
    return '''.p2align 6
.amdhsa_kernel %s
  .amdhsa_next_free_vgpr %d
  .amdhsa_next_free_sgpr %d
  .amdhsa_accum_offset %d
  .amdhsa_group_segment_fixed_size 0
  .amdhsa_kernarg_size 88
  .amdhsa_user_sgpr_count 2
  .amdhsa_user_sgpr_kernarg_segment_ptr 1
  .amdhsa_system_sgpr_workgroup_id_x 1
.end_amdhsa_kernel
''' % (name, nv, ns, acc_off)

def main(out):
    import os
    Asm.stamps_on = os.environ.get('STAMP', '0') == '1'
    A1 = Asm(); k1.gen_k1(A1, int(os.environ.get('MAP', '1')))
    A2 = Asm(); k2.gen_k2(A2)
    lds1 = max(k1.F_LDS, k1.A_LDS)
    hdr = '''; Generated by my own generator scripts (gen/gen.py, k1.py, k2.py, asmlib.py); two launches.
; k1: x @ [wqkv | w1] (32x32x16 bf16 MFMA, LDS-DMA rings, LayerNorm applied algebraically: r*(acc - m*colsum)),
;     hedgehog feature maps, kv/z accumulation (fp32 atomics), mish, re-layout of w2/wo.
; k2: o = num/den per head group (hand-off between the 8 workgroups of a row block), act@w2 and o@wo, out = x + s*silu(g).
; @launch kernel=k1_kernel grid=(256,1,1) block=(512,1,1) lds=%d
; @launch kernel=k2_kernel grid=(256,1,1) block=(512,1,1) lds=%d
.amdgcn_target "amdgcn-amd-amdhsa--gfx950"
.text
''' % (lds1, k2.K2_LDS)
    txt = hdr
    for nm, A in (('k1_kernel', A1), ('k2_kernel', A2)):
        txt += '.globl %s\n.p2align 8\n.type %s,@function\n' % (nm, nm) + A.text()
    txt += '.section .rodata,"a"\n'
    txt += kd('k1_kernel', 256, 256, 102)
    txt += kd('k2_kernel', 256, 256, 102)
    open(out, 'w').write(txt)
    print('k1 instrs', A1.nins, 'maxv', A1.maxv, 'maxa', A1.maxa, 'maxs', A1.maxs)
    print('k2 instrs', A2.nins, 'maxv', A2.maxv, 'maxa', A2.maxa, 'maxs', A2.maxs)

if __name__ == '__main__':
    main(sys.argv[1] if len(sys.argv) > 1 else 'cdna_kernels/%s.s' % NAME)
```
